```python
import torch

def _softmax(x, axis=-1):
    return torch.softmax(x, dim=axis)
def _gelu(x):
    return torch.nn.functional.gelu(x, approximate="tanh")
def _silu(x):
    return torch.nn.functional.silu(x)
def _sigmoid(x):
    return torch.sigmoid(x)
def _layernorm(x, axis=-1, eps=1e-5):
    m = x.mean(dim=axis, keepdim=True)
    v = x.var(dim=axis, keepdim=True, unbiased=False)
    return (x - m) / torch.sqrt(v + eps)
def _scatter_add(tgt, idx, src, axis=0):
    return tgt.clone().index_add_(axis, idx, src)
def _segment_sum(src, seg, n):
    out = torch.zeros((n,) + src.shape[1:], dtype=src.dtype)
    return out.index_add_(0, seg, src)
def _pad(x, pw):
    flat = tuple(v for pair in reversed(pw) for v in pair)
    return torch.nn.functional.pad(x, flat)

kernel_name = 'parallel_sum__ssm_conv_s4__dense_activation_relu__prompt'

def setup_inputs():

    _w = (lambda a: (lambda t: t.to(torch.bfloat16) if t.is_floating_point() else t)(torch.as_tensor(a)))
    def _A_setup():
        B, L, D, N = 1, 2048, 448, 256
        A_re = -(lambda _x: torch.exp(torch.as_tensor(_x)))((lambda *s: torch.randn(*s, dtype=torch.bfloat16) * 6.4)(D, N))
        A_im = torch.pi * (lambda *s: torch.randn(*s, dtype=torch.bfloat16) * 0.1)(D, N)
        B_re = (lambda *s: torch.randn(*s, dtype=torch.bfloat16) * 0.2)(D, N)
        B_im = (lambda *s: torch.randn(*s, dtype=torch.bfloat16) * 0.2)(D, N)
        C_re = (lambda *s: torch.randn(*s, dtype=torch.bfloat16) * 0.2)(D, N)
        C_im = (lambda *s: torch.randn(*s, dtype=torch.bfloat16) * 0.2)(D, N)
        log_dt = (lambda *s: torch.randn(*s, dtype=torch.bfloat16) * 0.1)(D) * 0.5 - 4.0
        Dskip = (lambda *s: torch.randn(*s, dtype=torch.bfloat16) * 0.1)(D)
        return {
            "u": _w((lambda *s: torch.randn(*s, dtype=torch.bfloat16) * 0.05)(B, L, D)),
            "A_re": _w(A_re),
            "A_im": _w(A_im),
            "B_re": _w(B_re),
            "B_im": _w(B_im),
            "C_re": _w(C_re),
            "C_im": _w(C_im),
            "log_dt": _w(log_dt),
            "Dskip": _w(Dskip),
        }
    _A_in = _A_setup()

    def _B_setup():
        B, S, D, Dff = 1, 2048, 448, 1792
        return {
            "x": _w((lambda *s: torch.randn(*s, dtype=torch.bfloat16) * 0.05)(B, S, D)),
            "w1": _w((lambda *s: torch.randn(*s, dtype=torch.bfloat16) * 0.05)(D, Dff)),
            "w2": _w((lambda *s: torch.randn(*s, dtype=torch.bfloat16) * 0.05)(Dff, D)),
        }
    _B_in = _B_setup()

    return {
        "A_u": _A_in["u"],
        "A_A_re": _A_in["A_re"],
        "A_A_im": _A_in["A_im"],
        "A_B_re": _A_in["B_re"],
        "A_B_im": _A_in["B_im"],
        "A_C_re": _A_in["C_re"],
        "A_C_im": _A_in["C_im"],
        "A_log_dt": _A_in["log_dt"],
        "A_Dskip": _A_in["Dskip"],
        "B_x": _B_in["x"],
        "B_w1": _B_in["w1"],
        "B_w2": _B_in["w2"],
    }

def reference(A_u, A_A_re, A_A_im, A_B_re, A_B_im, A_C_re, A_C_im, A_log_dt, A_Dskip, B_x, B_w1, B_w2):
    def _A_ref(u, A_re, A_im, B_re, B_im, C_re, C_im, log_dt, Dskip):
        Bsz, L, D = u.shape
        dt = torch.exp(log_dt)[:, None]
        A = A_re + 1j * A_im
        Bc = B_re + 1j * B_im
        Cc = C_re + 1j * C_im
        logdA = dt * A
        dB = dt * Bc
        l = (lambda x, dt: x.to(dt))(torch.arange(L), A_re.dtype)
        P = torch.exp(logdA[:, :, None] * l[None, None, :])
        K = torch.einsum("dn,dnl,dn->dl", Cc, P, dB).real
        L2 = 2 * L
        Kp = _pad(K, ((0, 0), (0, L)))
        up = (lambda x, *d: x.permute(*d))(u, 0, 2, 1)
        up = _pad(up, ((0, 0), (0, 0), (0, L)))
        Kf = (lambda x, axes=(-2,-1): torch.fft.rfft2(x.float(), dim=axes))(Kp[:, None, :], axes=(-2, -1))
        Uf = (lambda x, axes=(-2,-1): torch.fft.rfft2(x.float(), dim=axes))(up[:, :, None, :], axes=(-2, -1))
        Yf = Uf * Kf[None, :, :, :]
        y = (lambda x, s, axes=(-2,-1): torch.fft.irfft2(x, s=s, dim=axes).to(torch.bfloat16))(Yf, (1, L2), axes=(-2, -1))[:, :, 0, :L]
        y = (lambda x, *d: x.permute(*d))(y, 0, 2, 1) + u * Dskip[None, None, :]
        return y

    def _B_ref(x, w1, w2):
        h = torch.einsum("bsd,df->bsf", x, w1)
        zero = torch.zeros_like(h)
        h = torch.maximum(h, zero)
        return torch.einsum("bsf,fd->bsd", h, w2)

    x = A_u
    xn = _layernorm(x, axis=-1)
    return x + _A_ref(xn, A_A_re, A_A_im, A_B_re, A_B_im, A_C_re, A_C_im, A_log_dt, A_Dskip) + _B_ref(xn, B_w1, B_w2)
```

```python
import re

TRANS = ("v_exp_f32", "v_log_f32", "v_rcp_f32", "v_rsq_f32", "v_sqrt_f32", "v_sin_f32", "v_cos_f32")

def _regs(tok):
    tok = tok.strip()
    neg = tok.lstrip("-")
    if neg.startswith("abs(") or neg.startswith("|"):
        neg = neg.replace("abs(", "").replace(")", "").replace("|", "")
    m = re.fullmatch(r"([vsa])\[(\d+):(\d+)\]", neg)
    if m:
        return {f"{m.group(1)}{i}" for i in range(int(m.group(2)), int(m.group(3)) + 1)}
    m = re.fullmatch(r"([vsa])(\d+)", neg)
    if m:
        return {neg}
    if neg in ("vcc", "vcc_lo", "vcc_hi"):
        return {"vcc"}
    if neg in ("exec", "exec_lo", "exec_hi"):
        return {"exec"}
    if neg == "m0":
        return {"m0"}
    return set()

class Ins:
    def __init__(self, text):
        self.text = text
        t = text.split(";")[0].strip()
        self.is_label = t.endswith(":")
        self.op = t.split()[0] if t else ""
        rest = t[len(self.op):].strip()
        ops, depth, cur = [], 0, ""
        for ch in rest:
            if ch == "[": depth += 1
            if ch == "]": depth -= 1
            if ch == "," and depth == 0:
                ops.append(cur.strip()); cur = ""
            else:
                cur += ch
        if cur.strip(): ops.append(cur.strip())
        self.mods = ""
        if ops:
            parts = ops[-1].split(None, 1)
            if len(parts) == 2 and not parts[0].endswith(":"):
                ops[-1] = parts[0]; self.mods = parts[1]
        self.ops = ops
        op = self.op
        self.valu = op.startswith("v_") and not op.startswith("v_mfma")
        self.mfma = op.startswith("v_mfma")
        self.salu = op.startswith("s_")
        self.ds = op.startswith("ds_")
        self.vmem = op.startswith("buffer_") or op.startswith("global_")
        self.trans = any(op.startswith(x) for x in TRANS)
        self.dpp = ("_dpp" in op) or ("quad_perm" in self.mods) or ("row_" in self.mods) or ("wave_" in self.mods)
        self.W, self.R = set(), set()
        R = [_regs(o) for o in ops]
        if self.mfma:
            self.W = R[0]; self.A = R[1]; self.B = R[2]; self.C = R[3]; self.R = R[1] | R[2] | R[3]
            self.passes = 8 if "32x32" in op else 4
        elif self.valu:
            if op.startswith("v_cmp"):
                self.W = R[0]; self.R = set().union(*R[1:])
                if op.startswith("v_cmpx"): self.W |= {"exec"}
            elif op.startswith("v_readfirstlane") or op.startswith("v_readlane"):
                self.W = R[0]; self.R = set().union(*R[1:])
            elif op.startswith("v_permlane32_swap") or op.startswith("v_permlane16_swap"):
                self.W = R[0] | R[1]; self.R = R[0] | R[1]
            elif "_co_" in op:
                self.W = R[0] | R[1]; self.R = set().union(*R[2:])
            else:
                self.W = R[0]; self.R = set().union(*R[1:]) if len(R) > 1 else set()
                if op.startswith("v_fmac") or op.startswith("v_dot2c") or op.startswith("v_writelane") or "d16" in op:
                    self.R |= R[0]
                if op.startswith("v_cndmask") and len(ops) == 3: self.R |= {"vcc"}
                if self.dpp: self.R |= R[0]
        elif self.ds:
            if op.startswith("ds_read") or op.startswith("ds_swizzle") or op.startswith("ds_bpermute") or op.startswith("ds_permute"):
                self.W = R[0]; self.R = set().union(*R[1:])
            else:
                self.R = set().union(*R)
        elif self.vmem:
            lds = " lds" in (" " + self.mods) or op.startswith("global_load_lds")
            self.lds_dma = lds
            if ("load" in op and not lds):
                self.W = R[0]; self.R = set().union(*R[1:])
            elif "atomic" in op and "sc0" in self.mods:
                self.W = R[0]; self.R = set().union(*R)
            else:
                self.R = set().union(*R)
            if lds: self.R |= {"m0"}
        elif self.salu:
            if op.startswith(("s_cmp", "s_cbranch", "s_branch", "s_waitcnt", "s_barrier", "s_nop", "s_endpgm", "s_sleep", "s_setprio", "s_bitcmp")):
                self.R = set().union(*R) if R else set()
            else:
                self.W = R[0] if R else set(); self.R = set().union(*R[1:]) if len(R) > 1 else set()
                if "saveexec" in op: self.W |= {"exec"}; self.R |= {"exec"}
    def states(self):
        if self.op == "s_nop":
            return int(self.ops[0], 0) + 1
        if self.is_label or not self.op or self.op.startswith("."):
            return 0
        return 1

def required(p, c):
    n = 0
    vw = {r for r in p.W if r[0] in "va" and r not in ("vcc",)}
    sw = {r for r in p.W if r[0] == "s" or r == "vcc"}
    if p.valu:
        if c.mfma and (vw & c.R): n = max(n, 2)
        if "exec" in p.W and c.mfma: n = max(n, 4)
        if p.trans and c.valu and not c.trans and (vw & c.R): n = max(n, 1)
        if p.trans and c.mfma and (vw & c.R): n = max(n, 2)
        if c.valu and c.dpp and (vw & c.R): n = max(n, 2)
        if c.valu and c.op.startswith("v_permlane") and (vw & c.R): n = max(n, 2)
        if c.valu and c.op.startswith(("v_readfirstlane", "v_readlane")) and (vw & c.R): n = max(n, 1)
        if sw:
            if c.valu and (sw & c.R):
                n = max(n, 4 if c.op.startswith(("v_readlane", "v_writelane")) else 2)
            if c.vmem and (sw & c.R): n = max(n, 5)
            if c.salu and (sw & c.R): n = max(n, 1)
        if "exec" in p.W and c.valu and (c.dpp): n = max(n, 5)
        if "op_sel" in p.mods and c.valu and (vw & c.R) and not p.op.startswith("v_pk"): n = max(n, 1)
    if p.op.startswith("v_dot2"):
        if (vw & (c.R | c.W)) and not (c.op == p.op and vw == _regs(c.ops[0]) and not any(vw & _regs(o) for o in c.ops[1:3])):
            n = max(n, 3)
    if p.mfma:
        big = p.passes == 8
        if c.mfma:
            if p.W & c.C:
                if not (p.W == c.C and p.passes == c.passes): n = max(n, 10 if big else 6)
            if p.W & (c.A | c.B): n = max(n, 12 if big else 8)
        elif (c.valu or c.vmem or c.ds):
            if p.W & (c.R | c.W): n = max(n, 12 if big else 8)
            if c.valu and (p.C & c.W): n = max(n, 7 if big else 3)
    if p.salu and "m0" in p.W and c.vmem and getattr(c, "lds_dma", False): n = max(n, 1)
    if p.vmem and "store" in p.op and ("x4" in p.op or "x3" in p.op):
        data = _regs(p.ops[0]) if p.op.startswith("buffer") else _regs(p.ops[1])
        if (c.valu or c.mfma) and (data & c.W): n = max(n, 2)
        elif (data & c.W): n = max(n, 1)
    return n

def hazard_pass(lines, window=24):
    out = []
    res = []
    for text in lines:
        ins = Ins(text)
        if ins.op and not ins.is_label and not ins.op.startswith("."):
            need = 0; dist = 0
            for p in reversed(out[-window:]):
                r = required(p, ins)
                if r > dist: need = max(need, r - dist)
                dist += p.states()
                if dist >= 20: break
            while need > 0:
                k = min(need, 16)
                nop = Ins(f"  s_nop {k-1}")
                out.append(nop); res.append(nop.text); need -= k
        out.append(ins); res.append(text)
    return res

class Kern:
    def __init__(self):
        self.lines = []
    def __call__(self, s):
        for l in s.split("\n"):
            l = l.strip()
            if l: self.lines.append("  " + l)
    def label(self, name): self.lines.append(name + ":")
    def text(self): return "\n".join(hazard_pass(self.lines)) + "\n"
```

```python
import sys
from asmlib import Kern

NAME = "parallel_sum__ssm_conv_s4__dense_activation_relu__prompt"
L, D, DFF, NM = 2048, 448, 1792, 256

XT_OFF = 0x000000
RS_OFF = 0x1C0000
KR_OFF = 0x200000
HF_OFF = 0x400000
W2F_OFF = 0xC00000
ZT_OFF = 0xE00000
FL_OFF = 0x1000000
XT_SZ = 64 * 448 * 64
RS_SZ = 2048 * 4
KR_SZ = 448 * 4096
HF_SZ = 64 * 112 * 1024
W2F_SZ = 112 * 14 * 1024
ZT_SZ = 448 * 4096

def srd(k, d, lo, hi, size, off=0):
    if off:
        k(f"s_add_u32 s{d}, s{lo}, {off}")
        k(f"s_addc_u32 s{d+1}, s{hi}, 0")
    else:
        k(f"s_mov_b32 s{d}, s{lo}")
        k(f"s_mov_b32 s{d+1}, s{hi}")
    k(f"s_mov_b32 s{d+2}, {size}")
    k(f"s_mov_b32 s{d+3}, 0x00020000")

TS_OFF = 0x1100000
STAMP = False
EXP = []
G1MAP = '8x1'
def stamp(k, i):
    if not STAMP: return
    if i < 8: k(f"s_memtime s[{80+2*i}:{81+2*i}]")
    else: k(f"s_memrealtime s[{96+2*(i-8)}:{97+2*(i-8)}]")
def stamp_flush(k, kern_idx, n):
    if not STAMP: return
    k("s_memrealtime s[98:99]")
    k("s_waitcnt lgkmcnt(0)")
    k("s_load_dwordx2 s[76:77], s[0:1], 112")
    k("s_waitcnt lgkmcnt(0)")
    k(f"s_add_u32 s72, s76, {TS_OFF + kern_idx * 0x10000}")
    k("s_addc_u32 s73, s77, 0")
    k("s_mov_b32 s74, 0x10000")
    k("s_mov_b32 s75, 0x00020000")
    k("s_lshl_b32 s76, s2, 6")
    k("v_cmp_eq_u32 vcc, 0, v0")
    k("s_and_saveexec_b64 s[78:79], vcc")
    k("v_mov_b32 v1, s76")
    for i in range(n):
        k(f"v_mov_b32 v2, s{80+2*i}")
        k(f"buffer_store_dword v2, v1, s[72:75], 0 offen offset:{4*i}")
    k("v_mov_b32 v2, s96")
    k("buffer_store_dword v2, v1, s[72:75], 0 offen offset:56")
    k("v_mov_b32 v2, s98")
    k("buffer_store_dword v2, v1, s[72:75], 0 offen offset:60")
    k("s_mov_b64 exec, s[78:79]")

def vr(a, n=1):
    return f"v{a}" if n == 1 else f"v[{a}:{a+n-1}]"

def role_g1(k):
    NST = 14; NSL = 5
    stamp(k, 8); stamp(k, 0)
    k("s_load_dwordx2 s[4:5], s[0:1], 0")
    k("s_load_dwordx2 s[6:7], s[0:1], 80")
    k("s_load_dwordx2 s[8:9], s[0:1], 112")
    k("s_and_b32 s10, s2, 7")
    k("s_lshr_b32 s11, s2, 3")
    if G1MAP == "4x2":
        k("s_lshr_b32 s12, s10, 1")
        k("s_lshl_b32 s12, s12, 2")
        k("s_and_b32 s13, s11, 3")
        k("s_add_u32 s12, s12, s13")
        k("s_and_b32 s13, s10, 1")
        k("s_mul_i32 s13, s13, 7")
        k("s_lshr_b32 s14, s11, 2")
        k("s_add_u32 s13, s13, s14")
    else:
        k("s_lshl_b32 s12, s10, 1")
        k("s_and_b32 s13, s11, 1")
        k("s_add_u32 s12, s12, s13")
        k("s_lshr_b32 s13, s11, 1")
    k("v_and_b32 v1, 63, v0")
    k("v_lshrrev_b32 v2, 6, v0")
    k("v_readfirstlane_b32 s14, v2")
    k("s_and_b32 s15, s14, 1")
    k("s_lshr_b32 s28, s14, 1")
    k("s_lshl_b32 s29, s14, 11")
    VX0, VX1, VW0, VW1 = 4, 5, 6, 7
    k("s_lshl_b32 s30, s12, 7")
    k("s_lshl_b32 s31, s14, 5")
    k("s_add_u32 s30, s30, s31")
    k("v_lshrrev_b32 v3, 2, v1")
    k("v_add_u32 v3, s30, v3")
    k("v_mul_u32_u24 v3, 896, v3")
    k("v_lshrrev_b32 v8, 4, v1")
    k("v_xor_b32 v9, v1, v8")
    k("v_and_b32 v9, 3, v9")
    k(f"v_lshl_add_u32 v{VX0}, v9, 4, v3")
    k(f"v_add_u32 v{VX1}, 14336, v{VX0}")
    k("s_lshl_b32 s30, s14, 3")
    k("v_add_u32 v3, s30, v8")
    k("v_mul_u32_u24 v3, 3584, v3")
    k("v_lshlrev_b32 v9, 2, v8")
    k("v_xor_b32 v9, v1, v9")
    k("v_and_b32 v9, 15, v9")
    k("v_lshl_add_u32 v3, v9, 4, v3")
    k("s_lshl_b32 s30, s13, 8")
    k(f"v_add_u32 v{VW0}, s30, v3")
    k(f"v_add_u32 v{VW1}, 14336, v{VW0}")
    k("s_waitcnt lgkmcnt(0)")
    srd(k, 16, 4, 5, 2048 * 896)
    srd(k, 20, 6, 7, 448 * 3584)
    srd(k, 24, 8, 9, HF_SZ, HF_OFF)

    def dma(s):
        slot = s % NSL
        base = slot * 16384
        k(f"s_mov_b32 s32, {s * 114688}")
        k(f"s_mov_b32 s33, {s * 64}")
        k(f"s_add_u32 m0, s29, {base}")
        k(f"buffer_load_dwordx4 v{VW0}, s[20:23], s32 offen lds")
        k(f"s_add_u32 m0, s29, {base + 1024}")
        k(f"buffer_load_dwordx4 v{VW1}, s[20:23], s32 offen lds")
        k(f"s_add_u32 m0, s29, {base + 8192}")
        k(f"buffer_load_dwordx4 v{VX0}, s[16:19], s33 offen lds")
        k(f"s_add_u32 m0, s29, {base + 8192 + 1024}")
        k(f"buffer_load_dwordx4 v{VX1}, s[16:19], s33 offen lds")
    for s in range(4): dma(s)

    AA = [10, 11]; AAh = [12, 13]
    BB = [[14, 15], [16, 17]]; BBh = [[18, 19], [20, 21]]
    k("v_lshrrev_b32 v3, 5, v1")
    k("v_bfe_u32 v8, v1, 2, 2")
    k("v_lshl_add_u32 v3, v3, 3, v8")
    k("v_lshlrev_b32 v3, 8, v3")
    k("v_bfe_u32 v9, v1, 4, 1")
    k("v_lshlrev_b32 v9, 1, v9")
    k("v_bfe_u32 v22, v1, 1, 1")
    k("v_add_u32 v9, v9, v22")
    k("v_lshl_add_u32 v3, v9, 4, v3")
    k("v_and_b32 v22, 1, v1")
    k("v_lshl_add_u32 v3, v22, 3, v3")
    for ai in range(2):
        k(f"s_xor_b32 s30, s28, {ai}")
        k("s_lshl_b32 s31, s15, 1")
        k("s_add_u32 s30, s30, s31")
        k("v_xor_b32 v22, s30, v8")
        k(f"v_lshl_add_u32 v{AA[ai]}, v22, 6, v3")
        k(f"v_add_u32 v{AAh[ai]}, 65536, v{AA[ai]}")
    k("v_and_b32 v3, 31, v1")
    k("v_bfe_u32 v8, v1, 2, 2")
    k("v_lshrrev_b32 v9, 5, v1")
    k("v_xor_b32 v9, v9, v8")
    k("v_lshlrev_b32 v9, 4, v9")
    k("v_lshl_add_u32 v3, v3, 6, v9")
    for bi in range(2):
        k(f"s_xor_b32 s30, s15, {bi}")
        k("s_lshl_b32 s30, s30, 11")
        k("s_lshl_b32 s31, s28, 12")
        k("s_add_u32 s30, s30, s31")
        k("s_add_u32 s30, s30, 8192")
        k(f"v_add_u32 v{BB[0][bi]}, s30, v3")
        k(f"v_xor_b32 v{BB[1][bi]}, 32, v{BB[0][bi]}")
        k(f"v_add_u32 v{BBh[0][bi]}, 65536, v{BB[0][bi]}")
        k(f"v_add_u32 v{BBh[1][bi]}, 65536, v{BB[1][bi]}")
    SUMX, SUMW = 22, 23
    k(f"v_mov_b32 v{SUMX}, 0")
    k(f"v_mov_b32 v{SUMW}, 0")
    k("s_mov_b32 s34, 0x3f803f80")
    FR = [24, 40]
    ACC = 56
    for i in range(64): k(f"v_mov_b32 v{ACC + i}, 0")

    def reads(s, kap, fs):
        slot = s % NSL
        hi = slot >= 4
        sb = 0 if hi else slot * 16384
        for ai in range(2):
            a = (AAh if hi else AA)[ai]
            o = sb + kap * 4096
            k(f"ds_read_b64_tr_b16 {vr(fs + 4*ai, 2)}, v{a} offset:{o}")
            k(f"ds_read_b64_tr_b16 {vr(fs + 4*ai + 2, 2)}, v{a} offset:{o + 1024}")
        for bi in range(2):
            b = (BBh if hi else BB)[kap][bi]
            k(f"ds_read_b128 {vr(fs + 8 + 4*bi, 4)}, v{b} offset:{sb}")
    def mfmas(fs):
        for ai in range(2):
            for bi in range(2):
                c = ACC + (2*ai + bi) * 16
                k(f"v_mfma_f32_32x32x16_bf16 {vr(c,16)}, {vr(fs + 4*ai,4)}, {vr(fs + 8 + 4*bi,4)}, {vr(c,16)}")
            src = fs if ai == 0 else fs + 8
            dst = SUMW if ai == 0 else SUMX
            for j in range(4):
                k(f"v_dot2c_f32_bf16 v{dst}, s34, v{src + j}")

    stamp(k, 1)
    k("s_waitcnt vmcnt(12)")
    k("s_barrier")
    stamp(k, 2)
    reads(0, 0, FR[0])
    for s in range(NST):
        reads(s, 1, FR[1])
        k("s_waitcnt lgkmcnt(6)")
        mfmas(FR[0])
        if s + 1 < NST:
            outstanding_after = min(NST - 1, s + 3) - (s + 1)
            k(f"s_waitcnt vmcnt({4 * outstanding_after})")
            k("s_waitcnt lgkmcnt(0)")
            k("s_barrier")
            if s + 4 < NST: dma(s + 4)
            reads(s + 1, 0, FR[0])
            k("s_nop 0")
        else:
            k("s_waitcnt lgkmcnt(0)")
        mfmas(FR[1])
    stamp(k, 3)
    k("s_barrier")
    k(f"v_mov_b32 v24, v{SUMX}")
    k(f"v_mov_b32 v25, v{SUMW}")
    k(f"v_permlane32_swap_b32 v{SUMX}, v24")
    k(f"v_permlane32_swap_b32 v{SUMW}, v25")
    k(f"v_add_f32 v{SUMX}, v{SUMX}, v24")
    k(f"v_add_f32 v{SUMW}, v{SUMW}, v25")
    k(f"v_mul_f32 v{SUMX}, 0x3b124925, v{SUMX}")
    k(f"v_cvt_pk_bf16_f32 v{SUMX}, v{SUMX}, v{SUMX}")
    k(f"v_lshlrev_b32 v{SUMX}, 16, v{SUMX}")
    k("v_and_b32 v3, 31, v1")
    k("v_lshlrev_b32 v3, 2, v3")
    k("s_lshl_b32 s30, s28, 1\n s_add_u32 s30, s30, s15\n s_lshl_b32 s30, s30, 7")
    k("s_lshl_b32 s31, s15, 1\n s_add_u32 s31, s31, s28\n s_lshl_b32 s31, s31, 7\n s_add_u32 s31, s31, 512")
    k("v_add_u32 v8, s30, v3")
    k("v_add_u32 v9, s31, v3")
    k(f"ds_write_b32 v8, v{SUMX}")
    k(f"ds_write_b32 v9, v{SUMW}")
    k("s_waitcnt lgkmcnt(0)")
    k("s_barrier")
    for bi in range(2):
        k(f"s_xor_b32 s30, s15, {bi}\n s_lshl_b32 s31, s28, 1\n s_add_u32 s30, s30, s31\n s_lshl_b32 s30, s30, 7")
        k(f"v_add_u32 v8, s30, v3")
        k(f"ds_read_b32 v{26 + bi}, v8")
    k("v_lshrrev_b32 v9, 5, v1")
    k("v_lshlrev_b32 v9, 4, v9")
    for ai in range(2):
        k(f"s_xor_b32 s30, s28, {ai}\n s_lshl_b32 s31, s15, 1\n s_add_u32 s30, s30, s31\n s_lshl_b32 s30, s30, 7\n s_add_u32 s30, s30, 512")
        k(f"v_add_u32 v8, s30, v9")
        for q in range(4):
            k(f"ds_read_b128 {vr(124 + 16*ai + 4*q, 4)}, v8 offset:{32*q}")
    k("s_waitcnt lgkmcnt(0)")
    k("v_lshlrev_b32 v3, 4, v1")
    for ai in range(2):
        for bi in range(2):
            c = ACC + (2*ai + bi) * 16
            for r in range(16):
                k(f"v_fma_f32 v{c + r}, -v{26 + bi}, v{124 + 16*ai + r}, v{c + r}")
            for j in range(8):
                k(f"v_cvt_pk_bf16_f32 v{c + j}, v{c + 2*j}, v{c + 2*j + 1}")
            for j in range(8):
                k(f"v_pk_max_i16 v{c + j}, v{c + j}, 0")
            k(f"s_xor_b32 s30, s15, {bi}\n s_lshl_b32 s31, s28, 1\n s_add_u32 s30, s30, s31\n s_lshl_b32 s31, s12, 2\n s_add_u32 s30, s30, s31")
            k("s_mul_i32 s30, s30, 112")
            k(f"s_xor_b32 s31, s28, {ai}\n s_lshl_b32 s35, s15, 1\n s_add_u32 s31, s31, s35\n s_lshl_b32 s35, s13, 2\n s_add_u32 s31, s31, s35\n s_lshl_b32 s31, s31, 1")
            k("s_add_u32 s30, s30, s31\n s_lshl_b32 s30, s30, 10")
            k(f"buffer_store_dwordx4 {vr(c,4)}, v3, s[24:27], s30 offen")
            k(f"buffer_store_dwordx4 {vr(c+4,4)}, v3, s[24:27], s30 offen offset:1024")
    stamp(k, 4)
    if STAMP: k("s_waitcnt vmcnt(0)")
    stamp(k, 5)
    stamp_flush(k, 0, 6)
    k("s_endpgm")

def role_ln(k, idx_s):
    k("s_load_dwordx2 s[4:5], s[0:1], 0")
    k("s_load_dwordx2 s[6:7], s[0:1], 88")
    k("s_load_dwordx2 s[8:9], s[0:1], 112")
    k("v_and_b32 v1, 63, v0")
    k("v_lshrrev_b32 v2, 6, v0")
    k("v_readfirstlane_b32 s14, v2")
    k(f"s_lshl_b32 s30, s{idx_s}, 5")
    k("s_lshl_b32 s31, s14, 3")
    k("s_add_u32 s30, s30, s31")
    k("v_lshrrev_b32 v3, 3, v1")
    k("v_add_u32 v4, s30, v3")
    k("v_mul_u32_u24 v5, 896, v4")
    k("v_and_b32 v6, 7, v1")
    k("v_lshl_add_u32 v5, v6, 4, v5")
    k("s_waitcnt lgkmcnt(0)")
    srd(k, 16, 4, 5, 2048 * 896)
    srd(k, 20, 6, 7, 1792 * 896)
    srd(k, 24, 8, 9, XT_SZ, XT_OFF)
    srd(k, 36, 8, 9, RS_SZ, RS_OFF)
    srd(k, 40, 8, 9, W2F_SZ, W2F_OFF)
    X = 8
    for j in range(7):
        k(f"buffer_load_dwordx4 {vr(X + 4*j, 4)}, v5, s[16:19], 0 offen offset:{128*j}")
    W2L = 32768
    k(f"s_cmp_ge_u32 s{idx_s}, 56")
    k("s_cbranch_scc1 L_ln_now2")
    k(f"s_mul_i32 s30, s{idx_s}, 28672")
    k("s_mul_i32 s31, s14, 7168")
    k("s_add_u32 s30, s30, s31")
    k("v_lshlrev_b32 v7, 4, v1")
    for j in range(7):
        k(f"s_add_u32 m0, s31, {W2L + 1024*j}")
        k(f"s_add_u32 s32, s30, {1024*j}")
        k(f"buffer_load_dwordx4 v7, s[20:23], s32 offen lds")
    k("s_waitcnt vmcnt(7)")
    k("s_branch L_ln_cont")
    k.label("L_ln_now2")
    k("s_waitcnt vmcnt(0)")
    k.label("L_ln_cont")
    F = 40
    for j in range(28):
        k(f"v_lshlrev_b32 v{F + 2*j}, 16, v{X + j}")
        k(f"v_and_b32 v{F + 2*j + 1}, 0xffff0000, v{X + j}")
    def reduce8(reg, tmp):
        k(f"v_add_f32_dpp v{reg}, v{reg}, v{reg} quad_perm:[1,0,3,2] row_mask:0xf bank_mask:0xf")
        k(f"v_add_f32_dpp v{reg}, v{reg}, v{reg} quad_perm:[2,3,0,1] row_mask:0xf bank_mask:0xf")
        k(f"v_add_f32_dpp v{reg}, v{reg}, v{reg} row_half_mirror row_mask:0xf bank_mask:0xf")
    k(f"v_add_f32 v96, v{F}, v{F+1}")
    k(f"v_add_f32 v97, v{F+2}, v{F+3}")
    k(f"v_add_f32 v98, v{F+4}, v{F+5}")
    k(f"v_add_f32 v99, v{F+6}, v{F+7}")
    for j in range(8, 56):
        k(f"v_add_f32 v{96 + (j & 3)}, v{96 + (j & 3)}, v{F + j}")
    k("v_add_f32 v96, v96, v97\n v_add_f32 v98, v98, v99\n v_add_f32 v96, v96, v98")
    reduce8(96, 97)
    k("v_mul_f32 v96, 0x3b124925, v96")
    for j in range(4): k(f"v_mov_b32 v{100 + j}, 0")
    for j in range(56):
        k(f"v_sub_f32 v97, v{F + j}, v96") if False else None
    for j in range(0, 56, 4):
        for e in range(4):
            k(f"v_sub_f32 v{104 + e}, v{F + j + e}, v96")
        for e in range(4):
            k(f"v_fmac_f32 v{100 + e}, v{104 + e}, v{104 + e}")
    k("v_add_f32 v100, v100, v101\n v_add_f32 v102, v102, v103\n v_add_f32 v100, v100, v102")
    reduce8(100, 101)
    k("v_mul_f32 v100, 0x3b124925, v100")
    k("v_cvt_pk_bf16_f32 v100, v100, v96")
    k("v_and_b32 v96, 0xffff0000, v100")
    k("v_lshlrev_b32 v100, 16, v100")
    k("v_add_f32 v100, 0x3727c5ac, v100")
    k("v_cvt_pk_bf16_f32 v100, v100, v100")
    k("v_lshlrev_b32 v100, 16, v100")
    k("v_sqrt_f32 v100, v100")
    k("v_cvt_pk_bf16_f32 v100, v100, v100")
    k("v_lshlrev_b32 v100, 16, v100")
    k("v_rcp_f32 v101, v100")
    k("v_fma_f32 v102, -v100, v101, 2.0")
    k("v_mul_f32 v101, v101, v102")
    k("v_lshlrev_b32 v4, 2, v4")
    k("v_cmp_eq_u32 vcc, 0, v6")
    k("s_and_saveexec_b64 s[44:45], vcc")
    k("buffer_store_dword v101, v4, s[36:39], 0 offen")
    k("s_mov_b64 exec, s[44:45]")
    for j in range(28):
        a, b = F + 2*j, F + 2*j + 1
        k(f"v_sub_f32 v{a}, v{a}, v96")
        k(f"v_sub_f32 v{b}, v{b}, v96")
        k(f"v_cvt_pk_bf16_f32 v{X + j}, v{a}, v{b}")
        k(f"v_lshlrev_b32 v{a}, 16, v{X + j}")
        k(f"v_and_b32 v{b}, 0xffff0000, v{X + j}")
        k(f"v_mul_f32 v{a}, v{a}, v101")
        k(f"v_mul_f32 v{b}, v{b}, v101")
        k(f"v_cvt_pk_bf16_f32 v{X + j}, v{a}, v{b}")
    RSTR = 960
    k("s_lshl_b32 s30, s14, 3")
    k("v_add_u32 v3, s30, v3")
    k(f"v_mul_u32_u24 v3, {RSTR}, v3")
    k("v_lshl_add_u32 v3, v6, 4, v3")
    for j in range(7):
        k(f"ds_write_b128 v3, {vr(X + 4*j, 4)} offset:{128*j}")
    k("s_waitcnt lgkmcnt(0)")
    k("s_barrier")
    k("v_bfe_u32 v4, v1, 2, 2")
    k(f"v_mul_u32_u24 v4, {RSTR}, v4")
    k("v_lshrrev_b32 v5, 4, v1")
    k("v_lshlrev_b32 v5, 5, v5")
    k("v_add_u32 v4, v4, v5")
    k("v_and_b32 v5, 3, v1")
    k("v_lshl_add_u32 v4, v5, 3, v4")
    L2B = 61440
    k("s_lshl_b32 s33, s14, 12")
    k(f"s_add_u32 s33, s33, {L2B}")
    k("v_bfe_u32 v6, v1, 1, 2")
    k("v_lshlrev_b32 v7, 6, v1")
    k("v_add_u32 v7, s33, v7")
    for pi in range(4):
        k(f"v_xor_b32 v{100 + pi}, {pi}, v6")
        k(f"v_lshl_add_u32 v{100 + pi}, v{100 + pi}, 4, v7")
    k("v_lshlrev_b32 v104, 4, v1")
    k("v_add_u32 v104, s33, v104")
    k("v_bfe_u32 v105, v1, 3, 2")
    k("v_xor_b32 v105, v105, v1")
    k("v_and_b32 v105, 3, v105")
    k("v_lshrrev_b32 v106, 2, v1")
    k("v_lshlrev_b32 v106, 6, v106")
    k("v_lshl_add_u32 v105, v105, 4, v106")
    k(f"s_mul_i32 s34, s{idx_s}, {448*64}")
    for rnd in range(2):
        if rnd == 1:
            k("s_cmp_eq_u32 s14, 3")
            k("s_cbranch_scc1 L_ln_trdone")
        k(f"s_add_u32 s35, s14, {4*rnd}")
        k("s_lshl_b32 s46, s35, 7")
        k("v_add_u32 v107, s46, v4")
        for q in range(8):
            k(f"ds_read_b64_tr_b16 {vr(40 + 2*q, 2)}, v107 offset:{4*q*RSTR}")
        k("s_waitcnt lgkmcnt(0)")
        for pi in range(4):
            k(f"ds_write_b128 v{100 + pi}, {vr(40 + 4*pi, 4)}")
        k("s_waitcnt lgkmcnt(0)")
        for i2 in range(4):
            k(f"ds_read_b128 {vr(60 + 4*i2, 4)}, v104 offset:{1024*i2}")
        k("s_lshl_b32 s46, s35, 12")
        k("s_add_u32 s46, s46, s34")
        k("s_waitcnt lgkmcnt(0)")
        for i2 in range(4):
            k(f"buffer_store_dwordx4 {vr(60 + 4*i2, 4)}, v105, s[24:27], s46 offen offset:{1024*i2}")
    k.label("L_ln_trdone")
    k(f"s_cmp_ge_u32 s{idx_s}, 56")
    k("s_cbranch_scc1 L_ln_end")
    k("s_waitcnt vmcnt(0)")
    k("s_barrier")
    k("v_lshrrev_b32 v4, 5, v1")
    k("v_bfe_u32 v5, v1, 2, 2")
    k("v_lshl_add_u32 v4, v4, 2, v5")
    k("v_mul_u32_u24 v4, 896, v4")
    k("v_bfe_u32 v5, v1, 4, 1")
    k("v_lshl_add_u32 v4, v5, 5, v4")
    k("v_and_b32 v5, 3, v1")
    k("v_lshl_add_u32 v4, v5, 3, v4")
    k(f"v_add_u32 v4, {W2L}, v4")
    k("v_lshlrev_b32 v5, 4, v1")
    k("s_lshr_b32 s30, s14, 1")
    k("s_and_b32 s31, s14, 1")
    k("s_mul_i32 s31, s31, 7")
    k(f"s_mul_i32 s32, s30, {16*896}")
    k("s_lshl_b32 s33, s31, 6")
    k("s_add_u32 s32, s32, s33")
    k("v_add_u32 v4, s32, v4")
    k(f"s_lshl_b32 s33, s{idx_s}, 1\n s_add_u32 s33, s33, s30\n s_mul_i32 s33, s33, 14\n s_add_u32 s33, s33, s31\n s_lshl_b32 s33, s33, 10")
    for j in range(7):
        k(f"ds_read_b64_tr_b16 {vr(40 + 4*j, 2)}, v4 offset:{64*j}")
        k(f"ds_read_b64_tr_b16 {vr(40 + 4*j + 2, 2)}, v4 offset:{64*j + 8*896}")
    k("s_waitcnt lgkmcnt(0)")
    for j in range(7):
        k(f"s_add_u32 s35, s33, {1024*j}")
        k(f"buffer_store_dwordx4 {vr(40 + 4*j, 4)}, v5, s[40:43], s35 offen")
    k.label("L_ln_end")
    k("s_endpgm")

def role_g2(k, use_z=True):
    stamp(k, 8); stamp(k, 0)
    k("s_load_dwordx2 s[4:5], s[0:1], 0")
    k("s_load_dwordx2 s[6:7], s[0:1], 96")
    k("s_load_dwordx2 s[8:9], s[0:1], 112")
    k("s_and_b32 s10, s2, 7")
    k("s_lshr_b32 s11, s2, 3")
    k("s_and_b32 s12, s11, 3")
    k("s_lshl_b32 s13, s10, 2")
    k("s_add_u32 s12, s12, s13")
    k("s_lshr_b32 s13, s11, 2")
    k("s_mov_b32 s56, s12")
    k("s_mov_b32 s57, s13")
    if "sameT" in EXP: k("s_mov_b32 s56, 0")
    if "sameD" in EXP: k("s_mov_b32 s57, 0")
    k("v_and_b32 v1, 63, v0")
    k("v_lshrrev_b32 v2, 6, v0")
    k("v_readfirstlane_b32 s14, v2")
    k("v_lshlrev_b32 v3, 4, v1")
    k("s_waitcnt lgkmcnt(0)")
    srd(k, 16, 4, 5, 2048 * 896)
    srd(k, 20, 6, 7, 2048 * 896)
    srd(k, 24, 8, 9, HF_SZ, HF_OFF)
    srd(k, 52, 8, 9, W2F_SZ, W2F_OFF)
    srd(k, 36, 8, 9, RS_SZ, RS_OFF)
    srd(k, 40, 8, 9, ZT_SZ, ZT_OFF)
    k("s_mul_i32 s30, s14, 28")
    k("s_mul_i32 s31, s30, 14\n s_lshl_b32 s32, s57, 1\n s_add_u32 s31, s31, s32\n s_lshl_b32 s31, s31, 10")
    k("s_lshl_b32 s32, s56, 1\n s_mul_i32 s32, s32, 112\n s_add_u32 s32, s32, s30\n s_lshl_b32 s32, s32, 10")
    k(f"s_add_u32 s33, s32, {112*1024}")
    RED = 0
    ZL = 49152
    XL = 57344
    OL = 65536
    k("v_lshrrev_b32 v4, 3, v1")
    k("s_lshl_b32 s34, s14, 4")
    k("v_add_u32 v4, s34, v4")
    k("v_lshrrev_b32 v5, 1, v4")
    k("v_xor_b32 v5, v5, v1")
    k("v_and_b32 v5, 7, v5")
    k("s_lshl_b32 s34, s12, 6")
    k("v_add_u32 v6, s34, v4")
    k("v_mul_u32_u24 v6, 896, v6")
    k("v_lshl_add_u32 v6, v5, 4, v6")
    k("s_lshl_b32 s35, s13, 7")
    k("v_add_u32 v6, s35, v6")
    k("v_xor_b32 v7, 64, v6")
    k(f"v_add_u32 v7, {8*896}, v7")
    k("s_lshl_b32 s34, s14, 11")
    k(f"s_add_u32 m0, s34, {XL}")
    k("buffer_load_dwordx4 v6, s[16:19], 0 offen lds")
    k(f"s_add_u32 m0, s34, {XL + 1024}")
    k("buffer_load_dwordx4 v7, s[16:19], 0 offen lds")
    k("v_and_b32 v8, 31, v1")
    k("s_lshr_b32 s34, s14, 1\n s_lshl_b32 s34, s34, 5\n s_lshl_b32 s35, s12, 6\n s_add_u32 s34, s34, s35")
    k("v_add_u32 v8, s34, v8")
    k("v_lshlrev_b32 v8, 2, v8")
    k("buffer_load_dword v9, v8, s[36:39], 0 offen")
    NPRE = 3
    ACC = 16
    FR = 80
    DEPTH = 4 if 'd4' in EXP else (10 if 'd10' in EXP else 8)
    for i in range(64): k(f"v_mov_b32 v{ACC + i}, 0")
    def loads(j):
        f = FR + 16 * (j % DEPTH)
        k(f"s_add_u32 s46, s31, {j * 14 * 1024}")
        k(f"buffer_load_dwordx4 {vr(f,4)}, v3, s[52:55], s46 offen")
        k(f"buffer_load_dwordx4 {vr(f+4,4)}, v3, s[52:55], s46 offen offset:1024")
        k(f"s_add_u32 s47, s32, {j * 1024}")
        k(f"s_add_u32 s48, s33, {j * 1024}")
        k(f"buffer_load_dwordx4 {vr(f+8,4)}, v3, s[24:27], s47 offen")
        k(f"buffer_load_dwordx4 {vr(f+12,4)}, v3, s[24:27], s48 offen")
    NK = 28
    for j in range(DEPTH): loads(j)
    stamp(k, 1)
    for j in range(NK):
        if j == 1: stamp(k, 2)
        remaining = min(NK - 1, j + DEPTH - 1) - j
        k(f"s_waitcnt vmcnt({4 * remaining})")
        f = FR + 16 * (j % DEPTH)
        for di in range(2):
            for ti in range(2):
                c = ACC + (2*ti + di) * 16
                if "noMFMA" not in EXP:
                    k(f"v_mfma_f32_32x32x16_bf16 {vr(c,16)}, {vr(f + 4*di,4)}, {vr(f + 8 + 4*ti,4)}, {vr(c,16)}")
        if j + DEPTH < NK:
            loads(j + DEPTH)
    stamp(k, 3)
    if use_z:
        k("v_lshrrev_b32 v4, 3, v1")
        k("s_lshl_b32 s34, s14, 4\n s_lshl_b32 s35, s13, 6\n s_add_u32 s34, s34, s35")
        k("v_add_u32 v4, s34, v4")
        k("v_lshlrev_b32 v4, 12, v4")
        k("v_and_b32 v5, 7, v1")
        k("v_lshl_add_u32 v4, v5, 4, v4")
        k("s_lshl_b32 s35, s12, 7")
        k("v_add_u32 v4, s35, v4")
        k(f"v_add_u32 v5, {8*4096}, v4")
        k("s_lshl_b32 s34, s14, 11")
        k(f"s_add_u32 m0, s34, {ZL}")
        k("buffer_load_dwordx4 v4, s[40:43], 0 offen lds")
        k(f"s_add_u32 m0, s34, {ZL + 1024}")
        k("buffer_load_dwordx4 v5, s[40:43], 0 offen lds")
    k("s_nop 7")
    for o in range(4):
        k(f"s_cmp_eq_u32 s14, {o}")
        k(f"s_cbranch_scc1 L_g2_skip{o}")
        k(f"s_sub_u32 s34, s14, {o + 1}")
        k("s_and_b32 s34, s34, 3")
        k(f"s_add_u32 s34, s34, {3*o}")
        k("s_lshl_b32 s34, s34, 12")
        k("v_add_u32 v4, s34, v3")
        for q in range(4):
            k(f"ds_write_b128 v4, {vr(ACC + 16*o + 4*q, 4)} offset:{RED + 1024*q}")
        k.label(f"L_g2_skip{o}")
    k("s_waitcnt vmcnt(0) lgkmcnt(0)")
    k("s_barrier")
    for o in range(4):
        k(f"s_cmp_lg_u32 s14, {o}")
        k(f"s_cbranch_scc1 L_g2_mv{o}")
        for r in range(16): k(f"v_mov_b32 v{80 + r}, v{ACC + 16*o + r}")
        k.label(f"L_g2_mv{o}")
    k("s_mul_i32 s34, s14, 12288")
    k("v_add_u32 v4, s34, v3")
    for sl in range(3):
        for q in range(4):
            k(f"ds_read_b128 {vr(96 + 16*sl + 4*q, 4)}, v4 offset:{RED + 4096*sl + 1024*q}")
    k("s_and_b32 s34, s14, 1")
    k("s_lshr_b32 s35, s14, 1")
    if use_z:
        k("v_lshrrev_b32 v5, 5, v1")
        k("v_bfe_u32 v6, v1, 2, 2")
        k("v_lshl_add_u32 v5, v5, 2, v6")
        k("v_lshlrev_b32 v5, 7, v5")
        k("v_bfe_u32 v6, v1, 4, 1")
        k("v_lshl_add_u32 v5, v6, 5, v5")
        k("v_and_b32 v6, 3, v1")
        k("v_lshl_add_u32 v5, v6, 3, v5")
        k("s_lshl_b32 s46, s34, 12\n s_lshl_b32 s47, s35, 6\n s_add_u32 s46, s46, s47")
        k("v_add_u32 v5, s46, v5")
        for q in range(4):
            k(f"ds_read_b64_tr_b16 {vr(144 + 2*q, 2)}, v5 offset:{ZL + 1024*q}")
    k("v_and_b32 v5, 31, v1")
    k("s_lshl_b32 s46, s35, 5")
    k("v_add_u32 v5, s46, v5")
    k("v_bfe_u32 v6, v5, 1, 3")
    k("s_lshl_b32 s47, s34, 2")
    k("v_xor_b32 v6, s47, v6")
    k("v_lshlrev_b32 v7, 7, v5")
    k("v_lshrrev_b32 v10, 5, v1")
    k("v_lshl_add_u32 v7, v10, 3, v7")
    for q in range(4):
        k(f"v_xor_b32 v10, {q}, v6")
        k(f"v_lshl_add_u32 v10, v10, 4, v7")
        k(f"ds_read_b64 {vr(152 + 2*q, 2)}, v10 offset:{XL}")
    k("s_waitcnt lgkmcnt(0)")
    for r in range(16):
        k(f"v_add_f32 v{80 + r}, v{80 + r}, v{96 + r}")
        k(f"v_add_f32 v{112 + r}, v{112 + r}, v{128 + r}")
    for r in range(16):
        k(f"v_add_f32 v{80 + r}, v{80 + r}, v{112 + r}")
    for q in range(4):
        for hh in range(2):
            src = 152 + 2*q + hh
            k(f"v_lshlrev_b32 v{96 + 4*q + 2*hh}, 16, v{src}")
            k(f"v_and_b32 v{96 + 4*q + 2*hh + 1}, 0xffff0000, v{src}")
            if use_z:
                zs = 144 + 2*q + hh
                k(f"v_lshlrev_b32 v112, 16, v{zs}")
                k(f"v_and_b32 v113, 0xffff0000, v{zs}")
                k(f"v_add_f32 v{96 + 4*q + 2*hh}, v{96 + 4*q + 2*hh}, v112")
                k(f"v_add_f32 v{96 + 4*q + 2*hh + 1}, v{96 + 4*q + 2*hh + 1}, v113")
    for r in range(16):
        k(f"v_fma_f32 v{80 + r}, v9, v{80 + r}, v{96 + r}")
    for j in range(8):
        k(f"v_cvt_pk_bf16_f32 v{80 + j}, v{80 + 2*j}, v{80 + 2*j + 1}")
    k("s_lshl_b32 s46, s14, 11")
    k(f"s_add_u32 s46, s46, {OL}")
    k("v_and_b32 v5, 31, v1")
    k("v_bfe_u32 v6, v5, 1, 2")
    k("v_lshlrev_b32 v7, 6, v5")
    k("v_lshrrev_b32 v10, 5, v1")
    k("v_lshl_add_u32 v7, v10, 3, v7")
    k("v_add_u32 v7, s46, v7")
    for q in range(4):
        k(f"v_xor_b32 v10, {q}, v6")
        k(f"v_lshl_add_u32 v10, v10, 4, v7")
        k(f"ds_write_b64 v10, {vr(80 + 2*q, 2)}")
    k("s_waitcnt lgkmcnt(0)")
    k("v_add_u32 v4, s46, v3")
    k("ds_read_b128 v[96:99], v4")
    k("ds_read_b128 v[100:103], v4 offset:1024")
    k("v_bfe_u32 v5, v1, 3, 2")
    k("v_xor_b32 v5, v5, v1")
    k("v_and_b32 v5, 3, v5")
    k("v_lshrrev_b32 v6, 2, v1")
    k("s_lshl_b32 s46, s12, 6\n s_lshl_b32 s47, s35, 5\n s_add_u32 s46, s46, s47")
    k("v_add_u32 v6, s46, v6")
    k("v_mul_u32_u24 v6, 896, v6")
    k("v_lshl_add_u32 v6, v5, 4, v6")
    k("s_lshl_b32 s46, s13, 7\n s_lshl_b32 s47, s34, 6\n s_add_u32 s46, s46, s47")
    k("v_add_u32 v6, s46, v6")
    k(f"v_add_u32 v7, {16*896}, v6")
    k("s_waitcnt lgkmcnt(0)")
    k("buffer_store_dwordx4 v[96:99], v6, s[20:23], 0 offen")
    k("buffer_store_dwordx4 v[100:103], v7, s[20:23], 0 offen")
    stamp(k, 4)
    if STAMP: k("s_waitcnt vmcnt(0)")
    stamp(k, 5)
    stamp_flush(k, 1, 6)
    k("s_endpgm")

def cmul(k, o, x, y, t):
    k(f"v_pk_mul_f32 {vr(t,2)}, {vr(x,2)}, {vr(y,2)} op_sel:[0,0] op_sel_hi:[1,0]")
    k(f"v_pk_fma_f32 {vr(o,2)}, {vr(x,2)}, {vr(y,2)}, {vr(t,2)} op_sel:[1,1,0] op_sel_hi:[0,1,1] neg_lo:[1,0,0]")

def role_kgen(k, idx_s):
    stamp(k, 8); stamp(k, 0)
    k("s_load_dwordx16 s[56:71], s[0:1], 8")
    k("s_load_dwordx2 s[8:9], s[0:1], 112")
    k("v_and_b32 v1, 63, v0")
    k("v_lshrrev_b32 v2, 6, v0")
    k("v_readfirstlane_b32 s14, v2")
    k("s_lshr_b32 s15, s14, 1")
    k("s_and_b32 s28, s14, 1")
    k(f"s_lshl_b32 s29, s{idx_s}, 1")
    k("s_add_u32 s29, s29, s15")
    k("s_lshl_b32 s30, s29, 9")
    k("s_lshl_b32 s31, s28, 8")
    k("s_add_u32 s30, s30, s31")
    k("v_lshlrev_b32 v3, 2, v1")
    k("v_add_u32 v3, s30, v3")
    k("s_lshl_b32 s31, s29, 1")
    k("v_mov_b32 v4, s31")
    k("s_waitcnt lgkmcnt(0)")
    PSZ = 448 * 512
    for i in range(6):
        srd(k, 16, 56 + 2*i, 57 + 2*i, PSZ)
        k(f"buffer_load_dword v{8 + i}, v3, s[16:19], 0 offen")
    srd(k, 20, 68, 69, 896)
    k("buffer_load_ushort v14, v4, s[20:23], 0 offen")
    srd(k, 24, 8, 9, KR_SZ, KR_OFF)
    WSTR = 14464
    k(f"s_mul_i32 s33, s14, {WSTR}")
    k("v_lshlrev_b32 v5, 2, v1")
    k("v_add_u32 v5, s33, v5")
    k("v_and_b32 v6, 31, v1")
    k("v_mul_u32_u24 v6, 272, v6")
    k("v_lshrrev_b32 v7, 5, v1")
    k("v_lshl_add_u32 v6, v7, 4, v6")
    k("v_add_u32 v6, s33, v6")
    ACC = 112
    for i in range(16): k(f"v_mov_b32 v{ACC + i}, 0")
    k("s_waitcnt vmcnt(0)")
    stamp(k, 1)
    k("v_lshlrev_b32 v14, 16, v14")
    k("v_mul_f32 v15, 0x3fb8aa3b, v14")
    k("s_mov_b32 s34, 0x3fb8aa3b")
    k("v_fma_f32 v16, v14, s34, -v15")
    k("s_mov_b32 s34, 0x32a57060")
    k("v_fma_f32 v16, v14, s34, v16")
    k("v_exp_f32 v15, v15")
    k("v_mul_f32 v16, 0x3f317218, v16")
    k("v_fma_f32 v15, v15, v16, v15")
    k("v_cvt_pk_bf16_f32 v15, v15, v15")
    k("v_lshlrev_b32 v15, 16, v15")
    E1, Z2, Z4, E256 = 20, 22, 24, 26
    Q = [28, 30, 32, 34]
    E32 = 36
    P = 38
    PH = 40
    PT = 42
    T0, T1, T2 = 44, 46, 48
    for it in range(2):
        def ext(dst, src):
            if it == 0: k(f"v_lshlrev_b32 v{dst}, 16, v{src}")
            else: k(f"v_and_b32 v{dst}, 0xffff0000, v{src}")
        ext(50, 8); ext(51, 9)
        ext(52, 10); ext(53, 11)
        ext(54, 12); ext(55, 13)
        k("v_mul_f32 v18, v15, v50")
        k("v_mul_f32 v18, 0x3fb8aa3b, v18")
        k("v_mul_f32 v19, v15, v51")
        k("v_mul_f32 v19, 0.15915494, v19")
        k("v_mul_f32 v52, v15, v52")
        k("v_mul_f32 v53, v15, v53")
        cmul(k, 16, 54, 52, T0)
        def E(dst, l, tmp):
            lit = {1: "1.0", 8: "0x41000000", 16: "0x41800000", 24: "0x41c00000", 32: "0x42000000", 256: "0x43800000"}[l]
            k(f"v_mul_f32 v{tmp}, {lit}, v18")
            k(f"v_mul_f32 v{tmp+1}, {lit}, v19")
            k(f"v_exp_f32 v{tmp}, v{tmp}")
            k(f"v_fract_f32 v{tmp+1}, v{tmp+1}")
            k(f"v_cos_f32 v{dst}, v{tmp+1}")
            k(f"v_sin_f32 v{dst+1}, v{tmp+1}")
            k(f"v_mul_f32 v{dst}, v{dst}, v{tmp}")
            k(f"v_mul_f32 v{dst+1}, v{dst+1}, v{tmp}")
        E(E1, 1, T0); E(E256, 256, T1); E(Q[1], 8, T2); E(Q[2], 16, T0); E(Q[3], 24, T1); E(E32, 32, T2)
        k(f"v_mov_b32 v{Q[0]}, 1.0")
        k(f"v_mov_b32 v{Q[0]+1}, 0")
        def wrA(h, r):
            k(f"v_cvt_pk_bf16_f32 v56, v{r}, -v{r+1}") if False else None
        cnt = [0]
        def put(col, r, neg):
            tmp = 56 + (cnt[0] % 8); cnt[0] += 1
            k(f"v_cvt_pk_bf16_f32 v{tmp}, v{r}, {'-' if neg else ''}v{r+1}")
            k(f"ds_write_b32 v5, v{tmp} offset:{col * 272}")
        cmul(k, Z2, E1, E1, T0)
        cmul(k, Z4, Z2, Z2, T1)
        ops = []
        put(0, 16, True)
        for c in range(4): put(21 + c, Q[c], False)
        k(f"v_mov_b32 v{P}, v16\n v_mov_b32 v{P+1}, v17")
        cmul(k, PH, 16, E256, T2)
        put(8, PH, True)
        lowP = list(range(1, 8))
        high = [("side2", 9), ("side2c", 10), ("side2c", 11), ("up", 12), ("side4", 13), ("up", 14), ("side4", 15), ("up", 16), ("up", 17), ("up", 18), ("up", 19), ("up", 20)]
        for i in range(1, 8):
            for c in range(4):
                cmul(k, Q[c], Q[c], E32, [T0, T1][c & 1])
                put(21 + c + 4*i, Q[c], False)
            if lowP:
                h = lowP.pop(0)
                cmul(k, P, P, E1, T2)
                put(h, P, True)
            for _ in range(2):
                if high:
                    kind, h = high.pop(0)
                    if kind == "side2": cmul(k, PT, PH, Z2, T2); put(h, PT, True)
                    elif kind == "side2c": cmul(k, PT, PT, Z2, T2); put(h, PT, True)
                    elif kind == "side4": cmul(k, PT, PH, Z4, T2); put(h, PT, True)
                    else: cmul(k, PH, PH, E256, T2); put(h, PH, True)
        assert not lowP and not high
        k("s_waitcnt lgkmcnt(0)")
        for ks in range(8):
            fa = 64 + 8 * (ks % 4)
            k(f"ds_read_b128 {vr(fa,4)}, v6 offset:{32*ks}")
            k(f"ds_read_b128 {vr(fa+4,4)}, v6 offset:{32*ks + 21*272}")
            if ks >= 3 or True:
                pass
        k.lines = k.lines[:-16]
        for half in range(2):
            for ks in range(4*half, 4*half + 4):
                fa = 64 + 8 * (ks % 4)
                k(f"ds_read_b128 {vr(fa,4)}, v6 offset:{32*ks}")
                k(f"ds_read_b128 {vr(fa+4,4)}, v6 offset:{32*ks + 21*272}")
            for ks in range(4*half, 4*half + 4):
                fa = 64 + 8 * (ks % 4)
                k(f"s_waitcnt lgkmcnt({2*(3 - (ks % 4))})")
                k(f"v_mfma_f32_32x32x16_bf16 {vr(ACC,16)}, {vr(fa,4)}, {vr(fa+4,4)}, {vr(ACC,16)}")
    stamp(k, 2)
    k("s_barrier")
    XB = 0; TB = 8192
    k("v_lshlrev_b32 v3, 4, v1")
    k("s_mul_i32 s30, s15, 3072")
    k("v_add_u32 v3, s30, v3")
    k("s_cmp_eq_u32 s28, 0")
    k("s_cbranch_scc1 L_kg_a")
    k("s_nop 7\n s_nop 3")
    for q in range(3): k(f"ds_write_b128 v3, {vr(ACC + 4*q, 4)} offset:{XB + 1024*q}")
    k("s_waitcnt lgkmcnt(0)")
    k.label("L_kg_a")
    k("s_barrier")
    k("s_mul_i32 s31, s15, 1536")
    k(f"s_add_u32 s31, s31, {TB}")
    k("s_cmp_eq_u32 s28, 0")
    k("s_cbranch_scc0 L_kg_b")
    for q in range(3): k(f"ds_read_b128 {vr(64 + 4*q, 4)}, v3 offset:{XB + 1024*q}")
    k("s_waitcnt lgkmcnt(0)")
    for r in range(12): k(f"v_add_f32 v{ACC + r}, v{ACC + r}, v{64 + r}")
    for j in range(6): k(f"v_cvt_pk_bf16_f32 v{80 + j}, v{ACC + 2*j}, v{ACC + 2*j + 1}")
    k("v_and_b32 v6, 31, v1")
    k("v_lshrrev_b32 v7, 5, v1")
    k("v_lshlrev_b32 v8, 4, v6")
    k("v_lshl_add_u32 v8, v7, 3, v8")
    k("v_add_u32 v8, s31, v8")
    k("ds_write_b64 v8, v[80:81]")
    k("v_lshlrev_b32 v9, 3, v6\n v_add_u32 v9, s31, v9")
    k("v_lshlrev_b32 v10, 2, v6\n v_add_u32 v10, s31, v10")
    k("v_lshlrev_b32 v11, 1, v6\n v_add_u32 v11, s31, v11")
    k("s_mov_b64 s[36:37], exec")
    k("s_mov_b32 exec_lo, -1\n s_mov_b32 exec_hi, 0")
    k("ds_write_b64 v9, v[82:83] offset:512")
    k("ds_write_b16 v11, v84 offset:1024")
    k("ds_write_b16_d16_hi v11, v84 offset:1088")
    k("ds_write_b16 v11, v85 offset:1152")
    k("ds_write_b16_d16_hi v11, v85 offset:1216")
    k("s_mov_b32 exec_lo, 0\n s_mov_b32 exec_hi, -1")
    k("ds_write_b32 v10, v82 offset:768")
    k("ds_write_b32 v10, v83 offset:896")
    k("ds_write_b16 v11, v84 offset:1280")
    k("s_mov_b64 exec, s[36:37]")
    k("s_waitcnt lgkmcnt(0)")
    k.label("L_kg_b")
    k("s_barrier")
    k("s_lshl_b32 s30, s28, 6")
    k("v_add_u32 v3, s30, v1")
    for c in range(2):
        k(f"v_lshlrev_b32 v4, 3, v3")
        k(f"v_sub_u32 v4, {2047 - 1024*c}, v4")
        for e in range(8):
            k(f"v_subrev_u32 v{16 + e}, {e}, v4")
        for e in range(8):
            k(f"v_cvt_f32_u32 v{24 + e}, v{16 + e}")
        for e in range(0, 8, 2):
            k(f"v_cvt_pk_bf16_f32 v{32 + e//2}, v{24 + e}, v{24 + e + 1}")
        for e in range(8):
            if e % 2 == 0: k(f"v_and_b32 v{24 + e}, 0xffff, v{32 + e//2}")
            else: k(f"v_lshrrev_b32 v{24 + e}, 16, v{32 + e//2}")
        for e in range(8):
            k(f"v_add_u32 v{24 + e}, {(-0x4300 + 128) & 0xffffffff}, v{24 + e}")
        for e in range(8):
            k(f"v_cmp_gt_u32 vcc, 128, v{16 + e}")
            k(f"v_cndmask_b32 v{24 + e}, v{24 + e}, v{16 + e}, vcc")
        for e in range(8):
            k(f"v_lshl_add_u32 v{24 + e}, v{24 + e}, 1, s31")
        base = 40 + 4*c
        for e in range(8):
            if e % 2 == 0: k(f"ds_read_u16 v{base + e//2}, v{24 + e}")
            else: k(f"ds_read_u16_d16_hi v{48 + 4*c + e//2}, v{24 + e}")
    k("s_lshl_b32 s30, s29, 12")
    k("v_lshlrev_b32 v4, 4, v3")
    k("s_waitcnt lgkmcnt(0)")
    for i in range(8):
        k(f"v_and_b32 v{48 + i}, 0xffff0000, v{48 + i}")
        k(f"v_or_b32 v{40 + i}, v{40 + i}, v{48 + i}")
    k("buffer_store_dwordx4 v[40:43], v4, s[24:27], s30 offen")
    k("buffer_store_dwordx4 v[44:47], v4, s[24:27], s30 offen offset:2048")
    stamp(k, 3)
    stamp_flush(k, 0, 4)
    k("s_endpgm")

def role_conv(k, idx_s):
    stamp(k, 8); stamp(k, 0)
    k("s_load_dwordx2 s[6:7], s[0:1], 64")
    k("s_load_dwordx2 s[8:9], s[0:1], 112")
    k("v_and_b32 v1, 63, v0")
    k("v_lshrrev_b32 v2, 6, v0")
    k("v_readfirstlane_b32 s14, v2")
    k("s_lshr_b32 s15, s14, 1")
    k("s_and_b32 s28, s14, 1")
    k(f"s_lshl_b32 s29, s{idx_s}, 1")
    k("s_add_u32 s29, s29, s15")
    CSTR = 4160; CH = 37888
    k(f"s_mul_i32 s33, s15, {CH}")
    k(f"s_add_u32 s34, s33, {8*CSTR}")
    k("s_waitcnt lgkmcnt(0)")
    srd(k, 16, 8, 9, KR_SZ, KR_OFF)
    srd(k, 20, 8, 9, XT_SZ, XT_OFF)
    srd(k, 24, 8, 9, ZT_SZ, ZT_OFF)
    srd(k, 36, 6, 7, 896)
    k("s_lshl_b32 s30, s28, 6")
    k("v_add_u32 v3, s30, v1")
    k("v_lshlrev_b32 v4, 4, v3")
    k("s_lshl_b32 s30, s29, 12")
    k("buffer_load_dwordx4 v[8:11], v4, s[16:19], s30 offen")
    k("buffer_load_dwordx4 v[12:15], v4, s[16:19], s30 offen offset:16")
    k("buffer_load_dwordx4 v[16:19], v4, s[16:19], s30 offen offset:2048")
    k("buffer_load_dwordx4 v[20:23], v4, s[16:19], s30 offen offset:2064")
    k("v_lshrrev_b32 v5, 2, v1")
    k("s_lshl_b32 s30, s28, 5")
    k("v_add_u32 v5, s30, v5")
    k("v_mul_u32_u24 v5, 28672, v5")
    k("v_and_b32 v6, 3, v1")
    k("v_lshl_add_u32 v5, v6, 4, v5")
    k("s_lshl_b32 s30, s29, 6")
    k("v_add_u32 v5, s30, v5")
    k(f"v_add_u32 v6, {16*28672}, v5")
    k("s_lshl_b32 s30, s28, 11")
    k("s_add_u32 s30, s30, s34")
    k("s_add_u32 m0, s30, 512")
    k("buffer_load_dwordx4 v5, s[20:23], 0 offen lds")
    k("s_add_u32 m0, s30, 1536")
    k("buffer_load_dwordx4 v6, s[20:23], 0 offen lds")
    k("s_lshl_b32 s30, s29, 1")
    k("v_mov_b32 v7, s30")
    k("buffer_load_ushort v24, v7, s[36:39], 0 offen")
    for i in range(4): k(f"v_mov_b32 v{28 + i}, 0")
    k("v_lshlrev_b32 v25, 4, v1")
    k("v_add_u32 v25, s34, v25")
    k("v_subrev_u32 v26, 32, v1")
    k(f"v_mul_u32_u24 v26, {CSTR}, v26")
    k("v_add_u32 v26, s33, v26")
    k("v_add_u32 v26, 4096, v26")
    k("v_cmp_gt_u32 vcc, 32, v1")
    k("v_cndmask_b32 v25, v26, v25, vcc")
    k("v_cmp_gt_u32 vcc, 40, v1")
    k("s_and_saveexec_b64 s[40:41], vcc")
    k("ds_write_b128 v25, v[28:31]")
    k("s_mov_b64 exec, s[40:41]")
    k("s_waitcnt vmcnt(3)")
    k("v_cmp_eq_u32 vcc, 127, v3")
    for i in range(4): k(f"v_cndmask_b32 v{20 + i}, v{20 + i}, v28, vcc")
    k("v_lshlrev_b32 v27, 4, v3")
    k("v_add_u32 v27, s33, v27")
    for c in range(2):
        Dr = 8 + 8*c
        Ee = 32; Eo = 40; Do = 48
        for i in range(7): k(f"v_alignbit_b32 v{Ee + i}, v{Dr + i + 1}, v{Dr + i}, 16")
        for i in range(6): k(f"v_alignbit_b32 v{Eo + i}, v{Dr + i + 2}, v{Dr + i + 1}, 16")
        for i in range(6): k(f"v_mov_b32 v{Do + i}, v{Dr + i + 1}")
        src = {0: Dr, 1: Ee, 2: Do, 3: Eo, 4: Dr + 2, 5: Ee + 2, 6: Do + 2, 7: Eo + 2}
        for s_ in range(8):
            k(f"ds_write_b128 v27, {vr(src[s_], 4)} offset:{s_*CSTR + 2048*c}")
        if c == 0: k("s_waitcnt lgkmcnt(0)")
    k("s_waitcnt vmcnt(0) lgkmcnt(0)")
    k("s_barrier")
    stamp(k, 1)
    k("v_and_b32 v3, 7, v1")
    k("v_sub_u32 v3, 7, v3")
    k(f"v_mul_u32_u24 v3, {CSTR}, v3")
    k("v_bfe_u32 v4, v1, 3, 1")
    k("v_bfe_u32 v5, v1, 5, 1")
    k("v_bfe_u32 v6, v1, 4, 1")
    k("v_lshl_add_u32 v7, v5, 1, v4")
    k("v_sub_u32 v7, v6, v7")
    k("v_lshlrev_b32 v7, 4, v7")
    k("v_add_u32 v3, v3, v7")
    k(f"s_add_u32 s30, s33, {255*16 - 64*56}")
    k("s_lshl_b32 s31, s28, 8")
    k("s_sub_u32 s30, s30, s31")
    k("v_add_u32 v4, s30, v3")
    k("v_and_b32 v3, 15, v1")
    k("v_sub_u32 v3, v3, v5")
    k("v_lshlrev_b32 v3, 5, v3")
    k("v_lshl_add_u32 v3, v6, 4, v3")
    k("s_add_u32 s30, s34, 512")
    k("s_sub_u32 s30, s30, s31")
    k("v_add_u32 v5, s30, v3")
    ACC = 32
    FA = [64, 128]
    for i in range(32): k(f"v_mov_b32 v{ACC + i}, 0")
    def reads(fs):
        for p1 in range(8):
            k(f"ds_read_b128 {vr(fs + 4*p1, 4)}, v4 offset:{512*(7 - p1)}")
            k(f"ds_read_b128 {vr(fs + 32 + 4*p1, 4)}, v5 offset:{512*p1}")
        k("v_subrev_u32 v4, 64, v4")
        k("v_subrev_u32 v5, 64, v5")
    def mm(fs):
        for p1 in range(8):
            for be in range(8 - p1):
                c = ACC + 4*(p1 + be)
                k(f"v_mfma_f32_16x16x32_bf16 {vr(c,4)}, {vr(fs + 4*p1,4)}, {vr(fs + 32 + 4*be,4)}, {vr(c,4)}")
    reads(FA[0])
    for it in range(4):
        if it < 3:
            reads(FA[(it + 1) & 1])
            k("s_waitcnt lgkmcnt(15)")
            k("s_nop 0")
        else:
            k("s_waitcnt lgkmcnt(0)")
        mm(FA[it & 1])
    stamp(k, 2)
    k("s_barrier")
    k("v_lshlrev_b32 v3, 4, v1")
    k("s_lshl_b32 s30, s14, 12")
    k("v_add_u32 v6, s30, v3")
    k("s_xor_b32 s31, s14, 1")
    k("s_lshl_b32 s31, s31, 12")
    k("v_add_u32 v7, s31, v3")
    k("s_cmp_eq_u32 s28, 0")
    k("s_cbranch_scc0 L_cv_w1")
    for q in range(4): k(f"ds_write_b128 v6, {vr(ACC + 16 + 4*q, 4)} offset:{1024*q}")
    k("s_branch L_cv_w2")
    k.label("L_cv_w1")
    for q in range(4): k(f"ds_write_b128 v6, {vr(ACC + 4*q, 4)} offset:{1024*q}")
    for r in range(16): k(f"v_mov_b32 v{ACC + r}, v{ACC + 16 + r}")
    k.label("L_cv_w2")
    k("s_waitcnt lgkmcnt(0)")
    k("s_barrier")
    for q in range(4): k(f"ds_read_b128 {vr(64 + 4*q, 4)}, v7 offset:{1024*q}")
    k("v_and_b32 v8, 15, v1")
    k("v_lshlrev_b32 v8, 5, v8")
    k("v_lshrrev_b32 v9, 4, v1")
    k("v_lshl_add_u32 v8, v9, 3, v8")
    k("s_lshl_b32 s30, s28, 11")
    k("s_add_u32 s30, s30, s34")
    k("s_add_u32 s30, s30, 512")
    k("v_add_u32 v9, s30, v8")
    for q in range(4): k(f"ds_read_b64 {vr(80 + 2*q, 2)}, v9 offset:{512*q}")
    k("v_lshlrev_b32 v24, 16, v24")
    k("s_waitcnt lgkmcnt(0)")
    for r in range(16): k(f"v_add_f32 v{ACC + r}, v{ACC + r}, v{64 + r}")
    for q in range(4):
        for hh in range(2):
            src = 80 + 2*q + hh
            k(f"v_lshlrev_b32 v10, 16, v{src}")
            k(f"v_and_b32 v11, 0xffff0000, v{src}")
            k(f"v_fmac_f32 v{ACC + 4*q + 2*hh}, v10, v24")
            k(f"v_fmac_f32 v{ACC + 4*q + 2*hh + 1}, v11, v24")
    for j in range(8): k(f"v_cvt_pk_bf16_f32 v{64 + j}, v{ACC + 2*j}, v{ACC + 2*j + 1}")
    k("s_lshl_b32 s30, s14, 11")
    k("s_add_u32 s30, s30, 16384")
    k("v_add_u32 v9, s30, v8")
    for q in range(4): k(f"ds_write_b64 v9, {vr(64 + 2*q, 2)} offset:{512*q}")
    k("v_add_u32 v9, s30, v3")
    k("s_waitcnt lgkmcnt(0)")
    k("ds_read_b128 v[72:75], v9")
    k("ds_read_b128 v[76:79], v9 offset:1024")
    k("s_lshl_b32 s30, s29, 12")
    k("s_lshl_b32 s31, s28, 11")
    k("s_add_u32 s30, s30, s31")
    k("s_waitcnt lgkmcnt(0)")
    k("buffer_store_dwordx4 v[72:75], v3, s[24:27], s30 offen")
    k("buffer_store_dwordx4 v[76:79], v3, s[24:27], s30 offen offset:1024")
    stamp(k, 3)
    stamp_flush(k, 2, 4)
    k("s_endpgm")

def kd(name, vgpr, sgpr=102):
    return f""".amdhsa_kernel {name}
  .amdhsa_next_free_vgpr {vgpr}
  .amdhsa_next_free_sgpr {sgpr}
  .amdhsa_accum_offset {vgpr}
  .amdhsa_group_segment_fixed_size 0
  .amdhsa_kernarg_size 120
  .amdhsa_user_sgpr_count 2
  .amdhsa_user_sgpr_kernarg_segment_ptr 1
  .amdhsa_system_sgpr_workgroup_id_x 1
.end_amdhsa_kernel
"""

def header(launches):
    h = open("cdna_kernels/" + NAME + ".s.ref").read().split("; Override")[0]
    for (kn, g, b, lds) in launches:
        h += f"; @launch kernel={kn} grid=({g},1,1) block=({b},1,1) lds={lds}\n"
    h += '.amdgcn_target "amdgcn-amd-amdhsa--gfx950"\n.text\n'
    return h

def kern_text(name, k):
    return f".globl {name}\n.p2align 8\n.type {name},@function\n{name}:\n" + k.text()

def main(path):
    K1 = NAME + "_kernel"
    k1 = Kern()
    k1("s_cmp_lt_u32 s2, 224")
    k1("s_cbranch_scc1 L_g1")
    k1("s_cmp_lt_u32 s2, 448")
    k1("s_cbranch_scc1 L_kgen")
    k1("s_cmp_lt_u32 s2, 512")
    k1("s_cbranch_scc0 L_k1_exit")
    k1("s_sub_u32 s3, s2, 448")
    role_ln(k1, 3)
    k1.label("L_k1_exit")
    k1("s_endpgm")
    k1.label("L_kgen")
    k1("s_sub_u32 s3, s2, 224")
    role_kgen(k1, 3)
    k1.label("L_g1")
    role_g1(k1)
    k2 = Kern()
    k2("s_cmp_lt_u32 s2, 224")
    k2("s_cbranch_scc1 L_cv")
    k2("s_endpgm")
    k2.label("L_cv")
    k2("s_mov_b32 s3, s2")
    role_conv(k2, 3)
    k3 = Kern()
    k3("s_cmp_lt_u32 s2, 224")
    k3("s_cbranch_scc1 L_g2")
    k3("s_endpgm")
    k3.label("L_g2")
    role_g2(k3, use_z=True)
    launches = [(K1, 512, 256, 81920), ("conv_kernel", 224, 256, 81920), ("g2_kernel", 224, 256, 81920)]
    txt = header(launches)
    txt += kern_text(K1, k1) + kern_text("conv_kernel", k2) + kern_text("g2_kernel", k3)
    txt += '.section .rodata,"a"\n.p2align 6\n' + kd(K1, 160) + ".p2align 6\n" + kd("conv_kernel", 192) + ".p2align 6\n" + kd("g2_kernel", 256)
    open(path, "w").write(txt)

if __name__ == "__main__":
    for a in list(sys.argv):
        if a.startswith("--exp="):
            EXP = a[6:].split(","); sys.argv.remove(a)
    if "--stamp" in sys.argv:
        STAMP = True; sys.argv.remove("--stamp")
    main(sys.argv[1] if len(sys.argv) > 1 else "cdna_kernels/" + NAME + ".s")
```

```python
import sys
from asmlib import Kern

NAME = "parallel_sum__ssm_conv_s4__dense_activation_relu__prompt"
L, D, DFF, NM = 2048, 448, 1792, 256

XT_OFF = 0x000000
RS_OFF = 0x1C0000
KR_OFF = 0x200000
HF_OFF = 0x400000
W2F_OFF = 0xC00000
ZT_OFF = 0xE00000
FL_OFF = 0x1000000
XT_SZ = 64 * 448 * 64
RS_SZ = 2048 * 4
KR_SZ = 448 * 4096
HF_SZ = 64 * 112 * 1024
W2F_SZ = 112 * 14 * 1024
ZT_SZ = 448 * 4096

def srd(k, d, lo, hi, size, off=0):
    if off:
        k(f"s_add_u32 s{d}, s{lo}, {off}")
        k(f"s_addc_u32 s{d+1}, s{hi}, 0")
    else:
        k(f"s_mov_b32 s{d}, s{lo}")
        k(f"s_mov_b32 s{d+1}, s{hi}")
    k(f"s_mov_b32 s{d+2}, {size}")
    k(f"s_mov_b32 s{d+3}, 0x00020000")

TS_OFF = 0x1100000
STAMP = False
EXP = []
G1MAP = '8x1'
def stamp(k, i):
    if not STAMP: return
    if i < 8: k(f"s_memtime s[{80+2*i}:{81+2*i}]")
    else: k(f"s_memrealtime s[{96+2*(i-8)}:{97+2*(i-8)}]")
DBGSTAMP = False
def stamp_flush(k, kern_idx, n, launch_idx=0, dbg_slot=0):
    if not STAMP: return
    k("s_memrealtime s[98:99]")
    k("s_waitcnt lgkmcnt(0)")
    if DBGSTAMP:
        k("s_cmp_lg_u32 s3, 0")
        k(f"s_cbranch_scc1 L_dbgskip{dbg_slot}")
        k("s_load_dwordx2 s[76:77], s[0:1], 104")
        k("s_waitcnt lgkmcnt(0)")
        k(f"s_sub_u32 s72, s76, {512 * launch_idx}")
        k("s_subb_u32 s73, s77, 0")
        k("s_mov_b32 s74, 256")
        k("s_mov_b32 s75, 0x00020000")
        k("v_cmp_eq_u32 vcc, 0, v0")
        k("s_and_saveexec_b64 s[78:79], vcc")
        k(f"v_mov_b32 v1, {16 * dbg_slot}")
        k("v_mov_b32 v2, s96")
        k("buffer_store_dword v2, v1, s[72:75], 0 offen")
        k("v_mov_b32 v2, s98")
        k("buffer_store_dword v2, v1, s[72:75], 0 offen offset:4")
        k(f"s_sub_u32 s76, s{80+2*(n-1)}, s80")
        k("v_mov_b32 v2, s76")
        k("buffer_store_dword v2, v1, s[72:75], 0 offen offset:8")
        k(f"s_sub_u32 s76, s82, s80")
        k("v_mov_b32 v2, s76")
        k("buffer_store_dword v2, v1, s[72:75], 0 offen offset:12")
        k("s_mov_b64 exec, s[78:79]")
        k.label(f"L_dbgskip{dbg_slot}")
        return
    k("s_load_dwordx2 s[76:77], s[0:1], 112")
    k("s_waitcnt lgkmcnt(0)")
    k(f"s_add_u32 s72, s76, {TS_OFF + kern_idx * 0x10000}")
    k("s_addc_u32 s73, s77, 0")
    k("s_mov_b32 s74, 0x10000")
    k("s_mov_b32 s75, 0x00020000")
    k("s_lshl_b32 s76, s2, 6")
    k("v_cmp_eq_u32 vcc, 0, v0")
    k("s_and_saveexec_b64 s[78:79], vcc")
    k("v_mov_b32 v1, s76")
    for i in range(n):
        k(f"v_mov_b32 v2, s{80+2*i}")
        k(f"buffer_store_dword v2, v1, s[72:75], 0 offen offset:{4*i}")
    k("v_mov_b32 v2, s96")
    k("buffer_store_dword v2, v1, s[72:75], 0 offen offset:56")
    k("v_mov_b32 v2, s98")
    k("buffer_store_dword v2, v1, s[72:75], 0 offen offset:60")
    k("s_mov_b64 exec, s[78:79]")

def vr(a, n=1):
    return f"v{a}" if n == 1 else f"v[{a}:{a+n-1}]"

def role_g1(k):
    NST = 14; NSL = 5
    stamp(k, 8); stamp(k, 0)
    k("s_load_dwordx2 s[4:5], s[0:1], 0")
    k("s_load_dwordx2 s[6:7], s[0:1], 80")
    k("s_load_dwordx2 s[8:9], s[0:1], 112")
    k("s_and_b32 s10, s2, 7")
    k("s_lshr_b32 s11, s2, 3")
    if G1MAP == "4x2":
        k("s_lshr_b32 s12, s10, 1")
        k("s_lshl_b32 s12, s12, 2")
        k("s_and_b32 s13, s11, 3")
        k("s_add_u32 s12, s12, s13")
        k("s_and_b32 s13, s10, 1")
        k("s_mul_i32 s13, s13, 7")
        k("s_lshr_b32 s14, s11, 2")
        k("s_add_u32 s13, s13, s14")
    else:
        k("s_lshl_b32 s12, s10, 1")
        k("s_and_b32 s13, s11, 1")
        k("s_add_u32 s12, s12, s13")
        k("s_lshr_b32 s13, s11, 1")
    k("v_and_b32 v1, 63, v0")
    k("v_lshrrev_b32 v2, 6, v0")
    k("v_readfirstlane_b32 s14, v2")
    k("s_and_b32 s15, s14, 1")
    k("s_lshr_b32 s28, s14, 1")
    k("s_lshl_b32 s29, s14, 11")
    VX0, VX1, VW0, VW1 = 4, 5, 6, 7
    k("s_lshl_b32 s30, s12, 7")
    k("s_lshl_b32 s31, s14, 5")
    k("s_add_u32 s30, s30, s31")
    k("v_lshrrev_b32 v3, 2, v1")
    k("v_add_u32 v3, s30, v3")
    k("v_mul_u32_u24 v3, 896, v3")
    k("v_lshrrev_b32 v8, 4, v1")
    k("v_xor_b32 v9, v1, v8")
    k("v_and_b32 v9, 3, v9")
    k(f"v_lshl_add_u32 v{VX0}, v9, 4, v3")
    k(f"v_add_u32 v{VX1}, 14336, v{VX0}")
    k("s_lshl_b32 s30, s14, 3")
    k("v_add_u32 v3, s30, v8")
    k("v_mul_u32_u24 v3, 3584, v3")
    k("v_lshlrev_b32 v9, 2, v8")
    k("v_xor_b32 v9, v1, v9")
    k("v_and_b32 v9, 15, v9")
    k("v_lshl_add_u32 v3, v9, 4, v3")
    k("s_lshl_b32 s30, s13, 8")
    k(f"v_add_u32 v{VW0}, s30, v3")
    k(f"v_add_u32 v{VW1}, 14336, v{VW0}")
    k("s_waitcnt lgkmcnt(0)")
    srd(k, 16, 4, 5, 2048 * 896)
    srd(k, 20, 6, 7, 448 * 3584)
    srd(k, 24, 8, 9, HF_SZ, HF_OFF)

    def dma(s):
        slot = s % NSL
        base = slot * 16384
        k(f"s_mov_b32 s32, {s * 114688}")
        k(f"s_mov_b32 s33, {s * 64}")
        k(f"s_add_u32 m0, s29, {base}")
        k(f"buffer_load_dwordx4 v{VW0}, s[20:23], s32 offen lds")
        k(f"s_add_u32 m0, s29, {base + 1024}")
        k(f"buffer_load_dwordx4 v{VW1}, s[20:23], s32 offen lds")
        k(f"s_add_u32 m0, s29, {base + 8192}")
        k(f"buffer_load_dwordx4 v{VX0}, s[16:19], s33 offen lds")
        k(f"s_add_u32 m0, s29, {base + 8192 + 1024}")
        k(f"buffer_load_dwordx4 v{VX1}, s[16:19], s33 offen lds")
    for s in range(4): dma(s)

    AA = [10, 11]; AAh = [12, 13]
    BB = [[14, 15], [16, 17]]; BBh = [[18, 19], [20, 21]]
    k("v_lshrrev_b32 v3, 5, v1")
    k("v_bfe_u32 v8, v1, 2, 2")
    k("v_lshl_add_u32 v3, v3, 3, v8")
    k("v_lshlrev_b32 v3, 8, v3")
    k("v_bfe_u32 v9, v1, 4, 1")
    k("v_lshlrev_b32 v9, 1, v9")
    k("v_bfe_u32 v22, v1, 1, 1")
    k("v_add_u32 v9, v9, v22")
    k("v_lshl_add_u32 v3, v9, 4, v3")
    k("v_and_b32 v22, 1, v1")
    k("v_lshl_add_u32 v3, v22, 3, v3")
    for ai in range(2):
        k(f"s_xor_b32 s30, s28, {ai}")
        k("s_lshl_b32 s31, s15, 1")
        k("s_add_u32 s30, s30, s31")
        k("v_xor_b32 v22, s30, v8")
        k(f"v_lshl_add_u32 v{AA[ai]}, v22, 6, v3")
        k(f"v_add_u32 v{AAh[ai]}, 65536, v{AA[ai]}")
    k("v_and_b32 v3, 31, v1")
    k("v_bfe_u32 v8, v1, 2, 2")
    k("v_lshrrev_b32 v9, 5, v1")
    k("v_xor_b32 v9, v9, v8")
    k("v_lshlrev_b32 v9, 4, v9")
    k("v_lshl_add_u32 v3, v3, 6, v9")
    for bi in range(2):
        k(f"s_xor_b32 s30, s15, {bi}")
        k("s_lshl_b32 s30, s30, 11")
        k("s_lshl_b32 s31, s28, 12")
        k("s_add_u32 s30, s30, s31")
        k("s_add_u32 s30, s30, 8192")
        k(f"v_add_u32 v{BB[0][bi]}, s30, v3")
        k(f"v_xor_b32 v{BB[1][bi]}, 32, v{BB[0][bi]}")
        k(f"v_add_u32 v{BBh[0][bi]}, 65536, v{BB[0][bi]}")
        k(f"v_add_u32 v{BBh[1][bi]}, 65536, v{BB[1][bi]}")
    SUMX, SUMW = 22, 23
    k(f"v_mov_b32 v{SUMX}, 0")
    k(f"v_mov_b32 v{SUMW}, 0")
    k("s_mov_b32 s34, 0x3f803f80")
    FR = [24, 40]
    ACC = 56
    for i in range(64): k(f"v_mov_b32 v{ACC + i}, 0")

    def reads(s, kap, fs):
        slot = s % NSL
        hi = slot >= 4
        sb = 0 if hi else slot * 16384
        for ai in range(2):
            a = (AAh if hi else AA)[ai]
            o = sb + kap * 4096
            k(f"ds_read_b64_tr_b16 {vr(fs + 4*ai, 2)}, v{a} offset:{o}")
            k(f"ds_read_b64_tr_b16 {vr(fs + 4*ai + 2, 2)}, v{a} offset:{o + 1024}")
        for bi in range(2):
            b = (BBh if hi else BB)[kap][bi]
            k(f"ds_read_b128 {vr(fs + 8 + 4*bi, 4)}, v{b} offset:{sb}")
    def mfmas(fs):
        for ai in range(2):
            for bi in range(2):
                c = ACC + (2*ai + bi) * 16
                k(f"v_mfma_f32_32x32x16_bf16 {vr(c,16)}, {vr(fs + 4*ai,4)}, {vr(fs + 8 + 4*bi,4)}, {vr(c,16)}")
            src = fs if ai == 0 else fs + 8
            dst = SUMW if ai == 0 else SUMX
            for j in range(4):
                k(f"v_dot2c_f32_bf16 v{dst}, s34, v{src + j}")

    stamp(k, 1)
    k("s_waitcnt vmcnt(12)")
    k("s_barrier")
    stamp(k, 2)
    reads(0, 0, FR[0])
    for s in range(NST):
        reads(s, 1, FR[1])
        k("s_waitcnt lgkmcnt(6)")
        mfmas(FR[0])
        if s + 1 < NST:
            outstanding_after = min(NST - 1, s + 3) - (s + 1)
            k(f"s_waitcnt vmcnt({4 * outstanding_after})")
            k("s_waitcnt lgkmcnt(0)")
            k("s_barrier")
            if s + 4 < NST: dma(s + 4)
            reads(s + 1, 0, FR[0])
            k("s_nop 0")
        else:
            k("s_waitcnt lgkmcnt(0)")
        mfmas(FR[1])
    stamp(k, 3)
    k("s_barrier")
    k(f"v_mov_b32 v24, v{SUMX}")
    k(f"v_mov_b32 v25, v{SUMW}")
    k(f"v_permlane32_swap_b32 v{SUMX}, v24")
    k(f"v_permlane32_swap_b32 v{SUMW}, v25")
    k(f"v_add_f32 v{SUMX}, v{SUMX}, v24")
    k(f"v_add_f32 v{SUMW}, v{SUMW}, v25")
    k(f"v_mul_f32 v{SUMX}, 0x3b124925, v{SUMX}")
    k(f"v_cvt_pk_bf16_f32 v{SUMX}, v{SUMX}, v{SUMX}")
    k(f"v_lshlrev_b32 v{SUMX}, 16, v{SUMX}")
    k("v_and_b32 v3, 31, v1")
    k("v_lshlrev_b32 v3, 2, v3")
    k("s_lshl_b32 s30, s28, 1\n s_add_u32 s30, s30, s15\n s_lshl_b32 s30, s30, 7")
    k("s_lshl_b32 s31, s15, 1\n s_add_u32 s31, s31, s28\n s_lshl_b32 s31, s31, 7\n s_add_u32 s31, s31, 512")
    k("v_add_u32 v8, s30, v3")
    k("v_add_u32 v9, s31, v3")
    k(f"ds_write_b32 v8, v{SUMX}")
    k(f"ds_write_b32 v9, v{SUMW}")
    k("s_waitcnt lgkmcnt(0)")
    k("s_barrier")
    for bi in range(2):
        k(f"s_xor_b32 s30, s15, {bi}\n s_lshl_b32 s31, s28, 1\n s_add_u32 s30, s30, s31\n s_lshl_b32 s30, s30, 7")
        k(f"v_add_u32 v8, s30, v3")
        k(f"ds_read_b32 v{26 + bi}, v8")
    k("v_lshrrev_b32 v9, 5, v1")
    k("v_lshlrev_b32 v9, 4, v9")
    for ai in range(2):
        k(f"s_xor_b32 s30, s28, {ai}\n s_lshl_b32 s31, s15, 1\n s_add_u32 s30, s30, s31\n s_lshl_b32 s30, s30, 7\n s_add_u32 s30, s30, 512")
        k(f"v_add_u32 v8, s30, v9")
        for q in range(4):
            k(f"ds_read_b128 {vr(124 + 16*ai + 4*q, 4)}, v8 offset:{32*q}")
    k("s_waitcnt lgkmcnt(0)")
    k("v_lshlrev_b32 v3, 4, v1")
    for ai in range(2):
        for bi in range(2):
            c = ACC + (2*ai + bi) * 16
            for r in range(16):
                k(f"v_fma_f32 v{c + r}, -v{26 + bi}, v{124 + 16*ai + r}, v{c + r}")
            for j in range(8):
                k(f"v_cvt_pk_bf16_f32 v{c + j}, v{c + 2*j}, v{c + 2*j + 1}")
            for j in range(8):
                k(f"v_pk_max_i16 v{c + j}, v{c + j}, 0")
            k(f"s_xor_b32 s30, s15, {bi}\n s_lshl_b32 s31, s28, 1\n s_add_u32 s30, s30, s31\n s_lshl_b32 s31, s12, 2\n s_add_u32 s30, s30, s31")
            k("s_mul_i32 s30, s30, 112")
            k(f"s_xor_b32 s31, s28, {ai}\n s_lshl_b32 s35, s15, 1\n s_add_u32 s31, s31, s35\n s_lshl_b32 s35, s13, 2\n s_add_u32 s31, s31, s35\n s_lshl_b32 s31, s31, 1")
            k("s_add_u32 s30, s30, s31\n s_lshl_b32 s30, s30, 10")
            k(f"buffer_store_dwordx4 {vr(c,4)}, v3, s[24:27], s30 offen")
            k(f"buffer_store_dwordx4 {vr(c+4,4)}, v3, s[24:27], s30 offen offset:1024")
    stamp(k, 4)
    if STAMP: k("s_waitcnt vmcnt(0)")
    stamp(k, 5)
    stamp_flush(k, 0, 6, 0, 0)
    k("s_endpgm")

def role_ln(k, idx_s):
    k("s_load_dwordx2 s[4:5], s[0:1], 0")
    k("s_load_dwordx2 s[6:7], s[0:1], 88")
    k("s_load_dwordx2 s[8:9], s[0:1], 112")
    k("v_and_b32 v1, 63, v0")
    k("v_lshrrev_b32 v2, 6, v0")
    k("v_readfirstlane_b32 s14, v2")
    k(f"s_lshl_b32 s30, s{idx_s}, 5")
    k("s_lshl_b32 s31, s14, 3")
    k("s_add_u32 s30, s30, s31")
    k("v_lshrrev_b32 v3, 3, v1")
    k("v_add_u32 v4, s30, v3")
    k("v_mul_u32_u24 v5, 896, v4")
    k("v_and_b32 v6, 7, v1")
    k("v_lshl_add_u32 v5, v6, 4, v5")
    k("s_waitcnt lgkmcnt(0)")
    srd(k, 16, 4, 5, 2048 * 896)
    srd(k, 20, 6, 7, 1792 * 896)
    srd(k, 24, 8, 9, XT_SZ, XT_OFF)
    srd(k, 36, 8, 9, RS_SZ, RS_OFF)
    srd(k, 40, 8, 9, W2F_SZ, W2F_OFF)
    X = 8
    for j in range(7):
        k(f"buffer_load_dwordx4 {vr(X + 4*j, 4)}, v5, s[16:19], 0 offen offset:{128*j}")
    W2L = 32768
    k(f"s_cmp_ge_u32 s{idx_s}, 56")
    k("s_cbranch_scc1 L_ln_now2")
    k(f"s_mul_i32 s30, s{idx_s}, 28672")
    k("s_mul_i32 s31, s14, 7168")
    k("s_add_u32 s30, s30, s31")
    k("v_lshlrev_b32 v7, 4, v1")
    for j in range(7):
        k(f"s_add_u32 m0, s31, {W2L + 1024*j}")
        k(f"s_add_u32 s32, s30, {1024*j}")
        k(f"buffer_load_dwordx4 v7, s[20:23], s32 offen lds")
    k("s_waitcnt vmcnt(7)")
    k("s_branch L_ln_cont")
    k.label("L_ln_now2")
    k("s_waitcnt vmcnt(0)")
    k.label("L_ln_cont")
    F = 40
    for j in range(28):
        k(f"v_lshlrev_b32 v{F + 2*j}, 16, v{X + j}")
        k(f"v_and_b32 v{F + 2*j + 1}, 0xffff0000, v{X + j}")
    def reduce8(reg, tmp):
        k(f"v_add_f32_dpp v{reg}, v{reg}, v{reg} quad_perm:[1,0,3,2] row_mask:0xf bank_mask:0xf")
        k(f"v_add_f32_dpp v{reg}, v{reg}, v{reg} quad_perm:[2,3,0,1] row_mask:0xf bank_mask:0xf")
        k(f"v_add_f32_dpp v{reg}, v{reg}, v{reg} row_half_mirror row_mask:0xf bank_mask:0xf")
    k(f"v_add_f32 v96, v{F}, v{F+1}")
    k(f"v_add_f32 v97, v{F+2}, v{F+3}")
    k(f"v_add_f32 v98, v{F+4}, v{F+5}")
    k(f"v_add_f32 v99, v{F+6}, v{F+7}")
    for j in range(8, 56):
        k(f"v_add_f32 v{96 + (j & 3)}, v{96 + (j & 3)}, v{F + j}")
    k("v_add_f32 v96, v96, v97\n v_add_f32 v98, v98, v99\n v_add_f32 v96, v96, v98")
    reduce8(96, 97)
    k("v_mul_f32 v96, 0x3b124925, v96")
    for j in range(4): k(f"v_mov_b32 v{100 + j}, 0")
    for j in range(56):
        k(f"v_sub_f32 v97, v{F + j}, v96") if False else None
    for j in range(0, 56, 4):
        for e in range(4):
            k(f"v_sub_f32 v{104 + e}, v{F + j + e}, v96")
        for e in range(4):
            k(f"v_fmac_f32 v{100 + e}, v{104 + e}, v{104 + e}")
    k("v_add_f32 v100, v100, v101\n v_add_f32 v102, v102, v103\n v_add_f32 v100, v100, v102")
    reduce8(100, 101)
    k("v_mul_f32 v100, 0x3b124925, v100")
    k("v_cvt_pk_bf16_f32 v100, v100, v96")
    k("v_and_b32 v96, 0xffff0000, v100")
    k("v_lshlrev_b32 v100, 16, v100")
    k("v_add_f32 v100, 0x3727c5ac, v100")
    k("v_cvt_pk_bf16_f32 v100, v100, v100")
    k("v_lshlrev_b32 v100, 16, v100")
    k("v_sqrt_f32 v100, v100")
    k("v_cvt_pk_bf16_f32 v100, v100, v100")
    k("v_lshlrev_b32 v100, 16, v100")
    k("v_rcp_f32 v101, v100")
    k("v_fma_f32 v102, -v100, v101, 2.0")
    k("v_mul_f32 v101, v101, v102")
    k("v_lshlrev_b32 v4, 2, v4")
    k("v_cmp_eq_u32 vcc, 0, v6")
    k("s_and_saveexec_b64 s[44:45], vcc")
    k("buffer_store_dword v101, v4, s[36:39], 0 offen")
    k("s_mov_b64 exec, s[44:45]")
    for j in range(28):
        a, b = F + 2*j, F + 2*j + 1
        k(f"v_sub_f32 v{a}, v{a}, v96")
        k(f"v_sub_f32 v{b}, v{b}, v96")
        k(f"v_cvt_pk_bf16_f32 v{X + j}, v{a}, v{b}")
        k(f"v_lshlrev_b32 v{a}, 16, v{X + j}")
        k(f"v_and_b32 v{b}, 0xffff0000, v{X + j}")
        k(f"v_mul_f32 v{a}, v{a}, v101")
        k(f"v_mul_f32 v{b}, v{b}, v101")
        k(f"v_cvt_pk_bf16_f32 v{X + j}, v{a}, v{b}")
    RSTR = 960
    k("s_lshl_b32 s30, s14, 3")
    k("v_add_u32 v3, s30, v3")
    k(f"v_mul_u32_u24 v3, {RSTR}, v3")
    k("v_lshl_add_u32 v3, v6, 4, v3")
    for j in range(7):
        k(f"ds_write_b128 v3, {vr(X + 4*j, 4)} offset:{128*j}")
    k("s_waitcnt lgkmcnt(0)")
    k("s_barrier")
    k("v_bfe_u32 v4, v1, 2, 2")
    k(f"v_mul_u32_u24 v4, {RSTR}, v4")
    k("v_lshrrev_b32 v5, 4, v1")
    k("v_lshlrev_b32 v5, 5, v5")
    k("v_add_u32 v4, v4, v5")
    k("v_and_b32 v5, 3, v1")
    k("v_lshl_add_u32 v4, v5, 3, v4")
    L2B = 61440
    k("s_lshl_b32 s33, s14, 12")
    k(f"s_add_u32 s33, s33, {L2B}")
    k("v_bfe_u32 v6, v1, 1, 2")
    k("v_lshlrev_b32 v7, 6, v1")
    k("v_add_u32 v7, s33, v7")
    for pi in range(4):
        k(f"v_xor_b32 v{100 + pi}, {pi}, v6")
        k(f"v_lshl_add_u32 v{100 + pi}, v{100 + pi}, 4, v7")
    k("v_lshlrev_b32 v104, 4, v1")
    k("v_add_u32 v104, s33, v104")
    k("v_bfe_u32 v105, v1, 3, 2")
    k("v_xor_b32 v105, v105, v1")
    k("v_and_b32 v105, 3, v105")
    k("v_lshrrev_b32 v106, 2, v1")
    k("v_lshlrev_b32 v106, 6, v106")
    k("v_lshl_add_u32 v105, v105, 4, v106")
    k(f"s_mul_i32 s34, s{idx_s}, {448*64}")
    for rnd in range(2):
        if rnd == 1:
            k("s_cmp_eq_u32 s14, 3")
            k("s_cbranch_scc1 L_ln_trdone")
        k(f"s_add_u32 s35, s14, {4*rnd}")
        k("s_lshl_b32 s46, s35, 7")
        k("v_add_u32 v107, s46, v4")
        for q in range(8):
            k(f"ds_read_b64_tr_b16 {vr(40 + 2*q, 2)}, v107 offset:{4*q*RSTR}")
        k("s_waitcnt lgkmcnt(0)")
        for pi in range(4):
            k(f"ds_write_b128 v{100 + pi}, {vr(40 + 4*pi, 4)}")
        k("s_waitcnt lgkmcnt(0)")
        for i2 in range(4):
            k(f"ds_read_b128 {vr(60 + 4*i2, 4)}, v104 offset:{1024*i2}")
        k("s_lshl_b32 s46, s35, 12")
        k("s_add_u32 s46, s46, s34")
        k("s_waitcnt lgkmcnt(0)")
        for i2 in range(4):
            k(f"buffer_store_dwordx4 {vr(60 + 4*i2, 4)}, v105, s[24:27], s46 offen offset:{1024*i2}")
    k.label("L_ln_trdone")
    k(f"s_cmp_ge_u32 s{idx_s}, 56")
    k("s_cbranch_scc1 L_ln_end")
    k("s_waitcnt vmcnt(0)")
    k("s_barrier")
    k("v_lshrrev_b32 v4, 5, v1")
    k("v_bfe_u32 v5, v1, 2, 2")
    k("v_lshl_add_u32 v4, v4, 2, v5")
    k("v_mul_u32_u24 v4, 896, v4")
    k("v_bfe_u32 v5, v1, 4, 1")
    k("v_lshl_add_u32 v4, v5, 5, v4")
    k("v_and_b32 v5, 3, v1")
    k("v_lshl_add_u32 v4, v5, 3, v4")
    k(f"v_add_u32 v4, {W2L}, v4")
    k("v_lshlrev_b32 v5, 4, v1")
    k("s_lshr_b32 s30, s14, 1")
    k("s_and_b32 s31, s14, 1")
    k("s_mul_i32 s31, s31, 7")
    k(f"s_mul_i32 s32, s30, {16*896}")
    k("s_lshl_b32 s33, s31, 6")
    k("s_add_u32 s32, s32, s33")
    k("v_add_u32 v4, s32, v4")
    k(f"s_lshl_b32 s33, s{idx_s}, 1\n s_add_u32 s33, s33, s30\n s_mul_i32 s33, s33, 14\n s_add_u32 s33, s33, s31\n s_lshl_b32 s33, s33, 10")
    for j in range(7):
        k(f"ds_read_b64_tr_b16 {vr(40 + 4*j, 2)}, v4 offset:{64*j}")
        k(f"ds_read_b64_tr_b16 {vr(40 + 4*j + 2, 2)}, v4 offset:{64*j + 8*896}")
    k("s_waitcnt lgkmcnt(0)")
    for j in range(7):
        k(f"s_add_u32 s35, s33, {1024*j}")
        k(f"buffer_store_dwordx4 {vr(40 + 4*j, 4)}, v5, s[40:43], s35 offen")
    k.label("L_ln_end")
    k("s_endpgm")

def role_g2(k, use_z=True):
    stamp(k, 8); stamp(k, 0)
    k("s_load_dwordx2 s[4:5], s[0:1], 0")
    k("s_load_dwordx2 s[6:7], s[0:1], 96")
    k("s_load_dwordx2 s[8:9], s[0:1], 112")
    k("s_and_b32 s10, s2, 7")
    k("s_lshr_b32 s11, s2, 3")
    k("s_and_b32 s12, s11, 3")
    k("s_lshl_b32 s13, s10, 2")
    k("s_add_u32 s12, s12, s13")
    k("s_lshr_b32 s13, s11, 2")
    k("s_mov_b32 s56, s12")
    k("s_mov_b32 s57, s13")
    if "sameT" in EXP: k("s_mov_b32 s56, 0")
    if "sameD" in EXP: k("s_mov_b32 s57, 0")
    k("v_and_b32 v1, 63, v0")
    k("v_lshrrev_b32 v2, 6, v0")
    k("v_readfirstlane_b32 s14, v2")
    k("v_lshlrev_b32 v3, 4, v1")
    k("s_waitcnt lgkmcnt(0)")
    srd(k, 16, 4, 5, 2048 * 896)
    srd(k, 20, 6, 7, 2048 * 896)
    srd(k, 24, 8, 9, HF_SZ, HF_OFF)
    srd(k, 52, 8, 9, W2F_SZ, W2F_OFF)
    srd(k, 36, 8, 9, RS_SZ, RS_OFF)
    srd(k, 40, 8, 9, ZT_SZ, ZT_OFF)
    k("s_mul_i32 s30, s14, 28")
    k("s_mul_i32 s31, s30, 14\n s_lshl_b32 s32, s57, 1\n s_add_u32 s31, s31, s32\n s_lshl_b32 s31, s31, 10")
    k("s_lshl_b32 s32, s56, 1\n s_mul_i32 s32, s32, 112\n s_add_u32 s32, s32, s30\n s_lshl_b32 s32, s32, 10")
    k(f"s_add_u32 s33, s32, {112*1024}")
    RED = 0
    ZL = 49152
    XL = 57344
    OL = 65536
    k("v_lshrrev_b32 v4, 3, v1")
    k("s_lshl_b32 s34, s14, 4")
    k("v_add_u32 v4, s34, v4")
    k("v_lshrrev_b32 v5, 1, v4")
    k("v_xor_b32 v5, v5, v1")
    k("v_and_b32 v5, 7, v5")
    k("s_lshl_b32 s34, s12, 6")
    k("v_add_u32 v6, s34, v4")
    k("v_mul_u32_u24 v6, 896, v6")
    k("v_lshl_add_u32 v6, v5, 4, v6")
    k("s_lshl_b32 s35, s13, 7")
    k("v_add_u32 v6, s35, v6")
    k("v_xor_b32 v7, 64, v6")
    k(f"v_add_u32 v7, {8*896}, v7")
    k("s_lshl_b32 s34, s14, 11")
    k(f"s_add_u32 m0, s34, {XL}")
    k("buffer_load_dwordx4 v6, s[16:19], 0 offen lds")
    k(f"s_add_u32 m0, s34, {XL + 1024}")
    k("buffer_load_dwordx4 v7, s[16:19], 0 offen lds")
    k("v_and_b32 v8, 31, v1")
    k("s_lshr_b32 s34, s14, 1\n s_lshl_b32 s34, s34, 5\n s_lshl_b32 s35, s12, 6\n s_add_u32 s34, s34, s35")
    k("v_add_u32 v8, s34, v8")
    k("v_lshlrev_b32 v8, 2, v8")
    k("buffer_load_dword v9, v8, s[36:39], 0 offen")
    NPRE = 3
    ACC = 16
    FR = 80
    DEPTH = 4 if 'd4' in EXP else (10 if 'd10' in EXP else 8)
    for i in range(64): k(f"v_mov_b32 v{ACC + i}, 0")
    def loads(j):
        f = FR + 16 * (j % DEPTH)
        k(f"s_add_u32 s46, s31, {j * 14 * 1024}")
        k(f"buffer_load_dwordx4 {vr(f,4)}, v3, s[52:55], s46 offen")
        k(f"buffer_load_dwordx4 {vr(f+4,4)}, v3, s[52:55], s46 offen offset:1024")
        k(f"s_add_u32 s47, s32, {j * 1024}")
        k(f"s_add_u32 s48, s33, {j * 1024}")
        k(f"buffer_load_dwordx4 {vr(f+8,4)}, v3, s[24:27], s47 offen")
        k(f"buffer_load_dwordx4 {vr(f+12,4)}, v3, s[24:27], s48 offen")
    NK = 28
    for j in range(DEPTH): loads(j)
    stamp(k, 1)
    for j in range(NK):
        if j == 1: stamp(k, 2)
        remaining = min(NK - 1, j + DEPTH - 1) - j
        k(f"s_waitcnt vmcnt({4 * remaining})")
        f = FR + 16 * (j % DEPTH)
        for di in range(2):
            for ti in range(2):
                c = ACC + (2*ti + di) * 16
                if "noMFMA" not in EXP:
                    k(f"v_mfma_f32_32x32x16_bf16 {vr(c,16)}, {vr(f + 4*di,4)}, {vr(f + 8 + 4*ti,4)}, {vr(c,16)}")
        if j + DEPTH < NK:
            loads(j + DEPTH)
    stamp(k, 3)
    if use_z:
        k("v_lshrrev_b32 v4, 3, v1")
        k("s_lshl_b32 s34, s14, 4\n s_lshl_b32 s35, s13, 6\n s_add_u32 s34, s34, s35")
        k("v_add_u32 v4, s34, v4")
        k("v_lshlrev_b32 v4, 12, v4")
        k("v_and_b32 v5, 7, v1")
        k("v_lshl_add_u32 v4, v5, 4, v4")
        k("s_lshl_b32 s35, s12, 7")
        k("v_add_u32 v4, s35, v4")
        k(f"v_add_u32 v5, {8*4096}, v4")
        k("s_lshl_b32 s34, s14, 11")
        k(f"s_add_u32 m0, s34, {ZL}")
        k("buffer_load_dwordx4 v4, s[40:43], 0 offen lds")
        k(f"s_add_u32 m0, s34, {ZL + 1024}")
        k("buffer_load_dwordx4 v5, s[40:43], 0 offen lds")
    k("s_nop 7")
    for o in range(4):
        k(f"s_cmp_eq_u32 s14, {o}")
        k(f"s_cbranch_scc1 L_g2_skip{o}")
        k(f"s_sub_u32 s34, s14, {o + 1}")
        k("s_and_b32 s34, s34, 3")
        k(f"s_add_u32 s34, s34, {3*o}")
        k("s_lshl_b32 s34, s34, 12")
        k("v_add_u32 v4, s34, v3")
        for q in range(4):
            k(f"ds_write_b128 v4, {vr(ACC + 16*o + 4*q, 4)} offset:{RED + 1024*q}")
        k.label(f"L_g2_skip{o}")
    k("s_waitcnt vmcnt(0) lgkmcnt(0)")
    k("s_barrier")
    for o in range(4):
        k(f"s_cmp_lg_u32 s14, {o}")
        k(f"s_cbranch_scc1 L_g2_mv{o}")
        for r in range(16): k(f"v_mov_b32 v{80 + r}, v{ACC + 16*o + r}")
        k.label(f"L_g2_mv{o}")
    k("s_mul_i32 s34, s14, 12288")
    k("v_add_u32 v4, s34, v3")
    for sl in range(3):
        for q in range(4):
            k(f"ds_read_b128 {vr(96 + 16*sl + 4*q, 4)}, v4 offset:{RED + 4096*sl + 1024*q}")
    k("s_and_b32 s34, s14, 1")
    k("s_lshr_b32 s35, s14, 1")
    if use_z:
        k("v_lshrrev_b32 v5, 5, v1")
        k("v_bfe_u32 v6, v1, 2, 2")
        k("v_lshl_add_u32 v5, v5, 2, v6")
        k("v_lshlrev_b32 v5, 7, v5")
        k("v_bfe_u32 v6, v1, 4, 1")
        k("v_lshl_add_u32 v5, v6, 5, v5")
        k("v_and_b32 v6, 3, v1")
        k("v_lshl_add_u32 v5, v6, 3, v5")
        k("s_lshl_b32 s46, s34, 12\n s_lshl_b32 s47, s35, 6\n s_add_u32 s46, s46, s47")
        k("v_add_u32 v5, s46, v5")
        for q in range(4):
            k(f"ds_read_b64_tr_b16 {vr(144 + 2*q, 2)}, v5 offset:{ZL + 1024*q}")
    k("v_and_b32 v5, 31, v1")
    k("s_lshl_b32 s46, s35, 5")
    k("v_add_u32 v5, s46, v5")
    k("v_bfe_u32 v6, v5, 1, 3")
    k("s_lshl_b32 s47, s34, 2")
    k("v_xor_b32 v6, s47, v6")
    k("v_lshlrev_b32 v7, 7, v5")
    k("v_lshrrev_b32 v10, 5, v1")
    k("v_lshl_add_u32 v7, v10, 3, v7")
    for q in range(4):
        k(f"v_xor_b32 v10, {q}, v6")
        k(f"v_lshl_add_u32 v10, v10, 4, v7")
        k(f"ds_read_b64 {vr(152 + 2*q, 2)}, v10 offset:{XL}")
    k("s_waitcnt lgkmcnt(0)")
    for r in range(16):
        k(f"v_add_f32 v{80 + r}, v{80 + r}, v{96 + r}")
        k(f"v_add_f32 v{112 + r}, v{112 + r}, v{128 + r}")
    for r in range(16):
        k(f"v_add_f32 v{80 + r}, v{80 + r}, v{112 + r}")
    for q in range(4):
        for hh in range(2):
            src = 152 + 2*q + hh
            k(f"v_lshlrev_b32 v{96 + 4*q + 2*hh}, 16, v{src}")
            k(f"v_and_b32 v{96 + 4*q + 2*hh + 1}, 0xffff0000, v{src}")
            if use_z:
                zs = 144 + 2*q + hh
                k(f"v_lshlrev_b32 v112, 16, v{zs}")
                k(f"v_and_b32 v113, 0xffff0000, v{zs}")
                k(f"v_add_f32 v{96 + 4*q + 2*hh}, v{96 + 4*q + 2*hh}, v112")
                k(f"v_add_f32 v{96 + 4*q + 2*hh + 1}, v{96 + 4*q + 2*hh + 1}, v113")
    for r in range(16):
        k(f"v_fma_f32 v{80 + r}, v9, v{80 + r}, v{96 + r}")
    for j in range(8):
        k(f"v_cvt_pk_bf16_f32 v{80 + j}, v{80 + 2*j}, v{80 + 2*j + 1}")
    k("s_lshl_b32 s46, s14, 11")
    k(f"s_add_u32 s46, s46, {OL}")
    k("v_and_b32 v5, 31, v1")
    k("v_bfe_u32 v6, v5, 1, 2")
    k("v_lshlrev_b32 v7, 6, v5")
    k("v_lshrrev_b32 v10, 5, v1")
    k("v_lshl_add_u32 v7, v10, 3, v7")
    k("v_add_u32 v7, s46, v7")
    for q in range(4):
        k(f"v_xor_b32 v10, {q}, v6")
        k(f"v_lshl_add_u32 v10, v10, 4, v7")
        k(f"ds_write_b64 v10, {vr(80 + 2*q, 2)}")
    k("s_waitcnt lgkmcnt(0)")
    k("v_add_u32 v4, s46, v3")
    k("ds_read_b128 v[96:99], v4")
    k("ds_read_b128 v[100:103], v4 offset:1024")
    k("v_bfe_u32 v5, v1, 3, 2")
    k("v_xor_b32 v5, v5, v1")
    k("v_and_b32 v5, 3, v5")
    k("v_lshrrev_b32 v6, 2, v1")
    k("s_lshl_b32 s46, s12, 6\n s_lshl_b32 s47, s35, 5\n s_add_u32 s46, s46, s47")
    k("v_add_u32 v6, s46, v6")
    k("v_mul_u32_u24 v6, 896, v6")
    k("v_lshl_add_u32 v6, v5, 4, v6")
    k("s_lshl_b32 s46, s13, 7\n s_lshl_b32 s47, s34, 6\n s_add_u32 s46, s46, s47")
    k("v_add_u32 v6, s46, v6")
    k(f"v_add_u32 v7, {16*896}, v6")
    k("s_waitcnt lgkmcnt(0)")
    k("buffer_store_dwordx4 v[96:99], v6, s[20:23], 0 offen")
    k("buffer_store_dwordx4 v[100:103], v7, s[20:23], 0 offen")
    stamp(k, 4)
    if STAMP: k("s_waitcnt vmcnt(0)")
    stamp(k, 5)
    stamp_flush(k, 1, 6, 2, 3)
    k("s_endpgm")

def cmul(k, o, x, y, t):
    k(f"v_pk_mul_f32 {vr(t,2)}, {vr(x,2)}, {vr(y,2)} op_sel:[0,0] op_sel_hi:[1,0]")
    k(f"v_pk_fma_f32 {vr(o,2)}, {vr(x,2)}, {vr(y,2)}, {vr(t,2)} op_sel:[1,1,0] op_sel_hi:[0,1,1] neg_lo:[1,0,0]")

def role_kgen(k, idx_s):
    stamp(k, 8); stamp(k, 0)
    k("s_load_dwordx16 s[56:71], s[0:1], 8")
    k("s_load_dwordx2 s[8:9], s[0:1], 112")
    k("v_and_b32 v1, 63, v0")
    k("v_lshrrev_b32 v2, 6, v0")
    k("v_readfirstlane_b32 s14, v2")
    k("s_lshr_b32 s15, s14, 1")
    k("s_and_b32 s28, s14, 1")
    k(f"s_lshl_b32 s29, s{idx_s}, 1")
    k("s_add_u32 s29, s29, s15")
    k("s_lshl_b32 s30, s29, 9")
    k("s_lshl_b32 s31, s28, 8")
    k("s_add_u32 s30, s30, s31")
    k("v_lshlrev_b32 v3, 2, v1")
    k("v_add_u32 v3, s30, v3")
    k("s_lshl_b32 s31, s29, 1")
    k("v_mov_b32 v4, s31")
    k("s_waitcnt lgkmcnt(0)")
    PSZ = 448 * 512
    for i in range(6):
        srd(k, 16, 56 + 2*i, 57 + 2*i, PSZ)
        k(f"buffer_load_dword v{8 + i}, v3, s[16:19], 0 offen")
    srd(k, 20, 68, 69, 896)
    k("buffer_load_ushort v14, v4, s[20:23], 0 offen")
    srd(k, 24, 8, 9, KR_SZ, KR_OFF)
    WSTR = 14464
    k(f"s_mul_i32 s33, s14, {WSTR}")
    k("v_lshlrev_b32 v5, 2, v1")
    k("v_add_u32 v5, s33, v5")
    k("v_and_b32 v6, 31, v1")
    k("v_mul_u32_u24 v6, 272, v6")
    k("v_lshrrev_b32 v7, 5, v1")
    k("v_lshl_add_u32 v6, v7, 4, v6")
    k("v_add_u32 v6, s33, v6")
    ACC = 112
    for i in range(16): k(f"v_mov_b32 v{ACC + i}, 0")
    k("s_waitcnt vmcnt(0)")
    stamp(k, 1)
    k("v_lshlrev_b32 v14, 16, v14")
    k("v_mul_f32 v15, 0x3fb8aa3b, v14")
    k("s_mov_b32 s34, 0x3fb8aa3b")
    k("v_fma_f32 v16, v14, s34, -v15")
    k("s_mov_b32 s34, 0x32a57060")
    k("v_fma_f32 v16, v14, s34, v16")
    k("v_exp_f32 v15, v15")
    k("v_mul_f32 v16, 0x3f317218, v16")
    k("v_fma_f32 v15, v15, v16, v15")
    k("v_cvt_pk_bf16_f32 v15, v15, v15")
    k("v_lshlrev_b32 v15, 16, v15")
    E1, Z2, Z4, E256 = 20, 22, 24, 26
    Q = [28, 30, 32, 34]
    E32 = 36
    P = 38
    PH = 40
    PT = 42
    T0, T1, T2 = 44, 46, 48
    for it in range(2):
        def ext(dst, src):
            if it == 0: k(f"v_lshlrev_b32 v{dst}, 16, v{src}")
            else: k(f"v_and_b32 v{dst}, 0xffff0000, v{src}")
        ext(50, 8); ext(51, 9)
        ext(52, 10); ext(53, 11)
        ext(54, 12); ext(55, 13)
        k("v_mul_f32 v18, v15, v50")
        k("v_mul_f32 v18, 0x3fb8aa3b, v18")
        k("v_mul_f32 v19, v15, v51")
        k("v_mul_f32 v19, 0.15915494, v19")
        k("v_mul_f32 v52, v15, v52")
        k("v_mul_f32 v53, v15, v53")
        cmul(k, 16, 54, 52, T0)
        def E(dst, l, tmp):
            lit = {1: "1.0", 8: "0x41000000", 16: "0x41800000", 24: "0x41c00000", 32: "0x42000000", 256: "0x43800000"}[l]
            k(f"v_mul_f32 v{tmp}, {lit}, v18")
            k(f"v_mul_f32 v{tmp+1}, {lit}, v19")
            k(f"v_exp_f32 v{tmp}, v{tmp}")
            k(f"v_fract_f32 v{tmp+1}, v{tmp+1}")
            k(f"v_cos_f32 v{dst}, v{tmp+1}")
            k(f"v_sin_f32 v{dst+1}, v{tmp+1}")
            k(f"v_mul_f32 v{dst}, v{dst}, v{tmp}")
            k(f"v_mul_f32 v{dst+1}, v{dst+1}, v{tmp}")
        E(E1, 1, T0); E(E256, 256, T1); E(Q[1], 8, T2); E(Q[2], 16, T0); E(Q[3], 24, T1); E(E32, 32, T2)
        k(f"v_mov_b32 v{Q[0]}, 1.0")
        k(f"v_mov_b32 v{Q[0]+1}, 0")
        def wrA(h, r):
            k(f"v_cvt_pk_bf16_f32 v56, v{r}, -v{r+1}") if False else None
        cnt = [0]
        def put(col, r, neg):
            tmp = 56 + (cnt[0] % 8); cnt[0] += 1
            k(f"v_cvt_pk_bf16_f32 v{tmp}, v{r}, {'-' if neg else ''}v{r+1}")
            k(f"ds_write_b32 v5, v{tmp} offset:{col * 272}")
        cmul(k, Z2, E1, E1, T0)
        cmul(k, Z4, Z2, Z2, T1)
        ops = []
        put(0, 16, True)
        for c in range(4): put(21 + c, Q[c], False)
        k(f"v_mov_b32 v{P}, v16\n v_mov_b32 v{P+1}, v17")
        cmul(k, PH, 16, E256, T2)
        put(8, PH, True)
        lowP = list(range(1, 8))
        high = [("side2", 9), ("side2c", 10), ("side2c", 11), ("up", 12), ("side4", 13), ("up", 14), ("side4", 15), ("up", 16), ("up", 17), ("up", 18), ("up", 19), ("up", 20)]
        for i in range(1, 8):
            for c in range(4):
                cmul(k, Q[c], Q[c], E32, [T0, T1][c & 1])
                put(21 + c + 4*i, Q[c], False)
            if lowP:
                h = lowP.pop(0)
                cmul(k, P, P, E1, T2)
                put(h, P, True)
            for _ in range(2):
                if high:
                    kind, h = high.pop(0)
                    if kind == "side2": cmul(k, PT, PH, Z2, T2); put(h, PT, True)
                    elif kind == "side2c": cmul(k, PT, PT, Z2, T2); put(h, PT, True)
                    elif kind == "side4": cmul(k, PT, PH, Z4, T2); put(h, PT, True)
                    else: cmul(k, PH, PH, E256, T2); put(h, PH, True)
        assert not lowP and not high
        k("s_waitcnt lgkmcnt(0)")
        for ks in range(8):
            fa = 64 + 8 * (ks % 4)
            k(f"ds_read_b128 {vr(fa,4)}, v6 offset:{32*ks}")
            k(f"ds_read_b128 {vr(fa+4,4)}, v6 offset:{32*ks + 21*272}")
            if ks >= 3 or True:
                pass
        k.lines = k.lines[:-16]
        for half in range(2):
            for ks in range(4*half, 4*half + 4):
                fa = 64 + 8 * (ks % 4)
                k(f"ds_read_b128 {vr(fa,4)}, v6 offset:{32*ks}")
                k(f"ds_read_b128 {vr(fa+4,4)}, v6 offset:{32*ks + 21*272}")
            for ks in range(4*half, 4*half + 4):
                fa = 64 + 8 * (ks % 4)
                k(f"s_waitcnt lgkmcnt({2*(3 - (ks % 4))})")
                k(f"v_mfma_f32_32x32x16_bf16 {vr(ACC,16)}, {vr(fa,4)}, {vr(fa+4,4)}, {vr(ACC,16)}")
    stamp(k, 2)
    k("s_barrier")
    XB = 0; TB = 8192
    k("v_lshlrev_b32 v3, 4, v1")
    k("s_mul_i32 s30, s15, 3072")
    k("v_add_u32 v3, s30, v3")
    k("s_cmp_eq_u32 s28, 0")
    k("s_cbranch_scc1 L_kg_a")
    k("s_nop 7\n s_nop 3")
    for q in range(3): k(f"ds_write_b128 v3, {vr(ACC + 4*q, 4)} offset:{XB + 1024*q}")
    k("s_waitcnt lgkmcnt(0)")
    k.label("L_kg_a")
    k("s_barrier")
    k("s_mul_i32 s31, s15, 1536")
    k(f"s_add_u32 s31, s31, {TB}")
    k("s_cmp_eq_u32 s28, 0")
    k("s_cbranch_scc0 L_kg_b")
    for q in range(3): k(f"ds_read_b128 {vr(64 + 4*q, 4)}, v3 offset:{XB + 1024*q}")
    k("s_waitcnt lgkmcnt(0)")
    for r in range(12): k(f"v_add_f32 v{ACC + r}, v{ACC + r}, v{64 + r}")
    for j in range(6): k(f"v_cvt_pk_bf16_f32 v{80 + j}, v{ACC + 2*j}, v{ACC + 2*j + 1}")
    k("v_and_b32 v6, 31, v1")
    k("v_lshrrev_b32 v7, 5, v1")
    k("v_lshlrev_b32 v8, 4, v6")
    k("v_lshl_add_u32 v8, v7, 3, v8")
    k("v_add_u32 v8, s31, v8")
    k("ds_write_b64 v8, v[80:81]")
    k("v_lshlrev_b32 v9, 3, v6\n v_add_u32 v9, s31, v9")
    k("v_lshlrev_b32 v10, 2, v6\n v_add_u32 v10, s31, v10")
    k("v_lshlrev_b32 v11, 1, v6\n v_add_u32 v11, s31, v11")
    k("s_mov_b64 s[36:37], exec")
    k("s_mov_b32 exec_lo, -1\n s_mov_b32 exec_hi, 0")
    k("ds_write_b64 v9, v[82:83] offset:512")
    k("ds_write_b16 v11, v84 offset:1024")
    k("ds_write_b16_d16_hi v11, v84 offset:1088")
    k("ds_write_b16 v11, v85 offset:1152")
    k("ds_write_b16_d16_hi v11, v85 offset:1216")
    k("s_mov_b32 exec_lo, 0\n s_mov_b32 exec_hi, -1")
    k("ds_write_b32 v10, v82 offset:768")
    k("ds_write_b32 v10, v83 offset:896")
    k("ds_write_b16 v11, v84 offset:1280")
    k("s_mov_b64 exec, s[36:37]")
    k("s_waitcnt lgkmcnt(0)")
    k.label("L_kg_b")
    k("s_barrier")
    k("s_lshl_b32 s30, s28, 6")
    k("v_add_u32 v3, s30, v1")
    for c in range(2):
        k(f"v_lshlrev_b32 v4, 3, v3")
        k(f"v_sub_u32 v4, {2047 - 1024*c}, v4")
        for e in range(8):
            k(f"v_subrev_u32 v{16 + e}, {e}, v4")
        for e in range(8):
            k(f"v_cvt_f32_u32 v{24 + e}, v{16 + e}")
        for e in range(0, 8, 2):
            k(f"v_cvt_pk_bf16_f32 v{32 + e//2}, v{24 + e}, v{24 + e + 1}")
        for e in range(8):
            if e % 2 == 0: k(f"v_and_b32 v{24 + e}, 0xffff, v{32 + e//2}")
            else: k(f"v_lshrrev_b32 v{24 + e}, 16, v{32 + e//2}")
        for e in range(8):
            k(f"v_add_u32 v{24 + e}, {(-0x4300 + 128) & 0xffffffff}, v{24 + e}")
        for e in range(8):
            k(f"v_cmp_gt_u32 vcc, 128, v{16 + e}")
            k(f"v_cndmask_b32 v{24 + e}, v{24 + e}, v{16 + e}, vcc")
        for e in range(8):
            k(f"v_lshl_add_u32 v{24 + e}, v{24 + e}, 1, s31")
        base = 40 + 4*c
        for e in range(8):
            if e % 2 == 0: k(f"ds_read_u16 v{base + e//2}, v{24 + e}")
            else: k(f"ds_read_u16_d16_hi v{48 + 4*c + e//2}, v{24 + e}")
    k("s_lshl_b32 s30, s29, 12")
    k("v_lshlrev_b32 v4, 4, v3")
    k("s_waitcnt lgkmcnt(0)")
    for i in range(8):
        k(f"v_and_b32 v{48 + i}, 0xffff0000, v{48 + i}")
        k(f"v_or_b32 v{40 + i}, v{40 + i}, v{48 + i}")
    k("buffer_store_dwordx4 v[40:43], v4, s[24:27], s30 offen")
    k("buffer_store_dwordx4 v[44:47], v4, s[24:27], s30 offen offset:2048")
    stamp(k, 3)
    stamp_flush(k, 0, 4, 0, 1)
    k("s_endpgm")

def role_conv(k, idx_s):
    stamp(k, 8); stamp(k, 0)
    k("s_load_dwordx2 s[6:7], s[0:1], 64")
    k("s_load_dwordx2 s[8:9], s[0:1], 112")
    k("v_and_b32 v1, 63, v0")
    k("v_lshrrev_b32 v2, 6, v0")
    k("v_readfirstlane_b32 s14, v2")
    k("s_lshr_b32 s15, s14, 1")
    k("s_and_b32 s28, s14, 1")
    k(f"s_lshl_b32 s29, s{idx_s}, 1")
    k("s_add_u32 s29, s29, s15")
    CSTR = 4160; CH = 37888
    k(f"s_mul_i32 s33, s15, {CH}")
    k(f"s_add_u32 s34, s33, {8*CSTR}")
    k("s_waitcnt lgkmcnt(0)")
    srd(k, 16, 8, 9, KR_SZ, KR_OFF)
    srd(k, 20, 8, 9, XT_SZ, XT_OFF)
    srd(k, 24, 8, 9, ZT_SZ, ZT_OFF)
    srd(k, 36, 6, 7, 896)
    k("s_lshl_b32 s30, s28, 6")
    k("v_add_u32 v3, s30, v1")
    k("v_lshlrev_b32 v4, 4, v3")
    k("s_lshl_b32 s30, s29, 12")
    k("buffer_load_dwordx4 v[8:11], v4, s[16:19], s30 offen")
    k("buffer_load_dwordx4 v[12:15], v4, s[16:19], s30 offen offset:16")
    k("buffer_load_dwordx4 v[16:19], v4, s[16:19], s30 offen offset:2048")
    k("buffer_load_dwordx4 v[20:23], v4, s[16:19], s30 offen offset:2064")
    k("v_lshrrev_b32 v5, 2, v1")
    k("s_lshl_b32 s30, s28, 5")
    k("v_add_u32 v5, s30, v5")
    k("v_mul_u32_u24 v5, 28672, v5")
    k("v_and_b32 v6, 3, v1")
    k("v_lshl_add_u32 v5, v6, 4, v5")
    k("s_lshl_b32 s30, s29, 6")
    k("v_add_u32 v5, s30, v5")
    k(f"v_add_u32 v6, {16*28672}, v5")
    k("s_lshl_b32 s30, s28, 11")
    k("s_add_u32 s30, s30, s34")
    k("s_add_u32 m0, s30, 512")
    k("buffer_load_dwordx4 v5, s[20:23], 0 offen lds")
    k("s_add_u32 m0, s30, 1536")
    k("buffer_load_dwordx4 v6, s[20:23], 0 offen lds")
    k("s_lshl_b32 s30, s29, 1")
    k("v_mov_b32 v7, s30")
    k("buffer_load_ushort v24, v7, s[36:39], 0 offen")
    for i in range(4): k(f"v_mov_b32 v{28 + i}, 0")
    k("v_lshlrev_b32 v25, 4, v1")
    k("v_add_u32 v25, s34, v25")
    k("v_subrev_u32 v26, 32, v1")
    k(f"v_mul_u32_u24 v26, {CSTR}, v26")
    k("v_add_u32 v26, s33, v26")
    k("v_add_u32 v26, 4096, v26")
    k("v_cmp_gt_u32 vcc, 32, v1")
    k("v_cndmask_b32 v25, v26, v25, vcc")
    k("v_cmp_gt_u32 vcc, 40, v1")
    k("s_and_saveexec_b64 s[40:41], vcc")
    k("ds_write_b128 v25, v[28:31]")
    k("s_mov_b64 exec, s[40:41]")
    k("s_waitcnt vmcnt(3)")
    k("v_cmp_eq_u32 vcc, 127, v3")
    for i in range(4): k(f"v_cndmask_b32 v{20 + i}, v{20 + i}, v28, vcc")
    k("v_lshlrev_b32 v27, 4, v3")
    k("v_add_u32 v27, s33, v27")
    for c in range(2):
        Dr = 8 + 8*c
        Ee = 32; Eo = 40; Do = 48
        for i in range(7): k(f"v_alignbit_b32 v{Ee + i}, v{Dr + i + 1}, v{Dr + i}, 16")
        for i in range(6): k(f"v_alignbit_b32 v{Eo + i}, v{Dr + i + 2}, v{Dr + i + 1}, 16")
        for i in range(6): k(f"v_mov_b32 v{Do + i}, v{Dr + i + 1}")
        src = {0: Dr, 1: Ee, 2: Do, 3: Eo, 4: Dr + 2, 5: Ee + 2, 6: Do + 2, 7: Eo + 2}
        for s_ in range(8):
            k(f"ds_write_b128 v27, {vr(src[s_], 4)} offset:{s_*CSTR + 2048*c}")
        if c == 0: k("s_waitcnt lgkmcnt(0)")
    k("s_waitcnt vmcnt(0) lgkmcnt(0)")
    k("s_barrier")
    stamp(k, 1)
    k("v_and_b32 v3, 7, v1")
    k("v_sub_u32 v3, 7, v3")
    k(f"v_mul_u32_u24 v3, {CSTR}, v3")
    k("v_bfe_u32 v4, v1, 3, 1")
    k("v_bfe_u32 v5, v1, 5, 1")
    k("v_bfe_u32 v6, v1, 4, 1")
    k("v_lshl_add_u32 v7, v5, 1, v4")
    k("v_sub_u32 v7, v6, v7")
    k("v_lshlrev_b32 v7, 4, v7")
    k("v_add_u32 v3, v3, v7")
    k(f"s_add_u32 s30, s33, {255*16 - 64*56}")
    k("s_lshl_b32 s31, s28, 8")
    k("s_sub_u32 s30, s30, s31")
    k("v_add_u32 v4, s30, v3")
    k("v_and_b32 v3, 15, v1")
    k("v_sub_u32 v3, v3, v5")
    k("v_lshlrev_b32 v3, 5, v3")
    k("v_lshl_add_u32 v3, v6, 4, v3")
    k("s_add_u32 s30, s34, 512")
    k("s_sub_u32 s30, s30, s31")
    k("v_add_u32 v5, s30, v3")
    ACC = 32
    FA = [64, 128]
    for i in range(32): k(f"v_mov_b32 v{ACC + i}, 0")
    def reads(fs):
        for p1 in range(8):
            k(f"ds_read_b128 {vr(fs + 4*p1, 4)}, v4 offset:{512*(7 - p1)}")
            k(f"ds_read_b128 {vr(fs + 32 + 4*p1, 4)}, v5 offset:{512*p1}")
        k("v_subrev_u32 v4, 64, v4")
        k("v_subrev_u32 v5, 64, v5")
    def mm(fs):
        for p1 in range(8):
            for be in range(8 - p1):
                c = ACC + 4*(p1 + be)
                k(f"v_mfma_f32_16x16x32_bf16 {vr(c,4)}, {vr(fs + 4*p1,4)}, {vr(fs + 32 + 4*be,4)}, {vr(c,4)}")
    reads(FA[0])
    for it in range(4):
        if it < 3:
            reads(FA[(it + 1) & 1])
            k("s_waitcnt lgkmcnt(15)")
            k("s_nop 0")
        else:
            k("s_waitcnt lgkmcnt(0)")
        mm(FA[it & 1])
    stamp(k, 2)
    k("s_barrier")
    k("v_lshlrev_b32 v3, 4, v1")
    k("s_lshl_b32 s30, s14, 12")
    k("v_add_u32 v6, s30, v3")
    k("s_xor_b32 s31, s14, 1")
    k("s_lshl_b32 s31, s31, 12")
    k("v_add_u32 v7, s31, v3")
    k("s_cmp_eq_u32 s28, 0")
    k("s_cbranch_scc0 L_cv_w1")
    for q in range(4): k(f"ds_write_b128 v6, {vr(ACC + 16 + 4*q, 4)} offset:{1024*q}")
    k("s_branch L_cv_w2")
    k.label("L_cv_w1")
    for q in range(4): k(f"ds_write_b128 v6, {vr(ACC + 4*q, 4)} offset:{1024*q}")
    for r in range(16): k(f"v_mov_b32 v{ACC + r}, v{ACC + 16 + r}")
    k.label("L_cv_w2")
    k("s_waitcnt lgkmcnt(0)")
    k("s_barrier")
    for q in range(4): k(f"ds_read_b128 {vr(64 + 4*q, 4)}, v7 offset:{1024*q}")
    k("v_and_b32 v8, 15, v1")
    k("v_lshlrev_b32 v8, 5, v8")
    k("v_lshrrev_b32 v9, 4, v1")
    k("v_lshl_add_u32 v8, v9, 3, v8")
    k("s_lshl_b32 s30, s28, 11")
    k("s_add_u32 s30, s30, s34")
    k("s_add_u32 s30, s30, 512")
    k("v_add_u32 v9, s30, v8")
    for q in range(4): k(f"ds_read_b64 {vr(80 + 2*q, 2)}, v9 offset:{512*q}")
    k("v_lshlrev_b32 v24, 16, v24")
    k("s_waitcnt lgkmcnt(0)")
    for r in range(16): k(f"v_add_f32 v{ACC + r}, v{ACC + r}, v{64 + r}")
    for q in range(4):
        for hh in range(2):
            src = 80 + 2*q + hh
            k(f"v_lshlrev_b32 v10, 16, v{src}")
            k(f"v_and_b32 v11, 0xffff0000, v{src}")
            k(f"v_fmac_f32 v{ACC + 4*q + 2*hh}, v10, v24")
            k(f"v_fmac_f32 v{ACC + 4*q + 2*hh + 1}, v11, v24")
    for j in range(8): k(f"v_cvt_pk_bf16_f32 v{64 + j}, v{ACC + 2*j}, v{ACC + 2*j + 1}")
    k("s_lshl_b32 s30, s14, 11")
    k("s_add_u32 s30, s30, 16384")
    k("v_add_u32 v9, s30, v8")
    for q in range(4): k(f"ds_write_b64 v9, {vr(64 + 2*q, 2)} offset:{512*q}")
    k("v_add_u32 v9, s30, v3")
    k("s_waitcnt lgkmcnt(0)")
    k("ds_read_b128 v[72:75], v9")
    k("ds_read_b128 v[76:79], v9 offset:1024")
    k("s_lshl_b32 s30, s29, 12")
    k("s_lshl_b32 s31, s28, 11")
    k("s_add_u32 s30, s30, s31")
    k("s_waitcnt lgkmcnt(0)")
    k("buffer_store_dwordx4 v[72:75], v3, s[24:27], s30 offen")
    k("buffer_store_dwordx4 v[76:79], v3, s[24:27], s30 offen offset:1024")
    stamp(k, 3)
    stamp_flush(k, 2, 4, 1, 2)
    k("s_endpgm")

def kd(name, vgpr, sgpr=102):
    return f""".amdhsa_kernel {name}
  .amdhsa_next_free_vgpr {vgpr}
  .amdhsa_next_free_sgpr {sgpr}
  .amdhsa_accum_offset {vgpr}
  .amdhsa_group_segment_fixed_size 0
  .amdhsa_kernarg_size 120
  .amdhsa_user_sgpr_count 2
  .amdhsa_user_sgpr_kernarg_segment_ptr 1
  .amdhsa_system_sgpr_workgroup_id_x 1
.end_amdhsa_kernel
"""

def header(launches):
    h = open("cdna_kernels/" + NAME + ".s.ref").read().split("; Override")[0]
    for (kn, g, b, lds) in launches:
        h += f"; @launch kernel={kn} grid=({g},1,1) block=({b},1,1) lds={lds}\n"
    h += '.amdgcn_target "amdgcn-amd-amdhsa--gfx950"\n.text\n'
    return h

def kern_text(name, k):
    return f".globl {name}\n.p2align 8\n.type {name},@function\n{name}:\n" + k.text()

def main(path):
    K1 = NAME + "_kernel"
    k1 = Kern()
    k1("s_cmp_lt_u32 s2, 224")
    k1("s_cbranch_scc1 L_g1")
    k1("s_cmp_lt_u32 s2, 448")
    k1("s_cbranch_scc1 L_kgen")
    k1("s_cmp_lt_u32 s2, 512")
    k1("s_cbranch_scc0 L_k1_exit")
    k1("s_sub_u32 s3, s2, 448")
    role_ln(k1, 3)
    k1.label("L_k1_exit")
    k1("s_endpgm")
    k1.label("L_kgen")
    k1("s_sub_u32 s3, s2, 224")
    role_kgen(k1, 3)
    k1.label("L_g1")
    k1("s_mov_b32 s3, s2")
    role_g1(k1)
    k2 = Kern()
    k2("s_cmp_lt_u32 s2, 224")
    k2("s_cbranch_scc1 L_cv")
    k2("s_endpgm")
    k2.label("L_cv")
    k2("s_mov_b32 s3, s2")
    role_conv(k2, 3)
    k3 = Kern()
    k3("s_cmp_lt_u32 s2, 224")
    k3("s_cbranch_scc1 L_g2")
    k3("s_endpgm")
    k3.label("L_g2")
    k3("s_mov_b32 s3, s2")
    role_g2(k3, use_z=True)
    launches = [(K1, 512, 256, 81920), ("conv_kernel", 224, 256, 81920), ("g2_kernel", 224, 256, 81920)]
    txt = header(launches)
    txt += kern_text(K1, k1) + kern_text("conv_kernel", k2) + kern_text("g2_kernel", k3)
    txt += '.section .rodata,"a"\n.p2align 6\n' + kd(K1, 160) + ".p2align 6\n" + kd("conv_kernel", 192) + ".p2align 6\n" + kd("g2_kernel", 256)
    open(path, "w").write(txt)

if __name__ == "__main__":
    for a in list(sys.argv):
        if a.startswith("--exp="):
            EXP = a[6:].split(","); sys.argv.remove(a)
    if "--dbg" in sys.argv:
        DBGSTAMP = True; STAMP = True; sys.argv.remove("--dbg")
    if "--stamp" in sys.argv:
        STAMP = True; sys.argv.remove("--stamp")
    main(sys.argv[1] if len(sys.argv) > 1 else "cdna_kernels/" + NAME + ".s")
```

```python
import sys
from asmlib import Kern

NAME = "parallel_sum__ssm_conv_s4__dense_activation_relu__prompt"
L, D, DFF, NM = 2048, 448, 1792, 256

XT_OFF = 0x000000
RS_OFF = 0x1C0000
KR_OFF = 0x200000
HF_OFF = 0x400000
W2F_OFF = 0xC00000
ZT_OFF = 0xE00000
FL_OFF = 0x1000000
XT_SZ = 64 * 448 * 64
RS_SZ = 2048 * 4
KR_SZ = 448 * 4096
HF_SZ = 64 * 112 * 1024
W2F_SZ = 112 * 14 * 1024
ZT_SZ = 448 * 4096

def srd(k, d, lo, hi, size, off=0):
    if off:
        k(f"s_add_u32 s{d}, s{lo}, {off}")
        k(f"s_addc_u32 s{d+1}, s{hi}, 0")
    else:
        k(f"s_mov_b32 s{d}, s{lo}")
        k(f"s_mov_b32 s{d+1}, s{hi}")
    k(f"s_mov_b32 s{d+2}, {size}")
    k(f"s_mov_b32 s{d+3}, 0x00020000")

TS_OFF = 0x1100000
STAMP = False
EXP = []
G1MAP = '8x1'
def stamp(k, i):
    if not STAMP: return
    if i < 8: k(f"s_memtime s[{80+2*i}:{81+2*i}]")
    else: k(f"s_memrealtime s[{96+2*(i-8)}:{97+2*(i-8)}]")
DBGSTAMP = False
def stamp_flush(k, kern_idx, n, launch_idx=0, dbg_slot=0):
    if not STAMP: return
    k("s_memrealtime s[98:99]")
    k("s_waitcnt lgkmcnt(0)")
    if DBGSTAMP:
        k("s_cmp_lg_u32 s3, 0")
        k(f"s_cbranch_scc1 L_dbgskip{dbg_slot}")
        k("s_load_dwordx2 s[76:77], s[0:1], 104")
        k("s_load_dwordx2 s[70:71], s[0:1], 112")
        k("s_waitcnt lgkmcnt(0)")
        k("s_mov_b32 s72, s76")
        k("s_mov_b32 s73, s77")
        k("s_mov_b32 s74, 256")
        k("s_mov_b32 s75, 0x00020000")
        k(f"s_add_u32 s64, s70, {TS_OFF}")
        k("s_addc_u32 s65, s71, 0")
        k("s_mov_b32 s66, 256")
        k("s_mov_b32 s67, 0x00020000")
        k("v_cmp_eq_u32 vcc, 0, v0")
        k("s_and_saveexec_b64 s[78:79], vcc")
        k(f"v_mov_b32 v1, {16 * dbg_slot}")
        k("v_mov_b32 v4, s96")
        k("v_mov_b32 v5, s98")
        k(f"s_sub_u32 s76, s{80+2*(n-1)}, s80")
        k("v_mov_b32 v6, s76")
        k(f"s_sub_u32 s76, s82, s80")
        k("v_mov_b32 v7, s76")
        k("buffer_store_dwordx4 v[4:7], v1, s[72:75], 0 offen")
        k("buffer_store_dwordx4 v[4:7], v1, s[64:67], 0 offen")
        if dbg_slot == 3:
            k("v_mov_b32 v1, 0")
            for j in range(3):
                k(f"buffer_load_dwordx4 v[8:11], v1, s[64:67], 0 offen offset:{16*j}")
                k("s_waitcnt vmcnt(0)")
                k(f"buffer_store_dwordx4 v[8:11], v1, s[72:75], 0 offen offset:{16*j}")
                k("s_waitcnt vmcnt(0)")
        k("s_mov_b64 exec, s[78:79]")
        k.label(f"L_dbgskip{dbg_slot}")
        return
    k("s_load_dwordx2 s[76:77], s[0:1], 112")
    k("s_waitcnt lgkmcnt(0)")
    k(f"s_add_u32 s72, s76, {TS_OFF + kern_idx * 0x10000}")
    k("s_addc_u32 s73, s77, 0")
    k("s_mov_b32 s74, 0x10000")
    k("s_mov_b32 s75, 0x00020000")
    k("s_lshl_b32 s76, s2, 6")
    k("v_cmp_eq_u32 vcc, 0, v0")
    k("s_and_saveexec_b64 s[78:79], vcc")
    k("v_mov_b32 v1, s76")
    for i in range(n):
        k(f"v_mov_b32 v2, s{80+2*i}")
        k(f"buffer_store_dword v2, v1, s[72:75], 0 offen offset:{4*i}")
    k("v_mov_b32 v2, s96")
    k("buffer_store_dword v2, v1, s[72:75], 0 offen offset:56")
    k("v_mov_b32 v2, s98")
    k("buffer_store_dword v2, v1, s[72:75], 0 offen offset:60")
    k("s_mov_b64 exec, s[78:79]")

def vr(a, n=1):
    return f"v{a}" if n == 1 else f"v[{a}:{a+n-1}]"

def role_g1(k):
    NST = 14; NSL = 5
    stamp(k, 8); stamp(k, 0)
    k("s_load_dwordx2 s[4:5], s[0:1], 0")
    k("s_load_dwordx2 s[6:7], s[0:1], 80")
    k("s_load_dwordx2 s[8:9], s[0:1], 112")
    k("s_and_b32 s10, s2, 7")
    k("s_lshr_b32 s11, s2, 3")
    if G1MAP == "4x2":
        k("s_lshr_b32 s12, s10, 1")
        k("s_lshl_b32 s12, s12, 2")
        k("s_and_b32 s13, s11, 3")
        k("s_add_u32 s12, s12, s13")
        k("s_and_b32 s13, s10, 1")
        k("s_mul_i32 s13, s13, 7")
        k("s_lshr_b32 s14, s11, 2")
        k("s_add_u32 s13, s13, s14")
    else:
        k("s_lshl_b32 s12, s10, 1")
        k("s_and_b32 s13, s11, 1")
        k("s_add_u32 s12, s12, s13")
        k("s_lshr_b32 s13, s11, 1")
    k("v_and_b32 v1, 63, v0")
    k("v_lshrrev_b32 v2, 6, v0")
    k("v_readfirstlane_b32 s14, v2")
    k("s_and_b32 s15, s14, 1")
    k("s_lshr_b32 s28, s14, 1")
    k("s_lshl_b32 s29, s14, 11")
    VX0, VX1, VW0, VW1 = 4, 5, 6, 7
    k("s_lshl_b32 s30, s12, 7")
    k("s_lshl_b32 s31, s14, 5")
    k("s_add_u32 s30, s30, s31")
    k("v_lshrrev_b32 v3, 2, v1")
    k("v_add_u32 v3, s30, v3")
    k("v_mul_u32_u24 v3, 896, v3")
    k("v_lshrrev_b32 v8, 4, v1")
    k("v_xor_b32 v9, v1, v8")
    k("v_and_b32 v9, 3, v9")
    k(f"v_lshl_add_u32 v{VX0}, v9, 4, v3")
    k(f"v_add_u32 v{VX1}, 14336, v{VX0}")
    k("s_lshl_b32 s30, s14, 3")
    k("v_add_u32 v3, s30, v8")
    k("v_mul_u32_u24 v3, 3584, v3")
    k("v_lshlrev_b32 v9, 2, v8")
    k("v_xor_b32 v9, v1, v9")
    k("v_and_b32 v9, 15, v9")
    k("v_lshl_add_u32 v3, v9, 4, v3")
    k("s_lshl_b32 s30, s13, 8")
    k(f"v_add_u32 v{VW0}, s30, v3")
    k(f"v_add_u32 v{VW1}, 14336, v{VW0}")
    k("s_waitcnt lgkmcnt(0)")
    srd(k, 16, 4, 5, 2048 * 896)
    srd(k, 20, 6, 7, 448 * 3584)
    srd(k, 24, 8, 9, HF_SZ, HF_OFF)

    def dma(s):
        slot = s % NSL
        base = slot * 16384
        k(f"s_mov_b32 s32, {s * 114688}")
        k(f"s_mov_b32 s33, {s * 64}")
        k(f"s_add_u32 m0, s29, {base}")
        k(f"buffer_load_dwordx4 v{VW0}, s[20:23], s32 offen lds")
        k(f"s_add_u32 m0, s29, {base + 1024}")
        k(f"buffer_load_dwordx4 v{VW1}, s[20:23], s32 offen lds")
        k(f"s_add_u32 m0, s29, {base + 8192}")
        k(f"buffer_load_dwordx4 v{VX0}, s[16:19], s33 offen lds")
        k(f"s_add_u32 m0, s29, {base + 8192 + 1024}")
        k(f"buffer_load_dwordx4 v{VX1}, s[16:19], s33 offen lds")
    for s in range(4): dma(s)

    AA = [10, 11]; AAh = [12, 13]
    BB = [[14, 15], [16, 17]]; BBh = [[18, 19], [20, 21]]
    k("v_lshrrev_b32 v3, 5, v1")
    k("v_bfe_u32 v8, v1, 2, 2")
    k("v_lshl_add_u32 v3, v3, 3, v8")
    k("v_lshlrev_b32 v3, 8, v3")
    k("v_bfe_u32 v9, v1, 4, 1")
    k("v_lshlrev_b32 v9, 1, v9")
    k("v_bfe_u32 v22, v1, 1, 1")
    k("v_add_u32 v9, v9, v22")
    k("v_lshl_add_u32 v3, v9, 4, v3")
    k("v_and_b32 v22, 1, v1")
    k("v_lshl_add_u32 v3, v22, 3, v3")
    for ai in range(2):
        k(f"s_xor_b32 s30, s28, {ai}")
        k("s_lshl_b32 s31, s15, 1")
        k("s_add_u32 s30, s30, s31")
        k("v_xor_b32 v22, s30, v8")
        k(f"v_lshl_add_u32 v{AA[ai]}, v22, 6, v3")
        k(f"v_add_u32 v{AAh[ai]}, 65536, v{AA[ai]}")
    k("v_and_b32 v3, 31, v1")
    k("v_bfe_u32 v8, v1, 2, 2")
    k("v_lshrrev_b32 v9, 5, v1")
    k("v_xor_b32 v9, v9, v8")
    k("v_lshlrev_b32 v9, 4, v9")
    k("v_lshl_add_u32 v3, v3, 6, v9")
    for bi in range(2):
        k(f"s_xor_b32 s30, s15, {bi}")
        k("s_lshl_b32 s30, s30, 11")
        k("s_lshl_b32 s31, s28, 12")
        k("s_add_u32 s30, s30, s31")
        k("s_add_u32 s30, s30, 8192")
        k(f"v_add_u32 v{BB[0][bi]}, s30, v3")
        k(f"v_xor_b32 v{BB[1][bi]}, 32, v{BB[0][bi]}")
        k(f"v_add_u32 v{BBh[0][bi]}, 65536, v{BB[0][bi]}")
        k(f"v_add_u32 v{BBh[1][bi]}, 65536, v{BB[1][bi]}")
    SUMX, SUMW = 22, 23
    k(f"v_mov_b32 v{SUMX}, 0")
    k(f"v_mov_b32 v{SUMW}, 0")
    k("s_mov_b32 s34, 0x3f803f80")
    FR = [24, 40]
    ACC = 56
    for i in range(64): k(f"v_mov_b32 v{ACC + i}, 0")

    def reads(s, kap, fs):
        slot = s % NSL
        hi = slot >= 4
        sb = 0 if hi else slot * 16384
        for ai in range(2):
            a = (AAh if hi else AA)[ai]
            o = sb + kap * 4096
            k(f"ds_read_b64_tr_b16 {vr(fs + 4*ai, 2)}, v{a} offset:{o}")
            k(f"ds_read_b64_tr_b16 {vr(fs + 4*ai + 2, 2)}, v{a} offset:{o + 1024}")
        for bi in range(2):
            b = (BBh if hi else BB)[kap][bi]
            k(f"ds_read_b128 {vr(fs + 8 + 4*bi, 4)}, v{b} offset:{sb}")
    def mfmas(fs):
        for ai in range(2):
            for bi in range(2):
                c = ACC + (2*ai + bi) * 16
                k(f"v_mfma_f32_32x32x16_bf16 {vr(c,16)}, {vr(fs + 4*ai,4)}, {vr(fs + 8 + 4*bi,4)}, {vr(c,16)}")
            src = fs if ai == 0 else fs + 8
            dst = SUMW if ai == 0 else SUMX
            for j in range(4):
                k(f"v_dot2c_f32_bf16 v{dst}, s34, v{src + j}")

    stamp(k, 1)
    k("s_waitcnt vmcnt(12)")
    k("s_barrier")
    stamp(k, 2)
    reads(0, 0, FR[0])
    for s in range(NST):
        reads(s, 1, FR[1])
        k("s_waitcnt lgkmcnt(6)")
        mfmas(FR[0])
        if s + 1 < NST:
            outstanding_after = min(NST - 1, s + 3) - (s + 1)
            k(f"s_waitcnt vmcnt({4 * outstanding_after})")
            k("s_waitcnt lgkmcnt(0)")
            k("s_barrier")
            if s + 4 < NST: dma(s + 4)
            reads(s + 1, 0, FR[0])
            k("s_nop 0")
        else:
            k("s_waitcnt lgkmcnt(0)")
        mfmas(FR[1])
    stamp(k, 3)
    k("s_barrier")
    k(f"v_mov_b32 v24, v{SUMX}")
    k(f"v_mov_b32 v25, v{SUMW}")
    k(f"v_permlane32_swap_b32 v{SUMX}, v24")
    k(f"v_permlane32_swap_b32 v{SUMW}, v25")
    k(f"v_add_f32 v{SUMX}, v{SUMX}, v24")
    k(f"v_add_f32 v{SUMW}, v{SUMW}, v25")
    k(f"v_mul_f32 v{SUMX}, 0x3b124925, v{SUMX}")
    k(f"v_cvt_pk_bf16_f32 v{SUMX}, v{SUMX}, v{SUMX}")
    k(f"v_lshlrev_b32 v{SUMX}, 16, v{SUMX}")
    k("v_and_b32 v3, 31, v1")
    k("v_lshlrev_b32 v3, 2, v3")
    k("s_lshl_b32 s30, s28, 1\n s_add_u32 s30, s30, s15\n s_lshl_b32 s30, s30, 7")
    k("s_lshl_b32 s31, s15, 1\n s_add_u32 s31, s31, s28\n s_lshl_b32 s31, s31, 7\n s_add_u32 s31, s31, 512")
    k("v_add_u32 v8, s30, v3")
    k("v_add_u32 v9, s31, v3")
    k(f"ds_write_b32 v8, v{SUMX}")
    k(f"ds_write_b32 v9, v{SUMW}")
    k("s_waitcnt lgkmcnt(0)")
    k("s_barrier")
    for bi in range(2):
        k(f"s_xor_b32 s30, s15, {bi}\n s_lshl_b32 s31, s28, 1\n s_add_u32 s30, s30, s31\n s_lshl_b32 s30, s30, 7")
        k(f"v_add_u32 v8, s30, v3")
        k(f"ds_read_b32 v{26 + bi}, v8")
    k("v_lshrrev_b32 v9, 5, v1")
    k("v_lshlrev_b32 v9, 4, v9")
    for ai in range(2):
        k(f"s_xor_b32 s30, s28, {ai}\n s_lshl_b32 s31, s15, 1\n s_add_u32 s30, s30, s31\n s_lshl_b32 s30, s30, 7\n s_add_u32 s30, s30, 512")
        k(f"v_add_u32 v8, s30, v9")
        for q in range(4):
            k(f"ds_read_b128 {vr(124 + 16*ai + 4*q, 4)}, v8 offset:{32*q}")
    k("s_waitcnt lgkmcnt(0)")
    k("v_lshlrev_b32 v3, 4, v1")
    for ai in range(2):
        for bi in range(2):
            c = ACC + (2*ai + bi) * 16
            for r in range(16):
                k(f"v_fma_f32 v{c + r}, -v{26 + bi}, v{124 + 16*ai + r}, v{c + r}")
            for j in range(8):
                k(f"v_cvt_pk_bf16_f32 v{c + j}, v{c + 2*j}, v{c + 2*j + 1}")
            for j in range(8):
                k(f"v_pk_max_i16 v{c + j}, v{c + j}, 0")
            k(f"s_xor_b32 s30, s15, {bi}\n s_lshl_b32 s31, s28, 1\n s_add_u32 s30, s30, s31\n s_lshl_b32 s31, s12, 2\n s_add_u32 s30, s30, s31")
            k("s_mul_i32 s30, s30, 112")
            k(f"s_xor_b32 s31, s28, {ai}\n s_lshl_b32 s35, s15, 1\n s_add_u32 s31, s31, s35\n s_lshl_b32 s35, s13, 2\n s_add_u32 s31, s31, s35\n s_lshl_b32 s31, s31, 1")
            k("s_add_u32 s30, s30, s31\n s_lshl_b32 s30, s30, 10")
            k(f"buffer_store_dwordx4 {vr(c,4)}, v3, s[24:27], s30 offen")
            k(f"buffer_store_dwordx4 {vr(c+4,4)}, v3, s[24:27], s30 offen offset:1024")
    stamp(k, 4)
    if STAMP: k("s_waitcnt vmcnt(0)")
    stamp(k, 5)
    stamp_flush(k, 0, 6, 0, 0)
    k("s_endpgm")

def role_ln(k, idx_s):
    k("s_load_dwordx2 s[4:5], s[0:1], 0")
    k("s_load_dwordx2 s[6:7], s[0:1], 88")
    k("s_load_dwordx2 s[8:9], s[0:1], 112")
    k("v_and_b32 v1, 63, v0")
    k("v_lshrrev_b32 v2, 6, v0")
    k("v_readfirstlane_b32 s14, v2")
    k(f"s_lshl_b32 s30, s{idx_s}, 5")
    k("s_lshl_b32 s31, s14, 3")
    k("s_add_u32 s30, s30, s31")
    k("v_lshrrev_b32 v3, 3, v1")
    k("v_add_u32 v4, s30, v3")
    k("v_mul_u32_u24 v5, 896, v4")
    k("v_and_b32 v6, 7, v1")
    k("v_lshl_add_u32 v5, v6, 4, v5")
    k("s_waitcnt lgkmcnt(0)")
    srd(k, 16, 4, 5, 2048 * 896)
    srd(k, 20, 6, 7, 1792 * 896)
    srd(k, 24, 8, 9, XT_SZ, XT_OFF)
    srd(k, 36, 8, 9, RS_SZ, RS_OFF)
    srd(k, 40, 8, 9, W2F_SZ, W2F_OFF)
    X = 8
    for j in range(7):
        k(f"buffer_load_dwordx4 {vr(X + 4*j, 4)}, v5, s[16:19], 0 offen offset:{128*j}")
    W2L = 32768
    k(f"s_cmp_ge_u32 s{idx_s}, 56")
    k("s_cbranch_scc1 L_ln_now2")
    k(f"s_mul_i32 s30, s{idx_s}, 28672")
    k("s_mul_i32 s31, s14, 7168")
    k("s_add_u32 s30, s30, s31")
    k("v_lshlrev_b32 v7, 4, v1")
    for j in range(7):
        k(f"s_add_u32 m0, s31, {W2L + 1024*j}")
        k(f"s_add_u32 s32, s30, {1024*j}")
        k(f"buffer_load_dwordx4 v7, s[20:23], s32 offen lds")
    k("s_waitcnt vmcnt(7)")
    k("s_branch L_ln_cont")
    k.label("L_ln_now2")
    k("s_waitcnt vmcnt(0)")
    k.label("L_ln_cont")
    F = 40
    for j in range(28):
        k(f"v_lshlrev_b32 v{F + 2*j}, 16, v{X + j}")
        k(f"v_and_b32 v{F + 2*j + 1}, 0xffff0000, v{X + j}")
    def reduce8(reg, tmp):
        k(f"v_add_f32_dpp v{reg}, v{reg}, v{reg} quad_perm:[1,0,3,2] row_mask:0xf bank_mask:0xf")
        k(f"v_add_f32_dpp v{reg}, v{reg}, v{reg} quad_perm:[2,3,0,1] row_mask:0xf bank_mask:0xf")
        k(f"v_add_f32_dpp v{reg}, v{reg}, v{reg} row_half_mirror row_mask:0xf bank_mask:0xf")
    k(f"v_add_f32 v96, v{F}, v{F+1}")
    k(f"v_add_f32 v97, v{F+2}, v{F+3}")
    k(f"v_add_f32 v98, v{F+4}, v{F+5}")
    k(f"v_add_f32 v99, v{F+6}, v{F+7}")
    for j in range(8, 56):
        k(f"v_add_f32 v{96 + (j & 3)}, v{96 + (j & 3)}, v{F + j}")
    k("v_add_f32 v96, v96, v97\n v_add_f32 v98, v98, v99\n v_add_f32 v96, v96, v98")
    reduce8(96, 97)
    k("v_mul_f32 v96, 0x3b124925, v96")
    for j in range(4): k(f"v_mov_b32 v{100 + j}, 0")
    for j in range(56):
        k(f"v_sub_f32 v97, v{F + j}, v96") if False else None
    for j in range(0, 56, 4):
        for e in range(4):
            k(f"v_sub_f32 v{104 + e}, v{F + j + e}, v96")
        for e in range(4):
            k(f"v_fmac_f32 v{100 + e}, v{104 + e}, v{104 + e}")
    k("v_add_f32 v100, v100, v101\n v_add_f32 v102, v102, v103\n v_add_f32 v100, v100, v102")
    reduce8(100, 101)
    k("v_mul_f32 v100, 0x3b124925, v100")
    k("v_cvt_pk_bf16_f32 v100, v100, v96")
    k("v_and_b32 v96, 0xffff0000, v100")
    k("v_lshlrev_b32 v100, 16, v100")
    k("v_add_f32 v100, 0x3727c5ac, v100")
    k("v_cvt_pk_bf16_f32 v100, v100, v100")
    k("v_lshlrev_b32 v100, 16, v100")
    k("v_sqrt_f32 v100, v100")
    k("v_cvt_pk_bf16_f32 v100, v100, v100")
    k("v_lshlrev_b32 v100, 16, v100")
    k("v_rcp_f32 v101, v100")
    k("v_fma_f32 v102, -v100, v101, 2.0")
    k("v_mul_f32 v101, v101, v102")
    k("v_lshlrev_b32 v4, 2, v4")
    k("v_cmp_eq_u32 vcc, 0, v6")
    k("s_and_saveexec_b64 s[44:45], vcc")
    k("buffer_store_dword v101, v4, s[36:39], 0 offen")
    k("s_mov_b64 exec, s[44:45]")
    for j in range(28):
        a, b = F + 2*j, F + 2*j + 1
        k(f"v_sub_f32 v{a}, v{a}, v96")
        k(f"v_sub_f32 v{b}, v{b}, v96")
        k(f"v_cvt_pk_bf16_f32 v{X + j}, v{a}, v{b}")
        k(f"v_lshlrev_b32 v{a}, 16, v{X + j}")
        k(f"v_and_b32 v{b}, 0xffff0000, v{X + j}")
        k(f"v_mul_f32 v{a}, v{a}, v101")
        k(f"v_mul_f32 v{b}, v{b}, v101")
        k(f"v_cvt_pk_bf16_f32 v{X + j}, v{a}, v{b}")
    RSTR = 960
    k("s_lshl_b32 s30, s14, 3")
    k("v_add_u32 v3, s30, v3")
    k(f"v_mul_u32_u24 v3, {RSTR}, v3")
    k("v_lshl_add_u32 v3, v6, 4, v3")
    for j in range(7):
        k(f"ds_write_b128 v3, {vr(X + 4*j, 4)} offset:{128*j}")
    k("s_waitcnt lgkmcnt(0)")
    k("s_barrier")
    k("v_bfe_u32 v4, v1, 2, 2")
    k(f"v_mul_u32_u24 v4, {RSTR}, v4")
    k("v_lshrrev_b32 v5, 4, v1")
    k("v_lshlrev_b32 v5, 5, v5")
    k("v_add_u32 v4, v4, v5")
    k("v_and_b32 v5, 3, v1")
    k("v_lshl_add_u32 v4, v5, 3, v4")
    L2B = 61440
    k("s_lshl_b32 s33, s14, 12")
    k(f"s_add_u32 s33, s33, {L2B}")
    k("v_bfe_u32 v6, v1, 1, 2")
    k("v_lshlrev_b32 v7, 6, v1")
    k("v_add_u32 v7, s33, v7")
    for pi in range(4):
        k(f"v_xor_b32 v{100 + pi}, {pi}, v6")
        k(f"v_lshl_add_u32 v{100 + pi}, v{100 + pi}, 4, v7")
    k("v_lshlrev_b32 v104, 4, v1")
    k("v_add_u32 v104, s33, v104")
    k("v_bfe_u32 v105, v1, 3, 2")
    k("v_xor_b32 v105, v105, v1")
    k("v_and_b32 v105, 3, v105")
    k("v_lshrrev_b32 v106, 2, v1")
    k("v_lshlrev_b32 v106, 6, v106")
    k("v_lshl_add_u32 v105, v105, 4, v106")
    k(f"s_mul_i32 s34, s{idx_s}, {448*64}")
    for rnd in range(2):
        if rnd == 1:
            k("s_cmp_eq_u32 s14, 3")
            k("s_cbranch_scc1 L_ln_trdone")
        k(f"s_add_u32 s35, s14, {4*rnd}")
        k("s_lshl_b32 s46, s35, 7")
        k("v_add_u32 v107, s46, v4")
        for q in range(8):
            k(f"ds_read_b64_tr_b16 {vr(40 + 2*q, 2)}, v107 offset:{4*q*RSTR}")
        k("s_waitcnt lgkmcnt(0)")
        for pi in range(4):
            k(f"ds_write_b128 v{100 + pi}, {vr(40 + 4*pi, 4)}")
        k("s_waitcnt lgkmcnt(0)")
        for i2 in range(4):
            k(f"ds_read_b128 {vr(60 + 4*i2, 4)}, v104 offset:{1024*i2}")
        k("s_lshl_b32 s46, s35, 12")
        k("s_add_u32 s46, s46, s34")
        k("s_waitcnt lgkmcnt(0)")
        for i2 in range(4):
            k(f"buffer_store_dwordx4 {vr(60 + 4*i2, 4)}, v105, s[24:27], s46 offen offset:{1024*i2}")
    k.label("L_ln_trdone")
    k(f"s_cmp_ge_u32 s{idx_s}, 56")
    k("s_cbranch_scc1 L_ln_end")
    k("s_waitcnt vmcnt(0)")
    k("s_barrier")
    k("v_lshrrev_b32 v4, 5, v1")
    k("v_bfe_u32 v5, v1, 2, 2")
    k("v_lshl_add_u32 v4, v4, 2, v5")
    k("v_mul_u32_u24 v4, 896, v4")
    k("v_bfe_u32 v5, v1, 4, 1")
    k("v_lshl_add_u32 v4, v5, 5, v4")
    k("v_and_b32 v5, 3, v1")
    k("v_lshl_add_u32 v4, v5, 3, v4")
    k(f"v_add_u32 v4, {W2L}, v4")
    k("v_lshlrev_b32 v5, 4, v1")
    k("s_lshr_b32 s30, s14, 1")
    k("s_and_b32 s31, s14, 1")
    k("s_mul_i32 s31, s31, 7")
    k(f"s_mul_i32 s32, s30, {16*896}")
    k("s_lshl_b32 s33, s31, 6")
    k("s_add_u32 s32, s32, s33")
    k("v_add_u32 v4, s32, v4")
    k(f"s_lshl_b32 s33, s{idx_s}, 1\n s_add_u32 s33, s33, s30\n s_mul_i32 s33, s33, 14\n s_add_u32 s33, s33, s31\n s_lshl_b32 s33, s33, 10")
    for j in range(7):
        k(f"ds_read_b64_tr_b16 {vr(40 + 4*j, 2)}, v4 offset:{64*j}")
        k(f"ds_read_b64_tr_b16 {vr(40 + 4*j + 2, 2)}, v4 offset:{64*j + 8*896}")
    k("s_waitcnt lgkmcnt(0)")
    for j in range(7):
        k(f"s_add_u32 s35, s33, {1024*j}")
        k(f"buffer_store_dwordx4 {vr(40 + 4*j, 4)}, v5, s[40:43], s35 offen")
    k.label("L_ln_end")
    k("s_endpgm")

def role_g2(k, use_z=True):
    stamp(k, 8); stamp(k, 0)
    k("s_load_dwordx2 s[4:5], s[0:1], 0")
    k("s_load_dwordx2 s[6:7], s[0:1], 96")
    k("s_load_dwordx2 s[8:9], s[0:1], 112")
    k("s_and_b32 s10, s2, 7")
    k("s_lshr_b32 s11, s2, 3")
    k("s_and_b32 s12, s11, 3")
    k("s_lshl_b32 s13, s10, 2")
    k("s_add_u32 s12, s12, s13")
    k("s_lshr_b32 s13, s11, 2")
    k("s_mov_b32 s56, s12")
    k("s_mov_b32 s57, s13")
    if "sameT" in EXP: k("s_mov_b32 s56, 0")
    if "sameD" in EXP: k("s_mov_b32 s57, 0")
    k("v_and_b32 v1, 63, v0")
    k("v_lshrrev_b32 v2, 6, v0")
    k("v_readfirstlane_b32 s14, v2")
    k("v_lshlrev_b32 v3, 4, v1")
    k("s_waitcnt lgkmcnt(0)")
    srd(k, 16, 4, 5, 2048 * 896)
    srd(k, 20, 6, 7, 2048 * 896)
    srd(k, 24, 8, 9, HF_SZ, HF_OFF)
    srd(k, 52, 8, 9, W2F_SZ, W2F_OFF)
    srd(k, 36, 8, 9, RS_SZ, RS_OFF)
    srd(k, 40, 8, 9, ZT_SZ, ZT_OFF)
    k("s_mul_i32 s30, s14, 28")
    k("s_mul_i32 s31, s30, 14\n s_lshl_b32 s32, s57, 1\n s_add_u32 s31, s31, s32\n s_lshl_b32 s31, s31, 10")
    k("s_lshl_b32 s32, s56, 1\n s_mul_i32 s32, s32, 112\n s_add_u32 s32, s32, s30\n s_lshl_b32 s32, s32, 10")
    k(f"s_add_u32 s33, s32, {112*1024}")
    RED = 0
    ZL = 49152
    XL = 57344
    OL = 65536
    k("v_lshrrev_b32 v4, 3, v1")
    k("s_lshl_b32 s34, s14, 4")
    k("v_add_u32 v4, s34, v4")
    k("v_lshrrev_b32 v5, 1, v4")
    k("v_xor_b32 v5, v5, v1")
    k("v_and_b32 v5, 7, v5")
    k("s_lshl_b32 s34, s12, 6")
    k("v_add_u32 v6, s34, v4")
    k("v_mul_u32_u24 v6, 896, v6")
    k("v_lshl_add_u32 v6, v5, 4, v6")
    k("s_lshl_b32 s35, s13, 7")
    k("v_add_u32 v6, s35, v6")
    k("v_xor_b32 v7, 64, v6")
    k(f"v_add_u32 v7, {8*896}, v7")
    k("s_lshl_b32 s34, s14, 11")
    k(f"s_add_u32 m0, s34, {XL}")
    k("buffer_load_dwordx4 v6, s[16:19], 0 offen lds")
    k(f"s_add_u32 m0, s34, {XL + 1024}")
    k("buffer_load_dwordx4 v7, s[16:19], 0 offen lds")
    k("v_and_b32 v8, 31, v1")
    k("s_lshr_b32 s34, s14, 1\n s_lshl_b32 s34, s34, 5\n s_lshl_b32 s35, s12, 6\n s_add_u32 s34, s34, s35")
    k("v_add_u32 v8, s34, v8")
    k("v_lshlrev_b32 v8, 2, v8")
    k("buffer_load_dword v9, v8, s[36:39], 0 offen")
    NPRE = 3
    ACC = 16
    FR = 80
    DEPTH = 4 if 'd4' in EXP else (10 if 'd10' in EXP else 8)
    for i in range(64): k(f"v_mov_b32 v{ACC + i}, 0")
    def loads(j):
        f = FR + 16 * (j % DEPTH)
        k(f"s_add_u32 s46, s31, {j * 14 * 1024}")
        k(f"buffer_load_dwordx4 {vr(f,4)}, v3, s[52:55], s46 offen")
        k(f"buffer_load_dwordx4 {vr(f+4,4)}, v3, s[52:55], s46 offen offset:1024")
        k(f"s_add_u32 s47, s32, {j * 1024}")
        k(f"s_add_u32 s48, s33, {j * 1024}")
        k(f"buffer_load_dwordx4 {vr(f+8,4)}, v3, s[24:27], s47 offen")
        k(f"buffer_load_dwordx4 {vr(f+12,4)}, v3, s[24:27], s48 offen")
    NK = 28
    for j in range(DEPTH): loads(j)
    stamp(k, 1)
    for j in range(NK):
        if j == 1: stamp(k, 2)
        remaining = min(NK - 1, j + DEPTH - 1) - j
        k(f"s_waitcnt vmcnt({4 * remaining})")
        f = FR + 16 * (j % DEPTH)
        for di in range(2):
            for ti in range(2):
                c = ACC + (2*ti + di) * 16
                if "noMFMA" not in EXP:
                    k(f"v_mfma_f32_32x32x16_bf16 {vr(c,16)}, {vr(f + 4*di,4)}, {vr(f + 8 + 4*ti,4)}, {vr(c,16)}")
        if j + DEPTH < NK:
            loads(j + DEPTH)
    stamp(k, 3)
    if use_z:
        k("v_lshrrev_b32 v4, 3, v1")
        k("s_lshl_b32 s34, s14, 4\n s_lshl_b32 s35, s13, 6\n s_add_u32 s34, s34, s35")
        k("v_add_u32 v4, s34, v4")
        k("v_lshlrev_b32 v4, 12, v4")
        k("v_and_b32 v5, 7, v1")
        k("v_lshl_add_u32 v4, v5, 4, v4")
        k("s_lshl_b32 s35, s12, 7")
        k("v_add_u32 v4, s35, v4")
        k(f"v_add_u32 v5, {8*4096}, v4")
        k("s_lshl_b32 s34, s14, 11")
        k(f"s_add_u32 m0, s34, {ZL}")
        k("buffer_load_dwordx4 v4, s[40:43], 0 offen lds")
        k(f"s_add_u32 m0, s34, {ZL + 1024}")
        k("buffer_load_dwordx4 v5, s[40:43], 0 offen lds")
    k("s_nop 7")
    for o in range(4):
        k(f"s_cmp_eq_u32 s14, {o}")
        k(f"s_cbranch_scc1 L_g2_skip{o}")
        k(f"s_sub_u32 s34, s14, {o + 1}")
        k("s_and_b32 s34, s34, 3")
        k(f"s_add_u32 s34, s34, {3*o}")
        k("s_lshl_b32 s34, s34, 12")
        k("v_add_u32 v4, s34, v3")
        for q in range(4):
            k(f"ds_write_b128 v4, {vr(ACC + 16*o + 4*q, 4)} offset:{RED + 1024*q}")
        k.label(f"L_g2_skip{o}")
    k("s_waitcnt vmcnt(0) lgkmcnt(0)")
    k("s_barrier")
    for o in range(4):
        k(f"s_cmp_lg_u32 s14, {o}")
        k(f"s_cbranch_scc1 L_g2_mv{o}")
        for r in range(16): k(f"v_mov_b32 v{80 + r}, v{ACC + 16*o + r}")
        k.label(f"L_g2_mv{o}")
    k("s_mul_i32 s34, s14, 12288")
    k("v_add_u32 v4, s34, v3")
    for sl in range(3):
        for q in range(4):
            k(f"ds_read_b128 {vr(96 + 16*sl + 4*q, 4)}, v4 offset:{RED + 4096*sl + 1024*q}")
    k("s_and_b32 s34, s14, 1")
    k("s_lshr_b32 s35, s14, 1")
    if use_z:
        k("v_lshrrev_b32 v5, 5, v1")
        k("v_bfe_u32 v6, v1, 2, 2")
        k("v_lshl_add_u32 v5, v5, 2, v6")
        k("v_lshlrev_b32 v5, 7, v5")
        k("v_bfe_u32 v6, v1, 4, 1")
        k("v_lshl_add_u32 v5, v6, 5, v5")
        k("v_and_b32 v6, 3, v1")
        k("v_lshl_add_u32 v5, v6, 3, v5")
        k("s_lshl_b32 s46, s34, 12\n s_lshl_b32 s47, s35, 6\n s_add_u32 s46, s46, s47")
        k("v_add_u32 v5, s46, v5")
        for q in range(4):
            k(f"ds_read_b64_tr_b16 {vr(144 + 2*q, 2)}, v5 offset:{ZL + 1024*q}")
    k("v_and_b32 v5, 31, v1")
    k("s_lshl_b32 s46, s35, 5")
    k("v_add_u32 v5, s46, v5")
    k("v_bfe_u32 v6, v5, 1, 3")
    k("s_lshl_b32 s47, s34, 2")
    k("v_xor_b32 v6, s47, v6")
    k("v_lshlrev_b32 v7, 7, v5")
    k("v_lshrrev_b32 v10, 5, v1")
    k("v_lshl_add_u32 v7, v10, 3, v7")
    for q in range(4):
        k(f"v_xor_b32 v10, {q}, v6")
        k(f"v_lshl_add_u32 v10, v10, 4, v7")
        k(f"ds_read_b64 {vr(152 + 2*q, 2)}, v10 offset:{XL}")
    k("s_waitcnt lgkmcnt(0)")
    for r in range(16):
        k(f"v_add_f32 v{80 + r}, v{80 + r}, v{96 + r}")
        k(f"v_add_f32 v{112 + r}, v{112 + r}, v{128 + r}")
    for r in range(16):
        k(f"v_add_f32 v{80 + r}, v{80 + r}, v{112 + r}")
    for q in range(4):
        for hh in range(2):
            src = 152 + 2*q + hh
            k(f"v_lshlrev_b32 v{96 + 4*q + 2*hh}, 16, v{src}")
            k(f"v_and_b32 v{96 + 4*q + 2*hh + 1}, 0xffff0000, v{src}")
            if use_z:
                zs = 144 + 2*q + hh
                k(f"v_lshlrev_b32 v112, 16, v{zs}")
                k(f"v_and_b32 v113, 0xffff0000, v{zs}")
                k(f"v_add_f32 v{96 + 4*q + 2*hh}, v{96 + 4*q + 2*hh}, v112")
                k(f"v_add_f32 v{96 + 4*q + 2*hh + 1}, v{96 + 4*q + 2*hh + 1}, v113")
    for r in range(16):
        k(f"v_fma_f32 v{80 + r}, v9, v{80 + r}, v{96 + r}")
    for j in range(8):
        k(f"v_cvt_pk_bf16_f32 v{80 + j}, v{80 + 2*j}, v{80 + 2*j + 1}")
    k("s_lshl_b32 s46, s14, 11")
    k(f"s_add_u32 s46, s46, {OL}")
    k("v_and_b32 v5, 31, v1")
    k("v_bfe_u32 v6, v5, 1, 2")
    k("v_lshlrev_b32 v7, 6, v5")
    k("v_lshrrev_b32 v10, 5, v1")
    k("v_lshl_add_u32 v7, v10, 3, v7")
    k("v_add_u32 v7, s46, v7")
    for q in range(4):
        k(f"v_xor_b32 v10, {q}, v6")
        k(f"v_lshl_add_u32 v10, v10, 4, v7")
        k(f"ds_write_b64 v10, {vr(80 + 2*q, 2)}")
    k("s_waitcnt lgkmcnt(0)")
    k("v_add_u32 v4, s46, v3")
    k("ds_read_b128 v[96:99], v4")
    k("ds_read_b128 v[100:103], v4 offset:1024")
    k("v_bfe_u32 v5, v1, 3, 2")
    k("v_xor_b32 v5, v5, v1")
    k("v_and_b32 v5, 3, v5")
    k("v_lshrrev_b32 v6, 2, v1")
    k("s_lshl_b32 s46, s12, 6\n s_lshl_b32 s47, s35, 5\n s_add_u32 s46, s46, s47")
    k("v_add_u32 v6, s46, v6")
    k("v_mul_u32_u24 v6, 896, v6")
    k("v_lshl_add_u32 v6, v5, 4, v6")
    k("s_lshl_b32 s46, s13, 7\n s_lshl_b32 s47, s34, 6\n s_add_u32 s46, s46, s47")
    k("v_add_u32 v6, s46, v6")
    k(f"v_add_u32 v7, {16*896}, v6")
    k("s_waitcnt lgkmcnt(0)")
    k("buffer_store_dwordx4 v[96:99], v6, s[20:23], 0 offen")
    k("buffer_store_dwordx4 v[100:103], v7, s[20:23], 0 offen")
    stamp(k, 4)
    if STAMP: k("s_waitcnt vmcnt(0)")
    stamp(k, 5)
    stamp_flush(k, 1, 6, 2, 3)
    k("s_endpgm")

def cmul(k, o, x, y, t):
    k(f"v_pk_mul_f32 {vr(t,2)}, {vr(x,2)}, {vr(y,2)} op_sel:[0,0] op_sel_hi:[1,0]")
    k(f"v_pk_fma_f32 {vr(o,2)}, {vr(x,2)}, {vr(y,2)}, {vr(t,2)} op_sel:[1,1,0] op_sel_hi:[0,1,1] neg_lo:[1,0,0]")

def role_kgen(k, idx_s):
    stamp(k, 8); stamp(k, 0)
    k("s_load_dwordx16 s[56:71], s[0:1], 8")
    k("s_load_dwordx2 s[8:9], s[0:1], 112")
    k("v_and_b32 v1, 63, v0")
    k("v_lshrrev_b32 v2, 6, v0")
    k("v_readfirstlane_b32 s14, v2")
    k("s_lshr_b32 s15, s14, 1")
    k("s_and_b32 s28, s14, 1")
    k(f"s_lshl_b32 s29, s{idx_s}, 1")
    k("s_add_u32 s29, s29, s15")
    k("s_lshl_b32 s30, s29, 9")
    k("s_lshl_b32 s31, s28, 8")
    k("s_add_u32 s30, s30, s31")
    k("v_lshlrev_b32 v3, 2, v1")
    k("v_add_u32 v3, s30, v3")
    k("s_lshl_b32 s31, s29, 1")
    k("v_mov_b32 v4, s31")
    k("s_waitcnt lgkmcnt(0)")
    PSZ = 448 * 512
    for i in range(6):
        srd(k, 16, 56 + 2*i, 57 + 2*i, PSZ)
        k(f"buffer_load_dword v{8 + i}, v3, s[16:19], 0 offen")
    srd(k, 20, 68, 69, 896)
    k("buffer_load_ushort v14, v4, s[20:23], 0 offen")
    srd(k, 24, 8, 9, KR_SZ, KR_OFF)
    WSTR = 14464
    k(f"s_mul_i32 s33, s14, {WSTR}")
    k("v_lshlrev_b32 v5, 2, v1")
    k("v_add_u32 v5, s33, v5")
    k("v_and_b32 v6, 31, v1")
    k("v_mul_u32_u24 v6, 272, v6")
    k("v_lshrrev_b32 v7, 5, v1")
    k("v_lshl_add_u32 v6, v7, 4, v6")
    k("v_add_u32 v6, s33, v6")
    ACC = 112
    for i in range(16): k(f"v_mov_b32 v{ACC + i}, 0")
    k("s_waitcnt vmcnt(0)")
    stamp(k, 1)
    k("v_lshlrev_b32 v14, 16, v14")
    k("v_mul_f32 v15, 0x3fb8aa3b, v14")
    k("s_mov_b32 s34, 0x3fb8aa3b")
    k("v_fma_f32 v16, v14, s34, -v15")
    k("s_mov_b32 s34, 0x32a57060")
    k("v_fma_f32 v16, v14, s34, v16")
    k("v_exp_f32 v15, v15")
    k("v_mul_f32 v16, 0x3f317218, v16")
    k("v_fma_f32 v15, v15, v16, v15")
    k("v_cvt_pk_bf16_f32 v15, v15, v15")
    k("v_lshlrev_b32 v15, 16, v15")
    E1, Z2, Z4, E256 = 20, 22, 24, 26
    Q = [28, 30, 32, 34]
    E32 = 36
    P = 38
    PH = 40
    PT = 42
    T0, T1, T2 = 44, 46, 48
    for it in range(2):
        def ext(dst, src):
            if it == 0: k(f"v_lshlrev_b32 v{dst}, 16, v{src}")
            else: k(f"v_and_b32 v{dst}, 0xffff0000, v{src}")
        ext(50, 8); ext(51, 9)
        ext(52, 10); ext(53, 11)
        ext(54, 12); ext(55, 13)
        k("v_mul_f32 v18, v15, v50")
        k("v_mul_f32 v18, 0x3fb8aa3b, v18")
        k("v_mul_f32 v19, v15, v51")
        k("v_mul_f32 v19, 0.15915494, v19")
        k("v_mul_f32 v52, v15, v52")
        k("v_mul_f32 v53, v15, v53")
        cmul(k, 16, 54, 52, T0)
        def E(dst, l, tmp):
            lit = {1: "1.0", 8: "0x41000000", 16: "0x41800000", 24: "0x41c00000", 32: "0x42000000", 256: "0x43800000"}[l]
            k(f"v_mul_f32 v{tmp}, {lit}, v18")
            k(f"v_mul_f32 v{tmp+1}, {lit}, v19")
            k(f"v_exp_f32 v{tmp}, v{tmp}")
            k(f"v_fract_f32 v{tmp+1}, v{tmp+1}")
            k(f"v_cos_f32 v{dst}, v{tmp+1}")
            k(f"v_sin_f32 v{dst+1}, v{tmp+1}")
            k(f"v_mul_f32 v{dst}, v{dst}, v{tmp}")
            k(f"v_mul_f32 v{dst+1}, v{dst+1}, v{tmp}")
        E(E1, 1, T0); E(E256, 256, T1); E(Q[1], 8, T2); E(Q[2], 16, T0); E(Q[3], 24, T1); E(E32, 32, T2)
        k(f"v_mov_b32 v{Q[0]}, 1.0")
        k(f"v_mov_b32 v{Q[0]+1}, 0")
        def wrA(h, r):
            k(f"v_cvt_pk_bf16_f32 v56, v{r}, -v{r+1}") if False else None
        cnt = [0]
        def put(col, r, neg):
            tmp = 56 + (cnt[0] % 8); cnt[0] += 1
            k(f"v_cvt_pk_bf16_f32 v{tmp}, v{r}, {'-' if neg else ''}v{r+1}")
            k(f"ds_write_b32 v5, v{tmp} offset:{col * 272}")
        cmul(k, Z2, E1, E1, T0)
        cmul(k, Z4, Z2, Z2, T1)
        ops = []
        put(0, 16, True)
        for c in range(4): put(21 + c, Q[c], False)
        k(f"v_mov_b32 v{P}, v16\n v_mov_b32 v{P+1}, v17")
        cmul(k, PH, 16, E256, T2)
        put(8, PH, True)
        lowP = list(range(1, 8))
        high = [("side2", 9), ("side2c", 10), ("side2c", 11), ("up", 12), ("side4", 13), ("up", 14), ("side4", 15), ("up", 16), ("up", 17), ("up", 18), ("up", 19), ("up", 20)]
        for i in range(1, 8):
            for c in range(4):
                cmul(k, Q[c], Q[c], E32, [T0, T1][c & 1])
                put(21 + c + 4*i, Q[c], False)
            if lowP:
                h = lowP.pop(0)
                cmul(k, P, P, E1, T2)
                put(h, P, True)
            for _ in range(2):
                if high:
                    kind, h = high.pop(0)
                    if kind == "side2": cmul(k, PT, PH, Z2, T2); put(h, PT, True)
                    elif kind == "side2c": cmul(k, PT, PT, Z2, T2); put(h, PT, True)
                    elif kind == "side4": cmul(k, PT, PH, Z4, T2); put(h, PT, True)
                    else: cmul(k, PH, PH, E256, T2); put(h, PH, True)
        assert not lowP and not high
        k("s_waitcnt lgkmcnt(0)")
        for ks in range(8):
            fa = 64 + 8 * (ks % 4)
            k(f"ds_read_b128 {vr(fa,4)}, v6 offset:{32*ks}")
            k(f"ds_read_b128 {vr(fa+4,4)}, v6 offset:{32*ks + 21*272}")
            if ks >= 3 or True:
                pass
        k.lines = k.lines[:-16]
        for half in range(2):
            for ks in range(4*half, 4*half + 4):
                fa = 64 + 8 * (ks % 4)
                k(f"ds_read_b128 {vr(fa,4)}, v6 offset:{32*ks}")
                k(f"ds_read_b128 {vr(fa+4,4)}, v6 offset:{32*ks + 21*272}")
            for ks in range(4*half, 4*half + 4):
                fa = 64 + 8 * (ks % 4)
                k(f"s_waitcnt lgkmcnt({2*(3 - (ks % 4))})")
                k(f"v_mfma_f32_32x32x16_bf16 {vr(ACC,16)}, {vr(fa,4)}, {vr(fa+4,4)}, {vr(ACC,16)}")
    stamp(k, 2)
    k("s_barrier")
    XB = 0; TB = 8192
    k("v_lshlrev_b32 v3, 4, v1")
    k("s_mul_i32 s30, s15, 3072")
    k("v_add_u32 v3, s30, v3")
    k("s_cmp_eq_u32 s28, 0")
    k("s_cbranch_scc1 L_kg_a")
    k("s_nop 7\n s_nop 3")
    for q in range(3): k(f"ds_write_b128 v3, {vr(ACC + 4*q, 4)} offset:{XB + 1024*q}")
    k("s_waitcnt lgkmcnt(0)")
    k.label("L_kg_a")
    k("s_barrier")
    k("s_mul_i32 s31, s15, 1536")
    k(f"s_add_u32 s31, s31, {TB}")
    k("s_cmp_eq_u32 s28, 0")
    k("s_cbranch_scc0 L_kg_b")
    for q in range(3): k(f"ds_read_b128 {vr(64 + 4*q, 4)}, v3 offset:{XB + 1024*q}")
    k("s_waitcnt lgkmcnt(0)")
    for r in range(12): k(f"v_add_f32 v{ACC + r}, v{ACC + r}, v{64 + r}")
    for j in range(6): k(f"v_cvt_pk_bf16_f32 v{80 + j}, v{ACC + 2*j}, v{ACC + 2*j + 1}")
    k("v_and_b32 v6, 31, v1")
    k("v_lshrrev_b32 v7, 5, v1")
    k("v_lshlrev_b32 v8, 4, v6")
    k("v_lshl_add_u32 v8, v7, 3, v8")
    k("v_add_u32 v8, s31, v8")
    k("ds_write_b64 v8, v[80:81]")
    k("v_lshlrev_b32 v9, 3, v6\n v_add_u32 v9, s31, v9")
    k("v_lshlrev_b32 v10, 2, v6\n v_add_u32 v10, s31, v10")
    k("v_lshlrev_b32 v11, 1, v6\n v_add_u32 v11, s31, v11")
    k("s_mov_b64 s[36:37], exec")
    k("s_mov_b32 exec_lo, -1\n s_mov_b32 exec_hi, 0")
    k("ds_write_b64 v9, v[82:83] offset:512")
    k("ds_write_b16 v11, v84 offset:1024")
    k("ds_write_b16_d16_hi v11, v84 offset:1088")
    k("ds_write_b16 v11, v85 offset:1152")
    k("ds_write_b16_d16_hi v11, v85 offset:1216")
    k("s_mov_b32 exec_lo, 0\n s_mov_b32 exec_hi, -1")
    k("ds_write_b32 v10, v82 offset:768")
    k("ds_write_b32 v10, v83 offset:896")
    k("ds_write_b16 v11, v84 offset:1280")
    k("s_mov_b64 exec, s[36:37]")
    k("s_waitcnt lgkmcnt(0)")
    k.label("L_kg_b")
    k("s_barrier")
    k("s_lshl_b32 s30, s28, 6")
    k("v_add_u32 v3, s30, v1")
    for c in range(2):
        k(f"v_lshlrev_b32 v4, 3, v3")
        k(f"v_sub_u32 v4, {2047 - 1024*c}, v4")
        for e in range(8):
            k(f"v_subrev_u32 v{16 + e}, {e}, v4")
        for e in range(8):
            k(f"v_cvt_f32_u32 v{24 + e}, v{16 + e}")
        for e in range(0, 8, 2):
            k(f"v_cvt_pk_bf16_f32 v{32 + e//2}, v{24 + e}, v{24 + e + 1}")
        for e in range(8):
            if e % 2 == 0: k(f"v_and_b32 v{24 + e}, 0xffff, v{32 + e//2}")
            else: k(f"v_lshrrev_b32 v{24 + e}, 16, v{32 + e//2}")
        for e in range(8):
            k(f"v_add_u32 v{24 + e}, {(-0x4300 + 128) & 0xffffffff}, v{24 + e}")
        for e in range(8):
            k(f"v_cmp_gt_u32 vcc, 128, v{16 + e}")
            k(f"v_cndmask_b32 v{24 + e}, v{24 + e}, v{16 + e}, vcc")
        for e in range(8):
            k(f"v_lshl_add_u32 v{24 + e}, v{24 + e}, 1, s31")
        base = 40 + 4*c
        for e in range(8):
            if e % 2 == 0: k(f"ds_read_u16 v{base + e//2}, v{24 + e}")
            else: k(f"ds_read_u16_d16_hi v{48 + 4*c + e//2}, v{24 + e}")
    k("s_lshl_b32 s30, s29, 12")
    k("v_lshlrev_b32 v4, 4, v3")
    k("s_waitcnt lgkmcnt(0)")
    for i in range(8):
        k(f"v_and_b32 v{48 + i}, 0xffff0000, v{48 + i}")
        k(f"v_or_b32 v{40 + i}, v{40 + i}, v{48 + i}")
    k("buffer_store_dwordx4 v[40:43], v4, s[24:27], s30 offen")
    k("buffer_store_dwordx4 v[44:47], v4, s[24:27], s30 offen offset:2048")
    stamp(k, 3)
    stamp_flush(k, 0, 4, 0, 1)
    k("s_endpgm")

def role_conv(k, idx_s):
    stamp(k, 8); stamp(k, 0)
    k("s_load_dwordx2 s[6:7], s[0:1], 64")
    k("s_load_dwordx2 s[8:9], s[0:1], 112")
    k("v_and_b32 v1, 63, v0")
    k("v_lshrrev_b32 v2, 6, v0")
    k("v_readfirstlane_b32 s14, v2")
    k("s_lshr_b32 s15, s14, 1")
    k("s_and_b32 s28, s14, 1")
    k(f"s_lshl_b32 s29, s{idx_s}, 1")
    k("s_add_u32 s29, s29, s15")
    CSTR = 4160; CH = 37888
    k(f"s_mul_i32 s33, s15, {CH}")
    k(f"s_add_u32 s34, s33, {8*CSTR}")
    k("s_waitcnt lgkmcnt(0)")
    srd(k, 16, 8, 9, KR_SZ, KR_OFF)
    srd(k, 20, 8, 9, XT_SZ, XT_OFF)
    srd(k, 24, 8, 9, ZT_SZ, ZT_OFF)
    srd(k, 36, 6, 7, 896)
    k("s_lshl_b32 s30, s28, 6")
    k("v_add_u32 v3, s30, v1")
    k("v_lshlrev_b32 v4, 4, v3")
    k("s_lshl_b32 s30, s29, 12")
    k("buffer_load_dwordx4 v[8:11], v4, s[16:19], s30 offen")
    k("buffer_load_dwordx4 v[12:15], v4, s[16:19], s30 offen offset:16")
    k("buffer_load_dwordx4 v[16:19], v4, s[16:19], s30 offen offset:2048")
    k("buffer_load_dwordx4 v[20:23], v4, s[16:19], s30 offen offset:2064")
    k("v_lshrrev_b32 v5, 2, v1")
    k("s_lshl_b32 s30, s28, 5")
    k("v_add_u32 v5, s30, v5")
    k("v_mul_u32_u24 v5, 28672, v5")
    k("v_and_b32 v6, 3, v1")
    k("v_lshl_add_u32 v5, v6, 4, v5")
    k("s_lshl_b32 s30, s29, 6")
    k("v_add_u32 v5, s30, v5")
    k(f"v_add_u32 v6, {16*28672}, v5")
    k("s_lshl_b32 s30, s28, 11")
    k("s_add_u32 s30, s30, s34")
    k("s_add_u32 m0, s30, 512")
    k("buffer_load_dwordx4 v5, s[20:23], 0 offen lds")
    k("s_add_u32 m0, s30, 1536")
    k("buffer_load_dwordx4 v6, s[20:23], 0 offen lds")
    k("s_lshl_b32 s30, s29, 1")
    k("v_mov_b32 v7, s30")
    k("buffer_load_ushort v24, v7, s[36:39], 0 offen")
    for i in range(4): k(f"v_mov_b32 v{28 + i}, 0")
    k("v_lshlrev_b32 v25, 4, v1")
    k("v_add_u32 v25, s34, v25")
    k("v_subrev_u32 v26, 32, v1")
    k(f"v_mul_u32_u24 v26, {CSTR}, v26")
    k("v_add_u32 v26, s33, v26")
    k("v_add_u32 v26, 4096, v26")
    k("v_cmp_gt_u32 vcc, 32, v1")
    k("v_cndmask_b32 v25, v26, v25, vcc")
    k("v_cmp_gt_u32 vcc, 40, v1")
    k("s_and_saveexec_b64 s[40:41], vcc")
    k("ds_write_b128 v25, v[28:31]")
    k("s_mov_b64 exec, s[40:41]")
    k("s_waitcnt vmcnt(3)")
    k("v_cmp_eq_u32 vcc, 127, v3")
    for i in range(4): k(f"v_cndmask_b32 v{20 + i}, v{20 + i}, v28, vcc")
    k("v_lshlrev_b32 v27, 4, v3")
    k("v_add_u32 v27, s33, v27")
    for c in range(2):
        Dr = 8 + 8*c
        Ee = 32; Eo = 40; Do = 48
        for i in range(7): k(f"v_alignbit_b32 v{Ee + i}, v{Dr + i + 1}, v{Dr + i}, 16")
        for i in range(6): k(f"v_alignbit_b32 v{Eo + i}, v{Dr + i + 2}, v{Dr + i + 1}, 16")
        for i in range(6): k(f"v_mov_b32 v{Do + i}, v{Dr + i + 1}")
        src = {0: Dr, 1: Ee, 2: Do, 3: Eo, 4: Dr + 2, 5: Ee + 2, 6: Do + 2, 7: Eo + 2}
        for s_ in range(8):
            k(f"ds_write_b128 v27, {vr(src[s_], 4)} offset:{s_*CSTR + 2048*c}")
        if c == 0: k("s_waitcnt lgkmcnt(0)")
    k("s_waitcnt vmcnt(0) lgkmcnt(0)")
    k("s_barrier")
    stamp(k, 1)
    k("v_and_b32 v3, 7, v1")
    k("v_sub_u32 v3, 7, v3")
    k(f"v_mul_u32_u24 v3, {CSTR}, v3")
    k("v_bfe_u32 v4, v1, 3, 1")
    k("v_bfe_u32 v5, v1, 5, 1")
    k("v_bfe_u32 v6, v1, 4, 1")
    k("v_lshl_add_u32 v7, v5, 1, v4")
    k("v_sub_u32 v7, v6, v7")
    k("v_lshlrev_b32 v7, 4, v7")
    k("v_add_u32 v3, v3, v7")
    k(f"s_add_u32 s30, s33, {255*16 - 64*56}")
    k("s_lshl_b32 s31, s28, 8")
    k("s_sub_u32 s30, s30, s31")
    k("v_add_u32 v4, s30, v3")
    k("v_and_b32 v3, 15, v1")
    k("v_sub_u32 v3, v3, v5")
    k("v_lshlrev_b32 v3, 5, v3")
    k("v_lshl_add_u32 v3, v6, 4, v3")
    k("s_add_u32 s30, s34, 512")
    k("s_sub_u32 s30, s30, s31")
    k("v_add_u32 v5, s30, v3")
    ACC = 32
    FA = [64, 128]
    for i in range(32): k(f"v_mov_b32 v{ACC + i}, 0")
    def reads(fs):
        for p1 in range(8):
            k(f"ds_read_b128 {vr(fs + 4*p1, 4)}, v4 offset:{512*(7 - p1)}")
            k(f"ds_read_b128 {vr(fs + 32 + 4*p1, 4)}, v5 offset:{512*p1}")
        k("v_subrev_u32 v4, 64, v4")
        k("v_subrev_u32 v5, 64, v5")
    def mm(fs):
        for p1 in range(8):
            for be in range(8 - p1):
                c = ACC + 4*(p1 + be)
                k(f"v_mfma_f32_16x16x32_bf16 {vr(c,4)}, {vr(fs + 4*p1,4)}, {vr(fs + 32 + 4*be,4)}, {vr(c,4)}")
    reads(FA[0])
    for it in range(4):
        if it < 3:
            reads(FA[(it + 1) & 1])
            k("s_waitcnt lgkmcnt(15)")
            k("s_nop 0")
        else:
            k("s_waitcnt lgkmcnt(0)")
        mm(FA[it & 1])
    stamp(k, 2)
    k("s_barrier")
    k("v_lshlrev_b32 v3, 4, v1")
    k("s_lshl_b32 s30, s14, 12")
    k("v_add_u32 v6, s30, v3")
    k("s_xor_b32 s31, s14, 1")
    k("s_lshl_b32 s31, s31, 12")
    k("v_add_u32 v7, s31, v3")
    k("s_cmp_eq_u32 s28, 0")
    k("s_cbranch_scc0 L_cv_w1")
    for q in range(4): k(f"ds_write_b128 v6, {vr(ACC + 16 + 4*q, 4)} offset:{1024*q}")
    k("s_branch L_cv_w2")
    k.label("L_cv_w1")
    for q in range(4): k(f"ds_write_b128 v6, {vr(ACC + 4*q, 4)} offset:{1024*q}")
    for r in range(16): k(f"v_mov_b32 v{ACC + r}, v{ACC + 16 + r}")
    k.label("L_cv_w2")
    k("s_waitcnt lgkmcnt(0)")
    k("s_barrier")
    for q in range(4): k(f"ds_read_b128 {vr(64 + 4*q, 4)}, v7 offset:{1024*q}")
    k("v_and_b32 v8, 15, v1")
    k("v_lshlrev_b32 v8, 5, v8")
    k("v_lshrrev_b32 v9, 4, v1")
    k("v_lshl_add_u32 v8, v9, 3, v8")
    k("s_lshl_b32 s30, s28, 11")
    k("s_add_u32 s30, s30, s34")
    k("s_add_u32 s30, s30, 512")
    k("v_add_u32 v9, s30, v8")
    for q in range(4): k(f"ds_read_b64 {vr(80 + 2*q, 2)}, v9 offset:{512*q}")
    k("v_lshlrev_b32 v24, 16, v24")
    k("s_waitcnt lgkmcnt(0)")
    for r in range(16): k(f"v_add_f32 v{ACC + r}, v{ACC + r}, v{64 + r}")
    for q in range(4):
        for hh in range(2):
            src = 80 + 2*q + hh
            k(f"v_lshlrev_b32 v10, 16, v{src}")
            k(f"v_and_b32 v11, 0xffff0000, v{src}")
            k(f"v_fmac_f32 v{ACC + 4*q + 2*hh}, v10, v24")
            k(f"v_fmac_f32 v{ACC + 4*q + 2*hh + 1}, v11, v24")
    for j in range(8): k(f"v_cvt_pk_bf16_f32 v{64 + j}, v{ACC + 2*j}, v{ACC + 2*j + 1}")
    k("s_lshl_b32 s30, s14, 11")
    k("s_add_u32 s30, s30, 16384")
    k("v_add_u32 v9, s30, v8")
    for q in range(4): k(f"ds_write_b64 v9, {vr(64 + 2*q, 2)} offset:{512*q}")
    k("v_add_u32 v9, s30, v3")
    k("s_waitcnt lgkmcnt(0)")
    k("ds_read_b128 v[72:75], v9")
    k("ds_read_b128 v[76:79], v9 offset:1024")
    k("s_lshl_b32 s30, s29, 12")
    k("s_lshl_b32 s31, s28, 11")
    k("s_add_u32 s30, s30, s31")
    k("s_waitcnt lgkmcnt(0)")
    k("buffer_store_dwordx4 v[72:75], v3, s[24:27], s30 offen")
    k("buffer_store_dwordx4 v[76:79], v3, s[24:27], s30 offen offset:1024")
    stamp(k, 3)
    stamp_flush(k, 2, 4, 1, 2)
    k("s_endpgm")

def kd(name, vgpr, sgpr=102):
    return f""".amdhsa_kernel {name}
  .amdhsa_next_free_vgpr {vgpr}
  .amdhsa_next_free_sgpr {sgpr}
  .amdhsa_accum_offset {vgpr}
  .amdhsa_group_segment_fixed_size 0
  .amdhsa_kernarg_size 120
  .amdhsa_user_sgpr_count 2
  .amdhsa_user_sgpr_kernarg_segment_ptr 1
  .amdhsa_system_sgpr_workgroup_id_x 1
.end_amdhsa_kernel
"""

def header(launches):
    h = open("cdna_kernels/" + NAME + ".s.ref").read().split("; Override")[0]
    for (kn, g, b, lds) in launches:
        h += f"; @launch kernel={kn} grid=({g},1,1) block=({b},1,1) lds={lds}\n"
    h += '.amdgcn_target "amdgcn-amd-amdhsa--gfx950"\n.text\n'
    return h

def kern_text(name, k):
    return f".globl {name}\n.p2align 8\n.type {name},@function\n{name}:\n" + k.text()

def main(path):
    K1 = NAME + "_kernel"
    k1 = Kern()
    k1("s_cmp_lt_u32 s2, 224")
    k1("s_cbranch_scc1 L_g1")
    k1("s_cmp_lt_u32 s2, 448")
    k1("s_cbranch_scc1 L_kgen")
    k1("s_cmp_lt_u32 s2, 512")
    k1("s_cbranch_scc0 L_k1_exit")
    k1("s_sub_u32 s3, s2, 448")
    role_ln(k1, 3)
    k1.label("L_k1_exit")
    k1("s_endpgm")
    k1.label("L_kgen")
    k1("s_sub_u32 s3, s2, 224")
    role_kgen(k1, 3)
    k1.label("L_g1")
    k1("s_mov_b32 s3, s2")
    role_g1(k1)
    k2 = Kern()
    k2("s_cmp_lt_u32 s2, 224")
    k2("s_cbranch_scc1 L_cv")
    k2("s_endpgm")
    k2.label("L_cv")
    k2("s_mov_b32 s3, s2")
    role_conv(k2, 3)
    k3 = Kern()
    k3("s_cmp_lt_u32 s2, 224")
    k3("s_cbranch_scc1 L_g2")
    k3("s_endpgm")
    k3.label("L_g2")
    k3("s_mov_b32 s3, s2")
    role_g2(k3, use_z=True)
    launches = [(K1, 512, 256, 81920), ("conv_kernel", 224, 256, 81920), ("g2_kernel", 224, 256, 81920)]
    txt = header(launches)
    txt += kern_text(K1, k1) + kern_text("conv_kernel", k2) + kern_text("g2_kernel", k3)
    txt += '.section .rodata,"a"\n.p2align 6\n' + kd(K1, 160) + ".p2align 6\n" + kd("conv_kernel", 192) + ".p2align 6\n" + kd("g2_kernel", 256)
    open(path, "w").write(txt)

if __name__ == "__main__":
    for a in list(sys.argv):
        if a.startswith("--exp="):
            EXP = a[6:].split(","); sys.argv.remove(a)
    if "--dbg" in sys.argv:
        DBGSTAMP = True; STAMP = True; sys.argv.remove("--dbg")
    if "--stamp" in sys.argv:
        STAMP = True; sys.argv.remove("--stamp")
    main(sys.argv[1] if len(sys.argv) > 1 else "cdna_kernels/" + NAME + ".s")
```

```python
import re

TRANS = ("v_exp_f32", "v_log_f32", "v_rcp_f32", "v_rsq_f32", "v_sqrt_f32", "v_sin_f32", "v_cos_f32")

def _regs(tok):
    tok = tok.strip()
    neg = tok.lstrip("-")
    if neg.startswith("abs(") or neg.startswith("|"):
        neg = neg.replace("abs(", "").replace(")", "").replace("|", "")
    m = re.fullmatch(r"([vsa])\[(\d+):(\d+)\]", neg)
    if m:
        return {f"{m.group(1)}{i}" for i in range(int(m.group(2)), int(m.group(3)) + 1)}
    m = re.fullmatch(r"([vsa])(\d+)", neg)
    if m:
        return {neg}
    if neg in ("vcc", "vcc_lo", "vcc_hi"):
        return {"vcc"}
    if neg in ("exec", "exec_lo", "exec_hi"):
        return {"exec"}
    if neg == "m0":
        return {"m0"}
    return set()

class Ins:
    def __init__(self, text):
        self.text = text
        t = text.split(";")[0].strip()
        self.is_label = t.endswith(":")
        self.op = t.split()[0] if t else ""
        rest = t[len(self.op):].strip()
        ops, depth, cur = [], 0, ""
        for ch in rest:
            if ch == "[": depth += 1
            if ch == "]": depth -= 1
            if ch == "," and depth == 0:
                ops.append(cur.strip()); cur = ""
            else:
                cur += ch
        if cur.strip(): ops.append(cur.strip())
        self.mods = ""
        if ops:
            parts = ops[-1].split(None, 1)
            if len(parts) == 2 and not parts[0].endswith(":"):
                ops[-1] = parts[0]; self.mods = parts[1]
        self.ops = ops
        op = self.op
        self.valu = op.startswith("v_") and not op.startswith("v_mfma")
        self.mfma = op.startswith("v_mfma")
        self.salu = op.startswith("s_")
        self.ds = op.startswith("ds_")
        self.vmem = op.startswith("buffer_") or op.startswith("global_")
        self.trans = any(op.startswith(x) for x in TRANS)
        self.dpp = ("_dpp" in op) or ("quad_perm" in self.mods) or ("row_" in self.mods) or ("wave_" in self.mods)
        self.W, self.R = set(), set()
        R = [_regs(o) for o in ops]
        if self.mfma:
            self.W = R[0]; self.A = R[1]; self.B = R[2]; self.C = R[3]; self.R = R[1] | R[2] | R[3]
            self.passes = 8 if "32x32" in op else 4
        elif self.valu:
            if op.startswith("v_cmp"):
                self.W = R[0]; self.R = set().union(*R[1:])
                if op.startswith("v_cmpx"): self.W |= {"exec"}
            elif op.startswith("v_readfirstlane") or op.startswith("v_readlane"):
                self.W = R[0]; self.R = set().union(*R[1:])
            elif op.startswith("v_permlane32_swap") or op.startswith("v_permlane16_swap"):
                self.W = R[0] | R[1]; self.R = R[0] | R[1]
            elif "_co_" in op:
                self.W = R[0] | R[1]; self.R = set().union(*R[2:])
            else:
                self.W = R[0]; self.R = set().union(*R[1:]) if len(R) > 1 else set()
                if op.startswith("v_fmac") or op.startswith("v_dot2c") or op.startswith("v_writelane") or "d16" in op:
                    self.R |= R[0]
                if op.startswith("v_cndmask") and len(ops) == 3: self.R |= {"vcc"}
                if self.dpp: self.R |= R[0]
        elif self.ds:
            if op.startswith("ds_read") or op.startswith("ds_swizzle") or op.startswith("ds_bpermute") or op.startswith("ds_permute"):
                self.W = R[0]; self.R = set().union(*R[1:])
            else:
                self.R = set().union(*R)
        elif self.vmem:
            lds = " lds" in (" " + self.mods) or op.startswith("global_load_lds")
            self.lds_dma = lds
            if ("load" in op and not lds):
                self.W = R[0]; self.R = set().union(*R[1:])
            elif "atomic" in op and "sc0" in self.mods:
                self.W = R[0]; self.R = set().union(*R)
            else:
                self.R = set().union(*R)
            if lds: self.R |= {"m0"}
        elif self.salu:
            if op.startswith(("s_cmp", "s_cbranch", "s_branch", "s_waitcnt", "s_barrier", "s_nop", "s_endpgm", "s_sleep", "s_setprio", "s_bitcmp")):
                self.R = set().union(*R) if R else set()
            else:
                self.W = R[0] if R else set(); self.R = set().union(*R[1:]) if len(R) > 1 else set()
                if "saveexec" in op: self.W |= {"exec"}; self.R |= {"exec"}
    def states(self):
        if self.op == "s_nop":
            return int(self.ops[0], 0) + 1
        if self.is_label or not self.op or self.op.startswith("."):
            return 0
        return 1

def required(p, c):
    n = 0
    vw = {r for r in p.W if r[0] in "va" and r not in ("vcc",)}
    sw = {r for r in p.W if r[0] == "s" or r == "vcc"}
    if p.valu:
        if c.mfma and (vw & c.R): n = max(n, 2)
        if "exec" in p.W and c.mfma: n = max(n, 4)
        if p.trans and c.valu and not c.trans and (vw & c.R): n = max(n, 1)
        if p.trans and c.mfma and (vw & c.R): n = max(n, 2)
        if c.valu and c.dpp and (vw & c.R): n = max(n, 2)
        if c.valu and c.op.startswith("v_permlane") and (vw & c.R): n = max(n, 2)
        if c.valu and c.op.startswith(("v_readfirstlane", "v_readlane")) and (vw & c.R): n = max(n, 1)
        if sw:
            if c.valu and (sw & c.R):
                n = max(n, 4 if c.op.startswith(("v_readlane", "v_writelane")) else 2)
            if c.vmem and (sw & c.R): n = max(n, 5)
            if c.salu and (sw & c.R): n = max(n, 1)
        if "exec" in p.W and c.valu and (c.dpp): n = max(n, 5)
        if "op_sel" in p.mods and c.valu and (vw & c.R) and not p.op.startswith("v_pk"): n = max(n, 1)
    if p.op.startswith("v_dot2"):
        if (vw & (c.R | c.W)) and not (c.op == p.op and vw == _regs(c.ops[0]) and not any(vw & _regs(o) for o in c.ops[1:3])):
            n = max(n, 3)
    if p.mfma:
        big = p.passes == 8
        if c.mfma:
            if p.W & c.C:
                if not (p.W == c.C and p.passes == c.passes): n = max(n, 10 if big else 6)
            if p.W & (c.A | c.B): n = max(n, 12 if big else 8)
        elif (c.valu or c.vmem or c.ds):
            if p.W & (c.R | c.W): n = max(n, 12 if big else 8)
            if c.valu and (p.C & c.W): n = max(n, 7 if big else 3)
    if p.salu and "m0" in p.W and c.vmem and getattr(c, "lds_dma", False): n = max(n, 1)
    if p.vmem and "store" in p.op and ("x4" in p.op or "x3" in p.op):
        data = _regs(p.ops[0]) if p.op.startswith("buffer") else _regs(p.ops[1])
        if (c.valu or c.mfma) and (data & c.W): n = max(n, 2)
        elif (data & c.W): n = max(n, 1)
    return n

def hazard_pass(lines, window=24):
    out = []
    res = []
    for text in lines:
        ins = Ins(text)
        if ins.op and not ins.is_label and not ins.op.startswith("."):
            need = 0; dist = 0
            for p in reversed(out[-window:]):
                r = required(p, ins)
                if r > dist: need = max(need, r - dist)
                dist += p.states()
                if dist >= 20: break
            while need > 0:
                k = min(need, 16)
                nop = Ins(f"  s_nop {k-1}")
                out.append(nop); res.append(nop.text); need -= k
        out.append(ins); res.append(text)
    return res

class Kern:
    def __init__(self):
        self.lines = []
    def __call__(self, s):
        for l in s.split("\n"):
            l = l.strip()
            if l:
                m = re.search(r"offset:(\d+)", l)
                if m:
                    lim = 4096 if l.startswith("buffer_") else 65536
                    assert int(m.group(1)) < lim, l
                self.lines.append("  " + l)
    def label(self, name): self.lines.append(name + ":")
    def text(self): return "\n".join(hazard_pass(self.lines)) + "\n"


def _lat(p, c):
    if p.mfma: return 5 if p.passes == 4 else 9
    if p.trans: return 4
    if p.op.startswith("v_pk") or p.op.startswith("v_cvt") or p.op.startswith("v_dot"): return 3
    if p.valu: return 2
    return 1

def schedule(lines):
    ins = [Ins(t) for t in lines]
    n = len(ins)
    preds = [dict() for _ in range(n)]
    lastw = {}; readers = {}
    last_mem = {"ds": None, "vm": None}
    for i, x in enumerate(ins):
        R = set(x.R); W = set(x.W)
        if x.salu and not x.op.startswith(("s_mov", "s_nop", "s_mul_i32", "s_cselect")): W = W | {"scc"}
        if x.op.startswith(("s_cselect", "s_addc", "s_subb")): R = R | {"scc"}
        if x.valu or x.mfma or x.ds or x.vmem: R = R | {"exec"}
        for r in R:
            if r in lastw: preds[i][lastw[r]] = max(preds[i].get(lastw[r], 0), _lat(ins[lastw[r]], x) if r != "exec" else 1)
        for w in W:
            if w in lastw: preds[i][lastw[w]] = max(preds[i].get(lastw[w], 0), 1)
            for rd in readers.get(w, []):
                if rd != i: preds[i][rd] = max(preds[i].get(rd, 0), 1)
        kind = "ds" if x.ds else ("vm" if x.vmem else None)
        if kind:
            if last_mem[kind] is not None: preds[i][last_mem[kind]] = max(preds[i].get(last_mem[kind], 0), 1)
            last_mem[kind] = i
        for r in R: readers.setdefault(r, []).append(i)
        for w in W:
            lastw[w] = i; readers[w] = []
    succs = [[] for _ in range(n)]
    for i in range(n):
        for p, l in preds[i].items(): succs[p].append((i, l))
    prio = [0] * n
    for i in reversed(range(n)):
        prio[i] = max([prio[s] + l for s, l in succs[i]] + [0])
    ready_at = [0] * n
    npred = [len(preds[i]) for i in range(n)]
    avail = [i for i in range(n) if npred[i] == 0]
    order = []; t = 0
    while avail:
        cand = [i for i in avail if ready_at[i] <= t]
        if not cand:
            t = min(ready_at[i] for i in avail); continue
        i = max(cand, key=lambda j: (prio[j], -j))
        avail.remove(i); order.append(i)
        cost = 2 if ins[i].trans else 1
        for s, l in succs[i]:
            ready_at[s] = max(ready_at[s], t + l)
            npred[s] -= 1
            if npred[s] == 0: avail.append(s)
        t += cost
    assert len(order) == n
    return [lines[i] for i in order]

class _Sched:
    def __init__(self, k): self.k = k
    def __enter__(self): self.start = len(self.k.lines); return self
    def __exit__(self, *a):
        seg = self.k.lines[self.start:]
        self.k.lines[self.start:] = schedule(seg)

Kern.sched = lambda self: _Sched(self)
```

```python
import sys
from asmlib import Kern

NAME = "parallel_sum__ssm_conv_s4__dense_activation_relu__prompt"

XT_OFF = 0x000000
RS_OFF = 0x1C0000
HF_OFF = 0x400000
W2F_OFF = 0xC00000
ZT_OFF = 0xE00000
FL_OFF = 0x1000000
TS_OFF = 0x1100000
XT_SZ = 64 * 448 * 64
RS_SZ = 2048 * 4
HF_SZ = 64 * 112 * 1024
W2F_SZ = 112 * 14 * 1024
ZT_SZ = 448 * 4096
FL_SZ = 0x10000
FL_LN = 0
FL_W2 = 1024
FL_H = 2048
FL_Z = 8192

STAMP = False
EXP = []
SPIN_LIMIT = 200000

def srd(k, d, lo, hi, size, off=0):
    if off:
        k(f"s_add_u32 s{d}, s{lo}, {off}")
        k(f"s_addc_u32 s{d+1}, s{hi}, 0")
    else:
        k(f"s_mov_b32 s{d}, s{lo}")
        k(f"s_mov_b32 s{d+1}, s{hi}")
    k(f"s_mov_b32 s{d+2}, {size}")
    k(f"s_mov_b32 s{d+3}, 0x00020000")

def vr(a, n=1):
    return f"v{a}" if n == 1 else f"v[{a}:{a+n-1}]"

def stamp(k, i):
    if not STAMP: return
    if i == 8: k("s_memrealtime s[96:97]")
    else:
        j = i if i < 8 else i - 1
        k(f"s_memtime s[{72+2*j}:{73+2*j}]")

def stamp_flush(k, kern_idx, n):
    if not STAMP: return
    k("s_memrealtime s[98:99]")
    k("s_waitcnt lgkmcnt(0)")
    k("s_load_dwordx2 s[68:69], s[0:1], 112")
    k("s_waitcnt lgkmcnt(0)")
    k(f"s_add_u32 s64, s68, {TS_OFF + kern_idx * 0x10000}")
    k("s_addc_u32 s65, s69, 0")
    k("s_mov_b32 s66, 0x10000")
    k("s_mov_b32 s67, 0x00020000")
    k("s_lshl_b32 s68, s2, 6")
    k("v_cmp_eq_u32 vcc, 0, v0")
    k("s_and_saveexec_b64 s[70:71], vcc")
    k("v_mov_b32 v1, s68")
    for i in range(12):
        k(f"v_mov_b32 v2, s{72+2*i}")
        k(f"buffer_store_dword v2, v1, s[64:67], 0 offen offset:{4*i}")
    k("s_getreg_b32 s69, hwreg(HW_REG_HW_ID)")
    k("v_mov_b32 v2, s69")
    k("buffer_store_dword v2, v1, s[64:67], 0 offen offset:48")
    k("s_getreg_b32 s69, hwreg(HW_REG_XCC_ID)")
    k("v_mov_b32 v2, s69")
    k("buffer_store_dword v2, v1, s[64:67], 0 offen offset:52")
    k("v_mov_b32 v2, s96")
    k("buffer_store_dword v2, v1, s[64:67], 0 offen offset:56")
    k("v_mov_b32 v2, s98")
    k("buffer_store_dword v2, v1, s[64:67], 0 offen offset:60")
    k("s_mov_b64 exec, s[70:71]")

_uid = [0]
def uid(p):
    _uid[0] += 1
    return f"L_{p}{_uid[0]}"

def get_nonce(k, dbg_srd, sdst, vtmp):
    L = uid("nonce"); E = uid("nonce_e")
    k(f"v_mov_b32 v{vtmp}, 0")
    k(f"s_mov_b32 s{sdst+1}, 0")
    k.label(L)
    k(f"buffer_load_dword v{vtmp+1}, v{vtmp}, s[{dbg_srd}:{dbg_srd+3}], 0 offen sc1")
    k("s_waitcnt vmcnt(0)")
    k(f"v_readfirstlane_b32 s{sdst}, v{vtmp+1}")
    k("s_nop 3")
    k(f"s_cmp_lg_u32 s{sdst}, 0")
    k(f"s_cbranch_scc1 {E}")
    k(f"s_add_u32 s{sdst+1}, s{sdst+1}, 1")
    k(f"s_cmp_lt_u32 s{sdst+1}, {SPIN_LIMIT}")
    k("s_sleep 1")
    k(f"s_cbranch_scc1 {L}")
    k.label(E)

def wait_flags(k, fl_srd, base_off, stride_shift, nflags, snonce, vtmp, scnt, wave0=None):
    L = uid("wf"); E = uid("wf_e")
    if wave0 is not None:
        k(f"s_cmp_lg_u32 s{wave0}, 0")
        k(f"s_cbranch_scc1 {E}")
    k(f"v_and_b32 v{vtmp}, 63, v0")
    k(f"v_min_u32 v{vtmp}, {nflags - 1}, v{vtmp}")
    k(f"v_lshlrev_b32 v{vtmp}, {stride_shift}, v{vtmp}")
    k(f"v_add_u32 v{vtmp}, {base_off}, v{vtmp}") if isinstance(base_off, int) else k(f"v_add_u32 v{vtmp}, s{base_off[0]}, v{vtmp}")
    k(f"s_mov_b32 s{scnt}, 0")
    k.label(L)
    k(f"buffer_load_dword v{vtmp+1}, v{vtmp}, s[{fl_srd}:{fl_srd+3}], 0 offen sc1")
    k("s_waitcnt vmcnt(0)")
    k(f"v_cmp_ne_u32 vcc, s{snonce}, v{vtmp+1}")
    k("s_nop 4")
    k(f"s_cbranch_vccz {E}")
    k(f"s_add_u32 s{scnt}, s{scnt}, 1")
    k(f"s_cmp_lt_u32 s{scnt}, {SPIN_LIMIT}")
    k("s_sleep 2")
    k(f"s_cbranch_scc1 {L}")
    k.label(E)

def signal(k, fl_srd, soff, snonce, vtmp, imm=0):
    k("s_waitcnt vmcnt(0)")
    k("s_barrier")
    k("v_cmp_eq_u32 vcc, 0, v0")
    k("s_and_saveexec_b64 s[44:45], vcc")
    k(f"s_add_u32 s{soff}, s{soff}, {imm}")
    k(f"v_mov_b32 v{vtmp}, s{soff}")
    k(f"v_mov_b32 v{vtmp+1}, s{snonce}")
    k(f"buffer_store_dword v{vtmp+1}, v{vtmp}, s[{fl_srd}:{fl_srd+3}], 0 offen sc1")
    k("s_mov_b64 exec, s[44:45]")

def wait_flags2(k, fl_srd, sets, snonce, vtmp, scnt, wave0):
    L = uid("wf"); E = uid("wf_e")
    k(f"s_cmp_lg_u32 s{wave0}, 0")
    k(f"s_cbranch_scc1 {E}")
    n = len(sets)
    for i, (base_off, nflags) in enumerate(sets):
        v = vtmp + 2*i
        k(f"v_and_b32 v{v}, 63, v0")
        k(f"v_min_u32 v{v}, {nflags - 1}, v{v}")
        k(f"v_lshlrev_b32 v{v}, 4, v{v}")
        k(f"v_add_u32 v{v}, {base_off}, v{v}") if isinstance(base_off, int) else k(f"v_add_u32 v{v}, s{base_off[0]}, v{v}")
    k(f"s_mov_b32 s{scnt}, 0")
    k.label(L)
    for i in range(n):
        k(f"buffer_load_dword v{vtmp+2*i+1}, v{vtmp+2*i}, s[{fl_srd}:{fl_srd+3}], 0 offen sc1")
    k("s_waitcnt vmcnt(0)")
    for i in range(1, n):
        k(f"v_xor_b32 v{vtmp+2*i+1}, s{snonce}, v{vtmp+2*i+1}")
    k(f"v_xor_b32 v{vtmp+1}, s{snonce}, v{vtmp+1}")
    for i in range(1, n):
        k(f"v_or_b32 v{vtmp+1}, v{vtmp+1}, v{vtmp+2*i+1}")
    k(f"v_cmp_ne_u32 vcc, 0, v{vtmp+1}")
    k("s_nop 4")
    k(f"s_cbranch_vccz {E}")
    k(f"s_add_u32 s{scnt}, s{scnt}, 1")
    k(f"s_cmp_lt_u32 s{scnt}, {SPIN_LIMIT}")
    k("s_sleep 1")
    k(f"s_cbranch_scc1 {L}")
    k.label(E)

def role_g1(k):
    stamp(k, 8); stamp(k, 0)
    k("s_load_dwordx2 s[4:5], s[0:1], 0")
    k("s_setprio 3")
    k("s_load_dwordx2 s[6:7], s[0:1], 80")
    k("s_load_dwordx2 s[8:9], s[0:1], 112")
    k("s_load_dwordx2 s[50:51], s[0:1], 104")
    k("s_and_b32 s10, s3, 7")
    k("s_lshr_b32 s11, s3, 3")
    k("s_and_b32 s30, s11, 3")
    k("s_lshr_b32 s31, s11, 2")
    k("s_lshr_b32 s12, s10, 1")
    k("s_lshl_b32 s12, s12, 2")
    k("s_add_u32 s12, s12, s30")
    k("s_and_b32 s13, s10, 1")
    k("s_mul_i32 s13, s13, 7")
    k("s_add_u32 s13, s13, s31")
    k("s_mul_i32 s32, s30, 7\n s_add_u32 s32, s32, 1\n s_lshr_b32 s32, s32, 1")
    k("s_lshl_b32 s31, s31, 1\n s_add_u32 s45, s32, s31")
    k("s_cmp_ge_u32 s45, 14\n s_cselect_b32 s32, 14, 0\n s_sub_u32 s45, s45, s32")
    if "norot" in EXP: k("s_mov_b32 s45, 0")
    k("v_and_b32 v1, 63, v0")
    k("v_lshrrev_b32 v2, 6, v0")
    k("v_readfirstlane_b32 s14, v2")
    k("s_and_b32 s15, s14, 1")
    k("s_lshr_b32 s28, s14, 1")
    k("s_lshl_b32 s29, s14, 11")
    VX0, VX1, VW0, VW1 = 4, 5, 6, 7
    with k.sched():
        k("s_lshl_b32 s30, s12, 7")
        k("s_lshl_b32 s31, s14, 5")
        k("s_add_u32 s30, s30, s31")
        k("v_lshrrev_b32 v3, 2, v1")
        k("v_add_u32 v3, s30, v3")
        k("v_mul_u32_u24 v3, 896, v3")
        k("v_lshrrev_b32 v8, 4, v1")
        k("v_xor_b32 v9, v1, v8")
        k("v_and_b32 v9, 3, v9")
        k(f"v_lshl_add_u32 v{VX0}, v9, 4, v3")
        k(f"v_add_u32 v{VX1}, 14336, v{VX0}")
        k("s_lshl_b32 s33, s14, 3")
        k("v_add_u32 v10, s33, v8")
        k("v_mul_u32_u24 v10, 3584, v10")
        k("v_lshlrev_b32 v11, 2, v8")
        k("v_xor_b32 v11, v1, v11")
        k("v_and_b32 v11, 15, v11")
        k("v_lshl_add_u32 v10, v11, 4, v10")
        k("s_lshl_b32 s34, s13, 8")
        k(f"v_add_u32 v{VW0}, s34, v10")
        k(f"v_add_u32 v{VW1}, 14336, v{VW0}")
    k("s_memrealtime s[46:47]")
    k("s_waitcnt lgkmcnt(0)")
    srd(k, 16, 4, 5, 2048 * 896)
    srd(k, 20, 6, 7, 448 * 3584)
    srd(k, 24, 8, 9, HF_SZ, HF_OFF)
    srd(k, 52, 50, 51, 256)
    srd(k, 60, 8, 9, FL_SZ, FL_OFF)
    k("s_cmp_lg_u32 s3, 0")
    k("s_cbranch_scc1 L_g1_nn")
    k("s_or_b32 s46, s46, 1")
    k("v_cmp_eq_u32 vcc, 0, v0")
    k("s_and_saveexec_b64 s[30:31], vcc")
    k("v_mov_b32 v100, 0")
    k("v_mov_b32 v101, s46")
    k("buffer_store_dword v101, v100, s[52:55], 0 offen sc1")
    k("s_mov_b64 exec, s[30:31]")
    k("s_waitcnt vmcnt(0)")
    k.label("L_g1_nn")
    def set_stage():
        k("s_mul_i32 s40, s45, 114688")
        k("s_lshl_b32 s41, s45, 6")
    def adv_stage():
        k("s_add_u32 s45, s45, 1\n s_cmp_eq_u32 s45, 14\n s_cselect_b32 s45, 0, s45")
    def dma_w(j, slot):
        k(f"s_add_u32 m0, s29, {16384*slot + 1024*j}")
        k(f"buffer_load_dwordx4 v{[VW0, VW1][j]}, s[20:23], s40 offen lds")
    def dma_x(j, slot):
        k(f"s_add_u32 m0, s29, {16384*slot + 8192 + 1024*j}")
        k(f"buffer_load_dwordx4 v{[VX0, VX1][j]}, s[16:19], s41 offen lds")
    for s in range(3):
        set_stage(); dma_w(0, s); dma_w(1, s); dma_x(0, s); dma_x(1, s); adv_stage()
    set_stage(); dma_w(0, 3); dma_w(1, 3)
    AA = [10, 11]; BB0 = [12, 13]; BB1 = [14, 15]
    AAh = [16, 17]; BB0h = [18, 19]; BB1h = [20, 21]
    with k.sched():
        k("v_lshrrev_b32 v3, 5, v1")
        k("v_bfe_u32 v8, v1, 2, 2")
        k("v_lshl_add_u32 v3, v3, 3, v8")
        k("v_lshlrev_b32 v3, 8, v3")
        k("v_bfe_u32 v9, v1, 4, 1")
        k("v_lshlrev_b32 v9, 1, v9")
        k("v_bfe_u32 v22, v1, 1, 1")
        k("v_add_u32 v9, v9, v22")
        k("v_lshl_add_u32 v3, v9, 4, v3")
        k("v_and_b32 v22, 1, v1")
        k("v_lshl_add_u32 v3, v22, 3, v3")
        for ai in range(2):
            k(f"s_xor_b32 s{30+ai}, s28, {ai}")
            k(f"s_lshl_b32 s{32+ai}, s15, 1")
            k(f"s_add_u32 s{30+ai}, s{30+ai}, s{32+ai}")
            k(f"v_xor_b32 v{24+ai}, s{30+ai}, v8")
            k(f"v_lshl_add_u32 v{AA[ai]}, v{24+ai}, 6, v3")
            k(f"v_add_u32 v{AAh[ai]}, 65536, v{AA[ai]}")
        k("v_and_b32 v26, 31, v1")
        k("v_lshrrev_b32 v27, 5, v1")
        k("v_xor_b32 v27, v27, v8")
        k("v_lshlrev_b32 v27, 4, v27")
        k("v_lshl_add_u32 v26, v26, 6, v27")
        for bi in range(2):
            k(f"s_xor_b32 s{34+bi}, s15, {bi}")
            k(f"s_lshl_b32 s{34+bi}, s{34+bi}, 11")
            k(f"s_lshl_b32 s{36+bi}, s28, 12")
            k(f"s_add_u32 s{34+bi}, s{34+bi}, s{36+bi}")
            k(f"s_add_u32 s{34+bi}, s{34+bi}, 8192")
            k(f"v_add_u32 v{BB0[bi]}, s{34+bi}, v26")
            k(f"v_xor_b32 v{BB1[bi]}, 32, v{BB0[bi]}")
            k(f"v_add_u32 v{BB0h[bi]}, 65536, v{BB0[bi]}")
            k(f"v_add_u32 v{BB1h[bi]}, 65536, v{BB1[bi]}")
    SEL = 160; SW = 164; SX = 168
    k("v_and_b32 v22, 15, v1")
    k("v_bfe_u32 v23, v1, 4, 1")
    k("v_cmp_eq_u32 vcc, v22, v23")
    k("v_mov_b32 v22, 0x3f803f80")
    k(f"v_cndmask_b32 v{SEL}, 0, v22, vcc")
    for i in range(1, 4): k(f"v_mov_b32 v{SEL + i}, v{SEL}")
    for i in range(4):
        k(f"v_mov_b32 v{SW + i}, 0")
        k(f"v_mov_b32 v{SX + i}, 0")
    FR = [24, 40]
    ACC = 56
    for i in range(64): k(f"v_mov_b32 v{ACC + i}, 0")
    def rdA(slot, kap, fs, ai):
        if "nords" in EXP: return
        hi = slot >= 4; sb = 0 if hi else slot * 16384
        a_ = (AAh if hi else AA)[ai]
        k(f"ds_read_b64_tr_b16 {vr(fs + 4*ai, 2)}, v{a_} offset:{sb + kap*4096}")
        k(f"ds_read_b64_tr_b16 {vr(fs + 4*ai + 2, 2)}, v{a_} offset:{sb + kap*4096 + 1024}")
    def rdB(slot, kap, fs, bi):
        if "nords" in EXP: return
        hi = slot >= 4; sb = 0 if hi else slot * 16384
        b_ = ((BB1h if hi else BB1) if kap else (BB0h if hi else BB0))[bi]
        k(f"ds_read_b128 {vr(fs + 8 + 4*bi, 4)}, v{b_} offset:{sb}")
    def mf(fs, ai, bi):
        if "nomf" in EXP: return
        c = ACC + (2*ai + bi) * 16
        k(f"v_mfma_f32_32x32x16_bf16 {vr(c,16)}, {vr(fs + 4*ai,4)}, {vr(fs + 8 + 4*bi,4)}, {vr(c,16)}")
    def sums(fs, which):
        if "nomf" in EXP: return
        src = fs if which == 0 else fs + 8
        dst = SW if which == 0 else SX
        k(f"v_mfma_f32_16x16x32_bf16 {vr(dst,4)}, {vr(src,4)}, {vr(SEL,4)}, {vr(dst,4)}")
    def stage_body(slot, cd, ab, wait, last=False):
        nslot = (slot + 1) % 5
        k("s_waitcnt lgkmcnt(0)")
        mf(FR[0], 0, 0)
        rdA(slot, 1, FR[1], 0); rdB(slot, 1, FR[1], 0)
        mf(FR[0], 0, 1)
        rdA(slot, 1, FR[1], 1); rdB(slot, 1, FR[1], 1)
        sums(FR[0], 0)
        if cd: dma_x(0, (slot + 3) % 5)
        mf(FR[0], 1, 0)
        if cd: dma_x(1, (slot + 3) % 5)
        sums(FR[0], 1)
        if cd: adv_stage(); set_stage()
        mf(FR[0], 1, 1)
        if not last:
            k(f"s_waitcnt vmcnt({wait}) lgkmcnt(0)")
            k("s_barrier")
        else:
            k("s_waitcnt lgkmcnt(0)")
        mf(FR[1], 0, 0)
        if not last: rdA(nslot, 0, FR[0], 0); rdB(nslot, 0, FR[0], 0)
        mf(FR[1], 0, 1)
        if not last: rdA(nslot, 0, FR[0], 1); rdB(nslot, 0, FR[0], 1)
        sums(FR[1], 0)
        if ab: dma_w(0, (slot + 4) % 5)
        mf(FR[1], 1, 0)
        if ab: dma_w(1, (slot + 4) % 5)
        sums(FR[1], 1)
        mf(FR[1], 1, 1)
    k("s_mov_b32 s44, 0")
    stamp(k, 1)
    k("s_waitcnt vmcnt(10)")
    k("s_barrier")
    stamp(k, 2)
    for ai in range(2): rdA(0, 0, FR[0], ai)
    for bi in range(2): rdB(0, 0, FR[0], bi)
    k.label("L_g1_loop")
    for sl in range(5): stage_body(sl, True, True, 8)
    k("s_add_u32 s44, s44, 1")
    k("s_cmp_lt_u32 s44, 2")
    k("s_cbranch_scc1 L_g1_loop")
    stage_body(0, True, False, 8)
    stage_body(1, False, False, 4)
    stage_body(2, False, False, 0)
    stage_body(3, False, False, 0, last=True)
    stamp(k, 3)
    k("s_waitcnt lgkmcnt(0)")
    k("s_barrier")
    k("s_nop 7")
    for r in range(4): k(f"v_mul_f32 v{SX + r}, 0x3b124925, v{SX + r}")
    k(f"v_cvt_pk_bf16_f32 v24, v{SX}, v{SX+1}")
    k(f"v_cvt_pk_bf16_f32 v25, v{SX+2}, v{SX+3}")
    k(f"v_lshlrev_b32 v{SX}, 16, v24")
    k(f"v_and_b32 v{SX+1}, 0xffff0000, v24")
    k(f"v_lshlrev_b32 v{SX+2}, 16, v25")
    k(f"v_and_b32 v{SX+3}, 0xffff0000, v25")
    k("v_and_b32 v3, 1, v1")
    k("v_lshlrev_b32 v3, 6, v3")
    k("v_lshrrev_b32 v8, 4, v1")
    k("v_lshl_add_u32 v3, v8, 4, v3")
    k("s_lshl_b32 s30, s28, 1\n s_add_u32 s30, s30, s15\n s_lshl_b32 s30, s30, 7")
    k("s_lshl_b32 s31, s15, 1\n s_add_u32 s31, s31, s28\n s_lshl_b32 s31, s31, 7\n s_add_u32 s31, s31, 512")
    k("v_add_u32 v8, s30, v3")
    k("v_add_u32 v9, s31, v3")
    k("v_and_b32 v10, 15, v1")
    k("v_cmp_gt_u32 vcc, 2, v10")
    k("s_and_saveexec_b64 s[46:47], vcc")
    k(f"ds_write_b128 v8, {vr(SX,4)}")
    k(f"ds_write_b128 v9, {vr(SW,4)}")
    k("s_mov_b64 exec, s[46:47]")
    k("v_and_b32 v3, 31, v1")
    k("v_lshlrev_b32 v3, 2, v3")
    k("s_waitcnt lgkmcnt(0)")
    k("s_barrier")
    for bi in range(2):
        k(f"s_xor_b32 s30, s15, {bi}\n s_lshl_b32 s31, s28, 1\n s_add_u32 s30, s30, s31\n s_lshl_b32 s30, s30, 7")
        k(f"v_add_u32 v8, s30, v3")
        k(f"ds_read_b32 v{26 + 2*bi}, v8")
    k("v_lshrrev_b32 v9, 5, v1")
    k("v_lshlrev_b32 v9, 4, v9")
    for ai in range(2):
        k(f"s_xor_b32 s30, s28, {ai}\n s_lshl_b32 s31, s15, 1\n s_add_u32 s30, s30, s31\n s_lshl_b32 s30, s30, 7\n s_add_u32 s30, s30, 512")
        k(f"v_add_u32 v8, s30, v9")
        for q in range(4):
            k(f"ds_read_b128 {vr(124 + 16*ai + 4*q, 4)}, v8 offset:{32*q}")
    for bi in range(2):
        k(f"s_xor_b32 s{36+bi}, s15, {bi}\n s_lshl_b32 s31, s28, 1\n s_add_u32 s{36+bi}, s{36+bi}, s31\n s_lshl_b32 s31, s12, 2\n s_add_u32 s{36+bi}, s{36+bi}, s31\n s_mul_i32 s{36+bi}, s{36+bi}, {112*1024}")
    for ai in range(2):
        k(f"s_xor_b32 s{38+ai}, s28, {ai}\n s_lshl_b32 s31, s15, 1\n s_add_u32 s{38+ai}, s{38+ai}, s31\n s_lshl_b32 s31, s13, 2\n s_add_u32 s{38+ai}, s{38+ai}, s31\n s_lshl_b32 s{38+ai}, s{38+ai}, 11")
    k("v_lshlrev_b32 v3, 4, v1")
    k("s_waitcnt lgkmcnt(0)")
    for bi in range(2):
        k(f"v_sub_f32 v{26 + 2*bi}, 0, v{26 + 2*bi}")
        k(f"v_mov_b32 v{27 + 2*bi}, v{26 + 2*bi}")
    sfl = " sc1"
    for ai in range(2):
        for bi in range(2):
            c = ACC + (2*ai + bi) * 16
            with k.sched():
                for r in range(16):
                    k(f"v_fma_f32 v{c + r}, v{124 + 16*ai + r}, v{26 + 2*bi}, v{c + r}")
                for j in range(8):
                    k(f"v_cvt_pk_bf16_f32 v{40 + j}, v{c + 2*j}, v{c + 2*j + 1}")
                for j in range(8):
                    k(f"v_pk_max_i16 v{c + j}, v{40 + j}, 0")
            k(f"s_add_u32 s30, s{36+bi}, s{38+ai}")
            k(f"buffer_store_dwordx4 {vr(c,4)}, v3, s[24:27], s30 offen{sfl}")
            k(f"buffer_store_dwordx4 {vr(c+4,4)}, v3, s[24:27], s30 offen offset:1024{sfl}")
    stamp(k, 4)
    get_nonce(k, 52, 48, 40)
    k("s_lshl_b32 s30, s12, 8\n s_lshl_b32 s31, s13, 4\n s_add_u32 s30, s30, s31")
    signal(k, 60, 30, 48, 40, FL_H)
    stamp(k, 5)
    role_g2(k)

def role_ln(k):
    stamp(k, 8); stamp(k, 0)
    k("s_setprio 1")
    k("s_load_dwordx2 s[4:5], s[0:1], 0")
    k("s_load_dwordx2 s[6:7], s[0:1], 88")
    k("s_load_dwordx4 s[8:11], s[0:1], 104")
    k("v_and_b32 v1, 63, v0")
    k("v_lshrrev_b32 v2, 6, v0")
    k("v_readfirstlane_b32 s14, v2")
    k("s_lshl_b32 s30, s3, 5")
    k("s_lshl_b32 s31, s14, 3")
    k("s_add_u32 s30, s30, s31")
    k("v_lshrrev_b32 v3, 3, v1")
    k("v_add_u32 v4, s30, v3")
    k("v_mul_u32_u24 v5, 896, v4")
    k("v_and_b32 v6, 7, v1")
    k("v_lshl_add_u32 v5, v6, 4, v5")
    k("s_waitcnt lgkmcnt(0)")
    srd(k, 16, 4, 5, 2048 * 896)
    X = 8
    for j in range(7):
        k(f"buffer_load_dwordx4 {vr(X + 4*j, 4)}, v5, s[16:19], 0 offen offset:{128*j}")
    srd(k, 52, 8, 9, 256)
    srd(k, 20, 6, 7, 1792 * 896)
    srd(k, 24, 10, 11, XT_SZ, XT_OFF)
    srd(k, 36, 10, 11, RS_SZ, RS_OFF)
    srd(k, 40, 10, 11, W2F_SZ, W2F_OFF)
    srd(k, 56, 10, 11, FL_SZ, FL_OFF)
    W2L = 32768
    k("s_cmp_ge_u32 s3, 56")
    k("s_cbranch_scc1 L_ln_now2")
    k("s_mul_i32 s30, s3, 28672")
    k("s_mul_i32 s31, s14, 7168")
    k("s_add_u32 s30, s30, s31")
    k("v_lshlrev_b32 v7, 4, v1")
    for j in range(7):
        k(f"s_add_u32 m0, s31, {W2L + 1024*j}")
        k(f"s_add_u32 s32, s30, {1024*j}")
        k(f"buffer_load_dwordx4 v7, s[20:23], s32 offen lds")
    k.label("L_ln_now2")
    k("s_cmp_ge_u32 s3, 56")
    k("s_cbranch_scc1 L_ln_w0")
    k("s_waitcnt vmcnt(7)")
    k("s_branch L_ln_cont")
    k.label("L_ln_w0")
    k("s_waitcnt vmcnt(0)")
    k.label("L_ln_cont")
    stamp(k, 1)
    F = 40
    def reduce8(reg):
        k(f"v_add_f32_dpp v{reg}, v{reg}, v{reg} quad_perm:[1,0,3,2] row_mask:0xf bank_mask:0xf")
        k(f"v_add_f32_dpp v{reg}, v{reg}, v{reg} quad_perm:[2,3,0,1] row_mask:0xf bank_mask:0xf")
        k(f"v_add_f32_dpp v{reg}, v{reg}, v{reg} row_half_mirror row_mask:0xf bank_mask:0xf")
    with k.sched():
        for j in range(28):
            k(f"v_lshlrev_b32 v{F + 2*j}, 16, v{X + j}")
            k(f"v_and_b32 v{F + 2*j + 1}, 0xffff0000, v{X + j}")
        for j in range(4): k(f"v_add_f32 v{96 + j}, v{F + 2*j}, v{F + 2*j + 1}")
        for j in range(8, 56): k(f"v_add_f32 v{96 + (j & 3)}, v{96 + (j & 3)}, v{F + j}")
    k("v_add_f32 v96, v96, v97\n v_add_f32 v98, v98, v99\n v_add_f32 v96, v96, v98")
    reduce8(96)
    k("v_mul_f32 v96, 0xbb124925, v96")
    with k.sched():
        for j in range(4): k(f"v_mov_b32 v{100 + j}, 0")
        for j in range(56):
            t = 104 + (j % 12)
            k(f"v_add_f32 v{t}, v{F + j}, v96")
            k(f"v_fmac_f32 v{100 + (j % 4)}, v{t}, v{t}")
    k("v_add_f32 v100, v100, v101\n v_add_f32 v102, v102, v103\n v_add_f32 v100, v100, v102")
    reduce8(100)
    k("v_mul_f32 v100, 0x3b124925, v100")
    k("v_cvt_pk_bf16_f32 v100, v100, v96")
    k("v_and_b32 v96, 0xffff0000, v100")
    k("v_mov_b32 v97, v96")
    k("v_lshlrev_b32 v100, 16, v100")
    k("v_add_f32 v100, 0x3727c5ac, v100")
    k("v_cvt_pk_bf16_f32 v100, v100, v100")
    k("v_lshlrev_b32 v100, 16, v100")
    k("v_sqrt_f32 v100, v100")
    k("v_cvt_pk_bf16_f32 v100, v100, v100")
    k("v_lshlrev_b32 v100, 16, v100")
    k("v_rcp_f32 v102, v100")
    k("v_fma_f32 v103, -v100, v102, 2.0")
    k("v_mul_f32 v102, v102, v103")
    k("v_mov_b32 v103, v102")
    k("v_lshlrev_b32 v4, 2, v4")
    k("v_cmp_eq_u32 vcc, 0, v6")
    k("s_and_saveexec_b64 s[44:45], vcc")
    k("buffer_store_dword v102, v4, s[36:39], 0 offen sc1")
    k("s_mov_b64 exec, s[44:45]")
    with k.sched():
        for j in range(28):
            a = F + 2*j
            k(f"v_add_f32 v{a}, v{a}, v96")
            k(f"v_add_f32 v{a+1}, v{a+1}, v96")
            k(f"v_cvt_pk_bf16_f32 v{X + j}, v{a}, v{a+1}")
            k(f"v_lshlrev_b32 v{a}, 16, v{X + j}")
            k(f"v_and_b32 v{a+1}, 0xffff0000, v{X + j}")
            k(f"v_mul_f32 v{a}, v{a}, v102")
            k(f"v_mul_f32 v{a+1}, v{a+1}, v102")
            k(f"v_cvt_pk_bf16_f32 v{X + j}, v{a}, v{a+1}")
    RSTR = 960
    k("s_lshl_b32 s30, s14, 3")
    k("v_add_u32 v3, s30, v3")
    k(f"v_mul_u32_u24 v3, {RSTR}, v3")
    k("v_lshl_add_u32 v3, v6, 4, v3")
    for j in range(7):
        k(f"ds_write_b128 v3, {vr(X + 4*j, 4)} offset:{128*j}")
    L2B = 61440
    with k.sched():
        k("v_bfe_u32 v4, v1, 2, 2")
        k(f"v_mul_u32_u24 v4, {RSTR}, v4")
        k("v_lshrrev_b32 v5, 4, v1")
        k("v_lshlrev_b32 v5, 5, v5")
        k("v_add_u32 v4, v4, v5")
        k("v_and_b32 v8, 3, v1")
        k("v_lshl_add_u32 v4, v8, 3, v4")
        k("s_lshl_b32 s33, s14, 12")
        k(f"s_add_u32 s33, s33, {L2B}")
        k("v_bfe_u32 v6, v1, 1, 2")
        k("v_lshlrev_b32 v7, 6, v1")
        k("v_add_u32 v7, s33, v7")
        for pi in range(4):
            k(f"v_xor_b32 v{100 + pi}, {pi}, v6")
            k(f"v_lshl_add_u32 v{100 + pi}, v{100 + pi}, 4, v7")
        k("v_lshlrev_b32 v104, 4, v1")
        k("v_add_u32 v104, s33, v104")
        k("v_bfe_u32 v105, v1, 3, 2")
        k("v_xor_b32 v105, v105, v1")
        k("v_and_b32 v105, 3, v105")
        k("v_lshrrev_b32 v106, 2, v1")
        k("v_lshlrev_b32 v106, 6, v106")
        k("v_lshl_add_u32 v105, v105, 4, v106")
        k(f"s_mul_i32 s34, s3, {448*64}")
    k("s_waitcnt lgkmcnt(0)")
    k("s_barrier")
    k("s_mov_b32 s35, s14")
    k.label("L_ln_tr")
    k("s_lshl_b32 s46, s35, 7")
    k("v_add_u32 v107, s46, v4")
    for q in range(8):
        k(f"ds_read_b64_tr_b16 {vr(40 + 2*q, 2)}, v107 offset:{4*q*RSTR}")
    k("s_waitcnt lgkmcnt(0)")
    for pi in range(4):
        k(f"ds_write_b128 v{100 + pi}, {vr(40 + 4*pi, 4)}")
    k("s_waitcnt lgkmcnt(0)")
    for i2 in range(4):
        k(f"ds_read_b128 {vr(60 + 4*i2, 4)}, v104 offset:{1024*i2}")
    k("s_lshl_b32 s46, s35, 12")
    k("s_add_u32 s46, s46, s34")
    k("s_waitcnt lgkmcnt(0)")
    for i2 in range(4):
        k(f"buffer_store_dwordx4 {vr(60 + 4*i2, 4)}, v105, s[24:27], s46 offen offset:{1024*i2} sc1")
    k("s_add_u32 s35, s35, 4")
    k("s_cmp_lt_u32 s35, 7")
    k("s_cbranch_scc1 L_ln_tr")
    stamp(k, 2)
    get_nonce(k, 52, 48, 70)
    k("s_waitcnt vmcnt(0)")
    k("s_barrier")
    k("v_cmp_eq_u32 vcc, 0, v0")
    k("s_and_saveexec_b64 s[44:45], vcc")
    k(f"s_lshl_b32 s30, s3, 4")
    k(f"v_mov_b32 v70, s30")
    k("v_mov_b32 v71, s48")
    k(f"buffer_store_dword v71, v70, s[56:59], 0 offen offset:{FL_LN} sc1")
    k("s_mov_b64 exec, s[44:45]")
    k("s_cmp_ge_u32 s3, 56")
    k("s_cbranch_scc1 L_ln_end")
    k("v_lshrrev_b32 v4, 5, v1")
    k("v_bfe_u32 v5, v1, 2, 2")
    k("v_lshl_add_u32 v4, v4, 2, v5")
    k("v_mul_u32_u24 v4, 896, v4")
    k("v_bfe_u32 v5, v1, 4, 1")
    k("v_lshl_add_u32 v4, v5, 5, v4")
    k("v_and_b32 v5, 3, v1")
    k("v_lshl_add_u32 v4, v5, 3, v4")
    k(f"v_add_u32 v4, {W2L}, v4")
    k("v_lshlrev_b32 v5, 4, v1")
    k("s_lshr_b32 s30, s14, 1")
    k("s_and_b32 s31, s14, 1")
    k("s_mul_i32 s31, s31, 7")
    k(f"s_mul_i32 s32, s30, {16*896}")
    k("s_lshl_b32 s33, s31, 6")
    k("s_add_u32 s32, s32, s33")
    k("v_add_u32 v4, s32, v4")
    k(f"s_lshl_b32 s33, s3, 1\n s_add_u32 s33, s33, s30\n s_mul_i32 s33, s33, 14\n s_add_u32 s33, s33, s31\n s_lshl_b32 s33, s33, 10")
    for j in range(7):
        k(f"ds_read_b64_tr_b16 {vr(40 + 4*j, 2)}, v4 offset:{64*j}")
        k(f"ds_read_b64_tr_b16 {vr(40 + 4*j + 2, 2)}, v4 offset:{64*j + 8*896}")
    k("s_waitcnt lgkmcnt(0)")
    for j in range(7):
        k(f"s_add_u32 s35, s33, {1024*j}")
        k(f"buffer_store_dwordx4 {vr(40 + 4*j, 4)}, v5, s[40:43], s35 offen sc1")
    k("s_lshl_b32 s30, s3, 4")
    signal(k, 56, 30, 48, 70, FL_W2)
    k.label("L_ln_end")
    stamp(k, 3)
    wait_flags(k, 56, FL_W2, 4, 56, 48, 70, 49)
    k("s_and_b32 s30, s3, 31\n s_lshr_b32 s30, s30, 3\n s_lshr_b32 s31, s3, 5\n s_lshl_b32 s31, s31, 2\n s_add_u32 s30, s30, s31")
    k("s_lshl_b32 s30, s30, 2\n s_add_u32 s30, s30, s14\n s_mul_i32 s30, s30, %d" % (49 * 1024))
    k("v_lshlrev_b32 v5, 4, v1")
    k("s_mov_b32 s31, 0")
    k.label("L_ln_pf")
    for j in range(7):
        k(f"buffer_load_dwordx4 {vr(40 + 4*j, 4)}, v5, s[40:43], s30 offen sc1")
        k("s_add_u32 s30, s30, 1024")
    k("s_waitcnt vmcnt(7)")
    k("s_add_u32 s31, s31, 1")
    k("s_cmp_lt_u32 s31, 7")
    k("s_cbranch_scc1 L_ln_pf")
    stamp(k, 4)
    stamp_flush(k, 0, 4)
    k("s_endpgm")

def cmul(k, o, x, y, t):
    k(f"v_mul_f32 v{t}, v{x+1}, v{y+1}")
    k(f"v_mul_f32 v{t+1}, v{x+1}, v{y}")
    if o == x:
        k(f"v_fma_f32 v{o+1}, v{x}, v{y+1}, v{t+1}")
        k(f"v_fma_f32 v{o}, v{x}, v{y}, -v{t}")
    else:
        k(f"v_fma_f32 v{o}, v{x}, v{y}, -v{t}")
        k(f"v_fma_f32 v{o+1}, v{x}, v{y+1}, v{t+1}")

def role_s(k):
    stamp(k, 8); stamp(k, 0)
    k("s_load_dwordx16 s[56:71], s[0:1], 8")
    k("s_load_dwordx4 s[8:11], s[0:1], 104")
    k("v_and_b32 v1, 63, v0")
    k("v_lshrrev_b32 v2, 6, v0")
    k("v_readfirstlane_b32 s14, v2")
    k("s_lshr_b32 s15, s14, 1")
    k("s_and_b32 s28, s14, 1")
    k("s_lshl_b32 s29, s3, 1")
    k("s_add_u32 s29, s29, s15")
    k("s_lshl_b32 s30, s29, 9")
    k("s_lshl_b32 s31, s28, 8")
    k("s_add_u32 s30, s30, s31")
    k("v_lshlrev_b32 v3, 2, v1")
    k("v_add_u32 v3, s30, v3")
    k("s_lshl_b32 s31, s29, 1")
    k("v_mov_b32 v4, s31")
    k("s_waitcnt lgkmcnt(0)")
    PSZ = 448 * 512
    for i in range(6):
        srd(k, 16, 56 + 2*i, 57 + 2*i, PSZ)
        k(f"buffer_load_dword v{8 + i}, v3, s[16:19], 0 offen")
    srd(k, 20, 68, 69, 896)
    k("buffer_load_ushort v14, v4, s[20:23], 0 offen")
    srd(k, 20, 70, 71, 896)
    k("buffer_load_ushort v7, v4, s[20:23], 0 offen")
    srd(k, 52, 8, 9, 256)
    k("v_mov_b32 v190, 0")
    k("buffer_load_dword v191, v190, s[52:55], 0 offen sc1")
    srd(k, 20, 10, 11, XT_SZ, XT_OFF)
    srd(k, 24, 10, 11, ZT_SZ, ZT_OFF)
    srd(k, 36, 10, 11, FL_SZ, FL_OFF)
    TB = 75776; XB = 65536
    CSTR = 4160; CH = 37888
    WA = 144
    RA = 152
    GA = 160
    k("s_lshl_b32 s33, s14, 14")
    k("s_mul_i32 s31, s15, 1536")
    k(f"s_add_u32 s31, s31, {TB}")
    k("s_lshl_b32 s30, s28, 6")
    k("v_add_u32 v2, s30, v1")
    k("v_lshlrev_b32 v3, 4, v1")
    with k.sched():
        k("v_and_b32 v16, 7, v1")
        k("v_lshlrev_b32 v17, 7, v1")
        k("v_add_u32 v17, s33, v17")
        for v_ in range(8):
            k(f"v_xor_b32 v{WA + v_}, {v_}, v16")
            k(f"v_lshl_add_u32 v{WA + v_}, v{WA + v_}, 4, v17")
        k("v_bfe_u32 v18, v1, 5, 1")
        k("v_bfe_u32 v19, v1, 3, 1")
        k("v_lshl_add_u32 v18, v18, 2, v19")
        k("v_bfe_u32 v19, v1, 2, 1")
        k("v_bfe_u32 v20, v1, 4, 1")
        k("v_bfe_u32 v21, v1, 1, 1")
        k("v_lshl_add_u32 v20, v20, 1, v21")
        k("v_lshl_add_u32 v19, v19, 2, v20")
        k("v_and_b32 v21, 1, v1")
        k("v_lshlrev_b32 v21, 3, v21")
        k("v_add_u32 v21, s33, v21")
        for j in range(2):
            k(f"v_add_u32 v{22+j}, {2*j}, v18")
            k(f"v_xor_b32 v{24+j}, v19, v{22+j}")
            k(f"v_lshl_add_u32 v{24+j}, v{24+j}, 4, v21")
            k(f"v_lshl_add_u32 v{RA+j}, v{22+j}, 7, v{24+j}")
        for c in range(2):
            b_ = 28 + 20*c
            k(f"v_lshlrev_b32 v{b_+16}, 3, v2")
            k(f"v_sub_u32 v{b_+16}, {2047 - 1024*c}, v{b_+16}")
            for e in range(8): k(f"v_subrev_u32 v{b_ + e}, {e}, v{b_+16}")
            g = GA + 8*c
            for e in range(8): k(f"v_cvt_f32_u32 v{g + e}, v{b_ + e}")
            for e in range(0, 8, 2): k(f"v_cvt_pk_bf16_f32 v{b_ + 8 + e//2}, v{g + e}, v{g + e + 1}")
            for e in range(8):
                if e % 2 == 0: k(f"v_and_b32 v{g + e}, 0xffff, v{b_ + 8 + e//2}")
                else: k(f"v_lshrrev_b32 v{g + e}, 16, v{b_ + 8 + e//2}")
            for e in range(8): k(f"v_add_u32 v{g + e}, {(-0x4300 + 128) & 0xffffffff}, v{g + e}")
            for e in range(8):
                k(f"v_cmp_gt_u32 vcc, 128, v{b_ + e}")
                k(f"v_cndmask_b32 v{g + e}, v{g + e}, v{b_ + e}, vcc")
            for e in range(8): k(f"v_lshl_add_u32 v{g + e}, v{g + e}, 1, s31")
    ACC = 112
    for i in range(16): k(f"v_mov_b32 v{ACC + i}, 0")
    k("s_waitcnt vmcnt(0)")
    stamp(k, 1)
    k("v_readfirstlane_b32 s48, v191")
    k("v_lshlrev_b32 v14, 16, v14")
    k("v_mul_f32 v15, 0x3fb8aa3b, v14")
    k("s_mov_b32 s34, 0x3fb8aa3b")
    k("v_fma_f32 v16, v14, s34, -v15")
    k("s_mov_b32 s34, 0x32a57060")
    k("v_fma_f32 v16, v14, s34, v16")
    k("v_exp_f32 v15, v15")
    k("v_mul_f32 v16, 0x3f317218, v16")
    k("v_fma_f32 v15, v15, v16, v15")
    k("v_cvt_pk_bf16_f32 v15, v15, v15")
    k("v_lshlrev_b32 v15, 16, v15")
    E1, Z2, Z4, E256 = 20, 22, 24, 26
    Q = [28, 30, 32, 34]
    E32 = 36
    TT = [64 + 2*i for i in range(8)]
    tc = [0]
    def T():
        tc[0] += 1
        return TT[tc[0] % len(TT)]
    SA = 80
    SB = 176
    k("s_mov_b32 s35, 0")
    k("s_mov_b32 s34, 16")
    k.label("L_s_item")
    with k.sched():
        for i in range(6):
            k(f"v_lshlrev_b32 v{50 + i}, s34, v{8 + i}")
            k(f"v_and_b32 v{50 + i}, 0xffff0000, v{50 + i}")
        k("v_mul_f32 v18, v15, v50")
        k("v_mul_f32 v18, 0x3fb8aa3b, v18")
        k("v_mul_f32 v19, v15, v51")
        k("v_mul_f32 v19, 0.15915494, v19")
        k("v_mul_f32 v52, v15, v52")
        k("v_mul_f32 v53, v15, v53")
        P0 = 16
        cmul(k, P0, 54, 52, T())
        def E(dst, l):
            tmp = T()
            lit = {1: "1.0", 8: "0x41000000", 16: "0x41800000", 24: "0x41c00000", 32: "0x42000000", 256: "0x43800000"}[l]
            k(f"v_mul_f32 v{tmp}, {lit}, v18")
            k(f"v_mul_f32 v{tmp+1}, {lit}, v19")
            k(f"v_exp_f32 v{tmp}, v{tmp}")
            k(f"v_fract_f32 v{tmp+1}, v{tmp+1}")
            k(f"v_cos_f32 v{dst}, v{tmp+1}")
            k(f"v_sin_f32 v{dst+1}, v{tmp+1}")
            k(f"v_mul_f32 v{dst}, v{dst}, v{tmp}")
            k(f"v_mul_f32 v{dst+1}, v{dst+1}, v{tmp}")
        E(E1, 1); E(E256, 256); E(E32, 32); E(Q[1], 8); E(Q[2], 16); E(Q[3], 24)
        k(f"v_mov_b32 v{Q[0]}, 1.0")
        k(f"v_mov_b32 v{Q[0]+1}, 0")
        cmul(k, Z2, E1, E1, T())
        cmul(k, Z4, Z2, Z2, T())
        def pairA(h, ra, rb):
            p = h >> 3; dw = (h & 7) >> 1
            base = SA + 8*p
            if rb is None:
                k(f"v_cvt_pk_bf16_f32 v{base + dw}, v{ra}, 0")
                k(f"v_cvt_pk_bf16_f32 v{base + 4 + dw}, -v{ra+1}, 0")
            else:
                k(f"v_cvt_pk_bf16_f32 v{base + dw}, v{ra}, v{rb}")
                k(f"v_cvt_pk_bf16_f32 v{base + 4 + dw}, -v{ra+1}, -v{rb+1}")
        def flushA(p):
            base = SA + 8*p
            k(f"ds_write_b128 v{WA + p}, {vr(base, 4)}")
            k(f"ds_write_b128 v{WA + 4 + p}, {vr(base + 4, 4)}")
        def pairB(i):
            p = i >> 1; base = SB + 8*(p & 1); dw = 2*(i & 1)
            k(f"v_cvt_pk_bf16_f32 v{base + dw}, v{Q[0]}, v{Q[1]}")
            k(f"v_cvt_pk_bf16_f32 v{base + dw + 1}, v{Q[2]}, v{Q[3]}")
            k(f"v_cvt_pk_bf16_f32 v{base + 4 + dw}, v{Q[0]+1}, v{Q[1]+1}")
            k(f"v_cvt_pk_bf16_f32 v{base + 4 + dw + 1}, v{Q[2]+1}, v{Q[3]+1}")
            if i & 1:
                k(f"ds_write_b128 v{WA + p}, {vr(base, 4)} offset:8192")
                k(f"ds_write_b128 v{WA + 4 + p}, {vr(base + 4, 4)} offset:8192")
        PE, PO = 38, 40
        U0, U1, S0, S1 = 42, 44, 46, 48
        steps = []
        def low():
            cmul(k, PO, P0, E1, T()); pairA(0, P0, PO)
            yield
            for h in (2, 4, 6):
                cmul(k, PE, PO, E1, T())
                yield
                cmul(k, PO, PE, E1, T()); pairA(h, PE, PO)
                yield
            flushA(0)
            yield
        def high():
            cmul(k, U0, P0, E256, T())
            cmul(k, S0, U0, Z2, T()); pairA(8, U0, S0)
            yield
            cmul(k, U1, U0, E256, T())
            cmul(k, S1, S0, Z2, T())
            yield
            cmul(k, S0, S1, Z2, T()); pairA(10, S1, S0)
            cmul(k, U0, U1, E256, T())
            yield
            cmul(k, S1, U1, Z4, T()); pairA(12, U1, S1)
            cmul(k, U1, U0, E256, T())
            yield
            cmul(k, S0, U0, Z4, T()); pairA(14, U0, S0)
            flushA(1)
            cmul(k, U0, U1, E256, T()); pairA(16, U1, U0)
            yield
            cmul(k, U1, U0, E256, T())
            cmul(k, U0, U1, E256, T()); pairA(18, U1, U0)
            yield
            cmul(k, U1, U0, E256, T()); pairA(20, U1, None)
            k(f"v_mov_b32 v{SA + 16 + 3}, 0\n v_mov_b32 v{SA + 16 + 7}, 0")
            flushA(2)
            yield
        gl, gh = low(), high()
        pairB(0)
        for i in range(1, 8):
            for c in range(4): cmul(k, Q[c], Q[c], E32, T())
            pairB(i)
            next(gl, None); next(gh, None)
        for _ in gl: pass
        for _ in gh: pass
    k("s_waitcnt lgkmcnt(0)")
    for half in range(2):
        for ks in range(4*half, 4*half + 4):
            fa = 64 + 8 * (ks % 4)
            k(f"ds_read_b64_tr_b16 {vr(fa,2)}, v{RA} offset:{1024*ks}")
            k(f"ds_read_b64_tr_b16 {vr(fa+2,2)}, v{RA+1} offset:{1024*ks}")
            k(f"ds_read_b64_tr_b16 {vr(fa+4,2)}, v{RA} offset:{1024*ks + 8192}")
            k(f"ds_read_b64_tr_b16 {vr(fa+6,2)}, v{RA+1} offset:{1024*ks + 8192}")
        for ks in range(4*half, 4*half + 4):
            fa = 64 + 8 * (ks % 4)
            k(f"s_waitcnt lgkmcnt({4*(3 - (ks % 4))})")
            k(f"v_mfma_f32_32x32x16_bf16 {vr(ACC,16)}, {vr(fa,4)}, {vr(fa+4,4)}, {vr(ACC,16)}")
    k("s_mov_b32 s34, 0")
    k("s_add_u32 s35, s35, 1")
    k("s_cmp_lt_u32 s35, 2")
    k("s_cbranch_scc1 L_s_item")
    stamp(k, 2)
    k("s_mul_i32 s30, s15, 3072")
    k(f"s_add_u32 s30, s30, {XB}")
    k("v_add_u32 v4, s30, v3")
    k("s_cmp_eq_u32 s28, 0")
    k("s_cbranch_scc1 L_kg_a")
    k("s_nop 7\n s_nop 3")
    for q in range(3): k(f"ds_write_b128 v4, {vr(ACC + 4*q, 4)} offset:{1024*q}")
    k("s_waitcnt lgkmcnt(0)")
    k.label("L_kg_a")
    k("s_cmp_lg_u32 s48, 0")
    k("s_cbranch_scc1 L_s_haven")
    get_nonce(k, 52, 48, 90)
    k.label("L_s_haven")
    k("s_barrier")
    k("s_cmp_eq_u32 s28, 0")
    k("s_cbranch_scc0 L_kg_b")
    for q in range(3): k(f"ds_read_b128 {vr(64 + 4*q, 4)}, v4 offset:{1024*q}")
    k("v_and_b32 v6, 31, v1")
    k("v_lshrrev_b32 v12, 5, v1")
    k("v_lshlrev_b32 v8, 4, v6")
    k("v_lshl_add_u32 v8, v12, 3, v8")
    k("v_add_u32 v8, s31, v8")
    k("v_lshlrev_b32 v9, 3, v6\n v_add_u32 v9, s31, v9")
    k("v_lshlrev_b32 v10, 2, v6\n v_add_u32 v10, s31, v10")
    k("v_lshlrev_b32 v11, 1, v6\n v_add_u32 v11, s31, v11")
    k("s_waitcnt lgkmcnt(0)")
    for r in range(12): k(f"v_add_f32 v{ACC + r}, v{ACC + r}, v{64 + r}")
    for j in range(6): k(f"v_cvt_pk_bf16_f32 v{80 + j}, v{ACC + 2*j}, v{ACC + 2*j + 1}")
    k("ds_write_b64 v8, v[80:81]")
    k("s_mov_b64 s[40:41], exec")
    k("s_mov_b32 exec_lo, -1\n s_mov_b32 exec_hi, 0")
    k("ds_write_b64 v9, v[82:83] offset:512")
    k("ds_write_b16 v11, v84 offset:1024")
    k("ds_write_b16_d16_hi v11, v84 offset:1088")
    k("ds_write_b16 v11, v85 offset:1152")
    k("ds_write_b16_d16_hi v11, v85 offset:1216")
    k("s_mov_b32 exec_lo, 0\n s_mov_b32 exec_hi, -1")
    k("ds_write_b32 v10, v82 offset:768")
    k("ds_write_b32 v10, v83 offset:896")
    k("ds_write_b16 v11, v84 offset:1280")
    k("s_mov_b64 exec, s[40:41]")
    k("s_waitcnt lgkmcnt(0)")
    k.label("L_kg_b")
    k("s_xor_b32 s46, s14, 1")
    wait_flags(k, 36, FL_LN, 4, 64, 48, 90, 49, wave0=46)
    k("s_barrier")
    k("v_lshrrev_b32 v8, 2, v2")
    k("v_mul_u32_u24 v8, 28672, v8")
    k("v_and_b32 v9, 3, v2")
    k("v_lshl_add_u32 v8, v9, 4, v8")
    k("s_lshl_b32 s30, s29, 6")
    k("v_add_u32 v8, s30, v8")
    k(f"v_add_u32 v9, {32*28672}, v8")
    k("buffer_load_dwordx4 v[16:19], v8, s[20:23], 0 offen sc1")
    k("buffer_load_dwordx4 v[20:23], v9, s[20:23], 0 offen sc1")
    k(f"s_mul_i32 s33, s15, {CH}")
    k(f"s_add_u32 s34, s33, {8*CSTR}")
    k("s_barrier")
    stamp(k, 3)
    for c in range(2):
        for e in range(8):
            if e % 2 == 0: k(f"ds_read_u16 v{64 + 8*c + e//2}, v{GA + 8*c + e}")
            else: k(f"ds_read_u16_d16_hi v{80 + 4*c + e//2}, v{GA + 8*c + e}")
    for i in range(4): k(f"v_mov_b32 v{28 + i}, 0")
    k("v_add_u32 v25, s34, v3")
    k("v_subrev_u32 v26, 32, v1")
    k(f"v_mul_u32_u24 v26, {CSTR}, v26")
    k("v_add_u32 v26, s33, v26")
    k("v_add_u32 v26, 4096, v26")
    k("v_cmp_gt_u32 vcc, 32, v1")
    k("v_cndmask_b32 v25, v26, v25, vcc")
    k("v_lshlrev_b32 v27, 4, v2")
    k("v_add_u32 v27, s33, v27")
    k("s_waitcnt lgkmcnt(0)")
    for c in range(2):
        for j in range(4):
            k(f"v_and_b32 v{80 + 4*c + j}, 0xffff0000, v{80 + 4*c + j}")
            k(f"v_or_b32 v{64 + 8*c + j}, v{64 + 8*c + j}, v{80 + 4*c + j}")
    k("ds_write_b128 v27, v[64:67]")
    k("ds_write_b128 v27, v[72:75] offset:2048")
    k("v_cmp_gt_u32 vcc, 40, v1")
    k("s_and_saveexec_b64 s[40:41], vcc")
    k("ds_write_b128 v25, v[28:31]")
    k("s_mov_b64 exec, s[40:41]")
    k("s_waitcnt lgkmcnt(0)")
    k("s_barrier")
    k("ds_read_b128 v[68:71], v27 offset:16")
    k("ds_read_b128 v[76:79], v27 offset:2064")
    k("v_lshlrev_b32 v10, 4, v2")
    k("v_add_u32 v10, s34, v10")
    k("s_waitcnt vmcnt(0)")
    k("ds_write_b128 v10, v[16:19] offset:512")
    k("ds_write_b128 v10, v[20:23] offset:2560")
    k("s_waitcnt lgkmcnt(2)")
    for c in range(2):
        Dr = 64 + 8*c
        Ee = 96 + 24*c; Eo = Ee + 8; Do = Ee + 16
        with k.sched():
            for i in range(7): k(f"v_alignbit_b32 v{Ee + i}, v{Dr + i + 1}, v{Dr + i}, 16")
            for i in range(6): k(f"v_alignbit_b32 v{Eo + i}, v{Dr + i + 2}, v{Dr + i + 1}, 16")
            for i in range(6): k(f"v_mov_b32 v{Do + i}, v{Dr + i + 1}")
            src = {1: Ee, 2: Do, 3: Eo, 4: Dr + 2, 5: Ee + 2, 6: Do + 2, 7: Eo + 2}
            for s_ in range(1, 8):
                k(f"ds_write_b128 v27, {vr(src[s_], 4)} offset:{s_*CSTR + 2048*c}")
    stamp(k, 4)
    with k.sched():
        k("v_and_b32 v10, 7, v1")
        k("v_sub_u32 v10, 7, v10")
        k(f"v_mul_u32_u24 v10, {CSTR}, v10")
        k("v_bfe_u32 v11, v1, 3, 1")
        k("v_bfe_u32 v12, v1, 5, 1")
        k("v_bfe_u32 v13, v1, 4, 1")
        k("v_lshl_add_u32 v14, v12, 1, v11")
        k("v_sub_u32 v14, v13, v14")
        k("v_lshlrev_b32 v14, 4, v14")
        k("v_add_u32 v10, v10, v14")
        k(f"s_add_u32 s30, s33, {255*16 - 64*56}")
        k("s_lshl_b32 s31, s28, 8")
        k("s_sub_u32 s30, s30, s31")
        k("v_add_u32 v4, s30, v10")
        k("v_and_b32 v15, 15, v1")
        k("v_sub_u32 v15, v15, v12")
        k("v_lshlrev_b32 v15, 5, v15")
        k("v_lshl_add_u32 v15, v13, 4, v15")
        k("s_add_u32 s32, s34, 512")
        k("s_sub_u32 s32, s32, s31")
        k("v_add_u32 v5, s32, v15")
    ACC = 32
    FA = [64, 128]
    for i in range(32): k(f"v_mov_b32 v{ACC + i}, 0")
    k("s_waitcnt lgkmcnt(0)")
    k("s_barrier")
    stamp(k, 5)
    def rd(fs, p1):
        k(f"ds_read_b128 {vr(fs + 4*p1, 4)}, v4 offset:{512*(7 - p1)}")
        k(f"ds_read_b128 {vr(fs + 32 + 4*p1, 4)}, v5 offset:{512*p1}")
    def adv():
        k("v_subrev_u32 v4, 64, v4")
        k("v_subrev_u32 v5, 64, v5")
    def mm(fs, nxt):
        n = 0
        for p1 in range(8):
            for be in range(8 - p1):
                c = ACC + 4*(p1 + be)
                k(f"v_mfma_f32_16x16x32_bf16 {vr(c,4)}, {vr(fs + 4*p1,4)}, {vr(fs + 32 + 4*be,4)}, {vr(c,4)}")
                n += 1
                if nxt is not None and n % 4 == 0 and n // 4 <= 8: rd(nxt, n // 4 - 1)
        if nxt is not None: adv()
    for p1 in range(8): rd(FA[0], p1)
    adv()
    k("s_mov_b32 s35, 0")
    k.label("L_cv_loop")
    k("s_waitcnt lgkmcnt(0)")
    mm(FA[0], FA[1])
    k("s_waitcnt lgkmcnt(0)")
    mm(FA[1], FA[0])
    k("s_add_u32 s35, s35, 1")
    k("s_cmp_lt_u32 s35, 2")
    k("s_cbranch_scc1 L_cv_loop")
    stamp(k, 6)
    k("s_setprio 3")
    k("s_waitcnt lgkmcnt(0)")
    k("s_barrier")
    k("s_lshl_b32 s30, s14, 12")
    k("v_add_u32 v6, s30, v3")
    k("s_xor_b32 s31, s14, 1")
    k("s_lshl_b32 s31, s31, 12")
    k("v_add_u32 v11, s31, v3")
    k("s_cmp_eq_u32 s28, 0")
    k("s_cbranch_scc0 L_cv_w1")
    for q in range(4): k(f"ds_write_b128 v6, {vr(ACC + 16 + 4*q, 4)} offset:{1024*q}")
    k("s_branch L_cv_w2")
    k.label("L_cv_w1")
    for q in range(4): k(f"ds_write_b128 v6, {vr(ACC + 4*q, 4)} offset:{1024*q}")
    for r in range(16): k(f"v_mov_b32 v{ACC + r}, v{ACC + 16 + r}")
    k.label("L_cv_w2")
    k("v_and_b32 v8, 15, v1")
    k("v_lshlrev_b32 v8, 5, v8")
    k("v_lshrrev_b32 v9, 4, v1")
    k("v_lshl_add_u32 v8, v9, 3, v8")
    k("s_lshl_b32 s30, s28, 11")
    k("s_add_u32 s30, s30, s34")
    k("s_add_u32 s30, s30, 512")
    k("v_add_u32 v9, s30, v8")
    for q in range(4): k(f"ds_read_b64 {vr(80 + 2*q, 2)}, v9 offset:{512*q}")
    k("v_lshlrev_b32 v7, 16, v7")
    k("s_waitcnt lgkmcnt(0)")
    k("s_barrier")
    stamp(k, 7)
    for q in range(4): k(f"ds_read_b128 {vr(64 + 4*q, 4)}, v11 offset:{1024*q}")
    k("s_waitcnt lgkmcnt(0)")
    with k.sched():
        for r in range(16): k(f"v_add_f32 v{ACC + r}, v{ACC + r}, v{64 + r}")
        for q in range(4):
            for hh in range(2):
                src = 80 + 2*q + hh
                t = 96 + 4*q + 2*hh
                k(f"v_lshlrev_b32 v{t}, 16, v{src}")
                k(f"v_and_b32 v{t+1}, 0xffff0000, v{src}")
                k(f"v_fmac_f32 v{ACC + 4*q + 2*hh}, v{t}, v7")
                k(f"v_fmac_f32 v{ACC + 4*q + 2*hh + 1}, v{t+1}, v7")
        for j in range(8): k(f"v_cvt_pk_bf16_f32 v{112 + j}, v{ACC + 2*j}, v{ACC + 2*j + 1}")
    k("s_lshl_b32 s30, s14, 11")
    k("s_add_u32 s30, s30, 16384")
    k("v_add_u32 v9, s30, v8")
    for q in range(4): k(f"ds_write_b64 v9, {vr(112 + 2*q, 2)} offset:{512*q}")
    k("v_add_u32 v9, s30, v3")
    k("s_waitcnt lgkmcnt(0)")
    k("ds_read_b128 v[72:75], v9")
    k("ds_read_b128 v[76:79], v9 offset:1024")
    k("s_lshl_b32 s30, s29, 12")
    k("s_lshl_b32 s31, s28, 11")
    k("s_add_u32 s30, s30, s31")
    k("s_waitcnt lgkmcnt(0)")
    k("buffer_store_dwordx4 v[72:75], v3, s[24:27], s30 offen sc1")
    k("buffer_store_dwordx4 v[76:79], v3, s[24:27], s30 offen offset:1024 sc1")
    stamp(k, 9)
    k("s_lshl_b32 s30, s3, 4")
    signal(k, 36, 30, 48, 90, FL_Z)
    stamp(k, 10)
    stamp_flush(k, 0, 8)
    k("s_endpgm")

def role_g2(k):
    k("s_load_dwordx2 s[6:7], s[0:1], 96")
    k("s_setprio 1")
    k("s_and_b32 s10, s3, 7")
    k("s_lshr_b32 s11, s3, 3")
    k("s_and_b32 s30, s11, 3")
    k("s_lshl_b32 s13, s10, 2")
    k("s_add_u32 s12, s30, s13")
    k("s_lshr_b32 s13, s11, 2")
    k("s_mul_i32 s45, s30, 7\n s_lshl_b32 s31, s13, 2\n s_add_u32 s45, s45, s31\n s_cmp_ge_u32 s45, 28\n s_cselect_b32 s31, 28, 0\n s_sub_u32 s45, s45, s31")
    if "rot2" not in EXP: k("s_mov_b32 s45, 0")
    k("v_and_b32 v1, 63, v0")
    k("v_lshrrev_b32 v2, 6, v0")
    k("v_readfirstlane_b32 s14, v2")
    k("v_lshlrev_b32 v3, 4, v1")
    k("s_and_b32 s28, s14, 1")
    k("s_lshr_b32 s29, s14, 1")
    k("s_mul_i32 s30, s14, 28")
    k("s_add_u32 s30, s30, s45")
    k("s_mul_i32 s31, s30, 14\n s_lshl_b32 s32, s13, 1\n s_add_u32 s31, s31, s32")
    k("s_add_u32 s40, s31, s28\n s_lshl_b32 s40, s40, 10")
    k("s_xor_b32 s32, s28, 1\n s_add_u32 s41, s31, s32\n s_lshl_b32 s41, s41, 10")
    k("s_lshl_b32 s32, s12, 1")
    k("s_add_u32 s33, s32, s29\n s_mul_i32 s33, s33, 112\n s_add_u32 s42, s33, s30\n s_lshl_b32 s42, s42, 10")
    k("s_xor_b32 s33, s29, 1\n s_add_u32 s33, s33, s32\n s_mul_i32 s33, s33, 112\n s_add_u32 s43, s33, s30\n s_lshl_b32 s43, s43, 10")
    k("s_waitcnt lgkmcnt(0)")
    srd(k, 52, 8, 9, W2F_SZ, W2F_OFF)
    k("s_lshr_b32 s30, s12, 1\n s_lshl_b32 s30, s30, 8\n s_add_u32 s30, s30, %d" % FL_H)
    wait_flags2(k, 60, [(FL_W2, 56), ((30,), 14)], 48, 8, 49, 14)
    k("s_barrier")
    stamp(k, 6)
    ACC = 16; FR = 80; DEPTH = 4; NK = 28
    def loads(u):
        f = FR + 16 * u
        n0 = len(k.lines)
        k(f"buffer_load_dwordx4 {vr(f,4)}, v3, s[52:55], s40 offen sc1")
        k(f"buffer_load_dwordx4 {vr(f+8,4)}, v3, s[24:27], s42 offen sc1")
        k(f"buffer_load_dwordx4 {vr(f+4,4)}, v3, s[52:55], s41 offen sc1")
        k(f"buffer_load_dwordx4 {vr(f+12,4)}, v3, s[24:27], s43 offen sc1")
        if "nosc1ld" in EXP:
            for i in range(n0, len(k.lines)): k.lines[i] = k.lines[i].replace(" sc1", "")
        k("s_add_u32 s45, s45, 1")
        k("s_cmp_eq_u32 s45, 28")
        k("s_cselect_b32 s46, %d, 0" % (28 * 14336))
        k("s_cselect_b32 s47, %d, 0" % (28 * 1024))
        k("s_cselect_b32 s45, 0, s45")
        k("s_sub_u32 s46, 14336, s46")
        k("s_sub_u32 s47, 1024, s47")
        k("s_add_u32 s40, s40, s46\n s_add_u32 s41, s41, s46\n s_add_u32 s42, s42, s47\n s_add_u32 s43, s43, s47")
    for u in range(DEPTH): loads(u)
    srd(k, 16, 4, 5, 2048 * 896)
    srd(k, 20, 6, 7, 2048 * 896)
    srd(k, 36, 8, 9, RS_SZ, RS_OFF)
    srd(k, 56, 8, 9, ZT_SZ, ZT_OFF)
    RED = 0; ZL = 49152; XL = 57344; OL = 65536
    for i in range(64): k(f"v_mov_b32 v{ACC + i}, 0")
    def step(u, more, wait):
        k(f"s_waitcnt vmcnt({wait})")
        f = FR + 16 * u
        for ti in range(2):
            for di in range(2):
                c = ACC + (2*ti + di) * 16
                k(f"v_mfma_f32_32x32x16_bf16 {vr(c,16)}, {vr(f + 4*di,4)}, {vr(f + 8 + 4*ti,4)}, {vr(c,16)}")
        if more: loads(u)
    k("s_mov_b32 s44, 0")
    k.label("L_g2_loop")
    for u in range(DEPTH): step(u, True, 12)
    k("s_add_u32 s44, s44, 1")
    k("s_cmp_lt_u32 s44, 6")
    k("s_cbranch_scc1 L_g2_loop")
    stamp(k, 7)
    with k.sched():
        k("v_lshrrev_b32 v4, 3, v1")
        k("s_lshl_b32 s34, s14, 4")
        k("v_add_u32 v4, s34, v4")
        k("v_lshrrev_b32 v5, 1, v4")
        k("v_xor_b32 v5, v5, v1")
        k("v_and_b32 v5, 7, v5")
        k("s_lshl_b32 s35, s12, 6")
        k("v_add_u32 v6, s35, v4")
        k("v_mul_u32_u24 v6, 896, v6")
        k("v_lshl_add_u32 v6, v5, 4, v6")
        k("s_lshl_b32 s36, s13, 7") if False else None
        k("s_lshl_b32 s30, s13, 7")
        k("v_add_u32 v6, s30, v6")
        k("v_xor_b32 v7, 64, v6")
        k(f"v_add_u32 v7, {8*896}, v7")
        k("s_lshl_b32 s31, s13, 6")
        k("v_add_u32 v8, s31, v4")
        k("v_lshlrev_b32 v8, 12, v8")
        k("v_and_b32 v9, 7, v1")
        k("v_lshl_add_u32 v8, v9, 4, v8")
        k("s_lshl_b32 s32, s12, 7")
        k("v_add_u32 v8, s32, v8")
        k(f"v_add_u32 v9, {8*4096}, v8")
        k("v_and_b32 v10, 31, v1")
        k("s_lshl_b32 s33, s29, 5")
        k("s_add_u32 s33, s33, s35")
        k("v_add_u32 v10, s33, v10")
        k("v_lshlrev_b32 v10, 2, v10")
    k("s_lshl_b32 s34, s14, 11")
    k(f"s_add_u32 m0, s34, {XL}")
    k("buffer_load_dwordx4 v6, s[16:19], 0 offen lds")
    k(f"s_add_u32 m0, s34, {XL + 1024}")
    k("buffer_load_dwordx4 v7, s[16:19], 0 offen lds")
    for u in range(DEPTH): step(u, False, 2 + 4*(3 - u))
    stamp(k, 9)
    k("s_lshl_b32 s30, s13, 9\n s_add_u32 s30, s30, %d" % FL_Z)
    wait_flags2(k, 60, [((30,), 32), (FL_LN, 64)], 48, 144, 49, 14)
    k("s_barrier")
    stamp(k, 10)
    k("buffer_load_dwordx4 v[148:151], v8, s[56:59], 0 offen sc1")
    k("buffer_load_dwordx4 v[152:155], v9, s[56:59], 0 offen sc1")
    k("buffer_load_dword v11, v10, s[36:39], 0 offen sc1")
    k("s_nop 7")
    for tp in range(1, 4):
        k(f"s_xor_b32 s34, s14, {tp}")
        k("s_mul_i32 s34, s34, 12288")
        k(f"v_add_u32 v4, s34, v3")
        for q in range(4):
            k(f"ds_write_b128 v4, {vr(ACC + 16*tp + 4*q, 4)} offset:{RED + 4096*(tp-1) + 1024*q}")
    with k.sched():
        k("v_lshrrev_b32 v5, 5, v1")
        k("v_bfe_u32 v6, v1, 2, 2")
        k("v_lshl_add_u32 v5, v5, 2, v6")
        k("v_lshlrev_b32 v5, 7, v5")
        k("v_bfe_u32 v6, v1, 4, 1")
        k("v_lshl_add_u32 v5, v6, 5, v5")
        k("v_and_b32 v7, 3, v1")
        k("v_lshl_add_u32 v5, v7, 3, v5")
        k("s_lshl_b32 s46, s28, 12\n s_lshl_b32 s47, s29, 6\n s_add_u32 s46, s46, s47")
        k("v_add_u32 v5, s46, v5")
        k("v_and_b32 v8, 31, v1")
        k("s_lshl_b32 s30, s29, 5")
        k("v_add_u32 v8, s30, v8")
        k("v_bfe_u32 v9, v8, 1, 3")
        k("s_lshl_b32 s31, s28, 2")
        k("v_xor_b32 v9, s31, v9")
        k("v_lshlrev_b32 v10, 7, v8")
        k("v_lshrrev_b32 v12, 5, v1")
        k("v_lshl_add_u32 v10, v12, 3, v10")
        for q in range(4):
            k(f"v_xor_b32 v{96+q}, {q}, v9")
            k(f"v_lshl_add_u32 v{96+q}, v{96+q}, 4, v10")
        k("s_mul_i32 s34, s14, 12288")
        k("v_add_u32 v4, s34, v3")
        k("s_lshl_b32 s35, s14, 11")
        k(f"s_add_u32 s35, s35, {OL}")
        k("v_and_b32 v13, 31, v1")
        k("v_bfe_u32 v14, v13, 1, 2")
        k("v_lshlrev_b32 v13, 6, v13")
        k("v_lshl_add_u32 v13, v12, 3, v13")
        k("v_add_u32 v13, s35, v13")
        for q in range(4):
            k(f"v_xor_b32 v{100+q}, {q}, v14")
            k(f"v_lshl_add_u32 v{100+q}, v{100+q}, 4, v13")
        k("v_add_u32 v104, s35, v3")
        k("v_bfe_u32 v105, v1, 3, 2")
        k("v_xor_b32 v105, v105, v1")
        k("v_and_b32 v105, 3, v105")
        k("v_lshrrev_b32 v106, 2, v1")
        k("s_lshl_b32 s32, s12, 6\n s_add_u32 s32, s32, s30")
        k("v_add_u32 v106, s32, v106")
        k("v_mul_u32_u24 v106, 896, v106")
        k("v_lshl_add_u32 v106, v105, 4, v106")
        k("s_lshl_b32 s33, s13, 7\n s_lshl_b32 s40, s28, 6\n s_add_u32 s33, s33, s40")
        k("v_add_u32 v106, s33, v106")
        k(f"v_add_u32 v107, {16*896}, v106")
    k("s_lshl_b32 s34, s14, 11")
    k(f"s_add_u32 s34, s34, {ZL}")
    k("v_add_u32 v12, s34, v3")
    k("s_waitcnt vmcnt(0)")
    k("ds_write_b128 v12, v[148:151]")
    k("ds_write_b128 v12, v[152:155] offset:1024")
    k("s_waitcnt lgkmcnt(0)")
    k("s_barrier")
    for sl in range(3):
        for q in range(4):
            k(f"ds_read_b128 {vr(112 + 16*sl + 4*q, 4)}, v4 offset:{RED + 4096*sl + 1024*q}")
    for q in range(4):
        k(f"ds_read_b64_tr_b16 {vr(80 + 2*q, 2)}, v5 offset:{ZL + 1024*q}")
    k("s_waitcnt lgkmcnt(4)")
    for q in range(4):
        k(f"ds_read_b64 {vr(88 + 2*q, 2)}, v{96+q} offset:{XL}")
    with k.sched():
        for r in range(0, 16, 2):
            k(f"v_pk_add_f32 {vr(ACC + r,2)}, {vr(ACC + r,2)}, {vr(112 + r,2)}")
            k(f"v_pk_add_f32 {vr(128 + r,2)}, {vr(128 + r,2)}, {vr(144 + r,2)}")
            k(f"v_pk_add_f32 {vr(ACC + r,2)}, {vr(ACC + r,2)}, {vr(128 + r,2)}")
    k("s_waitcnt lgkmcnt(0)")
    k("v_mov_b32 v10, v11")
    with k.sched():
        for j in range(8):
            a = 112 + 2*j; b = 128 + 2*j
            k(f"v_lshlrev_b32 v{a}, 16, v{88 + j}")
            k(f"v_and_b32 v{a+1}, 0xffff0000, v{88 + j}")
            k(f"v_lshlrev_b32 v{b}, 16, v{80 + j}")
            k(f"v_and_b32 v{b+1}, 0xffff0000, v{80 + j}")
            k(f"v_pk_add_f32 {vr(a,2)}, {vr(a,2)}, {vr(b,2)}")
            k(f"v_pk_fma_f32 {vr(a,2)}, {vr(ACC + 2*j,2)}, v[10:11], {vr(a,2)}")
            k(f"v_cvt_pk_bf16_f32 v{144 + j}, v{a}, v{a+1}")
    for q in range(4):
        k(f"ds_write_b64 v{100+q}, {vr(144 + 2*q, 2)}")
    k("s_waitcnt lgkmcnt(0)")
    k("ds_read_b128 v[112:115], v104")
    k("ds_read_b128 v[116:119], v104 offset:1024")
    k("s_waitcnt lgkmcnt(0)")
    k("buffer_store_dwordx4 v[112:115], v106, s[20:23], 0 offen")
    k("buffer_store_dwordx4 v[116:119], v107, s[20:23], 0 offen")
    stamp(k, 11)
    stamp_flush(k, 0, 8)
    k("s_endpgm")

def kd(name, vgpr, sgpr=102):
    return f""".amdhsa_kernel {name}
  .amdhsa_next_free_vgpr {vgpr}
  .amdhsa_next_free_sgpr {sgpr}
  .amdhsa_accum_offset {vgpr}
  .amdhsa_group_segment_fixed_size 0
  .amdhsa_kernarg_size 120
  .amdhsa_user_sgpr_count 2
  .amdhsa_user_sgpr_kernarg_segment_ptr 1
  .amdhsa_system_sgpr_workgroup_id_x 1
.end_amdhsa_kernel
"""

def header(launches):
    h = open("cdna_kernels/" + NAME + ".s.ref").read().split("; Override")[0]
    for (kn, g, b, lds) in launches:
        h += f"; @launch kernel={kn} grid=({g},1,1) block=({b},1,1) lds={lds}\n"
    h += '.amdgcn_target "amdgcn-amd-amdhsa--gfx950"\n.text\n'
    return h

def kern_text(name, k):
    return f".globl {name}\n.p2align 8\n.type {name},@function\n{name}:\n" + k.text()

def main(path):
    K1 = NAME + "_kernel"
    k1 = Kern()
    k1("s_cmp_lt_u32 s2, 224")
    k1("s_cbranch_scc1 L_g1")
    k1("s_cmp_lt_u32 s2, 256")
    k1("s_cbranch_scc1 L_lna")
    k1("s_cmp_lt_u32 s2, 480")
    k1("s_cbranch_scc1 L_s")
    k1("s_cmp_lt_u32 s2, 512")
    k1("s_cbranch_scc1 L_lnb")
    k1("s_endpgm")
    k1.label("L_lna")
    k1("s_sub_u32 s3, s2, 224")
    k1("s_branch L_ln")
    k1.label("L_lnb")
    k1("s_sub_u32 s3, s2, 448")
    k1.label("L_ln")
    role_ln(k1)
    k1.label("L_g1")
    k1("s_mov_b32 s3, s2")
    role_g1(k1)
    k1.label("L_s")
    k1("s_sub_u32 s3, s2, 256")
    role_s(k1)
    launches = [(K1, 512, 256, 81920)]
    txt = header(launches)
    txt += kern_text(K1, k1)
    txt += '.section .rodata,"a"\n.p2align 6\n' + kd(K1, 192)
    open(path, "w").write(txt)

if __name__ == "__main__":
    for a in list(sys.argv):
        if a.startswith("--exp="):
            EXP = a[6:].split(","); sys.argv.remove(a)
    if "--stamp" in sys.argv:
        STAMP = True; sys.argv.remove("--stamp")
    main(sys.argv[1] if len(sys.argv) > 1 else "cdna_kernels/" + NAME + ".s")
```

```python
import sys
from asmlib import Kern

NAME = "parallel_sum__ssm_conv_s4__dense_activation_relu__prompt"

XT_OFF = 0x000000
RS_OFF = 0x1C0000
HF_OFF = 0x400000
W2F_OFF = 0xC00000
ZT_OFF = 0xE00000
FL_OFF = 0x1000000
TS_OFF = 0x1100000
XT_SZ = 64 * 448 * 64
RS_SZ = 2048 * 4
HF_SZ = 64 * 112 * 1024
W2F_SZ = 112 * 14 * 1024
ZT_SZ = 448 * 4096
FL_SZ = 0x10000
FL_LN = 0
FL_W2 = 1024
FL_H = 2048
FL_Z = 8192

STAMP = False
PLAIN = False
EXP = []
SPIN_LIMIT = 200000

def srd(k, d, lo, hi, size, off=0):
    if off:
        k(f"s_add_u32 s{d}, s{lo}, {off}")
        k(f"s_addc_u32 s{d+1}, s{hi}, 0")
    else:
        k(f"s_mov_b32 s{d}, s{lo}")
        k(f"s_mov_b32 s{d+1}, s{hi}")
    k(f"s_mov_b32 s{d+2}, {size}")
    k(f"s_mov_b32 s{d+3}, 0x00020000")

def vr(a, n=1):
    return f"v{a}" if n == 1 else f"v[{a}:{a+n-1}]"

def stamp(k, i):
    if not STAMP: return
    if i == 8: k("s_memrealtime s[96:97]")
    else:
        j = i if i < 8 else i - 1
        k(f"s_memtime s[{72+2*j}:{73+2*j}]")

def stamp_flush(k, kern_idx, n):
    if not STAMP: return
    k("s_memrealtime s[98:99]")
    k("s_waitcnt lgkmcnt(0)")
    k("s_load_dwordx2 s[68:69], s[0:1], 112")
    k("s_waitcnt lgkmcnt(0)")
    k(f"s_add_u32 s64, s68, {TS_OFF + kern_idx * 0x10000}")
    k("s_addc_u32 s65, s69, 0")
    k("s_mov_b32 s66, 0x10000")
    k("s_mov_b32 s67, 0x00020000")
    k("s_lshl_b32 s68, s2, 6")
    k("v_cmp_eq_u32 vcc, 0, v0")
    k("s_and_saveexec_b64 s[70:71], vcc")
    k("v_mov_b32 v1, s68")
    for i in range(12):
        k(f"v_mov_b32 v2, s{72+2*i}")
        k(f"buffer_store_dword v2, v1, s[64:67], 0 offen offset:{4*i}")
    k("s_getreg_b32 s69, hwreg(HW_REG_HW_ID)")
    k("v_mov_b32 v2, s69")
    k("buffer_store_dword v2, v1, s[64:67], 0 offen offset:48")
    k("s_getreg_b32 s69, hwreg(HW_REG_XCC_ID)")
    k("v_mov_b32 v2, s69")
    k("buffer_store_dword v2, v1, s[64:67], 0 offen offset:52")
    k("v_mov_b32 v2, s96")
    k("buffer_store_dword v2, v1, s[64:67], 0 offen offset:56")
    k("v_mov_b32 v2, s98")
    k("buffer_store_dword v2, v1, s[64:67], 0 offen offset:60")
    k("s_mov_b64 exec, s[70:71]")

_uid = [0]
def uid(p):
    _uid[0] += 1
    return f"L_{p}{_uid[0]}"

def get_nonce(k, dbg_srd, sdst, vtmp):
    L = uid("nonce"); E = uid("nonce_e")
    k(f"v_mov_b32 v{vtmp}, 0")
    k(f"s_mov_b32 s{sdst+1}, 0")
    k.label(L)
    k(f"buffer_load_dword v{vtmp+1}, v{vtmp}, s[{dbg_srd}:{dbg_srd+3}], 0 offen sc1")
    k("s_waitcnt vmcnt(0)")
    k(f"v_readfirstlane_b32 s{sdst}, v{vtmp+1}")
    k("s_nop 3")
    k(f"s_cmp_lg_u32 s{sdst}, 0")
    k(f"s_cbranch_scc1 {E}")
    k(f"s_add_u32 s{sdst+1}, s{sdst+1}, 1")
    k(f"s_cmp_lt_u32 s{sdst+1}, {SPIN_LIMIT}")
    k("s_sleep 1")
    k(f"s_cbranch_scc1 {L}")
    k.label(E)

def wait_flags(k, fl_srd, base_off, stride_shift, nflags, snonce, vtmp, scnt, wave0=None):
    L = uid("wf"); E = uid("wf_e")
    if wave0 is not None:
        k(f"s_cmp_lg_u32 s{wave0}, 0")
        k(f"s_cbranch_scc1 {E}")
    k(f"v_and_b32 v{vtmp}, 63, v0")
    k(f"v_min_u32 v{vtmp}, {nflags - 1}, v{vtmp}")
    k(f"v_lshlrev_b32 v{vtmp}, {stride_shift}, v{vtmp}")
    k(f"v_add_u32 v{vtmp}, {base_off}, v{vtmp}") if isinstance(base_off, int) else k(f"v_add_u32 v{vtmp}, s{base_off[0]}, v{vtmp}")
    k(f"s_mov_b32 s{scnt}, 0")
    k.label(L)
    k(f"buffer_load_dword v{vtmp+1}, v{vtmp}, s[{fl_srd}:{fl_srd+3}], 0 offen sc1")
    k("s_waitcnt vmcnt(0)")
    k(f"v_cmp_ne_u32 vcc, s{snonce}, v{vtmp+1}")
    k("s_nop 4")
    k(f"s_cbranch_vccz {E}")
    k(f"s_add_u32 s{scnt}, s{scnt}, 1")
    k(f"s_cmp_lt_u32 s{scnt}, {SPIN_LIMIT}")
    k("s_sleep 2")
    k(f"s_cbranch_scc1 {L}")
    k.label(E)

def signal(k, fl_srd, soff, snonce, vtmp, imm=0):
    k("s_waitcnt vmcnt(0)")
    k("s_barrier")
    k("v_cmp_eq_u32 vcc, 0, v0")
    k("s_and_saveexec_b64 s[44:45], vcc")
    k(f"s_add_u32 s{soff}, s{soff}, {imm}")
    k(f"v_mov_b32 v{vtmp}, s{soff}")
    k(f"v_mov_b32 v{vtmp+1}, s{snonce}")
    k(f"buffer_store_dword v{vtmp+1}, v{vtmp}, s[{fl_srd}:{fl_srd+3}], 0 offen sc1")
    k("s_mov_b64 exec, s[44:45]")

def wait_flags2(k, fl_srd, sets, snonce, vtmp, scnt, wave0):
    L = uid("wf"); E = uid("wf_e")
    k(f"s_cmp_lg_u32 s{wave0}, 0")
    k(f"s_cbranch_scc1 {E}")
    n = len(sets)
    for i, (base_off, nflags) in enumerate(sets):
        v = vtmp + 2*i
        k(f"v_and_b32 v{v}, 63, v0")
        k(f"v_min_u32 v{v}, {nflags - 1}, v{v}")
        k(f"v_lshlrev_b32 v{v}, 4, v{v}")
        k(f"v_add_u32 v{v}, {base_off}, v{v}") if isinstance(base_off, int) else k(f"v_add_u32 v{v}, s{base_off[0]}, v{v}")
    k(f"s_mov_b32 s{scnt}, 0")
    k.label(L)
    for i in range(n):
        k(f"buffer_load_dword v{vtmp+2*i+1}, v{vtmp+2*i}, s[{fl_srd}:{fl_srd+3}], 0 offen sc1")
    k("s_waitcnt vmcnt(0)")
    for i in range(1, n):
        k(f"v_xor_b32 v{vtmp+2*i+1}, s{snonce}, v{vtmp+2*i+1}")
    k(f"v_xor_b32 v{vtmp+1}, s{snonce}, v{vtmp+1}")
    for i in range(1, n):
        k(f"v_or_b32 v{vtmp+1}, v{vtmp+1}, v{vtmp+2*i+1}")
    k(f"v_cmp_ne_u32 vcc, 0, v{vtmp+1}")
    k("s_nop 4")
    k(f"s_cbranch_vccz {E}")
    k(f"s_add_u32 s{scnt}, s{scnt}, 1")
    k(f"s_cmp_lt_u32 s{scnt}, {SPIN_LIMIT}")
    k("s_sleep 1")
    k(f"s_cbranch_scc1 {L}")
    k.label(E)

def role_g1(k):
    stamp(k, 8); stamp(k, 0)
    k("s_load_dwordx2 s[4:5], s[0:1], 0")
    k("s_setprio 3")
    k("s_load_dwordx2 s[6:7], s[0:1], 80")
    k("s_load_dwordx2 s[8:9], s[0:1], 112")
    k("s_load_dwordx2 s[50:51], s[0:1], 104")
    k("s_and_b32 s10, s3, 7")
    k("s_lshr_b32 s11, s3, 3")
    k("s_and_b32 s30, s11, 3")
    k("s_lshr_b32 s31, s11, 2")
    k("s_lshr_b32 s12, s10, 1")
    k("s_lshl_b32 s12, s12, 2")
    k("s_add_u32 s12, s12, s30")
    k("s_and_b32 s13, s10, 1")
    k("s_mul_i32 s13, s13, 7")
    k("s_add_u32 s13, s13, s31")
    k("s_mul_i32 s32, s30, 7\n s_add_u32 s32, s32, 1\n s_lshr_b32 s32, s32, 1")
    k("s_lshl_b32 s31, s31, 1\n s_add_u32 s45, s32, s31")
    k("s_cmp_ge_u32 s45, 14\n s_cselect_b32 s32, 14, 0\n s_sub_u32 s45, s45, s32")
    if "norot" in EXP: k("s_mov_b32 s45, 0")
    k("v_and_b32 v1, 63, v0")
    k("v_lshrrev_b32 v2, 6, v0")
    k("v_readfirstlane_b32 s14, v2")
    k("s_and_b32 s15, s14, 1")
    k("s_lshr_b32 s28, s14, 1")
    k("s_lshl_b32 s29, s14, 11")
    VX0, VX1, VW0, VW1 = 4, 5, 6, 7
    with k.sched():
        k("s_lshl_b32 s30, s12, 7")
        k("s_lshl_b32 s31, s14, 5")
        k("s_add_u32 s30, s30, s31")
        k("v_lshrrev_b32 v3, 2, v1")
        k("v_add_u32 v3, s30, v3")
        k("v_mul_u32_u24 v3, 896, v3")
        k("v_lshrrev_b32 v8, 4, v1")
        k("v_xor_b32 v9, v1, v8")
        k("v_and_b32 v9, 3, v9")
        k(f"v_lshl_add_u32 v{VX0}, v9, 4, v3")
        k(f"v_add_u32 v{VX1}, 14336, v{VX0}")
        k("s_lshl_b32 s33, s14, 3")
        k("v_add_u32 v10, s33, v8")
        k("v_mul_u32_u24 v10, 3584, v10")
        k("v_lshlrev_b32 v11, 2, v8")
        k("v_xor_b32 v11, v1, v11")
        k("v_and_b32 v11, 15, v11")
        k("v_lshl_add_u32 v10, v11, 4, v10")
        k("s_lshl_b32 s34, s13, 8")
        k(f"v_add_u32 v{VW0}, s34, v10")
        k(f"v_add_u32 v{VW1}, 14336, v{VW0}")
    k("s_memrealtime s[46:47]")
    k("s_waitcnt lgkmcnt(0)")
    srd(k, 16, 4, 5, 2048 * 896)
    srd(k, 20, 6, 7, 448 * 3584)
    srd(k, 24, 8, 9, HF_SZ, HF_OFF)
    srd(k, 52, 50, 51, 256)
    srd(k, 60, 8, 9, FL_SZ, FL_OFF)
    k("s_cmp_lg_u32 s3, 0")
    k("s_cbranch_scc1 L_g1_nn")
    k("s_or_b32 s46, s46, 1")
    k("v_cmp_eq_u32 vcc, 0, v0")
    k("s_and_saveexec_b64 s[30:31], vcc")
    k("v_mov_b32 v100, 0")
    k("v_mov_b32 v101, s46")
    k("buffer_store_dword v101, v100, s[52:55], 0 offen sc1")
    k("s_mov_b64 exec, s[30:31]")
    k("s_waitcnt vmcnt(0)")
    k.label("L_g1_nn")
    def set_stage():
        k("s_mul_i32 s40, s45, 114688")
        k("s_lshl_b32 s41, s45, 6")
    def adv_stage():
        k("s_add_u32 s45, s45, 1\n s_cmp_eq_u32 s45, 14\n s_cselect_b32 s45, 0, s45")
    def dma_w(j, slot):
        k(f"s_add_u32 m0, s29, {16384*slot + 1024*j}")
        k(f"buffer_load_dwordx4 v{[VW0, VW1][j]}, s[20:23], s40 offen lds")
    def dma_x(j, slot):
        k(f"s_add_u32 m0, s29, {16384*slot + 8192 + 1024*j}")
        k(f"buffer_load_dwordx4 v{[VX0, VX1][j]}, s[16:19], s41 offen lds")
    for s in range(3):
        set_stage(); dma_w(0, s); dma_w(1, s); dma_x(0, s); dma_x(1, s); adv_stage()
    set_stage(); dma_w(0, 3); dma_w(1, 3)
    AA = [10, 11]; BB0 = [12, 13]; BB1 = [14, 15]
    AAh = [16, 17]; BB0h = [18, 19]; BB1h = [20, 21]
    with k.sched():
        k("v_lshrrev_b32 v3, 5, v1")
        k("v_bfe_u32 v8, v1, 2, 2")
        k("v_lshl_add_u32 v3, v3, 3, v8")
        k("v_lshlrev_b32 v3, 8, v3")
        k("v_bfe_u32 v9, v1, 4, 1")
        k("v_lshlrev_b32 v9, 1, v9")
        k("v_bfe_u32 v22, v1, 1, 1")
        k("v_add_u32 v9, v9, v22")
        k("v_lshl_add_u32 v3, v9, 4, v3")
        k("v_and_b32 v22, 1, v1")
        k("v_lshl_add_u32 v3, v22, 3, v3")
        for ai in range(2):
            k(f"s_xor_b32 s{30+ai}, s28, {ai}")
            k(f"s_lshl_b32 s{32+ai}, s15, 1")
            k(f"s_add_u32 s{30+ai}, s{30+ai}, s{32+ai}")
            k(f"v_xor_b32 v{24+ai}, s{30+ai}, v8")
            k(f"v_lshl_add_u32 v{AA[ai]}, v{24+ai}, 6, v3")
            k(f"v_add_u32 v{AAh[ai]}, 65536, v{AA[ai]}")
        k("v_and_b32 v26, 31, v1")
        k("v_lshrrev_b32 v27, 5, v1")
        k("v_xor_b32 v27, v27, v8")
        k("v_lshlrev_b32 v27, 4, v27")
        k("v_lshl_add_u32 v26, v26, 6, v27")
        for bi in range(2):
            k(f"s_xor_b32 s{34+bi}, s15, {bi}")
            k(f"s_lshl_b32 s{34+bi}, s{34+bi}, 11")
            k(f"s_lshl_b32 s{36+bi}, s28, 12")
            k(f"s_add_u32 s{34+bi}, s{34+bi}, s{36+bi}")
            k(f"s_add_u32 s{34+bi}, s{34+bi}, 8192")
            k(f"v_add_u32 v{BB0[bi]}, s{34+bi}, v26")
            k(f"v_xor_b32 v{BB1[bi]}, 32, v{BB0[bi]}")
            k(f"v_add_u32 v{BB0h[bi]}, 65536, v{BB0[bi]}")
            k(f"v_add_u32 v{BB1h[bi]}, 65536, v{BB1[bi]}")
    SEL = 160; SW = 164; SX = 168
    k("v_and_b32 v22, 15, v1")
    k("v_bfe_u32 v23, v1, 4, 1")
    k("v_cmp_eq_u32 vcc, v22, v23")
    k("v_mov_b32 v22, 0x3f803f80")
    k(f"v_cndmask_b32 v{SEL}, 0, v22, vcc")
    for i in range(1, 4): k(f"v_mov_b32 v{SEL + i}, v{SEL}")
    for i in range(4):
        k(f"v_mov_b32 v{SW + i}, 0")
        k(f"v_mov_b32 v{SX + i}, 0")
    FR = [24, 40]
    ACC = 56
    for i in range(64): k(f"v_mov_b32 v{ACC + i}, 0")
    def rdA(slot, kap, fs, ai):
        if "nords" in EXP: return
        hi = slot >= 4; sb = 0 if hi else slot * 16384
        a_ = (AAh if hi else AA)[ai]
        k(f"ds_read_b64_tr_b16 {vr(fs + 4*ai, 2)}, v{a_} offset:{sb + kap*4096}")
        k(f"ds_read_b64_tr_b16 {vr(fs + 4*ai + 2, 2)}, v{a_} offset:{sb + kap*4096 + 1024}")
    def rdB(slot, kap, fs, bi):
        if "nords" in EXP: return
        hi = slot >= 4; sb = 0 if hi else slot * 16384
        b_ = ((BB1h if hi else BB1) if kap else (BB0h if hi else BB0))[bi]
        k(f"ds_read_b128 {vr(fs + 8 + 4*bi, 4)}, v{b_} offset:{sb}")
    def mf(fs, ai, bi):
        if "nomf" in EXP: return
        c = ACC + (2*ai + bi) * 16
        k(f"v_mfma_f32_32x32x16_bf16 {vr(c,16)}, {vr(fs + 4*ai,4)}, {vr(fs + 8 + 4*bi,4)}, {vr(c,16)}")
    def sums(fs, which):
        if "nomf" in EXP: return
        src = fs if which == 0 else fs + 8
        dst = SW if which == 0 else SX
        k(f"v_mfma_f32_16x16x32_bf16 {vr(dst,4)}, {vr(src,4)}, {vr(SEL,4)}, {vr(dst,4)}")
    def stage_body(slot, cd, ab, wait, last=False):
        nslot = (slot + 1) % 5
        k("s_waitcnt lgkmcnt(0)")
        mf(FR[0], 0, 0)
        rdA(slot, 1, FR[1], 0); rdB(slot, 1, FR[1], 0)
        mf(FR[0], 0, 1)
        rdA(slot, 1, FR[1], 1); rdB(slot, 1, FR[1], 1)
        sums(FR[0], 0)
        if cd: dma_x(0, (slot + 3) % 5)
        mf(FR[0], 1, 0)
        if cd: dma_x(1, (slot + 3) % 5)
        sums(FR[0], 1)
        if cd: adv_stage(); set_stage()
        mf(FR[0], 1, 1)
        if not last:
            k(f"s_waitcnt vmcnt({wait}) lgkmcnt(0)")
            k("s_barrier")
        else:
            k("s_waitcnt lgkmcnt(0)")
        mf(FR[1], 0, 0)
        if not last: rdA(nslot, 0, FR[0], 0); rdB(nslot, 0, FR[0], 0)
        mf(FR[1], 0, 1)
        if not last: rdA(nslot, 0, FR[0], 1); rdB(nslot, 0, FR[0], 1)
        sums(FR[1], 0)
        if ab: dma_w(0, (slot + 4) % 5)
        mf(FR[1], 1, 0)
        if ab: dma_w(1, (slot + 4) % 5)
        sums(FR[1], 1)
        mf(FR[1], 1, 1)
    k("s_mov_b32 s44, 0")
    stamp(k, 1)
    k("s_waitcnt vmcnt(10)")
    k("s_barrier")
    stamp(k, 2)
    for ai in range(2): rdA(0, 0, FR[0], ai)
    for bi in range(2): rdB(0, 0, FR[0], bi)
    k.label("L_g1_loop")
    for sl in range(5): stage_body(sl, True, True, 8)
    k("s_add_u32 s44, s44, 1")
    k("s_cmp_lt_u32 s44, 2")
    k("s_cbranch_scc1 L_g1_loop")
    stage_body(0, True, False, 8)
    stage_body(1, False, False, 4)
    stage_body(2, False, False, 0)
    stage_body(3, False, False, 0, last=True)
    stamp(k, 3)
    k("s_waitcnt lgkmcnt(0)")
    k("s_barrier")
    k("s_nop 7")
    for r in range(4): k(f"v_mul_f32 v{SX + r}, 0x3b124925, v{SX + r}")
    k(f"v_cvt_pk_bf16_f32 v24, v{SX}, v{SX+1}")
    k(f"v_cvt_pk_bf16_f32 v25, v{SX+2}, v{SX+3}")
    k(f"v_lshlrev_b32 v{SX}, 16, v24")
    k(f"v_and_b32 v{SX+1}, 0xffff0000, v24")
    k(f"v_lshlrev_b32 v{SX+2}, 16, v25")
    k(f"v_and_b32 v{SX+3}, 0xffff0000, v25")
    k("v_and_b32 v3, 1, v1")
    k("v_lshlrev_b32 v3, 6, v3")
    k("v_lshrrev_b32 v8, 4, v1")
    k("v_lshl_add_u32 v3, v8, 4, v3")
    k("s_lshl_b32 s30, s28, 1\n s_add_u32 s30, s30, s15\n s_lshl_b32 s30, s30, 7")
    k("s_lshl_b32 s31, s15, 1\n s_add_u32 s31, s31, s28\n s_lshl_b32 s31, s31, 7\n s_add_u32 s31, s31, 512")
    k("v_add_u32 v8, s30, v3")
    k("v_add_u32 v9, s31, v3")
    k("v_and_b32 v10, 15, v1")
    k("v_cmp_gt_u32 vcc, 2, v10")
    k("s_and_saveexec_b64 s[46:47], vcc")
    k(f"ds_write_b128 v8, {vr(SX,4)}")
    k(f"ds_write_b128 v9, {vr(SW,4)}")
    k("s_mov_b64 exec, s[46:47]")
    k("v_and_b32 v3, 31, v1")
    k("v_lshlrev_b32 v3, 2, v3")
    k("s_waitcnt lgkmcnt(0)")
    k("s_barrier")
    for bi in range(2):
        k(f"s_xor_b32 s30, s15, {bi}\n s_lshl_b32 s31, s28, 1\n s_add_u32 s30, s30, s31\n s_lshl_b32 s30, s30, 7")
        k(f"v_add_u32 v8, s30, v3")
        k(f"ds_read_b32 v{26 + 2*bi}, v8")
    k("v_lshrrev_b32 v9, 5, v1")
    k("v_lshlrev_b32 v9, 4, v9")
    for ai in range(2):
        k(f"s_xor_b32 s30, s28, {ai}\n s_lshl_b32 s31, s15, 1\n s_add_u32 s30, s30, s31\n s_lshl_b32 s30, s30, 7\n s_add_u32 s30, s30, 512")
        k(f"v_add_u32 v8, s30, v9")
        for q in range(4):
            k(f"ds_read_b128 {vr(124 + 16*ai + 4*q, 4)}, v8 offset:{32*q}")
    for bi in range(2):
        k(f"s_xor_b32 s{36+bi}, s15, {bi}\n s_lshl_b32 s31, s28, 1\n s_add_u32 s{36+bi}, s{36+bi}, s31\n s_lshl_b32 s31, s12, 2\n s_add_u32 s{36+bi}, s{36+bi}, s31\n s_mul_i32 s{36+bi}, s{36+bi}, {112*1024}")
    for ai in range(2):
        k(f"s_xor_b32 s{38+ai}, s28, {ai}\n s_lshl_b32 s31, s15, 1\n s_add_u32 s{38+ai}, s{38+ai}, s31\n s_lshl_b32 s31, s13, 2\n s_add_u32 s{38+ai}, s{38+ai}, s31\n s_lshl_b32 s{38+ai}, s{38+ai}, 11")
    k("v_lshlrev_b32 v3, 4, v1")
    k("s_waitcnt lgkmcnt(0)")
    for bi in range(2):
        k(f"v_sub_f32 v{26 + 2*bi}, 0, v{26 + 2*bi}")
        k(f"v_mov_b32 v{27 + 2*bi}, v{26 + 2*bi}")
    sfl = " sc1"
    for ai in range(2):
        for bi in range(2):
            c = ACC + (2*ai + bi) * 16
            with k.sched():
                for r in range(16):
                    k(f"v_fma_f32 v{c + r}, v{124 + 16*ai + r}, v{26 + 2*bi}, v{c + r}")
                for j in range(8):
                    k(f"v_cvt_pk_bf16_f32 v{40 + j}, v{c + 2*j}, v{c + 2*j + 1}")
                for j in range(8):
                    k(f"v_pk_max_i16 v{c + j}, v{40 + j}, 0")
            k(f"s_add_u32 s30, s{36+bi}, s{38+ai}")
            k(f"buffer_store_dwordx4 {vr(c,4)}, v3, s[24:27], s30 offen{sfl}")
            k(f"buffer_store_dwordx4 {vr(c+4,4)}, v3, s[24:27], s30 offen offset:1024{sfl}")
    stamp(k, 4)
    get_nonce(k, 52, 48, 40)
    k("s_lshl_b32 s30, s12, 8\n s_lshl_b32 s31, s13, 4\n s_add_u32 s30, s30, s31")
    signal(k, 60, 30, 48, 40, FL_H)
    stamp(k, 5)
    role_g2(k)

def role_ln(k):
    stamp(k, 8); stamp(k, 0)
    k("s_setprio 1")
    k("s_load_dwordx2 s[4:5], s[0:1], 0")
    k("s_load_dwordx2 s[6:7], s[0:1], 88")
    k("s_load_dwordx4 s[8:11], s[0:1], 104")
    k("v_and_b32 v1, 63, v0")
    k("v_lshrrev_b32 v2, 6, v0")
    k("v_readfirstlane_b32 s14, v2")
    k("s_lshl_b32 s30, s3, 5")
    k("s_lshl_b32 s31, s14, 3")
    k("s_add_u32 s30, s30, s31")
    k("v_lshrrev_b32 v3, 3, v1")
    k("v_add_u32 v4, s30, v3")
    k("v_mul_u32_u24 v5, 896, v4")
    k("v_and_b32 v6, 7, v1")
    k("v_lshl_add_u32 v5, v6, 4, v5")
    k("s_waitcnt lgkmcnt(0)")
    srd(k, 16, 4, 5, 2048 * 896)
    X = 8
    for j in range(7):
        k(f"buffer_load_dwordx4 {vr(X + 4*j, 4)}, v5, s[16:19], 0 offen offset:{128*j}")
    srd(k, 52, 8, 9, 256)
    srd(k, 20, 6, 7, 1792 * 896)
    srd(k, 24, 10, 11, XT_SZ, XT_OFF)
    srd(k, 36, 10, 11, RS_SZ, RS_OFF)
    srd(k, 40, 10, 11, W2F_SZ, W2F_OFF)
    srd(k, 56, 10, 11, FL_SZ, FL_OFF)
    W2L = 32768
    k("s_cmp_ge_u32 s3, 56")
    k("s_cbranch_scc1 L_ln_now2")
    k("s_mul_i32 s30, s3, 28672")
    k("s_mul_i32 s31, s14, 7168")
    k("s_add_u32 s30, s30, s31")
    k("v_lshlrev_b32 v7, 4, v1")
    for j in range(7):
        k(f"s_add_u32 m0, s31, {W2L + 1024*j}")
        k(f"s_add_u32 s32, s30, {1024*j}")
        k(f"buffer_load_dwordx4 v7, s[20:23], s32 offen lds")
    k.label("L_ln_now2")
    k("s_cmp_ge_u32 s3, 56")
    k("s_cbranch_scc1 L_ln_w0")
    k("s_waitcnt vmcnt(7)")
    k("s_branch L_ln_cont")
    k.label("L_ln_w0")
    k("s_waitcnt vmcnt(0)")
    k.label("L_ln_cont")
    stamp(k, 1)
    F = 40
    def reduce8(reg):
        k(f"v_add_f32_dpp v{reg}, v{reg}, v{reg} quad_perm:[1,0,3,2] row_mask:0xf bank_mask:0xf")
        k(f"v_add_f32_dpp v{reg}, v{reg}, v{reg} quad_perm:[2,3,0,1] row_mask:0xf bank_mask:0xf")
        k(f"v_add_f32_dpp v{reg}, v{reg}, v{reg} row_half_mirror row_mask:0xf bank_mask:0xf")
    with k.sched():
        for j in range(28):
            k(f"v_lshlrev_b32 v{F + 2*j}, 16, v{X + j}")
            k(f"v_and_b32 v{F + 2*j + 1}, 0xffff0000, v{X + j}")
        for j in range(4): k(f"v_add_f32 v{96 + j}, v{F + 2*j}, v{F + 2*j + 1}")
        for j in range(8, 56): k(f"v_add_f32 v{96 + (j & 3)}, v{96 + (j & 3)}, v{F + j}")
    k("v_add_f32 v96, v96, v97\n v_add_f32 v98, v98, v99\n v_add_f32 v96, v96, v98")
    reduce8(96)
    k("v_mul_f32 v96, 0xbb124925, v96")
    with k.sched():
        for j in range(4): k(f"v_mov_b32 v{100 + j}, 0")
        for j in range(56):
            t = 104 + (j % 12)
            k(f"v_add_f32 v{t}, v{F + j}, v96")
            k(f"v_fmac_f32 v{100 + (j % 4)}, v{t}, v{t}")
    k("v_add_f32 v100, v100, v101\n v_add_f32 v102, v102, v103\n v_add_f32 v100, v100, v102")
    reduce8(100)
    k("v_mul_f32 v100, 0x3b124925, v100")
    k("v_cvt_pk_bf16_f32 v100, v100, v96")
    k("v_and_b32 v96, 0xffff0000, v100")
    k("v_mov_b32 v97, v96")
    k("v_lshlrev_b32 v100, 16, v100")
    k("v_add_f32 v100, 0x3727c5ac, v100")
    k("v_cvt_pk_bf16_f32 v100, v100, v100")
    k("v_lshlrev_b32 v100, 16, v100")
    k("v_sqrt_f32 v100, v100")
    k("v_cvt_pk_bf16_f32 v100, v100, v100")
    k("v_lshlrev_b32 v100, 16, v100")
    k("v_rcp_f32 v102, v100")
    k("v_fma_f32 v103, -v100, v102, 2.0")
    k("v_mul_f32 v102, v102, v103")
    k("v_mov_b32 v103, v102")
    k("v_lshlrev_b32 v4, 2, v4")
    k("v_cmp_eq_u32 vcc, 0, v6")
    k("s_and_saveexec_b64 s[44:45], vcc")
    k("buffer_store_dword v102, v4, s[36:39], 0 offen sc1")
    k("s_mov_b64 exec, s[44:45]")
    with k.sched():
        for j in range(28):
            a = F + 2*j
            k(f"v_add_f32 v{a}, v{a}, v96")
            k(f"v_add_f32 v{a+1}, v{a+1}, v96")
            k(f"v_cvt_pk_bf16_f32 v{X + j}, v{a}, v{a+1}")
            k(f"v_lshlrev_b32 v{a}, 16, v{X + j}")
            k(f"v_and_b32 v{a+1}, 0xffff0000, v{X + j}")
            k(f"v_mul_f32 v{a}, v{a}, v102")
            k(f"v_mul_f32 v{a+1}, v{a+1}, v102")
            k(f"v_cvt_pk_bf16_f32 v{X + j}, v{a}, v{a+1}")
    RSTR = 960
    k("s_lshl_b32 s30, s14, 3")
    k("v_add_u32 v3, s30, v3")
    k(f"v_mul_u32_u24 v3, {RSTR}, v3")
    k("v_lshl_add_u32 v3, v6, 4, v3")
    for j in range(7):
        k(f"ds_write_b128 v3, {vr(X + 4*j, 4)} offset:{128*j}")
    L2B = 61440
    with k.sched():
        k("v_bfe_u32 v4, v1, 2, 2")
        k(f"v_mul_u32_u24 v4, {RSTR}, v4")
        k("v_lshrrev_b32 v5, 4, v1")
        k("v_lshlrev_b32 v5, 5, v5")
        k("v_add_u32 v4, v4, v5")
        k("v_and_b32 v8, 3, v1")
        k("v_lshl_add_u32 v4, v8, 3, v4")
        k("s_lshl_b32 s33, s14, 12")
        k(f"s_add_u32 s33, s33, {L2B}")
        k("v_bfe_u32 v6, v1, 1, 2")
        k("v_lshlrev_b32 v7, 6, v1")
        k("v_add_u32 v7, s33, v7")
        for pi in range(4):
            k(f"v_xor_b32 v{100 + pi}, {pi}, v6")
            k(f"v_lshl_add_u32 v{100 + pi}, v{100 + pi}, 4, v7")
        k("v_lshlrev_b32 v104, 4, v1")
        k("v_add_u32 v104, s33, v104")
        k("v_bfe_u32 v105, v1, 3, 2")
        k("v_xor_b32 v105, v105, v1")
        k("v_and_b32 v105, 3, v105")
        k("v_lshrrev_b32 v106, 2, v1")
        k("v_lshlrev_b32 v106, 6, v106")
        k("v_lshl_add_u32 v105, v105, 4, v106")
        k(f"s_mul_i32 s34, s3, {448*64}")
    k("s_waitcnt lgkmcnt(0)")
    k("s_barrier")
    k("s_mov_b32 s35, s14")
    k.label("L_ln_tr")
    k("s_lshl_b32 s46, s35, 7")
    k("v_add_u32 v107, s46, v4")
    for q in range(8):
        k(f"ds_read_b64_tr_b16 {vr(40 + 2*q, 2)}, v107 offset:{4*q*RSTR}")
    k("s_waitcnt lgkmcnt(0)")
    for pi in range(4):
        k(f"ds_write_b128 v{100 + pi}, {vr(40 + 4*pi, 4)}")
    k("s_waitcnt lgkmcnt(0)")
    for i2 in range(4):
        k(f"ds_read_b128 {vr(60 + 4*i2, 4)}, v104 offset:{1024*i2}")
    k("s_lshl_b32 s46, s35, 12")
    k("s_add_u32 s46, s46, s34")
    k("s_waitcnt lgkmcnt(0)")
    for i2 in range(4):
        k(f"buffer_store_dwordx4 {vr(60 + 4*i2, 4)}, v105, s[24:27], s46 offen offset:{1024*i2} sc1")
    k("s_add_u32 s35, s35, 4")
    k("s_cmp_lt_u32 s35, 7")
    k("s_cbranch_scc1 L_ln_tr")
    stamp(k, 2)
    get_nonce(k, 52, 48, 70)
    k("s_waitcnt vmcnt(0)")
    k("s_barrier")
    k("v_cmp_eq_u32 vcc, 0, v0")
    k("s_and_saveexec_b64 s[44:45], vcc")
    k(f"s_lshl_b32 s30, s3, 4")
    k(f"v_mov_b32 v70, s30")
    k("v_mov_b32 v71, s48")
    k(f"buffer_store_dword v71, v70, s[56:59], 0 offen offset:{FL_LN} sc1")
    k("s_mov_b64 exec, s[44:45]")
    k("s_cmp_ge_u32 s3, 56")
    k("s_cbranch_scc1 L_ln_end")
    k("v_lshrrev_b32 v4, 5, v1")
    k("v_bfe_u32 v5, v1, 2, 2")
    k("v_lshl_add_u32 v4, v4, 2, v5")
    k("v_mul_u32_u24 v4, 896, v4")
    k("v_bfe_u32 v5, v1, 4, 1")
    k("v_lshl_add_u32 v4, v5, 5, v4")
    k("v_and_b32 v5, 3, v1")
    k("v_lshl_add_u32 v4, v5, 3, v4")
    k(f"v_add_u32 v4, {W2L}, v4")
    k("v_lshlrev_b32 v5, 4, v1")
    k("s_lshr_b32 s30, s14, 1")
    k("s_and_b32 s31, s14, 1")
    k("s_mul_i32 s31, s31, 7")
    k(f"s_mul_i32 s32, s30, {16*896}")
    k("s_lshl_b32 s33, s31, 6")
    k("s_add_u32 s32, s32, s33")
    k("v_add_u32 v4, s32, v4")
    k(f"s_lshl_b32 s33, s3, 1\n s_add_u32 s33, s33, s30\n s_mul_i32 s33, s33, 14\n s_add_u32 s33, s33, s31\n s_lshl_b32 s33, s33, 10")
    for j in range(7):
        k(f"ds_read_b64_tr_b16 {vr(40 + 4*j, 2)}, v4 offset:{64*j}")
        k(f"ds_read_b64_tr_b16 {vr(40 + 4*j + 2, 2)}, v4 offset:{64*j + 8*896}")
    k("s_waitcnt lgkmcnt(0)")
    for j in range(7):
        k(f"s_add_u32 s35, s33, {1024*j}")
        k(f"buffer_store_dwordx4 {vr(40 + 4*j, 4)}, v5, s[40:43], s35 offen sc1")
    k("s_lshl_b32 s30, s3, 4")
    signal(k, 56, 30, 48, 70, FL_W2)
    k.label("L_ln_end")
    stamp(k, 3)
    wait_flags(k, 56, FL_W2, 4, 56, 48, 70, 49)
    k("s_and_b32 s30, s3, 31\n s_lshr_b32 s30, s30, 3\n s_lshr_b32 s31, s3, 5\n s_lshl_b32 s31, s31, 2\n s_add_u32 s30, s30, s31")
    k("s_lshl_b32 s30, s30, 2\n s_add_u32 s30, s30, s14\n s_mul_i32 s30, s30, %d" % (49 * 1024))
    k("v_lshlrev_b32 v5, 4, v1")
    k("s_mov_b32 s31, 0")
    k.label("L_ln_pf")
    for j in range(7):
        k(f"buffer_load_dwordx4 {vr(40 + 4*j, 4)}, v5, s[40:43], s30 offen sc1")
        k("s_add_u32 s30, s30, 1024")
    k("s_waitcnt vmcnt(7)")
    k("s_add_u32 s31, s31, 1")
    k("s_cmp_lt_u32 s31, 7")
    k("s_cbranch_scc1 L_ln_pf")
    stamp(k, 4)
    stamp_flush(k, 0, 4)
    k("s_endpgm")

def cmul(k, o, x, y, t):
    k(f"v_mul_f32 v{t}, v{x+1}, v{y+1}")
    k(f"v_mul_f32 v{t+1}, v{x+1}, v{y}")
    if o == x:
        k(f"v_fma_f32 v{o+1}, v{x}, v{y+1}, v{t+1}")
        k(f"v_fma_f32 v{o}, v{x}, v{y}, -v{t}")
    else:
        k(f"v_fma_f32 v{o}, v{x}, v{y}, -v{t}")
        k(f"v_fma_f32 v{o+1}, v{x}, v{y+1}, v{t+1}")

def role_s(k):
    stamp(k, 8); stamp(k, 0)
    k("s_load_dwordx16 s[56:71], s[0:1], 8")
    k("s_load_dwordx4 s[8:11], s[0:1], 104")
    k("v_and_b32 v1, 63, v0")
    k("v_lshrrev_b32 v2, 6, v0")
    k("v_readfirstlane_b32 s14, v2")
    k("s_lshr_b32 s15, s14, 1")
    k("s_and_b32 s28, s14, 1")
    k("s_lshl_b32 s29, s3, 1")
    k("s_add_u32 s29, s29, s15")
    k("s_lshl_b32 s30, s29, 9")
    k("s_lshl_b32 s31, s28, 8")
    k("s_add_u32 s30, s30, s31")
    k("v_lshlrev_b32 v3, 2, v1")
    k("v_add_u32 v3, s30, v3")
    k("s_lshl_b32 s31, s29, 1")
    k("v_mov_b32 v4, s31")
    k("s_waitcnt lgkmcnt(0)")
    PSZ = 448 * 512
    for i in range(6):
        srd(k, 16, 56 + 2*i, 57 + 2*i, PSZ)
        k(f"buffer_load_dword v{8 + i}, v3, s[16:19], 0 offen")
    srd(k, 20, 68, 69, 896)
    k("buffer_load_ushort v14, v4, s[20:23], 0 offen")
    srd(k, 20, 70, 71, 896)
    k("buffer_load_ushort v7, v4, s[20:23], 0 offen")
    srd(k, 52, 8, 9, 256)
    k("v_mov_b32 v190, 0")
    k("buffer_load_dword v191, v190, s[52:55], 0 offen sc1")
    srd(k, 20, 10, 11, XT_SZ, XT_OFF)
    srd(k, 24, 10, 11, ZT_SZ, ZT_OFF)
    srd(k, 36, 10, 11, FL_SZ, FL_OFF)
    TB = 75776; XB = 65536
    CSTR = 4160; CH = 37888
    WA = 144
    RA = 152
    GA = 160
    k("s_lshl_b32 s33, s14, 14")
    k("s_mul_i32 s31, s15, 1536")
    k(f"s_add_u32 s31, s31, {TB}")
    k("s_lshl_b32 s30, s28, 6")
    k("v_add_u32 v2, s30, v1")
    k("v_lshlrev_b32 v3, 4, v1")
    with k.sched():
        k("v_and_b32 v16, 7, v1")
        k("v_lshlrev_b32 v17, 7, v1")
        k("v_add_u32 v17, s33, v17")
        for v_ in range(8):
            k(f"v_xor_b32 v{WA + v_}, {v_}, v16")
            k(f"v_lshl_add_u32 v{WA + v_}, v{WA + v_}, 4, v17")
        k("v_bfe_u32 v18, v1, 5, 1")
        k("v_bfe_u32 v19, v1, 3, 1")
        k("v_lshl_add_u32 v18, v18, 2, v19")
        k("v_bfe_u32 v19, v1, 2, 1")
        k("v_bfe_u32 v20, v1, 4, 1")
        k("v_bfe_u32 v21, v1, 1, 1")
        k("v_lshl_add_u32 v20, v20, 1, v21")
        k("v_lshl_add_u32 v19, v19, 2, v20")
        k("v_and_b32 v21, 1, v1")
        k("v_lshlrev_b32 v21, 3, v21")
        k("v_add_u32 v21, s33, v21")
        for j in range(2):
            k(f"v_add_u32 v{22+j}, {2*j}, v18")
            k(f"v_xor_b32 v{24+j}, v19, v{22+j}")
            k(f"v_lshl_add_u32 v{24+j}, v{24+j}, 4, v21")
            k(f"v_lshl_add_u32 v{RA+j}, v{22+j}, 7, v{24+j}")
        for c in range(2):
            b_ = 28 + 20*c
            k(f"v_lshlrev_b32 v{b_+16}, 3, v2")
            k(f"v_sub_u32 v{b_+16}, {2047 - 1024*c}, v{b_+16}")
            for e in range(8): k(f"v_subrev_u32 v{b_ + e}, {e}, v{b_+16}")
            g = GA + 8*c
            for e in range(8): k(f"v_cvt_f32_u32 v{g + e}, v{b_ + e}")
            for e in range(0, 8, 2): k(f"v_cvt_pk_bf16_f32 v{b_ + 8 + e//2}, v{g + e}, v{g + e + 1}")
            for e in range(8):
                if e % 2 == 0: k(f"v_and_b32 v{g + e}, 0xffff, v{b_ + 8 + e//2}")
                else: k(f"v_lshrrev_b32 v{g + e}, 16, v{b_ + 8 + e//2}")
            for e in range(8): k(f"v_add_u32 v{g + e}, {(-0x4300 + 128) & 0xffffffff}, v{g + e}")
            for e in range(8):
                k(f"v_cmp_gt_u32 vcc, 128, v{b_ + e}")
                k(f"v_cndmask_b32 v{g + e}, v{g + e}, v{b_ + e}, vcc")
            for e in range(8): k(f"v_lshl_add_u32 v{g + e}, v{g + e}, 1, s31")
    ACC = 112
    for i in range(16): k(f"v_mov_b32 v{ACC + i}, 0")
    k("s_waitcnt vmcnt(0)")
    stamp(k, 1)
    k("v_readfirstlane_b32 s48, v191")
    k("v_lshlrev_b32 v14, 16, v14")
    k("v_mul_f32 v15, 0x3fb8aa3b, v14")
    k("s_mov_b32 s34, 0x3fb8aa3b")
    k("v_fma_f32 v16, v14, s34, -v15")
    k("s_mov_b32 s34, 0x32a57060")
    k("v_fma_f32 v16, v14, s34, v16")
    k("v_exp_f32 v15, v15")
    k("v_mul_f32 v16, 0x3f317218, v16")
    k("v_fma_f32 v15, v15, v16, v15")
    k("v_cvt_pk_bf16_f32 v15, v15, v15")
    k("v_lshlrev_b32 v15, 16, v15")
    E1, Z2, Z4, E256 = 20, 22, 24, 26
    Q = [28, 30, 32, 34]
    E32 = 36
    TT = [64 + 2*i for i in range(8)]
    tc = [0]
    def T():
        tc[0] += 1
        return TT[tc[0] % len(TT)]
    SA = 80
    SB = 176
    k("s_mov_b32 s35, 0")
    k("s_mov_b32 s34, 16")
    k.label("L_s_item")
    with k.sched():
        for i in range(6):
            k(f"v_lshlrev_b32 v{50 + i}, s34, v{8 + i}")
            k(f"v_and_b32 v{50 + i}, 0xffff0000, v{50 + i}")
        k("v_mul_f32 v18, v15, v50")
        k("v_mul_f32 v18, 0x3fb8aa3b, v18")
        k("v_mul_f32 v19, v15, v51")
        k("v_mul_f32 v19, 0.15915494, v19")
        k("v_mul_f32 v52, v15, v52")
        k("v_mul_f32 v53, v15, v53")
        P0 = 16
        cmul(k, P0, 54, 52, T())
        def E(dst, l):
            tmp = T()
            lit = {1: "1.0", 8: "0x41000000", 16: "0x41800000", 24: "0x41c00000", 32: "0x42000000", 256: "0x43800000"}[l]
            k(f"v_mul_f32 v{tmp}, {lit}, v18")
            k(f"v_mul_f32 v{tmp+1}, {lit}, v19")
            k(f"v_exp_f32 v{tmp}, v{tmp}")
            k(f"v_fract_f32 v{tmp+1}, v{tmp+1}")
            k(f"v_cos_f32 v{dst}, v{tmp+1}")
            k(f"v_sin_f32 v{dst+1}, v{tmp+1}")
            k(f"v_mul_f32 v{dst}, v{dst}, v{tmp}")
            k(f"v_mul_f32 v{dst+1}, v{dst+1}, v{tmp}")
        E(E1, 1); E(E256, 256); E(E32, 32); E(Q[1], 8); E(Q[2], 16); E(Q[3], 24)
        k(f"v_mov_b32 v{Q[0]}, 1.0")
        k(f"v_mov_b32 v{Q[0]+1}, 0")
        cmul(k, Z2, E1, E1, T())
        cmul(k, Z4, Z2, Z2, T())
        def pairA(h, ra, rb):
            p = h >> 3; dw = (h & 7) >> 1
            base = SA + 8*p
            if rb is None:
                k(f"v_cvt_pk_bf16_f32 v{base + dw}, v{ra}, 0")
                k(f"v_cvt_pk_bf16_f32 v{base + 4 + dw}, -v{ra+1}, 0")
            else:
                k(f"v_cvt_pk_bf16_f32 v{base + dw}, v{ra}, v{rb}")
                k(f"v_cvt_pk_bf16_f32 v{base + 4 + dw}, -v{ra+1}, -v{rb+1}")
        def flushA(p):
            base = SA + 8*p
            k(f"ds_write_b128 v{WA + p}, {vr(base, 4)}")
            k(f"ds_write_b128 v{WA + 4 + p}, {vr(base + 4, 4)}")
        def pairB(i):
            p = i >> 1; base = SB + 8*(p & 1); dw = 2*(i & 1)
            k(f"v_cvt_pk_bf16_f32 v{base + dw}, v{Q[0]}, v{Q[1]}")
            k(f"v_cvt_pk_bf16_f32 v{base + dw + 1}, v{Q[2]}, v{Q[3]}")
            k(f"v_cvt_pk_bf16_f32 v{base + 4 + dw}, v{Q[0]+1}, v{Q[1]+1}")
            k(f"v_cvt_pk_bf16_f32 v{base + 4 + dw + 1}, v{Q[2]+1}, v{Q[3]+1}")
            if i & 1:
                k(f"ds_write_b128 v{WA + p}, {vr(base, 4)} offset:8192")
                k(f"ds_write_b128 v{WA + 4 + p}, {vr(base + 4, 4)} offset:8192")
        PE, PO = 38, 40
        U0, U1, S0, S1 = 42, 44, 46, 48
        steps = []
        def low():
            cmul(k, PO, P0, E1, T()); pairA(0, P0, PO)
            yield
            for h in (2, 4, 6):
                cmul(k, PE, PO, E1, T())
                yield
                cmul(k, PO, PE, E1, T()); pairA(h, PE, PO)
                yield
            flushA(0)
            yield
        def high():
            cmul(k, U0, P0, E256, T())
            cmul(k, S0, U0, Z2, T()); pairA(8, U0, S0)
            yield
            cmul(k, U1, U0, E256, T())
            cmul(k, S1, S0, Z2, T())
            yield
            cmul(k, S0, S1, Z2, T()); pairA(10, S1, S0)
            cmul(k, U0, U1, E256, T())
            yield
            cmul(k, S1, U1, Z4, T()); pairA(12, U1, S1)
            cmul(k, U1, U0, E256, T())
            yield
            cmul(k, S0, U0, Z4, T()); pairA(14, U0, S0)
            flushA(1)
            cmul(k, U0, U1, E256, T()); pairA(16, U1, U0)
            yield
            cmul(k, U1, U0, E256, T())
            cmul(k, U0, U1, E256, T()); pairA(18, U1, U0)
            yield
            cmul(k, U1, U0, E256, T()); pairA(20, U1, None)
            k(f"v_mov_b32 v{SA + 16 + 3}, 0\n v_mov_b32 v{SA + 16 + 7}, 0")
            flushA(2)
            yield
        gl, gh = low(), high()
        pairB(0)
        for i in range(1, 8):
            for c in range(4): cmul(k, Q[c], Q[c], E32, T())
            pairB(i)
            next(gl, None); next(gh, None)
        for _ in gl: pass
        for _ in gh: pass
    k("s_waitcnt lgkmcnt(0)")
    for half in range(2):
        for ks in range(4*half, 4*half + 4):
            fa = 64 + 8 * (ks % 4)
            k(f"ds_read_b64_tr_b16 {vr(fa,2)}, v{RA} offset:{1024*ks}")
            k(f"ds_read_b64_tr_b16 {vr(fa+2,2)}, v{RA+1} offset:{1024*ks}")
            k(f"ds_read_b64_tr_b16 {vr(fa+4,2)}, v{RA} offset:{1024*ks + 8192}")
            k(f"ds_read_b64_tr_b16 {vr(fa+6,2)}, v{RA+1} offset:{1024*ks + 8192}")
        for ks in range(4*half, 4*half + 4):
            fa = 64 + 8 * (ks % 4)
            k(f"s_waitcnt lgkmcnt({4*(3 - (ks % 4))})")
            k(f"v_mfma_f32_32x32x16_bf16 {vr(ACC,16)}, {vr(fa,4)}, {vr(fa+4,4)}, {vr(ACC,16)}")
    k("s_mov_b32 s34, 0")
    k("s_add_u32 s35, s35, 1")
    k("s_cmp_lt_u32 s35, 2")
    k("s_cbranch_scc1 L_s_item")
    stamp(k, 2)
    k("s_mul_i32 s30, s15, 3072")
    k(f"s_add_u32 s30, s30, {XB}")
    k("v_add_u32 v4, s30, v3")
    k("s_cmp_eq_u32 s28, 0")
    k("s_cbranch_scc1 L_kg_a")
    k("s_nop 7\n s_nop 3")
    for q in range(3): k(f"ds_write_b128 v4, {vr(ACC + 4*q, 4)} offset:{1024*q}")
    k("s_waitcnt lgkmcnt(0)")
    k.label("L_kg_a")
    k("s_cmp_lg_u32 s48, 0")
    k("s_cbranch_scc1 L_s_haven")
    get_nonce(k, 52, 48, 90)
    k.label("L_s_haven")
    k("s_barrier")
    k("s_cmp_eq_u32 s28, 0")
    k("s_cbranch_scc0 L_kg_b")
    for q in range(3): k(f"ds_read_b128 {vr(64 + 4*q, 4)}, v4 offset:{1024*q}")
    k("v_and_b32 v6, 31, v1")
    k("v_lshrrev_b32 v12, 5, v1")
    k("v_lshlrev_b32 v8, 4, v6")
    k("v_lshl_add_u32 v8, v12, 3, v8")
    k("v_add_u32 v8, s31, v8")
    k("v_lshlrev_b32 v9, 3, v6\n v_add_u32 v9, s31, v9")
    k("v_lshlrev_b32 v10, 2, v6\n v_add_u32 v10, s31, v10")
    k("v_lshlrev_b32 v11, 1, v6\n v_add_u32 v11, s31, v11")
    k("s_waitcnt lgkmcnt(0)")
    for r in range(12): k(f"v_add_f32 v{ACC + r}, v{ACC + r}, v{64 + r}")
    for j in range(6): k(f"v_cvt_pk_bf16_f32 v{80 + j}, v{ACC + 2*j}, v{ACC + 2*j + 1}")
    k("ds_write_b64 v8, v[80:81]")
    k("s_mov_b64 s[40:41], exec")
    k("s_mov_b32 exec_lo, -1\n s_mov_b32 exec_hi, 0")
    k("ds_write_b64 v9, v[82:83] offset:512")
    k("ds_write_b16 v11, v84 offset:1024")
    k("ds_write_b16_d16_hi v11, v84 offset:1088")
    k("ds_write_b16 v11, v85 offset:1152")
    k("ds_write_b16_d16_hi v11, v85 offset:1216")
    k("s_mov_b32 exec_lo, 0\n s_mov_b32 exec_hi, -1")
    k("ds_write_b32 v10, v82 offset:768")
    k("ds_write_b32 v10, v83 offset:896")
    k("ds_write_b16 v11, v84 offset:1280")
    k("s_mov_b64 exec, s[40:41]")
    k("s_waitcnt lgkmcnt(0)")
    k.label("L_kg_b")
    k("s_xor_b32 s46, s14, 1")
    wait_flags(k, 36, FL_LN, 4, 64, 48, 90, 49, wave0=46)
    k("s_barrier")
    k("v_lshrrev_b32 v8, 2, v2")
    k("v_mul_u32_u24 v8, 28672, v8")
    k("v_and_b32 v9, 3, v2")
    k("v_lshl_add_u32 v8, v9, 4, v8")
    k("s_lshl_b32 s30, s29, 6")
    k("v_add_u32 v8, s30, v8")
    k(f"v_add_u32 v9, {32*28672}, v8")
    k("buffer_load_dwordx4 v[16:19], v8, s[20:23], 0 offen sc1")
    k("buffer_load_dwordx4 v[20:23], v9, s[20:23], 0 offen sc1")
    k(f"s_mul_i32 s33, s15, {CH}")
    k(f"s_add_u32 s34, s33, {8*CSTR}")
    k("s_barrier")
    stamp(k, 3)
    for c in range(2):
        for e in range(8):
            if e % 2 == 0: k(f"ds_read_u16 v{64 + 8*c + e//2}, v{GA + 8*c + e}")
            else: k(f"ds_read_u16_d16_hi v{80 + 4*c + e//2}, v{GA + 8*c + e}")
    for i in range(4): k(f"v_mov_b32 v{28 + i}, 0")
    k("v_add_u32 v25, s34, v3")
    k("v_subrev_u32 v26, 32, v1")
    k(f"v_mul_u32_u24 v26, {CSTR}, v26")
    k("v_add_u32 v26, s33, v26")
    k("v_add_u32 v26, 4096, v26")
    k("v_cmp_gt_u32 vcc, 32, v1")
    k("v_cndmask_b32 v25, v26, v25, vcc")
    k("v_lshlrev_b32 v27, 4, v2")
    k("v_add_u32 v27, s33, v27")
    k("s_waitcnt lgkmcnt(0)")
    for c in range(2):
        for j in range(4):
            k(f"v_and_b32 v{80 + 4*c + j}, 0xffff0000, v{80 + 4*c + j}")
            k(f"v_or_b32 v{64 + 8*c + j}, v{64 + 8*c + j}, v{80 + 4*c + j}")
    k("ds_write_b128 v27, v[64:67]")
    k("ds_write_b128 v27, v[72:75] offset:2048")
    k("v_cmp_gt_u32 vcc, 40, v1")
    k("s_and_saveexec_b64 s[40:41], vcc")
    k("ds_write_b128 v25, v[28:31]")
    k("s_mov_b64 exec, s[40:41]")
    k("s_waitcnt lgkmcnt(0)")
    k("s_barrier")
    k("ds_read_b128 v[68:71], v27 offset:16")
    k("ds_read_b128 v[76:79], v27 offset:2064")
    k("v_lshlrev_b32 v10, 4, v2")
    k("v_add_u32 v10, s34, v10")
    k("s_waitcnt vmcnt(0)")
    k("ds_write_b128 v10, v[16:19] offset:512")
    k("ds_write_b128 v10, v[20:23] offset:2560")
    k("s_waitcnt lgkmcnt(2)")
    for c in range(2):
        Dr = 64 + 8*c
        Ee = 96 + 24*c; Eo = Ee + 8; Do = Ee + 16
        with k.sched():
            for i in range(7): k(f"v_alignbit_b32 v{Ee + i}, v{Dr + i + 1}, v{Dr + i}, 16")
            for i in range(6): k(f"v_alignbit_b32 v{Eo + i}, v{Dr + i + 2}, v{Dr + i + 1}, 16")
            for i in range(6): k(f"v_mov_b32 v{Do + i}, v{Dr + i + 1}")
            src = {1: Ee, 2: Do, 3: Eo, 4: Dr + 2, 5: Ee + 2, 6: Do + 2, 7: Eo + 2}
            for s_ in range(1, 8):
                k(f"ds_write_b128 v27, {vr(src[s_], 4)} offset:{s_*CSTR + 2048*c}")
    stamp(k, 4)
    with k.sched():
        k("v_and_b32 v10, 7, v1")
        k("v_sub_u32 v10, 7, v10")
        k(f"v_mul_u32_u24 v10, {CSTR}, v10")
        k("v_bfe_u32 v11, v1, 3, 1")
        k("v_bfe_u32 v12, v1, 5, 1")
        k("v_bfe_u32 v13, v1, 4, 1")
        k("v_lshl_add_u32 v14, v12, 1, v11")
        k("v_sub_u32 v14, v13, v14")
        k("v_lshlrev_b32 v14, 4, v14")
        k("v_add_u32 v10, v10, v14")
        k(f"s_add_u32 s30, s33, {255*16 - 64*56}")
        k("s_lshl_b32 s31, s28, 8")
        k("s_sub_u32 s30, s30, s31")
        k("v_add_u32 v4, s30, v10")
        k("v_and_b32 v15, 15, v1")
        k("v_sub_u32 v15, v15, v12")
        k("v_lshlrev_b32 v15, 5, v15")
        k("v_lshl_add_u32 v15, v13, 4, v15")
        k("s_add_u32 s32, s34, 512")
        k("s_sub_u32 s32, s32, s31")
        k("v_add_u32 v5, s32, v15")
    ACC = 32
    FA = [64, 128]
    for i in range(32): k(f"v_mov_b32 v{ACC + i}, 0")
    k("s_waitcnt lgkmcnt(0)")
    k("s_barrier")
    stamp(k, 5)
    def rd(fs, p1):
        k(f"ds_read_b128 {vr(fs + 4*p1, 4)}, v4 offset:{512*(7 - p1)}")
        k(f"ds_read_b128 {vr(fs + 32 + 4*p1, 4)}, v5 offset:{512*p1}")
    def adv():
        k("v_subrev_u32 v4, 64, v4")
        k("v_subrev_u32 v5, 64, v5")
    def mm(fs, nxt):
        n = 0
        for p1 in range(8):
            for be in range(8 - p1):
                c = ACC + 4*(p1 + be)
                k(f"v_mfma_f32_16x16x32_bf16 {vr(c,4)}, {vr(fs + 4*p1,4)}, {vr(fs + 32 + 4*be,4)}, {vr(c,4)}")
                n += 1
                if nxt is not None and n % 4 == 0 and n // 4 <= 8: rd(nxt, n // 4 - 1)
        if nxt is not None: adv()
    for p1 in range(8): rd(FA[0], p1)
    adv()
    k("s_mov_b32 s35, 0")
    k.label("L_cv_loop")
    k("s_waitcnt lgkmcnt(0)")
    mm(FA[0], FA[1])
    k("s_waitcnt lgkmcnt(0)")
    mm(FA[1], FA[0])
    k("s_add_u32 s35, s35, 1")
    k("s_cmp_lt_u32 s35, 2")
    k("s_cbranch_scc1 L_cv_loop")
    stamp(k, 6)
    k("s_setprio 3")
    k("s_waitcnt lgkmcnt(0)")
    k("s_barrier")
    k("s_lshl_b32 s30, s14, 12")
    k("v_add_u32 v6, s30, v3")
    k("s_xor_b32 s31, s14, 1")
    k("s_lshl_b32 s31, s31, 12")
    k("v_add_u32 v11, s31, v3")
    k("s_cmp_eq_u32 s28, 0")
    k("s_cbranch_scc0 L_cv_w1")
    for q in range(4): k(f"ds_write_b128 v6, {vr(ACC + 16 + 4*q, 4)} offset:{1024*q}")
    k("s_branch L_cv_w2")
    k.label("L_cv_w1")
    for q in range(4): k(f"ds_write_b128 v6, {vr(ACC + 4*q, 4)} offset:{1024*q}")
    for r in range(16): k(f"v_mov_b32 v{ACC + r}, v{ACC + 16 + r}")
    k.label("L_cv_w2")
    k("v_and_b32 v8, 15, v1")
    k("v_lshlrev_b32 v8, 5, v8")
    k("v_lshrrev_b32 v9, 4, v1")
    k("v_lshl_add_u32 v8, v9, 3, v8")
    k("s_lshl_b32 s30, s28, 11")
    k("s_add_u32 s30, s30, s34")
    k("s_add_u32 s30, s30, 512")
    k("v_add_u32 v9, s30, v8")
    for q in range(4): k(f"ds_read_b64 {vr(80 + 2*q, 2)}, v9 offset:{512*q}")
    k("v_lshlrev_b32 v7, 16, v7")
    k("s_waitcnt lgkmcnt(0)")
    k("s_barrier")
    stamp(k, 7)
    for q in range(4): k(f"ds_read_b128 {vr(64 + 4*q, 4)}, v11 offset:{1024*q}")
    k("s_waitcnt lgkmcnt(0)")
    with k.sched():
        for r in range(16): k(f"v_add_f32 v{ACC + r}, v{ACC + r}, v{64 + r}")
        for q in range(4):
            for hh in range(2):
                src = 80 + 2*q + hh
                t = 96 + 4*q + 2*hh
                k(f"v_lshlrev_b32 v{t}, 16, v{src}")
                k(f"v_and_b32 v{t+1}, 0xffff0000, v{src}")
                k(f"v_fmac_f32 v{ACC + 4*q + 2*hh}, v{t}, v7")
                k(f"v_fmac_f32 v{ACC + 4*q + 2*hh + 1}, v{t+1}, v7")
        for j in range(8): k(f"v_cvt_pk_bf16_f32 v{112 + j}, v{ACC + 2*j}, v{ACC + 2*j + 1}")
    k("s_lshl_b32 s30, s14, 11")
    k("s_add_u32 s30, s30, 16384")
    k("v_add_u32 v9, s30, v8")
    for q in range(4): k(f"ds_write_b64 v9, {vr(112 + 2*q, 2)} offset:{512*q}")
    k("v_add_u32 v9, s30, v3")
    k("s_waitcnt lgkmcnt(0)")
    k("ds_read_b128 v[72:75], v9")
    k("ds_read_b128 v[76:79], v9 offset:1024")
    k("s_lshl_b32 s30, s29, 12")
    k("s_lshl_b32 s31, s28, 11")
    k("s_add_u32 s30, s30, s31")
    k("s_waitcnt lgkmcnt(0)")
    k("buffer_store_dwordx4 v[72:75], v3, s[24:27], s30 offen sc1")
    k("buffer_store_dwordx4 v[76:79], v3, s[24:27], s30 offen offset:1024 sc1")
    stamp(k, 9)
    k("s_lshl_b32 s30, s3, 4")
    signal(k, 36, 30, 48, 90, FL_Z)
    stamp(k, 10)
    stamp_flush(k, 0, 8)
    k("s_endpgm")

def role_g2(k):
    k("s_load_dwordx2 s[6:7], s[0:1], 96")
    k("s_setprio 1")
    k("s_and_b32 s10, s3, 7")
    k("s_lshr_b32 s11, s3, 3")
    k("s_and_b32 s30, s11, 3")
    k("s_lshl_b32 s13, s10, 2")
    k("s_add_u32 s12, s30, s13")
    k("s_lshr_b32 s13, s11, 2")
    k("s_mul_i32 s45, s30, 7\n s_lshl_b32 s31, s13, 2\n s_add_u32 s45, s45, s31\n s_cmp_ge_u32 s45, 28\n s_cselect_b32 s31, 28, 0\n s_sub_u32 s45, s45, s31")
    if "rot2" not in EXP: k("s_mov_b32 s45, 0")
    k("v_and_b32 v1, 63, v0")
    k("v_lshrrev_b32 v2, 6, v0")
    k("v_readfirstlane_b32 s14, v2")
    k("v_lshlrev_b32 v3, 4, v1")
    k("s_and_b32 s28, s14, 1")
    k("s_lshr_b32 s29, s14, 1")
    k("s_mul_i32 s30, s14, 28")
    k("s_add_u32 s30, s30, s45")
    k("s_mul_i32 s31, s30, 14\n s_lshl_b32 s32, s13, 1\n s_add_u32 s31, s31, s32")
    k("s_add_u32 s40, s31, s28\n s_lshl_b32 s40, s40, 10")
    k("s_xor_b32 s32, s28, 1\n s_add_u32 s41, s31, s32\n s_lshl_b32 s41, s41, 10")
    k("s_lshl_b32 s32, s12, 1")
    k("s_add_u32 s33, s32, s29\n s_mul_i32 s33, s33, 112\n s_add_u32 s42, s33, s30\n s_lshl_b32 s42, s42, 10")
    k("s_xor_b32 s33, s29, 1\n s_add_u32 s33, s33, s32\n s_mul_i32 s33, s33, 112\n s_add_u32 s43, s33, s30\n s_lshl_b32 s43, s43, 10")
    k("s_waitcnt lgkmcnt(0)")
    srd(k, 52, 8, 9, W2F_SZ, W2F_OFF)
    k("s_lshr_b32 s30, s12, 1\n s_lshl_b32 s30, s30, 8\n s_add_u32 s30, s30, %d" % FL_H)
    wait_flags2(k, 60, [(FL_W2, 56), ((30,), 14)], 48, 8, 49, 14)
    k("s_barrier")
    stamp(k, 6)
    ACC = 16; FR = 80; DEPTH = 4; NK = 28
    def loads(u):
        f = FR + 16 * u
        n0 = len(k.lines)
        k(f"buffer_load_dwordx4 {vr(f,4)}, v3, s[52:55], s40 offen sc1")
        k(f"buffer_load_dwordx4 {vr(f+8,4)}, v3, s[24:27], s42 offen sc1")
        k(f"buffer_load_dwordx4 {vr(f+4,4)}, v3, s[52:55], s41 offen sc1")
        k(f"buffer_load_dwordx4 {vr(f+12,4)}, v3, s[24:27], s43 offen sc1")
        if "nosc1ld" in EXP:
            for i in range(n0, len(k.lines)): k.lines[i] = k.lines[i].replace(" sc1", "")
        k("s_add_u32 s45, s45, 1")
        k("s_cmp_eq_u32 s45, 28")
        k("s_cselect_b32 s46, %d, 0" % (28 * 14336))
        k("s_cselect_b32 s47, %d, 0" % (28 * 1024))
        k("s_cselect_b32 s45, 0, s45")
        k("s_sub_u32 s46, 14336, s46")
        k("s_sub_u32 s47, 1024, s47")
        k("s_add_u32 s40, s40, s46\n s_add_u32 s41, s41, s46\n s_add_u32 s42, s42, s47\n s_add_u32 s43, s43, s47")
    for u in range(DEPTH): loads(u)
    srd(k, 16, 4, 5, 2048 * 896)
    srd(k, 20, 6, 7, 2048 * 896)
    srd(k, 36, 8, 9, RS_SZ, RS_OFF)
    srd(k, 56, 8, 9, ZT_SZ, ZT_OFF)
    RED = 0; ZL = 49152; XL = 57344; OL = 65536
    for i in range(64): k(f"v_mov_b32 v{ACC + i}, 0")
    def step(u, more, wait):
        k(f"s_waitcnt vmcnt({wait})")
        f = FR + 16 * u
        for ti in range(2):
            for di in range(2):
                c = ACC + (2*ti + di) * 16
                k(f"v_mfma_f32_32x32x16_bf16 {vr(c,16)}, {vr(f + 4*di,4)}, {vr(f + 8 + 4*ti,4)}, {vr(c,16)}")
        if more: loads(u)
    k("s_mov_b32 s44, 0")
    k.label("L_g2_loop")
    for u in range(DEPTH): step(u, True, 12)
    k("s_add_u32 s44, s44, 1")
    k("s_cmp_lt_u32 s44, 6")
    k("s_cbranch_scc1 L_g2_loop")
    stamp(k, 7)
    with k.sched():
        k("v_lshrrev_b32 v4, 3, v1")
        k("s_lshl_b32 s34, s14, 4")
        k("v_add_u32 v4, s34, v4")
        k("v_lshrrev_b32 v5, 1, v4")
        k("v_xor_b32 v5, v5, v1")
        k("v_and_b32 v5, 7, v5")
        k("s_lshl_b32 s35, s12, 6")
        k("v_add_u32 v6, s35, v4")
        k("v_mul_u32_u24 v6, 896, v6")
        k("v_lshl_add_u32 v6, v5, 4, v6")
        k("s_lshl_b32 s36, s13, 7") if False else None
        k("s_lshl_b32 s30, s13, 7")
        k("v_add_u32 v6, s30, v6")
        k("v_xor_b32 v7, 64, v6")
        k(f"v_add_u32 v7, {8*896}, v7")
        k("s_lshl_b32 s31, s13, 6")
        k("v_add_u32 v8, s31, v4")
        k("v_lshlrev_b32 v8, 12, v8")
        k("v_and_b32 v9, 7, v1")
        k("v_lshl_add_u32 v8, v9, 4, v8")
        k("s_lshl_b32 s32, s12, 7")
        k("v_add_u32 v8, s32, v8")
        k(f"v_add_u32 v9, {8*4096}, v8")
        k("v_and_b32 v10, 31, v1")
        k("s_lshl_b32 s33, s29, 5")
        k("s_add_u32 s33, s33, s35")
        k("v_add_u32 v10, s33, v10")
        k("v_lshlrev_b32 v10, 2, v10")
    k("s_lshl_b32 s34, s14, 11")
    k(f"s_add_u32 m0, s34, {XL}")
    k("buffer_load_dwordx4 v6, s[16:19], 0 offen lds")
    k(f"s_add_u32 m0, s34, {XL + 1024}")
    k("buffer_load_dwordx4 v7, s[16:19], 0 offen lds")
    for u in range(DEPTH): step(u, False, 2 + 4*(3 - u))
    stamp(k, 9)
    k("s_lshl_b32 s30, s13, 9\n s_add_u32 s30, s30, %d" % FL_Z)
    wait_flags2(k, 60, [((30,), 32), (FL_LN, 64)], 48, 144, 49, 14)
    k("s_barrier")
    stamp(k, 10)
    k("buffer_load_dwordx4 v[148:151], v8, s[56:59], 0 offen sc1")
    k("buffer_load_dwordx4 v[152:155], v9, s[56:59], 0 offen sc1")
    k("buffer_load_dword v11, v10, s[36:39], 0 offen sc1")
    k("s_nop 7")
    for tp in range(1, 4):
        k(f"s_xor_b32 s34, s14, {tp}")
        k("s_mul_i32 s34, s34, 12288")
        k(f"v_add_u32 v4, s34, v3")
        for q in range(4):
            k(f"ds_write_b128 v4, {vr(ACC + 16*tp + 4*q, 4)} offset:{RED + 4096*(tp-1) + 1024*q}")
    with k.sched():
        k("v_lshrrev_b32 v5, 5, v1")
        k("v_bfe_u32 v6, v1, 2, 2")
        k("v_lshl_add_u32 v5, v5, 2, v6")
        k("v_lshlrev_b32 v5, 7, v5")
        k("v_bfe_u32 v6, v1, 4, 1")
        k("v_lshl_add_u32 v5, v6, 5, v5")
        k("v_and_b32 v7, 3, v1")
        k("v_lshl_add_u32 v5, v7, 3, v5")
        k("s_lshl_b32 s46, s28, 12\n s_lshl_b32 s47, s29, 6\n s_add_u32 s46, s46, s47")
        k("v_add_u32 v5, s46, v5")
        k("v_and_b32 v8, 31, v1")
        k("s_lshl_b32 s30, s29, 5")
        k("v_add_u32 v8, s30, v8")
        k("v_bfe_u32 v9, v8, 1, 3")
        k("s_lshl_b32 s31, s28, 2")
        k("v_xor_b32 v9, s31, v9")
        k("v_lshlrev_b32 v10, 7, v8")
        k("v_lshrrev_b32 v12, 5, v1")
        k("v_lshl_add_u32 v10, v12, 3, v10")
        for q in range(4):
            k(f"v_xor_b32 v{96+q}, {q}, v9")
            k(f"v_lshl_add_u32 v{96+q}, v{96+q}, 4, v10")
        k("s_mul_i32 s34, s14, 12288")
        k("v_add_u32 v4, s34, v3")
        k("s_lshl_b32 s35, s14, 11")
        k(f"s_add_u32 s35, s35, {OL}")
        k("v_and_b32 v13, 31, v1")
        k("v_bfe_u32 v14, v13, 1, 2")
        k("v_lshlrev_b32 v13, 6, v13")
        k("v_lshl_add_u32 v13, v12, 3, v13")
        k("v_add_u32 v13, s35, v13")
        for q in range(4):
            k(f"v_xor_b32 v{100+q}, {q}, v14")
            k(f"v_lshl_add_u32 v{100+q}, v{100+q}, 4, v13")
        k("v_add_u32 v104, s35, v3")
        k("v_bfe_u32 v105, v1, 3, 2")
        k("v_xor_b32 v105, v105, v1")
        k("v_and_b32 v105, 3, v105")
        k("v_lshrrev_b32 v106, 2, v1")
        k("s_lshl_b32 s32, s12, 6\n s_add_u32 s32, s32, s30")
        k("v_add_u32 v106, s32, v106")
        k("v_mul_u32_u24 v106, 896, v106")
        k("v_lshl_add_u32 v106, v105, 4, v106")
        k("s_lshl_b32 s33, s13, 7\n s_lshl_b32 s40, s28, 6\n s_add_u32 s33, s33, s40")
        k("v_add_u32 v106, s33, v106")
        k(f"v_add_u32 v107, {16*896}, v106")
    k("s_lshl_b32 s34, s14, 11")
    k(f"s_add_u32 s34, s34, {ZL}")
    k("v_add_u32 v12, s34, v3")
    k("s_waitcnt vmcnt(0)")
    k("ds_write_b128 v12, v[148:151]")
    k("ds_write_b128 v12, v[152:155] offset:1024")
    k("s_waitcnt lgkmcnt(0)")
    k("s_barrier")
    for sl in range(3):
        for q in range(4):
            k(f"ds_read_b128 {vr(112 + 16*sl + 4*q, 4)}, v4 offset:{RED + 4096*sl + 1024*q}")
    for q in range(4):
        k(f"ds_read_b64_tr_b16 {vr(80 + 2*q, 2)}, v5 offset:{ZL + 1024*q}")
    k("s_waitcnt lgkmcnt(4)")
    for q in range(4):
        k(f"ds_read_b64 {vr(88 + 2*q, 2)}, v{96+q} offset:{XL}")
    with k.sched():
        for r in range(0, 16, 2):
            k(f"v_pk_add_f32 {vr(ACC + r,2)}, {vr(ACC + r,2)}, {vr(112 + r,2)}")
            k(f"v_pk_add_f32 {vr(128 + r,2)}, {vr(128 + r,2)}, {vr(144 + r,2)}")
            k(f"v_pk_add_f32 {vr(ACC + r,2)}, {vr(ACC + r,2)}, {vr(128 + r,2)}")
    k("s_waitcnt lgkmcnt(0)")
    k("v_mov_b32 v10, v11")
    with k.sched():
        for j in range(8):
            a = 112 + 2*j; b = 128 + 2*j
            k(f"v_lshlrev_b32 v{a}, 16, v{88 + j}")
            k(f"v_and_b32 v{a+1}, 0xffff0000, v{88 + j}")
            k(f"v_lshlrev_b32 v{b}, 16, v{80 + j}")
            k(f"v_and_b32 v{b+1}, 0xffff0000, v{80 + j}")
            k(f"v_pk_add_f32 {vr(a,2)}, {vr(a,2)}, {vr(b,2)}")
            k(f"v_pk_fma_f32 {vr(a,2)}, {vr(ACC + 2*j,2)}, v[10:11], {vr(a,2)}")
            k(f"v_cvt_pk_bf16_f32 v{144 + j}, v{a}, v{a+1}")
    for q in range(4):
        k(f"ds_write_b64 v{100+q}, {vr(144 + 2*q, 2)}")
    k("s_waitcnt lgkmcnt(0)")
    k("ds_read_b128 v[112:115], v104")
    k("ds_read_b128 v[116:119], v104 offset:1024")
    k("s_waitcnt lgkmcnt(0)")
    k("buffer_store_dwordx4 v[112:115], v106, s[20:23], 0 offen")
    k("buffer_store_dwordx4 v[116:119], v107, s[20:23], 0 offen")
    stamp(k, 11)
    stamp_flush(k, 0, 8)
    k("s_endpgm")

def kd(name, vgpr, sgpr=102):
    return f""".amdhsa_kernel {name}
  .amdhsa_next_free_vgpr {vgpr}
  .amdhsa_next_free_sgpr {sgpr}
  .amdhsa_accum_offset {vgpr}
  .amdhsa_group_segment_fixed_size 0
  .amdhsa_kernarg_size 120
  .amdhsa_user_sgpr_count 2
  .amdhsa_user_sgpr_kernarg_segment_ptr 1
  .amdhsa_system_sgpr_workgroup_id_x 1
.end_amdhsa_kernel
"""

def header(launches):
    h = open("cdna_kernels/" + NAME + ".s.ref").read().split("; Override")[0]
    for (kn, g, b, lds) in launches:
        if len(launches) == 1 and PLAIN: h += f"; @launch grid=({g},1,1) block=({b},1,1) lds={lds}\n"
        else: h += f"; @launch kernel={kn} grid=({g},1,1) block=({b},1,1) lds={lds}\n"
    h += '.amdgcn_target "amdgcn-amd-amdhsa--gfx950"\n.text\n'
    return h

def kern_text(name, k):
    return f".globl {name}\n.p2align 8\n.type {name},@function\n{name}:\n" + k.text()

def main(path):
    K1 = NAME + "_kernel"
    k1 = Kern()
    k1("s_cmp_lt_u32 s2, 224")
    k1("s_cbranch_scc1 L_g1")
    k1("s_cmp_lt_u32 s2, 256")
    k1("s_cbranch_scc1 L_lna")
    k1("s_cmp_lt_u32 s2, 480")
    k1("s_cbranch_scc1 L_s")
    k1("s_cmp_lt_u32 s2, 512")
    k1("s_cbranch_scc1 L_lnb")
    k1("s_endpgm")
    k1.label("L_lna")
    k1("s_sub_u32 s3, s2, 224")
    k1("s_branch L_ln")
    k1.label("L_lnb")
    k1("s_sub_u32 s3, s2, 448")
    k1.label("L_ln")
    role_ln(k1)
    k1.label("L_g1")
    k1("s_mov_b32 s3, s2")
    role_g1(k1)
    k1.label("L_s")
    k1("s_sub_u32 s3, s2, 256")
    role_s(k1)
    launches = [(K1, 512, 256, 81920)]
    txt = header(launches)
    txt += kern_text(K1, k1)
    txt += '.section .rodata,"a"\n.p2align 6\n' + kd(K1, 192)
    open(path, "w").write(txt)

if __name__ == "__main__":
    for a in list(sys.argv):
        if a.startswith("--exp="):
            EXP = a[6:].split(","); sys.argv.remove(a)
    if "--plain" in sys.argv:
        PLAIN = True; sys.argv.remove("--plain")
    if "--stamp" in sys.argv:
        STAMP = True; sys.argv.remove("--stamp")
    main(sys.argv[1] if len(sys.argv) > 1 else "cdna_kernels/" + NAME + ".s")
```

```python
import sys
from asmlib import Kern

NAME = "parallel_sum__ssm_conv_s4__dense_activation_relu__prompt"

XT_OFF = 0x000000
RS_OFF = 0x1C0000
HF_OFF = 0x400000
W2F_OFF = 0xC00000
ZT_OFF = 0xE00000
FL_OFF = 0x1000000
TS_OFF = 0x1100000
XT_SZ = 64 * 448 * 64
RS_SZ = 2048 * 4
HF_SZ = 64 * 112 * 1024
W2F_SZ = 112 * 14 * 1024
ZT_SZ = 448 * 4096
FL_SZ = 0x10000
FL_LN = 0
FL_W2 = 4096
FL_H = 5120
FL_Z = 9216

STAMP = False
PRIO = [3, 1, 0]
PLAIN = False
EXP = []
SPIN_LIMIT = 200000

def srd(k, d, lo, hi, size, off=0):
    if off:
        k(f"s_add_u32 s{d}, s{lo}, {off}")
        k(f"s_addc_u32 s{d+1}, s{hi}, 0")
    else:
        k(f"s_mov_b32 s{d}, s{lo}")
        k(f"s_mov_b32 s{d+1}, s{hi}")
    k(f"s_mov_b32 s{d+2}, {size}")
    k(f"s_mov_b32 s{d+3}, 0x00020000")

def vr(a, n=1):
    return f"v{a}" if n == 1 else f"v[{a}:{a+n-1}]"

def stamp(k, i):
    if not STAMP: return
    if i == 8: k("s_memrealtime s[96:97]")
    else:
        j = i if i < 8 else i - 1
        k(f"s_memtime s[{72+2*j}:{73+2*j}]")

def stamp_flush(k, kern_idx, n):
    if not STAMP: return
    k("s_memrealtime s[98:99]")
    k("s_waitcnt lgkmcnt(0)")
    k("s_load_dwordx2 s[68:69], s[0:1], 112")
    k("s_waitcnt lgkmcnt(0)")
    k(f"s_add_u32 s64, s68, {TS_OFF + kern_idx * 0x10000}")
    k("s_addc_u32 s65, s69, 0")
    k("s_mov_b32 s66, 0x10000")
    k("s_mov_b32 s67, 0x00020000")
    k("s_lshl_b32 s68, s2, 6")
    k("v_cmp_eq_u32 vcc, 0, v0")
    k("s_and_saveexec_b64 s[70:71], vcc")
    k("v_mov_b32 v1, s68")
    for i in range(12):
        k(f"v_mov_b32 v2, s{72+2*i}")
        k(f"buffer_store_dword v2, v1, s[64:67], 0 offen offset:{4*i}")
    k("s_getreg_b32 s69, hwreg(HW_REG_HW_ID)")
    k("v_mov_b32 v2, s69")
    k("buffer_store_dword v2, v1, s[64:67], 0 offen offset:48")
    k("s_getreg_b32 s69, hwreg(HW_REG_XCC_ID)")
    k("v_mov_b32 v2, s69")
    k("buffer_store_dword v2, v1, s[64:67], 0 offen offset:52")
    k("v_mov_b32 v2, s96")
    k("buffer_store_dword v2, v1, s[64:67], 0 offen offset:56")
    k("v_mov_b32 v2, s98")
    k("buffer_store_dword v2, v1, s[64:67], 0 offen offset:60")
    k("s_mov_b64 exec, s[70:71]")

_uid = [0]
def uid(p):
    _uid[0] += 1
    return f"L_{p}{_uid[0]}"

def get_nonce(k, dbg_srd, sdst, vtmp):
    L = uid("nonce"); E = uid("nonce_e")
    k(f"v_mov_b32 v{vtmp}, 0")
    k(f"s_mov_b32 s{sdst+1}, 0")
    k.label(L)
    k(f"buffer_load_dword v{vtmp+1}, v{vtmp}, s[{dbg_srd}:{dbg_srd+3}], 0 offen sc1")
    k("s_waitcnt vmcnt(0)")
    k(f"v_readfirstlane_b32 s{sdst}, v{vtmp+1}")
    k("s_nop 3")
    k(f"s_cmp_lg_u32 s{sdst}, 0")
    k(f"s_cbranch_scc1 {E}")
    k(f"s_add_u32 s{sdst+1}, s{sdst+1}, 1")
    k(f"s_cmp_lt_u32 s{sdst+1}, {SPIN_LIMIT}")
    k("s_sleep 1")
    k(f"s_cbranch_scc1 {L}")
    k.label(E)

def wait_flags(k, fl_srd, base_off, stride_shift, nflags, snonce, vtmp, scnt, wave0=None):
    L = uid("wf"); E = uid("wf_e")
    if wave0 is not None:
        k(f"s_cmp_lg_u32 s{wave0}, 0")
        k(f"s_cbranch_scc1 {E}")
    k(f"v_and_b32 v{vtmp}, 63, v0")
    k(f"v_min_u32 v{vtmp}, {nflags - 1}, v{vtmp}")
    k(f"v_lshlrev_b32 v{vtmp}, {stride_shift}, v{vtmp}")
    k(f"v_add_u32 v{vtmp}, {base_off}, v{vtmp}") if isinstance(base_off, int) else k(f"v_add_u32 v{vtmp}, s{base_off[0]}, v{vtmp}")
    k(f"s_mov_b32 s{scnt}, 0")
    k.label(L)
    k(f"buffer_load_dword v{vtmp+1}, v{vtmp}, s[{fl_srd}:{fl_srd+3}], 0 offen sc1")
    k("s_waitcnt vmcnt(0)")
    k(f"v_cmp_ne_u32 vcc, s{snonce}, v{vtmp+1}")
    k("s_nop 4")
    k(f"s_cbranch_vccz {E}")
    k(f"s_add_u32 s{scnt}, s{scnt}, 1")
    k(f"s_cmp_lt_u32 s{scnt}, {SPIN_LIMIT}")
    k("s_sleep 2")
    k(f"s_cbranch_scc1 {L}")
    k.label(E)

def signal(k, fl_srd, soff, snonce, vtmp, imm=0):
    k("s_waitcnt vmcnt(0)")
    k("s_barrier")
    k("v_cmp_eq_u32 vcc, 0, v0")
    k("s_and_saveexec_b64 s[44:45], vcc")
    k(f"s_add_u32 s{soff}, s{soff}, {imm}")
    k(f"v_mov_b32 v{vtmp}, s{soff}")
    k(f"v_mov_b32 v{vtmp+1}, s{snonce}")
    k(f"buffer_store_dword v{vtmp+1}, v{vtmp}, s[{fl_srd}:{fl_srd+3}], 0 offen sc1")
    k("s_mov_b64 exec, s[44:45]")

def wait_flags2(k, fl_srd, sets, snonce, vtmp, scnt, wave0):
    L = uid("wf"); E = uid("wf_e")
    k(f"s_cmp_lg_u32 s{wave0}, 0")
    k(f"s_cbranch_scc1 {E}")
    n = len(sets)
    for i, (base_off, nflags) in enumerate(sets):
        v = vtmp + 2*i
        k(f"v_and_b32 v{v}, 63, v0")
        k(f"v_min_u32 v{v}, {nflags - 1}, v{v}")
        k(f"v_lshlrev_b32 v{v}, 4, v{v}")
        k(f"v_add_u32 v{v}, {base_off}, v{v}") if isinstance(base_off, int) else k(f"v_add_u32 v{v}, s{base_off[0]}, v{v}")
    k(f"s_mov_b32 s{scnt}, 0")
    k.label(L)
    for i in range(n):
        k(f"buffer_load_dword v{vtmp+2*i+1}, v{vtmp+2*i}, s[{fl_srd}:{fl_srd+3}], 0 offen sc1")
    k("s_waitcnt vmcnt(0)")
    for i in range(1, n):
        k(f"v_xor_b32 v{vtmp+2*i+1}, s{snonce}, v{vtmp+2*i+1}")
    k(f"v_xor_b32 v{vtmp+1}, s{snonce}, v{vtmp+1}")
    for i in range(1, n):
        k(f"v_or_b32 v{vtmp+1}, v{vtmp+1}, v{vtmp+2*i+1}")
    k(f"v_cmp_ne_u32 vcc, 0, v{vtmp+1}")
    k("s_nop 4")
    k(f"s_cbranch_vccz {E}")
    k(f"s_add_u32 s{scnt}, s{scnt}, 1")
    k(f"s_cmp_lt_u32 s{scnt}, {SPIN_LIMIT}")
    k("s_sleep 1")
    k(f"s_cbranch_scc1 {L}")
    k.label(E)

def role_g1(k):
    stamp(k, 8); stamp(k, 0)
    k("s_load_dwordx2 s[4:5], s[0:1], 0")
    k(f"s_setprio {PRIO[0]}")
    k("s_load_dwordx2 s[6:7], s[0:1], 80")
    k("s_load_dwordx2 s[8:9], s[0:1], 112")
    k("s_load_dwordx2 s[50:51], s[0:1], 104")
    k("s_and_b32 s10, s3, 7")
    k("s_lshr_b32 s11, s3, 3")
    k("s_and_b32 s30, s11, 3")
    k("s_lshr_b32 s31, s11, 2")
    k("s_lshr_b32 s12, s10, 1")
    k("s_lshl_b32 s12, s12, 2")
    k("s_add_u32 s12, s12, s30")
    k("s_and_b32 s13, s10, 1")
    k("s_mul_i32 s13, s13, 7")
    k("s_add_u32 s13, s13, s31")
    k("s_mul_i32 s32, s30, 7\n s_add_u32 s32, s32, 1\n s_lshr_b32 s32, s32, 1")
    k("s_lshl_b32 s31, s31, 1\n s_add_u32 s45, s32, s31")
    k("s_cmp_ge_u32 s45, 14\n s_cselect_b32 s32, 14, 0\n s_sub_u32 s45, s45, s32")
    if "norot" in EXP: k("s_mov_b32 s45, 0")
    k("v_and_b32 v1, 63, v0")
    k("v_lshrrev_b32 v2, 6, v0")
    k("v_readfirstlane_b32 s14, v2")
    k("s_and_b32 s15, s14, 1")
    k("s_lshr_b32 s28, s14, 1")
    k("s_lshl_b32 s29, s14, 11")
    VX0, VX1, VW0, VW1 = 4, 5, 6, 7
    with k.sched():
        k("s_lshl_b32 s30, s12, 7")
        k("s_lshl_b32 s31, s14, 5")
        k("s_add_u32 s30, s30, s31")
        k("v_lshrrev_b32 v3, 2, v1")
        k("v_add_u32 v3, s30, v3")
        k("v_mul_u32_u24 v3, 896, v3")
        k("v_lshrrev_b32 v8, 4, v1")
        k("v_xor_b32 v9, v1, v8")
        k("v_and_b32 v9, 3, v9")
        k(f"v_lshl_add_u32 v{VX0}, v9, 4, v3")
        k(f"v_add_u32 v{VX1}, 14336, v{VX0}")
        k("s_lshl_b32 s33, s14, 3")
        k("v_add_u32 v10, s33, v8")
        k("v_mul_u32_u24 v10, 3584, v10")
        k("v_lshlrev_b32 v11, 2, v8")
        k("v_xor_b32 v11, v1, v11")
        k("v_and_b32 v11, 15, v11")
        k("v_lshl_add_u32 v10, v11, 4, v10")
        k("s_lshl_b32 s34, s13, 8")
        k(f"v_add_u32 v{VW0}, s34, v10")
        k(f"v_add_u32 v{VW1}, 14336, v{VW0}")
    k("s_memrealtime s[46:47]")
    k("s_waitcnt lgkmcnt(0)")
    srd(k, 16, 4, 5, 2048 * 896)
    srd(k, 20, 6, 7, 448 * 3584)
    srd(k, 24, 8, 9, HF_SZ, HF_OFF)
    srd(k, 52, 50, 51, 256)
    srd(k, 60, 8, 9, FL_SZ, FL_OFF)
    k("s_cmp_lg_u32 s3, 0")
    k("s_cbranch_scc1 L_g1_nn")
    k("s_or_b32 s46, s46, 1")
    k("v_cmp_eq_u32 vcc, 0, v0")
    k("s_and_saveexec_b64 s[30:31], vcc")
    k("v_mov_b32 v100, 0")
    k("v_mov_b32 v101, s46")
    k("buffer_store_dword v101, v100, s[52:55], 0 offen sc1")
    k("s_mov_b64 exec, s[30:31]")
    k("s_waitcnt vmcnt(0)")
    k.label("L_g1_nn")
    k("v_mov_b32 v176, 0")
    k("buffer_load_dword v177, v176, s[52:55], 0 offen sc1")
    def set_stage():
        k("s_mul_i32 s40, s45, 114688")
        k("s_lshl_b32 s41, s45, 6")
    def adv_stage():
        k("s_add_u32 s45, s45, 1\n s_cmp_eq_u32 s45, 14\n s_cselect_b32 s45, 0, s45")
    def dma_w(j, slot):
        k(f"s_add_u32 m0, s29, {16384*slot + 1024*j}")
        k(f"buffer_load_dwordx4 v{[VW0, VW1][j]}, s[20:23], s40 offen lds")
    def dma_x(j, slot):
        k(f"s_add_u32 m0, s29, {16384*slot + 8192 + 1024*j}")
        k(f"buffer_load_dwordx4 v{[VX0, VX1][j]}, s[16:19], s41 offen lds")
    for s in range(3):
        set_stage(); dma_w(0, s); dma_w(1, s); dma_x(0, s); dma_x(1, s); adv_stage()
    set_stage(); dma_w(0, 3); dma_w(1, 3)
    AA = [10, 11]; BB0 = [12, 13]; BB1 = [14, 15]
    AAh = [16, 17]; BB0h = [18, 19]; BB1h = [20, 21]
    with k.sched():
        k("v_lshrrev_b32 v3, 5, v1")
        k("v_bfe_u32 v8, v1, 2, 2")
        k("v_lshl_add_u32 v3, v3, 3, v8")
        k("v_lshlrev_b32 v3, 8, v3")
        k("v_bfe_u32 v9, v1, 4, 1")
        k("v_lshlrev_b32 v9, 1, v9")
        k("v_bfe_u32 v22, v1, 1, 1")
        k("v_add_u32 v9, v9, v22")
        k("v_lshl_add_u32 v3, v9, 4, v3")
        k("v_and_b32 v22, 1, v1")
        k("v_lshl_add_u32 v3, v22, 3, v3")
        for ai in range(2):
            k(f"s_xor_b32 s{30+ai}, s28, {ai}")
            k(f"s_lshl_b32 s{32+ai}, s15, 1")
            k(f"s_add_u32 s{30+ai}, s{30+ai}, s{32+ai}")
            k(f"v_xor_b32 v{24+ai}, s{30+ai}, v8")
            k(f"v_lshl_add_u32 v{AA[ai]}, v{24+ai}, 6, v3")
            k(f"v_add_u32 v{AAh[ai]}, 65536, v{AA[ai]}")
        k("v_and_b32 v26, 31, v1")
        k("v_lshrrev_b32 v27, 5, v1")
        k("v_xor_b32 v27, v27, v8")
        k("v_lshlrev_b32 v27, 4, v27")
        k("v_lshl_add_u32 v26, v26, 6, v27")
        for bi in range(2):
            k(f"s_xor_b32 s{34+bi}, s15, {bi}")
            k(f"s_lshl_b32 s{34+bi}, s{34+bi}, 11")
            k(f"s_lshl_b32 s{36+bi}, s28, 12")
            k(f"s_add_u32 s{34+bi}, s{34+bi}, s{36+bi}")
            k(f"s_add_u32 s{34+bi}, s{34+bi}, 8192")
            k(f"v_add_u32 v{BB0[bi]}, s{34+bi}, v26")
            k(f"v_xor_b32 v{BB1[bi]}, 32, v{BB0[bi]}")
            k(f"v_add_u32 v{BB0h[bi]}, 65536, v{BB0[bi]}")
            k(f"v_add_u32 v{BB1h[bi]}, 65536, v{BB1[bi]}")
    SEL = 160; SW = 164; SX = 168
    k("v_and_b32 v22, 15, v1")
    k("v_bfe_u32 v23, v1, 4, 1")
    k("v_cmp_eq_u32 vcc, v22, v23")
    k("v_mov_b32 v22, 0x3f803f80")
    k(f"v_cndmask_b32 v{SEL}, 0, v22, vcc")
    for i in range(1, 4): k(f"v_mov_b32 v{SEL + i}, v{SEL}")
    for i in range(4):
        k(f"v_mov_b32 v{SW + i}, 0")
        k(f"v_mov_b32 v{SX + i}, 0")
    FR = [24, 40]
    ACC = 56
    for i in range(64): k(f"v_mov_b32 v{ACC + i}, 0")
    def rdA(slot, kap, fs, ai):
        if "nords" in EXP: return
        hi = slot >= 4; sb = 0 if hi else slot * 16384
        a_ = (AAh if hi else AA)[ai]
        k(f"ds_read_b64_tr_b16 {vr(fs + 4*ai, 2)}, v{a_} offset:{sb + kap*4096}")
        k(f"ds_read_b64_tr_b16 {vr(fs + 4*ai + 2, 2)}, v{a_} offset:{sb + kap*4096 + 1024}")
    def rdB(slot, kap, fs, bi):
        if "nords" in EXP: return
        hi = slot >= 4; sb = 0 if hi else slot * 16384
        b_ = ((BB1h if hi else BB1) if kap else (BB0h if hi else BB0))[bi]
        k(f"ds_read_b128 {vr(fs + 8 + 4*bi, 4)}, v{b_} offset:{sb}")
    def mf(fs, ai, bi):
        if "nomf" in EXP: return
        c = ACC + (2*ai + bi) * 16
        k(f"v_mfma_f32_32x32x16_bf16 {vr(c,16)}, {vr(fs + 4*ai,4)}, {vr(fs + 8 + 4*bi,4)}, {vr(c,16)}")
    def sums(fs, which):
        if "nomf" in EXP: return
        src = fs if which == 0 else fs + 8
        dst = SW if which == 0 else SX
        k(f"v_mfma_f32_16x16x32_bf16 {vr(dst,4)}, {vr(src,4)}, {vr(SEL,4)}, {vr(dst,4)}")
    def stage_body(slot, cd, ab, wait, last=False):
        nslot = (slot + 1) % 5
        k("s_waitcnt lgkmcnt(0)")
        mf(FR[0], 0, 0)
        rdA(slot, 1, FR[1], 0); rdB(slot, 1, FR[1], 0)
        mf(FR[0], 0, 1)
        rdA(slot, 1, FR[1], 1); rdB(slot, 1, FR[1], 1)
        sums(FR[0], 0)
        if cd: dma_x(0, (slot + 3) % 5)
        mf(FR[0], 1, 0)
        if cd: dma_x(1, (slot + 3) % 5)
        sums(FR[0], 1)
        if cd: adv_stage(); set_stage()
        mf(FR[0], 1, 1)
        if not last:
            k(f"s_waitcnt vmcnt({wait}) lgkmcnt(0)")
            k("s_barrier")
        else:
            k("s_waitcnt lgkmcnt(0)")
        mf(FR[1], 0, 0)
        if not last: rdA(nslot, 0, FR[0], 0); rdB(nslot, 0, FR[0], 0)
        mf(FR[1], 0, 1)
        if not last: rdA(nslot, 0, FR[0], 1); rdB(nslot, 0, FR[0], 1)
        sums(FR[1], 0)
        if ab: dma_w(0, (slot + 4) % 5)
        mf(FR[1], 1, 0)
        if ab: dma_w(1, (slot + 4) % 5)
        sums(FR[1], 1)
        mf(FR[1], 1, 1)
    k("s_mov_b32 s44, 0")
    stamp(k, 1)
    k("s_waitcnt vmcnt(10)")
    k("s_barrier")
    stamp(k, 2)
    for ai in range(2): rdA(0, 0, FR[0], ai)
    for bi in range(2): rdB(0, 0, FR[0], bi)
    k.label("L_g1_loop")
    for sl in range(5): stage_body(sl, True, True, 8)
    k("s_add_u32 s44, s44, 1")
    k("s_cmp_lt_u32 s44, 2")
    k("s_cbranch_scc1 L_g1_loop")
    stage_body(0, True, False, 8)
    stage_body(1, False, False, 4)
    stage_body(2, False, False, 0)
    stage_body(3, False, False, 0, last=True)
    stamp(k, 3)
    k("s_waitcnt lgkmcnt(0)")
    k("s_barrier")
    k("s_nop 7")
    for r in range(4): k(f"v_mul_f32 v{SX + r}, 0x3b124925, v{SX + r}")
    k(f"v_cvt_pk_bf16_f32 v24, v{SX}, v{SX+1}")
    k(f"v_cvt_pk_bf16_f32 v25, v{SX+2}, v{SX+3}")
    k(f"v_lshlrev_b32 v{SX}, 16, v24")
    k(f"v_and_b32 v{SX+1}, 0xffff0000, v24")
    k(f"v_lshlrev_b32 v{SX+2}, 16, v25")
    k(f"v_and_b32 v{SX+3}, 0xffff0000, v25")
    k("v_and_b32 v3, 1, v1")
    k("v_lshlrev_b32 v3, 6, v3")
    k("v_lshrrev_b32 v8, 4, v1")
    k("v_lshl_add_u32 v3, v8, 4, v3")
    k("s_lshl_b32 s30, s28, 1\n s_add_u32 s30, s30, s15\n s_lshl_b32 s30, s30, 7")
    k("s_lshl_b32 s31, s15, 1\n s_add_u32 s31, s31, s28\n s_lshl_b32 s31, s31, 7\n s_add_u32 s31, s31, 512")
    k("v_add_u32 v8, s30, v3")
    k("v_add_u32 v9, s31, v3")
    k("v_and_b32 v10, 15, v1")
    k("v_cmp_gt_u32 vcc, 2, v10")
    k("s_and_saveexec_b64 s[46:47], vcc")
    k(f"ds_write_b128 v8, {vr(SX,4)}")
    k(f"ds_write_b128 v9, {vr(SW,4)}")
    k("s_mov_b64 exec, s[46:47]")
    k("v_and_b32 v3, 31, v1")
    k("v_lshlrev_b32 v3, 2, v3")
    for bi in range(2):
        k(f"s_xor_b32 s30, s15, {bi}\n s_lshl_b32 s31, s28, 1\n s_add_u32 s30, s30, s31\n s_lshl_b32 s30, s30, 7")
        k(f"v_add_u32 v{10+bi}, s30, v3")
    for ai in range(2):
        k(f"s_xor_b32 s30, s28, {ai}\n s_lshl_b32 s31, s15, 1\n s_add_u32 s30, s30, s31\n s_lshl_b32 s30, s30, 7\n s_add_u32 s30, s30, 512")
        k(f"v_add_u32 v{12+ai}, s30, v3")
    for bi in range(2):
        k(f"s_xor_b32 s{36+bi}, s15, {bi}\n s_lshl_b32 s31, s28, 1\n s_add_u32 s{36+bi}, s{36+bi}, s31\n s_lshl_b32 s31, s12, 2\n s_add_u32 s{36+bi}, s{36+bi}, s31\n s_mul_i32 s{36+bi}, s{36+bi}, {112*1024}")
    for ai in range(2):
        k(f"s_xor_b32 s{38+ai}, s28, {ai}\n s_lshl_b32 s31, s15, 1\n s_add_u32 s{38+ai}, s{38+ai}, s31\n s_lshl_b32 s31, s13, 2\n s_add_u32 s{38+ai}, s{38+ai}, s31\n s_lshl_b32 s{38+ai}, s{38+ai}, 11")
    for i in range(16): k(f"v_mov_b32 v{24 + i}, 0")
    k("v_cmp_gt_u32 vcc, 32, v1")
    k("s_mov_b64 s[42:43], vcc")
    k("s_waitcnt lgkmcnt(0)")
    k("s_barrier")
    for bi in range(2): k(f"ds_read_b32 v{40+bi}, v{10+bi}")
    for ai in range(2): k(f"ds_read_b32 v{42+ai}, v{12+ai}")
    k("v_lshlrev_b32 v3, 4, v1")
    k("s_waitcnt lgkmcnt(0)")
    with k.sched():
        for bi in range(2):
            k(f"v_cvt_pk_bf16_f32 v{44+bi}, -v{40+bi}, -v{40+bi}")
            k(f"v_cndmask_b32 v{32 + 4*bi}, 0, v{44+bi}, s[42:43]")
        for ai in range(2):
            k(f"v_cvt_pk_bf16_f32 v{46+ai}, v{42+ai}, v{42+ai}")
            k(f"v_lshlrev_b32 v{46+ai}, 16, v{46+ai}")
            k(f"v_sub_f32 v{46+ai}, v{42+ai}, v{46+ai}")
            k(f"v_cvt_pk_bf16_f32 v{46+ai}, v{42+ai}, v{46+ai}")
            k(f"v_cndmask_b32 v{24 + 4*ai}, 0, v{46+ai}, s[42:43]")
    for ai in range(2):
        for bi in range(2):
            c = ACC + (2*ai + bi) * 16
            k(f"v_mfma_f32_32x32x16_bf16 {vr(c,16)}, {vr(24 + 4*ai,4)}, {vr(32 + 4*bi,4)}, {vr(c,16)}")
    for ai in range(2):
        for bi in range(2):
            c = ACC + (2*ai + bi) * 16
            t = 124 + 8*(2*ai + bi)
            for j in range(8):
                k(f"v_cvt_pk_bf16_f32 v{t + j}, v{c + 2*j}, v{c + 2*j + 1}")
            for j in range(8):
                k(f"v_pk_max_i16 v{t + j}, v{t + j}, 0")
            k(f"s_add_u32 s30, s{36+bi}, s{38+ai}")
            k(f"buffer_store_dwordx4 {vr(t,4)}, v3, s[24:27], s30 offen sc1")
            k(f"buffer_store_dwordx4 {vr(t+4,4)}, v3, s[24:27], s30 offen offset:1024 sc1")
    stamp(k, 4)
    k("v_readfirstlane_b32 s48, v177")
    k("s_nop 3")
    k("s_cmp_lg_u32 s48, 0")
    k("s_cbranch_scc1 L_g1_haven")
    get_nonce(k, 52, 48, 40)
    k.label("L_g1_haven")
    k("s_lshl_b32 s30, s12, 8\n s_lshl_b32 s31, s13, 4\n s_add_u32 s30, s30, s31")
    signal(k, 60, 30, 48, 40, FL_H)
    stamp(k, 5)
    role_g2(k)


def ln8_issue(k, blk_s, xsrd):
    k(f"s_lshl_b32 s30, s{blk_s}, 3")
    k("s_lshl_b32 s31, s14, 1")
    k("s_add_u32 s30, s30, s31")
    k("v_lshrrev_b32 v36, 5, v1")
    k("v_add_u32 v36, s30, v36")
    k("v_and_b32 v37, 31, v1")
    k("v_mul_u32_u24 v38, 896, v36")
    k("v_lshl_add_u32 v38, v37, 4, v38")
    for i in range(4): k(f"v_mov_b32 v{44 + i}, 0")
    k(f"buffer_load_dwordx4 v[40:43], v38, s[{xsrd}:{xsrd+3}], 0 offen")
    k("s_mov_b32 exec_lo, 0x00ffffff\n s_mov_b32 exec_hi, 0x00ffffff")
    k(f"buffer_load_dwordx4 v[44:47], v38, s[{xsrd}:{xsrd+3}], 0 offen offset:512")
    k("s_mov_b64 exec, -1")

def ln8_compute(k, blk_s, xtsrd, rssrd, ldsbase):
    F = 48
    def red32(reg, tmp):
        k(f"v_add_f32_dpp v{reg}, v{reg}, v{reg} quad_perm:[1,0,3,2] row_mask:0xf bank_mask:0xf")
        k(f"v_add_f32_dpp v{reg}, v{reg}, v{reg} quad_perm:[2,3,0,1] row_mask:0xf bank_mask:0xf")
        k(f"v_add_f32_dpp v{reg}, v{reg}, v{reg} row_half_mirror row_mask:0xf bank_mask:0xf")
        k(f"v_add_f32_dpp v{reg}, v{reg}, v{reg} row_mirror row_mask:0xf bank_mask:0xf")
        k(f"ds_swizzle_b32 v{tmp}, v{reg} offset:0x401F")
        k("s_waitcnt lgkmcnt(0)")
        k(f"v_add_f32 v{reg}, v{reg}, v{tmp}")
    with k.sched():
        for j in range(8):
            k(f"v_lshlrev_b32 v{F + 2*j}, 16, v{40 + j}")
            k(f"v_and_b32 v{F + 2*j + 1}, 0xffff0000, v{40 + j}")
        for j in range(4): k(f"v_add_f32 v{64 + j}, v{F + j}, v{F + 4 + j}")
        for j in range(8, 16): k(f"v_add_f32 v{64 + (j & 3)}, v{64 + (j & 3)}, v{F + j}")
        k("v_add_f32 v64, v64, v65\n v_add_f32 v66, v66, v67\n v_add_f32 v64, v64, v66")
    red32(64, 65)
    k("v_mul_f32 v64, 0xbb124925, v64")
    with k.sched():
        for j in range(8): k(f"v_add_f32 v{68 + j}, v{F + j}, v64")
        k("v_mul_f32 v65, v68, v68\n v_mul_f32 v66, v69, v69")
        for j in range(2, 8): k(f"v_fmac_f32 v{65 + (j & 1)}, v{68 + j}, v{68 + j}")
    k("s_mov_b32 exec_lo, 0x00ffffff\n s_mov_b32 exec_hi, 0x00ffffff")
    with k.sched():
        for j in range(8): k(f"v_add_f32 v{68 + j}, v{F + 8 + j}, v64")
        for j in range(8): k(f"v_fmac_f32 v{65 + (j & 1)}, v{68 + j}, v{68 + j}")
    k("s_mov_b64 exec, -1")
    k("v_add_f32 v65, v65, v66")
    red32(65, 66)
    k("v_mul_f32 v65, 0x3b124925, v65")
    k("v_cvt_pk_bf16_f32 v65, v65, v64")
    k("v_and_b32 v64, 0xffff0000, v65")
    k("v_lshlrev_b32 v65, 16, v65")
    k("v_add_f32 v65, 0x3727c5ac, v65")
    k("v_cvt_pk_bf16_f32 v65, v65, v65")
    k("v_lshlrev_b32 v65, 16, v65")
    k("v_sqrt_f32 v65, v65")
    k("v_cvt_pk_bf16_f32 v65, v65, v65")
    k("v_lshlrev_b32 v65, 16, v65")
    k("v_rcp_f32 v66, v65")
    k("v_fma_f32 v67, -v65, v66, 2.0")
    k("v_mul_f32 v66, v66, v67")
    k("v_lshlrev_b32 v39, 2, v36")
    k("s_mov_b32 exec_lo, 1\n s_mov_b32 exec_hi, 1")
    k(f"buffer_store_dword v66, v39, s[{rssrd}:{rssrd+3}], 0 offen sc1")
    k("s_mov_b64 exec, -1")
    with k.sched():
        for j in range(8):
            a = F + 2*j
            k(f"v_add_f32 v{a}, v{a}, v64")
            k(f"v_add_f32 v{a+1}, v{a+1}, v64")
            k(f"v_cvt_pk_bf16_f32 v{40 + j}, v{a}, v{a+1}")
            k(f"v_lshlrev_b32 v{a}, 16, v{40 + j}")
            k(f"v_and_b32 v{a+1}, 0xffff0000, v{40 + j}")
            k(f"v_mul_f32 v{a}, v{a}, v66")
            k(f"v_mul_f32 v{a+1}, v{a+1}, v66")
            k(f"v_cvt_pk_bf16_f32 v{40 + j}, v{a}, v{a+1}")
        k("v_and_b32 v68, 7, v36")
        k("v_mul_u32_u24 v68, 960, v68")
        k("v_lshl_add_u32 v68, v37, 4, v68")
        k(f"v_add_u32 v68, {ldsbase}, v68")
        k("v_bfe_u32 v69, v1, 2, 2")
        k("v_mul_u32_u24 v69, 960, v69")
        k("v_lshrrev_b32 v70, 4, v1")
        k("v_lshl_add_u32 v69, v70, 5, v69")
        k("v_and_b32 v70, 3, v1")
        k("v_lshl_add_u32 v69, v70, 3, v69")
        k("s_lshl_b32 s44, s14, 7")
        k(f"s_add_u32 s44, s44, {ldsbase}")
        k("v_add_u32 v69, s44, v69")
        k("v_lshlrev_b32 v70, 4, v1")
    k("ds_write_b128 v68, v[40:43]")
    k("s_mov_b32 exec_lo, 0x00ffffff\n s_mov_b32 exec_hi, 0x00ffffff")
    k("ds_write_b128 v68, v[44:47] offset:512")
    k("s_mov_b64 exec, -1")
    k(f"s_mul_i32 s44, s{blk_s}, 7168")
    k("s_lshl_b32 s45, s14, 10")
    k("s_add_u32 s44, s44, s45")
    k("s_waitcnt lgkmcnt(0)")
    k("s_barrier")
    k("ds_read_b64_tr_b16 v[72:73], v69")
    k(f"ds_read_b64_tr_b16 v[74:75], v69 offset:{4*960}")
    k("ds_read_b64_tr_b16 v[76:77], v69 offset:512")
    k(f"ds_read_b64_tr_b16 v[78:79], v69 offset:{4*960 + 512}")
    k("s_waitcnt lgkmcnt(2)")
    k(f"buffer_store_dwordx4 v[72:75], v70, s[{xtsrd}:{xtsrd+3}], s44 offen sc1")
    L = uid("ln8")
    k("s_cmp_eq_u32 s14, 3")
    k(f"s_cbranch_scc1 {L}")
    k("s_add_u32 s44, s44, 4096")
    k("s_waitcnt lgkmcnt(0)")
    k(f"buffer_store_dwordx4 v[76:79], v70, s[{xtsrd}:{xtsrd+3}], s44 offen sc1")
    k.label(L)
    k("s_waitcnt lgkmcnt(0)")

def role_ln(k):
    stamp(k, 8); stamp(k, 0)
    k("s_setprio 1")
    k("s_load_dwordx2 s[4:5], s[0:1], 0")
    k("s_load_dwordx2 s[6:7], s[0:1], 88")
    k("s_load_dwordx4 s[8:11], s[0:1], 104")
    k("v_and_b32 v1, 63, v0")
    k("v_lshrrev_b32 v2, 6, v0")
    k("v_readfirstlane_b32 s14, v2")
    k("s_min_u32 s33, s3, 55")
    k("s_mul_i32 s30, s33, 28672")
    k("s_mul_i32 s31, s14, 7168")
    k("s_add_u32 s30, s30, s31")
    k("v_lshlrev_b32 v7, 4, v1")
    k("s_waitcnt lgkmcnt(0)")
    srd(k, 20, 6, 7, 1792 * 896)
    W2L = 32768
    for j in range(7):
        k(f"s_add_u32 m0, s31, {W2L + 1024*j}")
        k(f"s_add_u32 s32, s30, {1024*j}")
        k(f"buffer_load_dwordx4 v7, s[20:23], s32 offen lds")
    srd(k, 16, 4, 5, 2048 * 896)
    k("s_and_b32 s47, s3, 31")
    k("s_add_u32 s47, s47, 224")
    ln8_issue(k, 47, 16)
    srd(k, 52, 8, 9, 256)
    k("v_mov_b32 v120, 0")
    k("buffer_load_dword v121, v120, s[52:55], 0 offen sc1")
    srd(k, 24, 10, 11, XT_SZ, XT_OFF)
    srd(k, 36, 10, 11, RS_SZ, RS_OFF)
    srd(k, 40, 10, 11, W2F_SZ, W2F_OFF)
    srd(k, 56, 10, 11, FL_SZ, FL_OFF)
    with k.sched():
        k("v_lshrrev_b32 v80, 5, v1")
        k("v_bfe_u32 v81, v1, 2, 2")
        k("v_lshl_add_u32 v80, v80, 2, v81")
        k("v_mul_u32_u24 v80, 896, v80")
        k("v_bfe_u32 v82, v1, 4, 1")
        k("v_lshl_add_u32 v80, v82, 5, v80")
        k("v_and_b32 v83, 3, v1")
        k("v_lshl_add_u32 v80, v83, 3, v80")
        k(f"v_add_u32 v80, {W2L}, v80")
        k("s_lshr_b32 s30, s14, 1")
        k("s_and_b32 s31, s14, 1")
        k("s_mul_i32 s31, s31, 7")
        k(f"s_mul_i32 s32, s30, {16*896}")
        k("s_lshl_b32 s34, s31, 6")
        k("s_add_u32 s32, s32, s34")
        k("v_add_u32 v80, s32, v80")
        k("s_lshl_b32 s35, s33, 1")
        k("s_add_u32 s35, s35, s30")
        k("s_mul_i32 s35, s35, 14")
        k("s_add_u32 s35, s35, s31")
        k("s_lshl_b32 s35, s35, 10")
    k("s_waitcnt vmcnt(3)")
    k("s_barrier")
    stamp(k, 1)
    for j in range(7):
        k(f"ds_read_b64_tr_b16 {vr(84 + 4*j, 2)}, v80 offset:{64*j}")
        k(f"ds_read_b64_tr_b16 {vr(84 + 4*j + 2, 2)}, v80 offset:{64*j + 8*896}")
    k("s_waitcnt lgkmcnt(0) vmcnt(0)")
    k("v_readfirstlane_b32 s48, v121")
    k("s_cmp_ge_u32 s3, 56")
    k("s_cbranch_scc1 L_ln_now2")
    for j in range(7):
        k(f"buffer_store_dwordx4 {vr(84 + 4*j, 4)}, v7, s[40:43], s35 offen sc1")
        k(f"s_add_u32 s35, s35, 1024")
    k.label("L_ln_now2")
    k("s_cmp_lg_u32 s48, 0")
    k("s_cbranch_scc1 L_ln_haven")
    get_nonce(k, 52, 48, 112)
    k.label("L_ln_haven")
    k("s_cmp_ge_u32 s3, 32")
    k("s_cbranch_scc1 L_ln_noln")
    ln8_compute(k, 47, 24, 36, 0)
    k("s_lshl_b32 s30, s47, 4")
    signal(k, 56, 30, 48, 112, FL_LN)
    k.label("L_ln_noln")
    stamp(k, 2)
    k("s_lshl_b32 s30, s3, 4")
    signal(k, 56, 30, 48, 112, FL_W2)
    stamp(k, 3)
    stamp_flush(k, 0, 4)
    k("s_endpgm")

def cmul(k, o, x, y, t):
    k(f"v_mul_f32 v{t}, v{x+1}, v{y+1}")
    k(f"v_mul_f32 v{t+1}, v{x+1}, v{y}")
    if o == x:
        k(f"v_fma_f32 v{o+1}, v{x}, v{y+1}, v{t+1}")
        k(f"v_fma_f32 v{o}, v{x}, v{y}, -v{t}")
    else:
        k(f"v_fma_f32 v{o}, v{x}, v{y}, -v{t}")
        k(f"v_fma_f32 v{o+1}, v{x}, v{y+1}, v{t+1}")

def role_s(k):
    stamp(k, 8); stamp(k, 0)
    k(f"s_setprio {PRIO[2]}")
    k("s_load_dwordx16 s[56:71], s[0:1], 8")
    k("s_load_dwordx4 s[8:11], s[0:1], 104")
    k("s_load_dwordx2 s[4:5], s[0:1], 0")
    k("v_and_b32 v1, 63, v0")
    k("v_lshrrev_b32 v2, 6, v0")
    k("v_readfirstlane_b32 s14, v2")
    k("s_lshr_b32 s15, s14, 1")
    k("s_and_b32 s28, s14, 1")
    k("s_lshl_b32 s29, s3, 1")
    k("s_add_u32 s29, s29, s15")
    k("s_lshl_b32 s30, s29, 9")
    k("s_lshl_b32 s31, s28, 8")
    k("s_add_u32 s30, s30, s31")
    k("v_lshlrev_b32 v3, 2, v1")
    k("v_add_u32 v3, s30, v3")
    k("s_lshl_b32 s31, s29, 1")
    k("v_mov_b32 v4, s31")
    k("s_waitcnt lgkmcnt(0)")
    srd(k, 40, 4, 5, 2048 * 896)
    ln8_issue(k, 3, 40)
    PSZ = 448 * 512
    for i in range(6):
        srd(k, 16, 56 + 2*i, 57 + 2*i, PSZ)
        k(f"buffer_load_dword v{8 + i}, v3, s[16:19], 0 offen")
    srd(k, 20, 68, 69, 896)
    k("buffer_load_ushort v14, v4, s[20:23], 0 offen")
    srd(k, 20, 70, 71, 896)
    k("buffer_load_ushort v7, v4, s[20:23], 0 offen")
    srd(k, 52, 8, 9, 256)
    k("v_mov_b32 v190, 0")
    k("buffer_load_dword v191, v190, s[52:55], 0 offen sc1")
    srd(k, 20, 10, 11, XT_SZ, XT_OFF)
    srd(k, 24, 10, 11, ZT_SZ, ZT_OFF)
    srd(k, 36, 10, 11, FL_SZ, FL_OFF)
    srd(k, 40, 10, 11, RS_SZ, RS_OFF)
    TB = 75776; XB = 65536
    CSTR = 4160; CH = 37888
    WA = 144
    RA = 152
    GA = 160
    k("s_lshl_b32 s33, s14, 14")
    k("s_mul_i32 s31, s15, 1536")
    k(f"s_add_u32 s31, s31, {TB}")
    k("s_lshl_b32 s30, s28, 6")
    k("v_add_u32 v2, s30, v1")
    k("v_lshlrev_b32 v3, 4, v1")
    k("s_waitcnt vmcnt(9)")
    ln8_compute(k, 3, 20, 40, 65536)
    stamp(k, 11)
    with k.sched():
        k("v_and_b32 v16, 7, v1")
        k("v_lshlrev_b32 v17, 7, v1")
        k("v_add_u32 v17, s33, v17")
        for v_ in range(8):
            k(f"v_xor_b32 v{WA + v_}, {v_}, v16")
            k(f"v_lshl_add_u32 v{WA + v_}, v{WA + v_}, 4, v17")
        k("v_bfe_u32 v18, v1, 5, 1")
        k("v_bfe_u32 v19, v1, 3, 1")
        k("v_lshl_add_u32 v18, v18, 2, v19")
        k("v_bfe_u32 v19, v1, 2, 1")
        k("v_bfe_u32 v20, v1, 4, 1")
        k("v_bfe_u32 v21, v1, 1, 1")
        k("v_lshl_add_u32 v20, v20, 1, v21")
        k("v_lshl_add_u32 v19, v19, 2, v20")
        k("v_and_b32 v21, 1, v1")
        k("v_lshlrev_b32 v21, 3, v21")
        k("v_add_u32 v21, s33, v21")
        for j in range(2):
            k(f"v_add_u32 v{22+j}, {2*j}, v18")
            k(f"v_xor_b32 v{24+j}, v19, v{22+j}")
            k(f"v_lshl_add_u32 v{24+j}, v{24+j}, 4, v21")
            k(f"v_lshl_add_u32 v{RA+j}, v{22+j}, 7, v{24+j}")
        for c in range(2):
            b_ = 28 + 20*c
            k(f"v_lshlrev_b32 v{b_+16}, 3, v2")
            k(f"v_sub_u32 v{b_+16}, {2047 - 1024*c}, v{b_+16}")
            for e in range(8): k(f"v_subrev_u32 v{b_ + e}, {e}, v{b_+16}")
            g = GA + 8*c
            for e in range(8): k(f"v_cvt_f32_u32 v{g + e}, v{b_ + e}")
            for e in range(0, 8, 2): k(f"v_cvt_pk_bf16_f32 v{b_ + 8 + e//2}, v{g + e}, v{g + e + 1}")
            for e in range(8):
                if e % 2 == 0: k(f"v_and_b32 v{g + e}, 0xffff, v{b_ + 8 + e//2}")
                else: k(f"v_lshrrev_b32 v{g + e}, 16, v{b_ + 8 + e//2}")
            for e in range(8): k(f"v_add_u32 v{g + e}, {(-0x4300 + 128) & 0xffffffff}, v{g + e}")
            for e in range(8):
                k(f"v_cmp_gt_u32 vcc, 128, v{b_ + e}")
                k(f"v_cndmask_b32 v{g + e}, v{g + e}, v{b_ + e}, vcc")
            for e in range(8): k(f"v_lshl_add_u32 v{g + e}, v{g + e}, 1, s31")
    ACC = 112
    for i in range(16): k(f"v_mov_b32 v{ACC + i}, 0")
    k("s_waitcnt vmcnt(2)")
    stamp(k, 1)
    k("v_readfirstlane_b32 s48, v191")
    k("v_lshlrev_b32 v14, 16, v14")
    k("v_mul_f32 v15, 0x3fb8aa3b, v14")
    k("s_mov_b32 s34, 0x3fb8aa3b")
    k("v_fma_f32 v16, v14, s34, -v15")
    k("s_mov_b32 s34, 0x32a57060")
    k("v_fma_f32 v16, v14, s34, v16")
    k("v_exp_f32 v15, v15")
    k("v_mul_f32 v16, 0x3f317218, v16")
    k("v_fma_f32 v15, v15, v16, v15")
    k("v_cvt_pk_bf16_f32 v15, v15, v15")
    k("v_lshlrev_b32 v15, 16, v15")
    E1, Z2, Z4, E256 = 20, 22, 24, 26
    Q = [28, 30, 32, 34]
    E32 = 36
    TT = [64 + 2*i for i in range(8)]
    tc = [0]
    def T():
        tc[0] += 1
        return TT[tc[0] % len(TT)]
    SA = 80
    SB = 176
    k("s_mov_b32 s35, 0")
    k("s_mov_b32 s34, 16")
    k.label("L_s_item")
    with k.sched():
        for i in range(6):
            k(f"v_lshlrev_b32 v{50 + i}, s34, v{8 + i}")
            k(f"v_and_b32 v{50 + i}, 0xffff0000, v{50 + i}")
        k("v_mul_f32 v18, v15, v50")
        k("v_mul_f32 v18, 0x3fb8aa3b, v18")
        k("v_mul_f32 v19, v15, v51")
        k("v_mul_f32 v19, 0.15915494, v19")
        k("v_mul_f32 v52, v15, v52")
        k("v_mul_f32 v53, v15, v53")
        P0 = 16
        cmul(k, P0, 54, 52, T())
        def E(dst, l):
            tmp = T()
            lit = {1: "1.0", 8: "0x41000000", 16: "0x41800000", 24: "0x41c00000", 32: "0x42000000", 256: "0x43800000"}[l]
            k(f"v_mul_f32 v{tmp}, {lit}, v18")
            k(f"v_mul_f32 v{tmp+1}, {lit}, v19")
            k(f"v_exp_f32 v{tmp}, v{tmp}")
            k(f"v_fract_f32 v{tmp+1}, v{tmp+1}")
            k(f"v_cos_f32 v{dst}, v{tmp+1}")
            k(f"v_sin_f32 v{dst+1}, v{tmp+1}")
            k(f"v_mul_f32 v{dst}, v{dst}, v{tmp}")
            k(f"v_mul_f32 v{dst+1}, v{dst+1}, v{tmp}")
        E(E1, 1); E(E256, 256); E(E32, 32); E(Q[1], 8); E(Q[2], 16); E(Q[3], 24)
        k(f"v_mov_b32 v{Q[0]}, 1.0")
        k(f"v_mov_b32 v{Q[0]+1}, 0")
        cmul(k, Z2, E1, E1, T())
        cmul(k, Z4, Z2, Z2, T())
        def pairA(h, ra, rb):
            p = h >> 3; dw = (h & 7) >> 1
            base = SA + 8*p
            if rb is None:
                k(f"v_cvt_pk_bf16_f32 v{base + dw}, v{ra}, 0")
                k(f"v_cvt_pk_bf16_f32 v{base + 4 + dw}, -v{ra+1}, 0")
            else:
                k(f"v_cvt_pk_bf16_f32 v{base + dw}, v{ra}, v{rb}")
                k(f"v_cvt_pk_bf16_f32 v{base + 4 + dw}, -v{ra+1}, -v{rb+1}")
        def flushA(p):
            base = SA + 8*p
            k(f"ds_write_b128 v{WA + p}, {vr(base, 4)}")
            k(f"ds_write_b128 v{WA + 4 + p}, {vr(base + 4, 4)}")
        def pairB(i):
            p = i >> 1; base = SB + 8*(p & 1); dw = 2*(i & 1)
            k(f"v_cvt_pk_bf16_f32 v{base + dw}, v{Q[0]}, v{Q[1]}")
            k(f"v_cvt_pk_bf16_f32 v{base + dw + 1}, v{Q[2]}, v{Q[3]}")
            k(f"v_cvt_pk_bf16_f32 v{base + 4 + dw}, v{Q[0]+1}, v{Q[1]+1}")
            k(f"v_cvt_pk_bf16_f32 v{base + 4 + dw + 1}, v{Q[2]+1}, v{Q[3]+1}")
            if i & 1:
                k(f"ds_write_b128 v{WA + p}, {vr(base, 4)} offset:8192")
                k(f"ds_write_b128 v{WA + 4 + p}, {vr(base + 4, 4)} offset:8192")
        PE, PO = 38, 40
        U0, U1, S0, S1 = 42, 44, 46, 48
        steps = []
        def low():
            cmul(k, PO, P0, E1, T()); pairA(0, P0, PO)
            yield
            for h in (2, 4, 6):
                cmul(k, PE, PO, E1, T())
                yield
                cmul(k, PO, PE, E1, T()); pairA(h, PE, PO)
                yield
            flushA(0)
            yield
        def high():
            cmul(k, U0, P0, E256, T())
            cmul(k, S0, U0, Z2, T()); pairA(8, U0, S0)
            yield
            cmul(k, U1, U0, E256, T())
            cmul(k, S1, S0, Z2, T())
            yield
            cmul(k, S0, S1, Z2, T()); pairA(10, S1, S0)
            cmul(k, U0, U1, E256, T())
            yield
            cmul(k, S1, U1, Z4, T()); pairA(12, U1, S1)
            cmul(k, U1, U0, E256, T())
            yield
            cmul(k, S0, U0, Z4, T()); pairA(14, U0, S0)
            flushA(1)
            cmul(k, U0, U1, E256, T()); pairA(16, U1, U0)
            yield
            cmul(k, U1, U0, E256, T())
            cmul(k, U0, U1, E256, T()); pairA(18, U1, U0)
            yield
            cmul(k, U1, U0, E256, T()); pairA(20, U1, None)
            k(f"v_mov_b32 v{SA + 16 + 3}, 0\n v_mov_b32 v{SA + 16 + 7}, 0")
            flushA(2)
            yield
        gl, gh = low(), high()
        pairB(0)
        for i in range(1, 8):
            for c in range(4): cmul(k, Q[c], Q[c], E32, T())
            pairB(i)
            next(gl, None); next(gh, None)
        for _ in gl: pass
        for _ in gh: pass
    k("s_waitcnt lgkmcnt(0)")
    for half in range(2):
        for ks in range(4*half, 4*half + 4):
            fa = 64 + 8 * (ks % 4)
            k(f"ds_read_b64_tr_b16 {vr(fa,2)}, v{RA} offset:{1024*ks}")
            k(f"ds_read_b64_tr_b16 {vr(fa+2,2)}, v{RA+1} offset:{1024*ks}")
            k(f"ds_read_b64_tr_b16 {vr(fa+4,2)}, v{RA} offset:{1024*ks + 8192}")
            k(f"ds_read_b64_tr_b16 {vr(fa+6,2)}, v{RA+1} offset:{1024*ks + 8192}")
        for ks in range(4*half, 4*half + 4):
            fa = 64 + 8 * (ks % 4)
            k(f"s_waitcnt lgkmcnt({4*(3 - (ks % 4))})")
            k(f"v_mfma_f32_32x32x16_bf16 {vr(ACC,16)}, {vr(fa,4)}, {vr(fa+4,4)}, {vr(ACC,16)}")
    k("s_cmp_lg_u32 s35, 0")
    k("s_cbranch_scc1 L_s_nosig")
    k("s_cmp_lg_u32 s48, 0")
    k("s_cbranch_scc1 L_s_haven")
    get_nonce(k, 52, 48, 104)
    k.label("L_s_haven")
    k("s_lshl_b32 s30, s3, 4")
    signal(k, 36, 30, 48, 104, FL_LN)
    k.label("L_s_nosig")
    k("s_mov_b32 s34, 0")
    k("s_add_u32 s35, s35, 1")
    k("s_cmp_lt_u32 s35, 2")
    k("s_cbranch_scc1 L_s_item")
    stamp(k, 2)
    k("s_mul_i32 s30, s15, 3072")
    k(f"s_add_u32 s30, s30, {XB}")
    k("v_add_u32 v4, s30, v3")
    k("s_cmp_eq_u32 s28, 0")
    k("s_cbranch_scc1 L_kg_a")
    k("s_nop 7\n s_nop 3")
    for q in range(3): k(f"ds_write_b128 v4, {vr(ACC + 4*q, 4)} offset:{1024*q}")
    k("s_waitcnt lgkmcnt(0)")
    k.label("L_kg_a")
    k("s_barrier")
    k("s_cmp_eq_u32 s28, 0")
    k("s_cbranch_scc0 L_kg_b")
    for q in range(3): k(f"ds_read_b128 {vr(64 + 4*q, 4)}, v4 offset:{1024*q}")
    k("v_and_b32 v6, 31, v1")
    k("v_lshrrev_b32 v12, 5, v1")
    k("v_lshlrev_b32 v8, 4, v6")
    k("v_lshl_add_u32 v8, v12, 3, v8")
    k("v_add_u32 v8, s31, v8")
    k("v_lshlrev_b32 v9, 3, v6\n v_add_u32 v9, s31, v9")
    k("v_lshlrev_b32 v10, 2, v6\n v_add_u32 v10, s31, v10")
    k("v_lshlrev_b32 v11, 1, v6\n v_add_u32 v11, s31, v11")
    k("s_waitcnt lgkmcnt(0)")
    for r in range(12): k(f"v_add_f32 v{ACC + r}, v{ACC + r}, v{64 + r}")
    for j in range(6): k(f"v_cvt_pk_bf16_f32 v{80 + j}, v{ACC + 2*j}, v{ACC + 2*j + 1}")
    k("ds_write_b64 v8, v[80:81]")
    k("s_mov_b64 s[40:41], exec")
    k("s_mov_b32 exec_lo, -1\n s_mov_b32 exec_hi, 0")
    k("ds_write_b64 v9, v[82:83] offset:512")
    k("ds_write_b16 v11, v84 offset:1024")
    k("ds_write_b16_d16_hi v11, v84 offset:1088")
    k("ds_write_b16 v11, v85 offset:1152")
    k("ds_write_b16_d16_hi v11, v85 offset:1216")
    k("s_mov_b32 exec_lo, 0\n s_mov_b32 exec_hi, -1")
    k("ds_write_b32 v10, v82 offset:768")
    k("ds_write_b32 v10, v83 offset:896")
    k("ds_write_b16 v11, v84 offset:1280")
    k("s_mov_b64 exec, s[40:41]")
    k("s_waitcnt lgkmcnt(0)")
    k.label("L_kg_b")
    k("s_xor_b32 s46, s14, 1")
    wait_flags2(k, 36, [(FL_LN + 1024*i, 64) for i in range(4)], 48, 90, 49, 46)
    k("s_barrier")
    k("v_mul_u32_u24 v8, 7168, v2")
    k("s_lshl_b32 s30, s29, 4")
    k("v_add_u32 v8, s30, v8")
    k(f"v_add_u32 v9, {128*7168}, v8")
    k("buffer_load_dwordx4 v[16:19], v8, s[20:23], 0 offen sc1")
    k("buffer_load_dwordx4 v[20:23], v9, s[20:23], 0 offen sc1")
    k(f"s_mul_i32 s33, s15, {CH}")
    k(f"s_add_u32 s34, s33, {8*CSTR}")
    k("s_barrier")
    stamp(k, 3)
    for c in range(2):
        for e in range(8):
            if e % 2 == 0: k(f"ds_read_u16 v{64 + 8*c + e//2}, v{GA + 8*c + e}")
            else: k(f"ds_read_u16_d16_hi v{80 + 4*c + e//2}, v{GA + 8*c + e}")
    for i in range(4): k(f"v_mov_b32 v{28 + i}, 0")
    k("v_add_u32 v25, s34, v3")
    k("v_subrev_u32 v26, 32, v1")
    k(f"v_mul_u32_u24 v26, {CSTR}, v26")
    k("v_add_u32 v26, s33, v26")
    k("v_add_u32 v26, 4096, v26")
    k("v_cmp_gt_u32 vcc, 32, v1")
    k("v_cndmask_b32 v25, v26, v25, vcc")
    k("v_lshlrev_b32 v27, 4, v2")
    k("v_add_u32 v27, s33, v27")
    k("s_waitcnt lgkmcnt(0)")
    for c in range(2):
        for j in range(4):
            k(f"v_and_b32 v{80 + 4*c + j}, 0xffff0000, v{80 + 4*c + j}")
            k(f"v_or_b32 v{64 + 8*c + j}, v{64 + 8*c + j}, v{80 + 4*c + j}")
    k("ds_write_b128 v27, v[64:67]")
    k("ds_write_b128 v27, v[72:75] offset:2048")
    k("v_cmp_gt_u32 vcc, 40, v1")
    k("s_and_saveexec_b64 s[40:41], vcc")
    k("ds_write_b128 v25, v[28:31]")
    k("s_mov_b64 exec, s[40:41]")
    k("s_waitcnt lgkmcnt(0)")
    k("s_barrier")
    k("ds_read_b128 v[68:71], v27 offset:16")
    k("ds_read_b128 v[76:79], v27 offset:2064")
    k("v_lshlrev_b32 v10, 4, v2")
    k("v_add_u32 v10, s34, v10")
    k("s_waitcnt vmcnt(0)")
    k("ds_write_b128 v10, v[16:19] offset:512")
    k("ds_write_b128 v10, v[20:23] offset:2560")
    k("s_waitcnt lgkmcnt(2)")
    for c in range(2):
        Dr = 64 + 8*c
        Ee = 96 + 24*c; Eo = Ee + 8; Do = Ee + 16
        with k.sched():
            for i in range(7): k(f"v_alignbit_b32 v{Ee + i}, v{Dr + i + 1}, v{Dr + i}, 16")
            for i in range(6): k(f"v_alignbit_b32 v{Eo + i}, v{Dr + i + 2}, v{Dr + i + 1}, 16")
            for i in range(6): k(f"v_mov_b32 v{Do + i}, v{Dr + i + 1}")
            src = {1: Ee, 2: Do, 3: Eo, 4: Dr + 2, 5: Ee + 2, 6: Do + 2, 7: Eo + 2}
            for s_ in range(1, 8):
                k(f"ds_write_b128 v27, {vr(src[s_], 4)} offset:{s_*CSTR + 2048*c}")
    stamp(k, 4)
    with k.sched():
        k("v_and_b32 v10, 7, v1")
        k("v_sub_u32 v10, 7, v10")
        k(f"v_mul_u32_u24 v10, {CSTR}, v10")
        k("v_bfe_u32 v11, v1, 3, 1")
        k("v_bfe_u32 v12, v1, 5, 1")
        k("v_bfe_u32 v13, v1, 4, 1")
        k("v_lshl_add_u32 v14, v12, 1, v11")
        k("v_sub_u32 v14, v13, v14")
        k("v_lshlrev_b32 v14, 4, v14")
        k("v_add_u32 v10, v10, v14")
        k(f"s_add_u32 s30, s33, {255*16 - 64*56}")
        k("s_lshl_b32 s31, s28, 8")
        k("s_sub_u32 s30, s30, s31")
        k("v_add_u32 v4, s30, v10")
        k("v_and_b32 v15, 15, v1")
        k("v_sub_u32 v15, v15, v12")
        k("v_lshlrev_b32 v15, 5, v15")
        k("v_lshl_add_u32 v15, v13, 4, v15")
        k("s_add_u32 s32, s34, 512")
        k("s_sub_u32 s32, s32, s31")
        k("v_add_u32 v5, s32, v15")
    ACC = 32
    FA = [64, 128]
    for i in range(32): k(f"v_mov_b32 v{ACC + i}, 0")
    k("s_waitcnt lgkmcnt(0)")
    k("s_barrier")
    stamp(k, 5)
    def rd(fs, p1):
        k(f"ds_read_b128 {vr(fs + 4*p1, 4)}, v4 offset:{512*(7 - p1)}")
        k(f"ds_read_b128 {vr(fs + 32 + 4*p1, 4)}, v5 offset:{512*p1}")
    def adv():
        k("v_subrev_u32 v4, 64, v4")
        k("v_subrev_u32 v5, 64, v5")
    def mm(fs, nxt):
        n = 0
        for p1 in range(8):
            for be in range(8 - p1):
                c = ACC + 4*(p1 + be)
                k(f"v_mfma_f32_16x16x32_bf16 {vr(c,4)}, {vr(fs + 4*p1,4)}, {vr(fs + 32 + 4*be,4)}, {vr(c,4)}")
                n += 1
                if nxt is not None and n % 4 == 0 and n // 4 <= 8: rd(nxt, n // 4 - 1)
        if nxt is not None: adv()
    for p1 in range(8): rd(FA[0], p1)
    adv()
    k("s_mov_b32 s35, 0")
    k.label("L_cv_loop")
    k("s_waitcnt lgkmcnt(0)")
    mm(FA[0], FA[1])
    k("s_waitcnt lgkmcnt(0)")
    mm(FA[1], FA[0])
    k("s_add_u32 s35, s35, 1")
    k("s_cmp_lt_u32 s35, 2")
    k("s_cbranch_scc1 L_cv_loop")
    stamp(k, 6)
    k("s_setprio 3")
    k("s_waitcnt lgkmcnt(0)")
    k("s_barrier")
    k("s_lshl_b32 s30, s14, 12")
    k("v_add_u32 v6, s30, v3")
    k("s_xor_b32 s31, s14, 1")
    k("s_lshl_b32 s31, s31, 12")
    k("v_add_u32 v11, s31, v3")
    k("s_cmp_eq_u32 s28, 0")
    k("s_cbranch_scc0 L_cv_w1")
    for q in range(4): k(f"ds_write_b128 v6, {vr(ACC + 16 + 4*q, 4)} offset:{1024*q}")
    k("s_branch L_cv_w2")
    k.label("L_cv_w1")
    for q in range(4): k(f"ds_write_b128 v6, {vr(ACC + 4*q, 4)} offset:{1024*q}")
    for r in range(16): k(f"v_mov_b32 v{ACC + r}, v{ACC + 16 + r}")
    k.label("L_cv_w2")
    k("v_and_b32 v8, 15, v1")
    k("v_lshlrev_b32 v8, 5, v8")
    k("v_lshrrev_b32 v9, 4, v1")
    k("v_lshl_add_u32 v8, v9, 3, v8")
    k("s_lshl_b32 s30, s28, 11")
    k("s_add_u32 s30, s30, s34")
    k("s_add_u32 s30, s30, 512")
    k("v_add_u32 v9, s30, v8")
    for q in range(4): k(f"ds_read_b64 {vr(80 + 2*q, 2)}, v9 offset:{512*q}")
    k("v_lshlrev_b32 v7, 16, v7")
    k("s_waitcnt lgkmcnt(0)")
    k("s_barrier")
    stamp(k, 7)
    for q in range(4): k(f"ds_read_b128 {vr(64 + 4*q, 4)}, v11 offset:{1024*q}")
    k("s_waitcnt lgkmcnt(0)")
    with k.sched():
        for r in range(16): k(f"v_add_f32 v{ACC + r}, v{ACC + r}, v{64 + r}")
        for q in range(4):
            for hh in range(2):
                src = 80 + 2*q + hh
                t = 96 + 4*q + 2*hh
                k(f"v_lshlrev_b32 v{t}, 16, v{src}")
                k(f"v_and_b32 v{t+1}, 0xffff0000, v{src}")
                k(f"v_fmac_f32 v{ACC + 4*q + 2*hh}, v{t}, v7")
                k(f"v_fmac_f32 v{ACC + 4*q + 2*hh + 1}, v{t+1}, v7")
        for j in range(8): k(f"v_cvt_pk_bf16_f32 v{112 + j}, v{ACC + 2*j}, v{ACC + 2*j + 1}")
    k("s_lshl_b32 s30, s14, 11")
    k("s_add_u32 s30, s30, 16384")
    k("v_add_u32 v9, s30, v8")
    for q in range(4): k(f"ds_write_b64 v9, {vr(112 + 2*q, 2)} offset:{512*q}")
    k("v_add_u32 v9, s30, v3")
    k("s_waitcnt lgkmcnt(0)")
    k("ds_read_b128 v[72:75], v9")
    k("ds_read_b128 v[76:79], v9 offset:1024")
    k("s_lshl_b32 s30, s29, 12")
    k("s_lshl_b32 s31, s28, 11")
    k("s_add_u32 s30, s30, s31")
    k("s_waitcnt lgkmcnt(0)")
    k("buffer_store_dwordx4 v[72:75], v3, s[24:27], s30 offen sc1")
    k("buffer_store_dwordx4 v[76:79], v3, s[24:27], s30 offen offset:1024 sc1")
    stamp(k, 9)
    k("s_lshl_b32 s30, s3, 4")
    signal(k, 36, 30, 48, 90, FL_Z)
    stamp(k, 10)
    stamp_flush(k, 0, 8)
    k("s_endpgm")

def role_g2(k):
    k("s_load_dwordx2 s[6:7], s[0:1], 96")
    k(f"s_setprio {PRIO[1]}")
    k("s_and_b32 s10, s3, 7")
    k("s_lshr_b32 s11, s3, 3")
    k("s_and_b32 s30, s11, 3")
    k("s_lshl_b32 s13, s10, 2")
    k("s_add_u32 s12, s30, s13")
    k("s_lshr_b32 s13, s11, 2")
    k("v_lshlrev_b32 v3, 4, v1")
    k("s_and_b32 s28, s14, 1")
    k("s_lshr_b32 s29, s14, 1")
    k("s_mul_i32 s30, s14, 28")
    k("s_mul_i32 s31, s30, 14\n s_lshl_b32 s32, s13, 1\n s_add_u32 s31, s31, s32")
    k("s_add_u32 s40, s31, s28\n s_lshl_b32 s40, s40, 10")
    k("s_xor_b32 s32, s28, 1\n s_add_u32 s41, s31, s32\n s_lshl_b32 s41, s41, 10")
    k("s_lshl_b32 s32, s12, 1")
    k("s_add_u32 s33, s32, s29\n s_mul_i32 s33, s33, 112\n s_add_u32 s42, s33, s30\n s_lshl_b32 s42, s42, 10")
    k("s_xor_b32 s33, s29, 1\n s_add_u32 s33, s33, s32\n s_mul_i32 s33, s33, 112\n s_add_u32 s43, s33, s30\n s_lshl_b32 s43, s43, 10")
    srd(k, 52, 8, 9, W2F_SZ, W2F_OFF)
    srd(k, 16, 4, 5, 2048 * 896)
    srd(k, 36, 8, 9, RS_SZ, RS_OFF)
    srd(k, 56, 8, 9, ZT_SZ, ZT_OFF)
    ACC = 16; BR = 80; AR = 112; AP = 144; NK = 28; NPRE = 12
    RED = 0; ZL = 49152; XL = 57344; OL = 65536
    wait_flags2(k, 60, [(FL_W2, 56)], 48, 8, 49, 14)
    k("s_barrier")
    def aregs(j): return AP + 8*j if j < NPRE else AR + 8*(j % 4)
    def loadA(j):
        f = aregs(j)
        k(f"buffer_load_dwordx4 {vr(f,4)}, v3, s[52:55], s40 offen sc1")
        k(f"buffer_load_dwordx4 {vr(f+4,4)}, v3, s[52:55], s41 offen sc1")
        k("s_add_u32 s40, s40, 14336\n s_add_u32 s41, s41, 14336")
    def loadB(j):
        f = BR + 8*(j % 4)
        k(f"buffer_load_dwordx4 {vr(f,4)}, v3, s[24:27], s42 offen sc1")
        k(f"buffer_load_dwordx4 {vr(f+4,4)}, v3, s[24:27], s43 offen sc1")
        k("s_add_u32 s42, s42, 1024\n s_add_u32 s43, s43, 1024")
    for j in range(NPRE + 4): loadA(j)
    with k.sched():
        k("v_lshrrev_b32 v4, 3, v1")
        k("s_lshl_b32 s34, s14, 4")
        k("v_add_u32 v4, s34, v4")
        k("v_lshrrev_b32 v5, 1, v4")
        k("v_xor_b32 v5, v5, v1")
        k("v_and_b32 v5, 7, v5")
        k("s_lshl_b32 s35, s12, 6")
        k("v_add_u32 v6, s35, v4")
        k("v_mul_u32_u24 v6, 896, v6")
        k("v_lshl_add_u32 v6, v5, 4, v6")
        k("s_lshl_b32 s30, s13, 7")
        k("v_add_u32 v6, s30, v6")
        k("v_xor_b32 v7, 64, v6")
        k(f"v_add_u32 v7, {8*896}, v7")
        k("s_lshl_b32 s31, s13, 6")
        k("v_add_u32 v240, s31, v4")
        k("v_lshlrev_b32 v240, 12, v240")
        k("v_and_b32 v9, 7, v1")
        k("v_lshl_add_u32 v240, v9, 4, v240")
        k("s_lshl_b32 s32, s12, 7")
        k("v_add_u32 v240, s32, v240")
        k(f"v_add_u32 v241, {8*4096}, v240")
        k("v_and_b32 v242, 31, v1")
        k("s_lshl_b32 s33, s29, 5")
        k("s_add_u32 s33, s33, s35")
        k("v_add_u32 v242, s33, v242")
        k("v_lshlrev_b32 v242, 2, v242")
        k("v_and_b32 v243, 31, v1")
        k("v_lshlrev_b32 v243, 4, v243")
        k("s_lshl_b32 s44, s13, 9")
        k(f"s_add_u32 s44, s44, {FL_Z}")
        k("v_add_u32 v243, s44, v243")
        k("v_and_b32 v244, 7, v1")
        k("v_lshlrev_b32 v244, 4, v244")
        k("s_lshl_b32 s45, s12, 7")
        k("v_add_u32 v244, s45, v244")
    k("s_lshl_b32 s34, s14, 11")
    k(f"s_add_u32 m0, s34, {XL}")
    k("buffer_load_dwordx4 v6, s[16:19], 0 offen lds")
    k(f"s_add_u32 m0, s34, {XL + 1024}")
    k("buffer_load_dwordx4 v7, s[16:19], 0 offen lds")
    for i in range(64): k(f"v_mov_b32 v{ACC + i}, 0")
    k("s_waitcnt lgkmcnt(0)")
    srd(k, 20, 6, 7, 2048 * 896)
    k("s_lshr_b32 s30, s12, 1\n s_lshl_b32 s30, s30, 8\n s_add_u32 s30, s30, %d" % FL_H)
    k("s_mul_i32 s31, s14, 7\n s_lshr_b32 s31, s31, 1\n s_lshl_b32 s31, s31, 4\n s_add_u32 s30, s30, s31")
    k("s_mov_b32 s46, 0")
    wait_flags2(k, 60, [((30,), 4)], 48, 8, 49, 46)
    stamp(k, 6)
    for j in range(4): loadB(j)
    size = lambda i: 0 if i >= NK else (2 if i < NPRE + 4 else 4)
    extra = 0
    for j in range(NK):
        n = sum(size(i) for i in range(j + 1, j + 4)) + extra
        k(f"s_waitcnt vmcnt({n})")
        fa = aregs(j); fb = BR + 8*(j % 4)
        for ti in range(2):
            for di in range(2):
                c = ACC + (2*ti + di) * 16
                k(f"v_mfma_f32_32x32x16_bf16 {vr(c,16)}, {vr(fa + 4*di,4)}, {vr(fb + 4*ti,4)}, {vr(c,16)}")
            if ti == 0 and j + 4 < NK and j + 4 >= NPRE + 4:
                pass
        if j + 4 < NK:
            loadB(j + 4)
            if j + 4 >= NPRE + 4: loadA(j + 4)
        if j == NK - 5:
            k("buffer_load_dword v245, v243, s[60:63], 0 offen sc1")
            k(f"buffer_load_dword v246, v244, s[60:63], 0 offen offset:{FL_LN} sc1")
            extra = 2
            stamp(k, 7)
    stamp(k, 9)
    k("s_waitcnt vmcnt(0)")
    k("v_xor_b32 v245, s48, v245")
    k("v_xor_b32 v246, s48, v246")
    k("v_or_b32 v245, v245, v246")
    k("v_cmp_ne_u32 vcc, 0, v245")
    k("s_nop 4")
    k("s_cbranch_vccz L_g2_zok")
    k("s_mov_b32 s46, 0")
    wait_flags2(k, 60, [((44,), 32), ((45,), 8)], 48, 248, 49, 46)
    k.label("L_g2_zok")
    stamp(k, 10)
    k("buffer_load_dwordx4 v[148:151], v240, s[56:59], 0 offen sc1")
    k("buffer_load_dwordx4 v[152:155], v241, s[56:59], 0 offen sc1")
    k("buffer_load_dword v11, v242, s[36:39], 0 offen sc1")
    for tp in range(1, 4):
        k(f"s_xor_b32 s34, s14, {tp}")
        k("s_mul_i32 s34, s34, 12288")
        k(f"v_add_u32 v4, s34, v3")
        for q in range(4):
            k(f"ds_write_b128 v4, {vr(ACC + 16*tp + 4*q, 4)} offset:{RED + 4096*(tp-1) + 1024*q}")
    with k.sched():
        k("v_lshrrev_b32 v5, 5, v1")
        k("v_bfe_u32 v6, v1, 2, 2")
        k("v_lshl_add_u32 v5, v5, 2, v6")
        k("v_lshlrev_b32 v5, 7, v5")
        k("v_bfe_u32 v6, v1, 4, 1")
        k("v_lshl_add_u32 v5, v6, 5, v5")
        k("v_and_b32 v7, 3, v1")
        k("v_lshl_add_u32 v5, v7, 3, v5")
        k("s_lshl_b32 s46, s28, 12\n s_lshl_b32 s47, s29, 6\n s_add_u32 s46, s46, s47")
        k("v_add_u32 v5, s46, v5")
        k("v_and_b32 v8, 31, v1")
        k("s_lshl_b32 s30, s29, 5")
        k("v_add_u32 v8, s30, v8")
        k("v_bfe_u32 v9, v8, 1, 3")
        k("s_lshl_b32 s31, s28, 2")
        k("v_xor_b32 v9, s31, v9")
        k("v_lshlrev_b32 v10, 7, v8")
        k("v_lshrrev_b32 v12, 5, v1")
        k("v_lshl_add_u32 v10, v12, 3, v10")
        for q in range(4):
            k(f"v_xor_b32 v{96+q}, {q}, v9")
            k(f"v_lshl_add_u32 v{96+q}, v{96+q}, 4, v10")
        k("s_mul_i32 s34, s14, 12288")
        k("v_add_u32 v4, s34, v3")
        k("s_lshl_b32 s35, s14, 11")
        k(f"s_add_u32 s35, s35, {OL}")
        k("v_and_b32 v13, 31, v1")
        k("v_bfe_u32 v14, v13, 1, 2")
        k("v_lshlrev_b32 v13, 6, v13")
        k("v_lshl_add_u32 v13, v12, 3, v13")
        k("v_add_u32 v13, s35, v13")
        for q in range(4):
            k(f"v_xor_b32 v{100+q}, {q}, v14")
            k(f"v_lshl_add_u32 v{100+q}, v{100+q}, 4, v13")
        k("v_add_u32 v104, s35, v3")
        k("v_bfe_u32 v105, v1, 3, 2")
        k("v_xor_b32 v105, v105, v1")
        k("v_and_b32 v105, 3, v105")
        k("v_lshrrev_b32 v106, 2, v1")
        k("s_lshl_b32 s32, s12, 6\n s_add_u32 s32, s32, s30")
        k("v_add_u32 v106, s32, v106")
        k("v_mul_u32_u24 v106, 896, v106")
        k("v_lshl_add_u32 v106, v105, 4, v106")
        k("s_lshl_b32 s33, s13, 7\n s_lshl_b32 s40, s28, 6\n s_add_u32 s33, s33, s40")
        k("v_add_u32 v106, s33, v106")
        k(f"v_add_u32 v107, {16*896}, v106")
    k("s_lshl_b32 s34, s14, 11")
    k(f"s_add_u32 s34, s34, {ZL}")
    k("v_add_u32 v15, s34, v3")
    k("s_waitcnt vmcnt(0)")
    k("ds_write_b128 v15, v[148:151]")
    k("ds_write_b128 v15, v[152:155] offset:1024")
    k("s_waitcnt lgkmcnt(0)")
    k("s_barrier")
    for sl in range(3):
        for q in range(4):
            k(f"ds_read_b128 {vr(112 + 16*sl + 4*q, 4)}, v4 offset:{RED + 4096*sl + 1024*q}")
    for q in range(4):
        k(f"ds_read_b64_tr_b16 {vr(80 + 2*q, 2)}, v5 offset:{ZL + 1024*q}")
    k("s_waitcnt lgkmcnt(4)")
    for q in range(4):
        k(f"ds_read_b64 {vr(88 + 2*q, 2)}, v{96+q} offset:{XL}")
    with k.sched():
        for r in range(16):
            k(f"v_add_f32 v{ACC + r}, v{ACC + r}, v{112 + r}")
            k(f"v_add_f32 v{128 + r}, v{128 + r}, v{144 + r}")
            k(f"v_add_f32 v{ACC + r}, v{ACC + r}, v{128 + r}")
    k("s_waitcnt lgkmcnt(0)")
    with k.sched():
        for j in range(8):
            a = 112 + 2*j; b = 128 + 2*j
            k(f"v_lshlrev_b32 v{a}, 16, v{88 + j}")
            k(f"v_and_b32 v{a+1}, 0xffff0000, v{88 + j}")
            k(f"v_lshlrev_b32 v{b}, 16, v{80 + j}")
            k(f"v_and_b32 v{b+1}, 0xffff0000, v{80 + j}")
            k(f"v_add_f32 v{a}, v{a}, v{b}")
            k(f"v_add_f32 v{a+1}, v{a+1}, v{b+1}")
            k(f"v_fma_f32 v{a}, v{ACC + 2*j}, v11, v{a}")
            k(f"v_fma_f32 v{a+1}, v{ACC + 2*j + 1}, v11, v{a+1}")
            k(f"v_cvt_pk_bf16_f32 v{144 + j}, v{a}, v{a+1}")
    for q in range(4):
        k(f"ds_write_b64 v{100+q}, {vr(144 + 2*q, 2)}")
    k("s_waitcnt lgkmcnt(0)")
    k("ds_read_b128 v[112:115], v104")
    k("ds_read_b128 v[116:119], v104 offset:1024")
    k("s_waitcnt lgkmcnt(0)")
    k("buffer_store_dwordx4 v[112:115], v106, s[20:23], 0 offen")
    k("buffer_store_dwordx4 v[116:119], v107, s[20:23], 0 offen")
    stamp(k, 11)
    stamp_flush(k, 0, 8)
    k("s_endpgm")

def kd(name, vgpr, sgpr=102):
    return f""".amdhsa_kernel {name}
  .amdhsa_next_free_vgpr {vgpr}
  .amdhsa_next_free_sgpr {sgpr}
  .amdhsa_accum_offset {vgpr}
  .amdhsa_group_segment_fixed_size 0
  .amdhsa_kernarg_size 120
  .amdhsa_user_sgpr_count 2
  .amdhsa_user_sgpr_kernarg_segment_ptr 1
  .amdhsa_system_sgpr_workgroup_id_x 1
.end_amdhsa_kernel
"""

def header(launches):
    h = open("cdna_kernels/" + NAME + ".s.ref").read().split("; Override")[0]
    for (kn, g, b, lds) in launches:
        if len(launches) == 1 and PLAIN: h += f"; @launch grid=({g},1,1) block=({b},1,1) lds={lds}\n"
        else: h += f"; @launch kernel={kn} grid=({g},1,1) block=({b},1,1) lds={lds}\n"
    h += '.amdgcn_target "amdgcn-amd-amdhsa--gfx950"\n.text\n'
    return h

def kern_text(name, k):
    return f".globl {name}\n.p2align 8\n.type {name},@function\n{name}:\n" + k.text()

def main(path):
    K1 = NAME + "_kernel"
    k1 = Kern()
    k1("s_cmp_lt_u32 s2, 224")
    k1("s_cbranch_scc1 L_g1")
    k1("s_cmp_lt_u32 s2, 256")
    k1("s_cbranch_scc1 L_lna")
    k1("s_cmp_lt_u32 s2, 480")
    k1("s_cbranch_scc1 L_s")
    k1("s_cmp_lt_u32 s2, 512")
    k1("s_cbranch_scc1 L_lnb")
    k1("s_endpgm")
    k1.label("L_lna")
    k1("s_sub_u32 s3, s2, 224")
    k1("s_branch L_ln")
    k1.label("L_lnb")
    k1("s_sub_u32 s3, s2, 448")
    k1.label("L_ln")
    role_ln(k1)
    k1.label("L_g1")
    k1("s_mov_b32 s3, s2")
    role_g1(k1)
    k1.label("L_s")
    k1("s_sub_u32 s3, s2, 256")
    role_s(k1)
    launches = [(K1, 512, 256, 81920)]
    txt = header(launches)
    txt += kern_text(K1, k1)
    txt += '.section .rodata,"a"\n.p2align 6\n' + kd(K1, 256)
    open(path, "w").write(txt)

if __name__ == "__main__":
    for a in list(sys.argv):
        if a.startswith("--exp="):
            EXP = a[6:].split(","); sys.argv.remove(a)
    for a in list(sys.argv):
        if a.startswith("--prio="):
            PRIO = [int(x) for x in a[7:].split(",")]; sys.argv.remove(a)
    if "--plain" in sys.argv:
        PLAIN = True; sys.argv.remove("--plain")
    if "--stamp" in sys.argv:
        STAMP = True; sys.argv.remove("--stamp")
    main(sys.argv[1] if len(sys.argv) > 1 else "cdna_kernels/" + NAME + ".s")
```

```python
import sys
from asmlib import Kern

NAME = "parallel_sum__ssm_conv_s4__dense_activation_relu__prompt"

XT_OFF = 0x000000
RS_OFF = 0x1C0000
HF_OFF = 0x400000
W2F_OFF = 0xC00000
ZT_OFF = 0xE00000
FL_OFF = 0x1000000
TS_OFF = 0x1100000
XT_SZ = 64 * 448 * 64
RS_SZ = 2048 * 4
HF_SZ = 64 * 112 * 1024
W2F_SZ = 112 * 14 * 1024
ZT_SZ = 448 * 4096
FL_SZ = 0x10000
FL_LN = 0
FL_W2 = 4096
FL_H = 5120
FL_Z = 9216

STAMP = False
PRIO = [3, 1, 0, 2]
PLAIN = False
EXP = []
SPIN_LIMIT = 200000

def srd(k, d, lo, hi, size, off=0):
    if off:
        k(f"s_add_u32 s{d}, s{lo}, {off}")
        k(f"s_addc_u32 s{d+1}, s{hi}, 0")
    else:
        k(f"s_mov_b32 s{d}, s{lo}")
        k(f"s_mov_b32 s{d+1}, s{hi}")
    k(f"s_mov_b32 s{d+2}, {size}")
    k(f"s_mov_b32 s{d+3}, 0x00020000")

def vr(a, n=1):
    return f"v{a}" if n == 1 else f"v[{a}:{a+n-1}]"

def stamp(k, i):
    if not STAMP: return
    if i == 8: k("s_memrealtime s[96:97]")
    else:
        j = i if i < 8 else i - 1
        k(f"s_memtime s[{72+2*j}:{73+2*j}]")

def stamp_flush(k, kern_idx, n):
    if not STAMP: return
    k("s_memrealtime s[98:99]")
    k("s_waitcnt lgkmcnt(0)")
    k("s_load_dwordx2 s[68:69], s[0:1], 112")
    k("s_waitcnt lgkmcnt(0)")
    k(f"s_add_u32 s64, s68, {TS_OFF + kern_idx * 0x10000}")
    k("s_addc_u32 s65, s69, 0")
    k("s_mov_b32 s66, 0x10000")
    k("s_mov_b32 s67, 0x00020000")
    k("s_lshl_b32 s68, s2, 6")
    k("v_cmp_eq_u32 vcc, 0, v0")
    k("s_and_saveexec_b64 s[70:71], vcc")
    k("v_mov_b32 v1, s68")
    for i in range(12):
        k(f"v_mov_b32 v2, s{72+2*i}")
        k(f"buffer_store_dword v2, v1, s[64:67], 0 offen offset:{4*i}")
    k("s_getreg_b32 s69, hwreg(HW_REG_HW_ID)")
    k("v_mov_b32 v2, s69")
    k("buffer_store_dword v2, v1, s[64:67], 0 offen offset:48")
    k("s_getreg_b32 s69, hwreg(HW_REG_XCC_ID)")
    k("v_mov_b32 v2, s69")
    k("buffer_store_dword v2, v1, s[64:67], 0 offen offset:52")
    k("v_mov_b32 v2, s96")
    k("buffer_store_dword v2, v1, s[64:67], 0 offen offset:56")
    k("v_mov_b32 v2, s98")
    k("buffer_store_dword v2, v1, s[64:67], 0 offen offset:60")
    k("s_mov_b64 exec, s[70:71]")

_uid = [0]
def uid(p):
    _uid[0] += 1
    return f"L_{p}{_uid[0]}"

def get_nonce(k, dbg_srd, sdst, vtmp):
    L = uid("nonce"); E = uid("nonce_e")
    k(f"v_mov_b32 v{vtmp}, 0")
    k(f"s_mov_b32 s{sdst+1}, 0")
    k.label(L)
    k(f"buffer_load_dword v{vtmp+1}, v{vtmp}, s[{dbg_srd}:{dbg_srd+3}], 0 offen sc1")
    k("s_waitcnt vmcnt(0)")
    k(f"v_readfirstlane_b32 s{sdst}, v{vtmp+1}")
    k("s_nop 3")
    k(f"s_cmp_lg_u32 s{sdst}, 0")
    k(f"s_cbranch_scc1 {E}")
    k(f"s_add_u32 s{sdst+1}, s{sdst+1}, 1")
    k(f"s_cmp_lt_u32 s{sdst+1}, {SPIN_LIMIT}")
    k("s_sleep 1")
    k(f"s_cbranch_scc1 {L}")
    k.label(E)

def wait_flags(k, fl_srd, base_off, stride_shift, nflags, snonce, vtmp, scnt, wave0=None):
    L = uid("wf"); E = uid("wf_e")
    if wave0 is not None:
        k(f"s_cmp_lg_u32 s{wave0}, 0")
        k(f"s_cbranch_scc1 {E}")
    k(f"v_and_b32 v{vtmp}, 63, v0")
    k(f"v_min_u32 v{vtmp}, {nflags - 1}, v{vtmp}")
    k(f"v_lshlrev_b32 v{vtmp}, {stride_shift}, v{vtmp}")
    k(f"v_add_u32 v{vtmp}, {base_off}, v{vtmp}") if isinstance(base_off, int) else k(f"v_add_u32 v{vtmp}, s{base_off[0]}, v{vtmp}")
    k(f"s_mov_b32 s{scnt}, 0")
    k.label(L)
    k(f"buffer_load_dword v{vtmp+1}, v{vtmp}, s[{fl_srd}:{fl_srd+3}], 0 offen sc1")
    k("s_waitcnt vmcnt(0)")
    k(f"v_cmp_ne_u32 vcc, s{snonce}, v{vtmp+1}")
    k("s_nop 4")
    k(f"s_cbranch_vccz {E}")
    k(f"s_add_u32 s{scnt}, s{scnt}, 1")
    k(f"s_cmp_lt_u32 s{scnt}, {SPIN_LIMIT}")
    k("s_sleep 2")
    k(f"s_cbranch_scc1 {L}")
    k.label(E)

def signal(k, fl_srd, soff, snonce, vtmp, imm=0):
    k("s_waitcnt vmcnt(0)")
    k("s_barrier")
    k("v_cmp_eq_u32 vcc, 0, v0")
    k("s_and_saveexec_b64 s[44:45], vcc")
    k(f"s_add_u32 s{soff}, s{soff}, {imm}")
    k(f"v_mov_b32 v{vtmp}, s{soff}")
    k(f"v_mov_b32 v{vtmp+1}, s{snonce}")
    k(f"buffer_store_dword v{vtmp+1}, v{vtmp}, s[{fl_srd}:{fl_srd+3}], 0 offen sc1")
    k("s_mov_b64 exec, s[44:45]")

def wait_flags2(k, fl_srd, sets, snonce, vtmp, scnt, wave0):
    L = uid("wf"); E = uid("wf_e")
    k(f"s_cmp_lg_u32 s{wave0}, 0")
    k(f"s_cbranch_scc1 {E}")
    n = len(sets)
    for i, (base_off, nflags) in enumerate(sets):
        v = vtmp + 2*i
        k(f"v_and_b32 v{v}, 63, v0")
        k(f"v_min_u32 v{v}, {nflags - 1}, v{v}")
        k(f"v_lshlrev_b32 v{v}, 4, v{v}")
        k(f"v_add_u32 v{v}, {base_off}, v{v}") if isinstance(base_off, int) else k(f"v_add_u32 v{v}, s{base_off[0]}, v{v}")
    k(f"s_mov_b32 s{scnt}, 0")
    k.label(L)
    for i in range(n):
        k(f"buffer_load_dword v{vtmp+2*i+1}, v{vtmp+2*i}, s[{fl_srd}:{fl_srd+3}], 0 offen sc1")
    k("s_waitcnt vmcnt(0)")
    for i in range(1, n):
        k(f"v_xor_b32 v{vtmp+2*i+1}, s{snonce}, v{vtmp+2*i+1}")
    k(f"v_xor_b32 v{vtmp+1}, s{snonce}, v{vtmp+1}")
    for i in range(1, n):
        k(f"v_or_b32 v{vtmp+1}, v{vtmp+1}, v{vtmp+2*i+1}")
    k(f"v_cmp_ne_u32 vcc, 0, v{vtmp+1}")
    k("s_nop 4")
    k(f"s_cbranch_vccz {E}")
    k(f"s_add_u32 s{scnt}, s{scnt}, 1")
    k(f"s_cmp_lt_u32 s{scnt}, {SPIN_LIMIT}")
    k("s_sleep 1")
    k(f"s_cbranch_scc1 {L}")
    k.label(E)

def role_g1(k):
    stamp(k, 8); stamp(k, 0)
    k("s_load_dwordx2 s[4:5], s[0:1], 0")
    k(f"s_setprio {PRIO[0]}")
    k("s_load_dwordx2 s[6:7], s[0:1], 80")
    k("s_load_dwordx2 s[8:9], s[0:1], 112")
    k("s_load_dwordx2 s[50:51], s[0:1], 104")
    k("s_and_b32 s10, s3, 7")
    k("s_lshr_b32 s11, s3, 3")
    k("s_and_b32 s30, s11, 3")
    k("s_lshr_b32 s31, s11, 2")
    k("s_lshr_b32 s12, s10, 1")
    k("s_lshl_b32 s12, s12, 2")
    k("s_add_u32 s12, s12, s30")
    k("s_and_b32 s13, s10, 1")
    k("s_mul_i32 s13, s13, 7")
    k("s_add_u32 s13, s13, s31")
    k("s_mul_i32 s32, s30, 7\n s_add_u32 s32, s32, 1\n s_lshr_b32 s32, s32, 1")
    k("s_lshl_b32 s31, s31, 1\n s_add_u32 s45, s32, s31")
    k("s_cmp_ge_u32 s45, 14\n s_cselect_b32 s32, 14, 0\n s_sub_u32 s45, s45, s32")
    if "norot" in EXP: k("s_mov_b32 s45, 0")
    k("v_and_b32 v1, 63, v0")
    k("v_lshrrev_b32 v2, 6, v0")
    k("v_readfirstlane_b32 s14, v2")
    k("s_and_b32 s15, s14, 1")
    k("s_lshr_b32 s28, s14, 1")
    k("s_lshl_b32 s29, s14, 11")
    VX0, VX1, VW0, VW1 = 4, 5, 6, 7
    with k.sched():
        k("s_lshl_b32 s30, s12, 7")
        k("s_lshl_b32 s31, s14, 5")
        k("s_add_u32 s30, s30, s31")
        k("v_lshrrev_b32 v3, 2, v1")
        k("v_add_u32 v3, s30, v3")
        k("v_mul_u32_u24 v3, 896, v3")
        k("v_lshrrev_b32 v8, 4, v1")
        k("v_xor_b32 v9, v1, v8")
        k("v_and_b32 v9, 3, v9")
        k(f"v_lshl_add_u32 v{VX0}, v9, 4, v3")
        k(f"v_add_u32 v{VX1}, 14336, v{VX0}")
        k("s_lshl_b32 s33, s14, 3")
        k("v_add_u32 v10, s33, v8")
        k("v_mul_u32_u24 v10, 3584, v10")
        k("v_lshlrev_b32 v11, 2, v8")
        k("v_xor_b32 v11, v1, v11")
        k("v_and_b32 v11, 15, v11")
        k("v_lshl_add_u32 v10, v11, 4, v10")
        k("s_lshl_b32 s34, s13, 8")
        k(f"v_add_u32 v{VW0}, s34, v10")
        k(f"v_add_u32 v{VW1}, 14336, v{VW0}")
    k("s_memrealtime s[46:47]")
    k("s_waitcnt lgkmcnt(0)")
    srd(k, 16, 4, 5, 2048 * 896)
    srd(k, 20, 6, 7, 448 * 3584)
    srd(k, 24, 8, 9, HF_SZ, HF_OFF)
    srd(k, 52, 50, 51, 256)
    srd(k, 60, 8, 9, FL_SZ, FL_OFF)
    k("s_cmp_lg_u32 s3, 0")
    k("s_cbranch_scc1 L_g1_nn")
    k("s_or_b32 s46, s46, 1")
    k("v_cmp_eq_u32 vcc, 0, v0")
    k("s_and_saveexec_b64 s[30:31], vcc")
    k("v_mov_b32 v100, 0")
    k("v_mov_b32 v101, s46")
    k("buffer_store_dword v101, v100, s[52:55], 0 offen sc1")
    k("s_mov_b64 exec, s[30:31]")
    k("s_waitcnt vmcnt(0)")
    k.label("L_g1_nn")
    k("v_mov_b32 v176, 0")
    k("buffer_load_dword v177, v176, s[52:55], 0 offen sc1")
    def set_stage():
        k("s_mul_i32 s40, s45, 114688")
        k("s_lshl_b32 s41, s45, 6")
    def adv_stage():
        k("s_add_u32 s45, s45, 1\n s_cmp_eq_u32 s45, 14\n s_cselect_b32 s45, 0, s45")
    def dma_w(j, slot):
        k(f"s_add_u32 m0, s29, {16384*slot + 1024*j}")
        k(f"buffer_load_dwordx4 v{[VW0, VW1][j]}, s[20:23], s40 offen lds")
    def dma_x(j, slot):
        k(f"s_add_u32 m0, s29, {16384*slot + 8192 + 1024*j}")
        k(f"buffer_load_dwordx4 v{[VX0, VX1][j]}, s[16:19], s41 offen lds")
    for s in range(3):
        set_stage(); dma_w(0, s); dma_w(1, s); dma_x(0, s); dma_x(1, s); adv_stage()
    set_stage(); dma_w(0, 3); dma_w(1, 3)
    AA = [10, 11]; BB0 = [12, 13]; BB1 = [14, 15]
    AAh = [16, 17]; BB0h = [18, 19]; BB1h = [20, 21]
    with k.sched():
        k("v_lshrrev_b32 v3, 5, v1")
        k("v_bfe_u32 v8, v1, 2, 2")
        k("v_lshl_add_u32 v3, v3, 3, v8")
        k("v_lshlrev_b32 v3, 8, v3")
        k("v_bfe_u32 v9, v1, 4, 1")
        k("v_lshlrev_b32 v9, 1, v9")
        k("v_bfe_u32 v22, v1, 1, 1")
        k("v_add_u32 v9, v9, v22")
        k("v_lshl_add_u32 v3, v9, 4, v3")
        k("v_and_b32 v22, 1, v1")
        k("v_lshl_add_u32 v3, v22, 3, v3")
        for ai in range(2):
            k(f"s_xor_b32 s{30+ai}, s28, {ai}")
            k(f"s_lshl_b32 s{32+ai}, s15, 1")
            k(f"s_add_u32 s{30+ai}, s{30+ai}, s{32+ai}")
            k(f"v_xor_b32 v{24+ai}, s{30+ai}, v8")
            k(f"v_lshl_add_u32 v{AA[ai]}, v{24+ai}, 6, v3")
            k(f"v_add_u32 v{AAh[ai]}, 65536, v{AA[ai]}")
        k("v_and_b32 v26, 31, v1")
        k("v_lshrrev_b32 v27, 5, v1")
        k("v_xor_b32 v27, v27, v8")
        k("v_lshlrev_b32 v27, 4, v27")
        k("v_lshl_add_u32 v26, v26, 6, v27")
        for bi in range(2):
            k(f"s_xor_b32 s{34+bi}, s15, {bi}")
            k(f"s_lshl_b32 s{34+bi}, s{34+bi}, 11")
            k(f"s_lshl_b32 s{36+bi}, s28, 12")
            k(f"s_add_u32 s{34+bi}, s{34+bi}, s{36+bi}")
            k(f"s_add_u32 s{34+bi}, s{34+bi}, 8192")
            k(f"v_add_u32 v{BB0[bi]}, s{34+bi}, v26")
            k(f"v_xor_b32 v{BB1[bi]}, 32, v{BB0[bi]}")
            k(f"v_add_u32 v{BB0h[bi]}, 65536, v{BB0[bi]}")
            k(f"v_add_u32 v{BB1h[bi]}, 65536, v{BB1[bi]}")
    SEL = 160; SW = 164; SX = 168
    k("v_and_b32 v22, 15, v1")
    k("v_bfe_u32 v23, v1, 4, 1")
    k("v_cmp_eq_u32 vcc, v22, v23")
    k("v_mov_b32 v22, 0x3f803f80")
    k(f"v_cndmask_b32 v{SEL}, 0, v22, vcc")
    for i in range(1, 4): k(f"v_mov_b32 v{SEL + i}, v{SEL}")
    for i in range(4):
        k(f"v_mov_b32 v{SW + i}, 0")
        k(f"v_mov_b32 v{SX + i}, 0")
    FR = [24, 40]
    ACC = 56
    for i in range(64): k(f"v_mov_b32 v{ACC + i}, 0")
    def rdA(slot, kap, fs, ai):
        if "nords" in EXP: return
        hi = slot >= 4; sb = 0 if hi else slot * 16384
        a_ = (AAh if hi else AA)[ai]
        k(f"ds_read_b64_tr_b16 {vr(fs + 4*ai, 2)}, v{a_} offset:{sb + kap*4096}")
        k(f"ds_read_b64_tr_b16 {vr(fs + 4*ai + 2, 2)}, v{a_} offset:{sb + kap*4096 + 1024}")
    def rdB(slot, kap, fs, bi):
        if "nords" in EXP: return
        hi = slot >= 4; sb = 0 if hi else slot * 16384
        b_ = ((BB1h if hi else BB1) if kap else (BB0h if hi else BB0))[bi]
        k(f"ds_read_b128 {vr(fs + 8 + 4*bi, 4)}, v{b_} offset:{sb}")
    def mf(fs, ai, bi):
        if "nomf" in EXP: return
        c = ACC + (2*ai + bi) * 16
        k(f"v_mfma_f32_32x32x16_bf16 {vr(c,16)}, {vr(fs + 4*ai,4)}, {vr(fs + 8 + 4*bi,4)}, {vr(c,16)}")
    def sums(fs, which):
        if "nomf" in EXP: return
        src = fs if which == 0 else fs + 8
        dst = SW if which == 0 else SX
        k(f"v_mfma_f32_16x16x32_bf16 {vr(dst,4)}, {vr(src,4)}, {vr(SEL,4)}, {vr(dst,4)}")
    def stage_body(slot, cd, ab, wait, last=False):
        nslot = (slot + 1) % 5
        k("s_waitcnt lgkmcnt(0)")
        mf(FR[0], 0, 0)
        rdA(slot, 1, FR[1], 0); rdB(slot, 1, FR[1], 0)
        mf(FR[0], 0, 1)
        rdA(slot, 1, FR[1], 1); rdB(slot, 1, FR[1], 1)
        sums(FR[0], 0)
        if cd: dma_x(0, (slot + 3) % 5)
        mf(FR[0], 1, 0)
        if cd: dma_x(1, (slot + 3) % 5)
        sums(FR[0], 1)
        if cd: adv_stage(); set_stage()
        mf(FR[0], 1, 1)
        if not last:
            k(f"s_waitcnt vmcnt({wait}) lgkmcnt(0)")
            k("s_barrier")
        else:
            k("s_waitcnt lgkmcnt(0)")
        mf(FR[1], 0, 0)
        if not last: rdA(nslot, 0, FR[0], 0); rdB(nslot, 0, FR[0], 0)
        mf(FR[1], 0, 1)
        if not last: rdA(nslot, 0, FR[0], 1); rdB(nslot, 0, FR[0], 1)
        sums(FR[1], 0)
        if ab: dma_w(0, (slot + 4) % 5)
        mf(FR[1], 1, 0)
        if ab: dma_w(1, (slot + 4) % 5)
        sums(FR[1], 1)
        mf(FR[1], 1, 1)
    k("s_mov_b32 s44, 0")
    stamp(k, 1)
    k("s_waitcnt vmcnt(10)")
    k("s_barrier")
    stamp(k, 2)
    for ai in range(2): rdA(0, 0, FR[0], ai)
    for bi in range(2): rdB(0, 0, FR[0], bi)
    k.label("L_g1_loop")
    for sl in range(5): stage_body(sl, True, True, 8)
    k("s_add_u32 s44, s44, 1")
    k("s_cmp_lt_u32 s44, 2")
    k("s_cbranch_scc1 L_g1_loop")
    stage_body(0, True, False, 8)
    stage_body(1, False, False, 4)
    stage_body(2, False, False, 0)
    stage_body(3, False, False, 0, last=True)
    stamp(k, 3)
    k("s_waitcnt lgkmcnt(0)")
    k("s_barrier")
    k("s_nop 7")
    for r in range(4): k(f"v_mul_f32 v{SX + r}, 0x3b124925, v{SX + r}")
    k(f"v_cvt_pk_bf16_f32 v24, v{SX}, v{SX+1}")
    k(f"v_cvt_pk_bf16_f32 v25, v{SX+2}, v{SX+3}")
    k(f"v_lshlrev_b32 v{SX}, 16, v24")
    k(f"v_and_b32 v{SX+1}, 0xffff0000, v24")
    k(f"v_lshlrev_b32 v{SX+2}, 16, v25")
    k(f"v_and_b32 v{SX+3}, 0xffff0000, v25")
    k("v_and_b32 v3, 1, v1")
    k("v_lshlrev_b32 v3, 6, v3")
    k("v_lshrrev_b32 v8, 4, v1")
    k("v_lshl_add_u32 v3, v8, 4, v3")
    k("s_lshl_b32 s30, s28, 1\n s_add_u32 s30, s30, s15\n s_lshl_b32 s30, s30, 7")
    k("s_lshl_b32 s31, s15, 1\n s_add_u32 s31, s31, s28\n s_lshl_b32 s31, s31, 7\n s_add_u32 s31, s31, 512")
    k("v_add_u32 v8, s30, v3")
    k("v_add_u32 v9, s31, v3")
    k("v_and_b32 v10, 15, v1")
    k("v_cmp_gt_u32 vcc, 2, v10")
    k("s_and_saveexec_b64 s[46:47], vcc")
    k(f"ds_write_b128 v8, {vr(SX,4)}")
    k(f"ds_write_b128 v9, {vr(SW,4)}")
    k("s_mov_b64 exec, s[46:47]")
    k("v_and_b32 v3, 31, v1")
    k("v_lshlrev_b32 v3, 2, v3")
    for bi in range(2):
        k(f"s_xor_b32 s30, s15, {bi}\n s_lshl_b32 s31, s28, 1\n s_add_u32 s30, s30, s31\n s_lshl_b32 s30, s30, 7")
        k(f"v_add_u32 v{10+bi}, s30, v3")
    for ai in range(2):
        k(f"s_xor_b32 s30, s28, {ai}\n s_lshl_b32 s31, s15, 1\n s_add_u32 s30, s30, s31\n s_lshl_b32 s30, s30, 7\n s_add_u32 s30, s30, 512")
        k(f"v_add_u32 v{12+ai}, s30, v3")
    for bi in range(2):
        k(f"s_xor_b32 s{36+bi}, s15, {bi}\n s_lshl_b32 s31, s28, 1\n s_add_u32 s{36+bi}, s{36+bi}, s31\n s_lshl_b32 s31, s12, 2\n s_add_u32 s{36+bi}, s{36+bi}, s31\n s_mul_i32 s{36+bi}, s{36+bi}, {112*1024}")
    for ai in range(2):
        k(f"s_xor_b32 s{38+ai}, s28, {ai}\n s_lshl_b32 s31, s15, 1\n s_add_u32 s{38+ai}, s{38+ai}, s31\n s_lshl_b32 s31, s13, 2\n s_add_u32 s{38+ai}, s{38+ai}, s31\n s_lshl_b32 s{38+ai}, s{38+ai}, 11")
    for i in range(16): k(f"v_mov_b32 v{24 + i}, 0")
    k("v_cmp_gt_u32 vcc, 32, v1")
    k("s_mov_b64 s[42:43], vcc")
    k("v_readfirstlane_b32 s48, v177")
    k("s_nop 3")
    k("s_cmp_lg_u32 s48, 0")
    k("s_cbranch_scc1 L_g1_haven")
    get_nonce(k, 52, 48, 48)
    k.label("L_g1_haven")
    k("v_min_u32 v48, 55, v1")
    k("v_lshlrev_b32 v48, 4, v48")
    k(f"v_add_u32 v48, {FL_W2}, v48")
    k("buffer_load_dword v49, v48, s[60:63], 0 offen sc1")
    k("s_waitcnt lgkmcnt(0)")
    k("s_barrier")
    for bi in range(2): k(f"ds_read_b32 v{40+bi}, v{10+bi}")
    for ai in range(2): k(f"ds_read_b32 v{42+ai}, v{12+ai}")
    k("v_lshlrev_b32 v3, 4, v1")
    k("s_waitcnt lgkmcnt(0)")
    with k.sched():
        for bi in range(2):
            k(f"v_cvt_pk_bf16_f32 v{44+bi}, -v{40+bi}, -v{40+bi}")
            k(f"v_cndmask_b32 v{32 + 4*bi}, 0, v{44+bi}, s[42:43]")
        for ai in range(2):
            k(f"v_cvt_pk_bf16_f32 v{46+ai}, v{42+ai}, v{42+ai}")
            k(f"v_lshlrev_b32 v{46+ai}, 16, v{46+ai}")
            k(f"v_sub_f32 v{46+ai}, v{42+ai}, v{46+ai}")
            k(f"v_cvt_pk_bf16_f32 v{46+ai}, v{42+ai}, v{46+ai}")
            k(f"v_cndmask_b32 v{24 + 4*ai}, 0, v{46+ai}, s[42:43]")
    for ai in range(2):
        for bi in range(2):
            c = ACC + (2*ai + bi) * 16
            k(f"v_mfma_f32_32x32x16_bf16 {vr(c,16)}, {vr(24 + 4*ai,4)}, {vr(32 + 4*bi,4)}, {vr(c,16)}")
    g2_setup(k)
    for ai in range(2):
        for bi in range(2):
            c = ACC + (2*ai + bi) * 16
            t = 24 + 8*((2*ai + bi) & 1)
            for j in range(8):
                k(f"v_cvt_pk_bf16_f32 v{t + j}, v{c + 2*j}, v{c + 2*j + 1}")
            for j in range(8):
                k(f"v_pk_max_i16 v{t + j}, v{t + j}, 0")
            k(f"s_add_u32 s30, s{36+bi}, s{38+ai}")
            k(f"buffer_store_dwordx4 {vr(t,4)}, v3, s[24:27], s30 offen sc1")
            k(f"buffer_store_dwordx4 {vr(t+4,4)}, v3, s[24:27], s30 offen offset:1024 sc1")
    stamp(k, 4)
    role_g2(k)

def g2_setup(k):
    k("s_load_dwordx2 s[6:7], s[0:1], 96")
    k("s_and_b32 s10, s3, 7")
    k("s_lshr_b32 s11, s3, 3")
    k("s_and_b32 s30, s11, 3")
    k("s_lshl_b32 s65, s10, 2")
    k("s_add_u32 s64, s30, s65")
    k("s_lshr_b32 s65, s11, 2")
    k("s_and_b32 s66, s14, 1")
    k("s_lshr_b32 s67, s14, 1")
    k("s_lshl_b32 s68, s65, 2")
    if "rota" in EXP:
        k("s_and_b32 s69, s11, 3\n s_mul_i32 s69, s69, 7\n s_add_u32 s68, s68, s69")
        k("s_cmp_ge_u32 s68, 28\n s_cselect_b32 s69, 28, 0\n s_sub_u32 s68, s68, s69")
    if "norot2" in EXP: k("s_mov_b32 s68, 0")
    k("s_mov_b32 s69, s68")
    k("s_mul_i32 s30, s14, 28")
    k("s_add_u32 s30, s30, s68")
    k("s_mul_i32 s31, s30, 14\n s_lshl_b32 s32, s65, 1\n s_add_u32 s31, s31, s32")
    k("s_add_u32 s40, s31, s66\n s_lshl_b32 s40, s40, 10")
    k("s_xor_b32 s32, s66, 1\n s_add_u32 s41, s31, s32\n s_lshl_b32 s41, s41, 10")
    k("s_lshl_b32 s32, s64, 1")
    k("s_add_u32 s33, s32, s67\n s_mul_i32 s33, s33, 112\n s_add_u32 s46, s33, s30\n s_lshl_b32 s46, s46, 10")
    k("s_xor_b32 s33, s67, 1\n s_add_u32 s33, s33, s32\n s_mul_i32 s33, s33, 112\n s_add_u32 s47, s33, s30\n s_lshl_b32 s47, s47, 10")
    srd(k, 52, 8, 9, W2F_SZ, W2F_OFF)

def role_g2(k):
    ACC = 16; BR = 80; NBR = 6; NK = 28; NPRE = 11; NLDS = 8
    AP = 128; AR = 216
    RED = 0; ZL = 49152; XL = 65536 + 0; OL = 73728
    ALDS = 0
    FIRST_LDS = NPRE + 4
    k("s_waitcnt vmcnt(8)")
    k("v_cmp_ne_u32 vcc, s48, v49")
    k("s_nop 4")
    k("s_cbranch_vccz L_g2_w2ok")
    k("s_mov_b32 s44, 0")
    wait_flags2(k, 60, [(FL_W2, 56)], 48, 50, 49, 44)
    k.label("L_g2_w2ok")
    def aregs(j):
        if j < NPRE: return AP + 8*j
        return AR + 8*((j - NPRE) % 4)
    def advA(n=1):
        k("s_add_u32 s68, s68, 1\n s_cmp_eq_u32 s68, 28\n s_cselect_b32 s70, %d, 0\n s_cselect_b32 s68, 0, s68\n s_sub_u32 s70, 14336, s70" % (28*14336))
        k("s_add_u32 s40, s40, s70\n s_add_u32 s41, s41, s70")
    def loadA(j):
        f = aregs(j)
        k(f"buffer_load_dwordx4 {vr(f,4)}, v3, s[52:55], s40 offen sc1")
        k(f"buffer_load_dwordx4 {vr(f+4,4)}, v3, s[52:55], s41 offen sc1")
        advA()
    def loadA_lds(j):
        o = (j - FIRST_LDS) * 2048
        k(f"s_add_u32 m0, s34, {ALDS + o}")
        k(f"buffer_load_dwordx4 v3, s[52:55], s40 offen sc1 lds")
        k(f"s_add_u32 m0, s34, {ALDS + o + 1024}")
        k(f"buffer_load_dwordx4 v3, s[52:55], s41 offen sc1 lds")
        advA()
    def loadB(j):
        f = BR + 8*(j % NBR)
        k(f"buffer_load_dwordx4 {vr(f,4)}, v3, s[24:27], s46 offen sc1")
        k(f"buffer_load_dwordx4 {vr(f+4,4)}, v3, s[24:27], s47 offen sc1")
        k("s_add_u32 s69, s69, 1\n s_cmp_eq_u32 s69, 28\n s_cselect_b32 s71, %d, 0\n s_cselect_b32 s69, 0, s69\n s_sub_u32 s71, 1024, s71" % (28*1024))
        k("s_add_u32 s46, s46, s71\n s_add_u32 s47, s47, s71")
    NE = 3
    for j in range(NE): loadA(j)
    npre = 2*NE
    k(f"s_waitcnt vmcnt({npre})")
    k("s_barrier")
    k("s_lshl_b32 s30, s12, 8\n s_lshl_b32 s31, s13, 4\n s_add_u32 s30, s30, s31\n s_add_u32 s30, s30, %d" % FL_H)
    k("v_cmp_eq_u32 vcc, 0, v0")
    k("s_and_saveexec_b64 s[44:45], vcc")
    k("v_mov_b32 v40, s30")
    k("v_mov_b32 v41, s48")
    k("buffer_store_dword v41, v40, s[60:63], 0 offen sc1")
    k("s_mov_b64 exec, s[44:45]")
    stamp(k, 5)
    k("s_setprio %d" % PRIO[1])
    for j in range(NE, FIRST_LDS): loadA(j)
    k("s_lshl_b32 s34, s14, 14")
    srd(k, 16, 4, 5, 2048 * 896)
    srd(k, 36, 8, 9, RS_SZ, RS_OFF)
    srd(k, 56, 8, 9, ZT_SZ, ZT_OFF)
    with k.sched():
        k("v_lshrrev_b32 v4, 3, v1")
        k("s_lshl_b32 s35, s14, 4")
        k("v_add_u32 v4, s35, v4")
        k("v_lshrrev_b32 v5, 1, v4")
        k("v_xor_b32 v5, v5, v1")
        k("v_and_b32 v5, 7, v5")
        k("s_lshl_b32 s35, s64, 6")
        k("v_add_u32 v6, s35, v4")
        k("v_mul_u32_u24 v6, 896, v6")
        k("v_lshl_add_u32 v6, v5, 4, v6")
        k("s_lshl_b32 s30, s65, 7")
        k("v_add_u32 v6, s30, v6")
        k("v_xor_b32 v7, 64, v6")
        k(f"v_add_u32 v7, {8*896}, v7")
        k("s_lshl_b32 s31, s65, 6")
        k("v_add_u32 v248, s31, v4")
        k("v_lshlrev_b32 v248, 12, v248")
        k("v_and_b32 v9, 7, v1")
        k("v_lshl_add_u32 v248, v9, 4, v248")
        k("s_lshl_b32 s32, s64, 7")
        k("v_add_u32 v248, s32, v248")
        k(f"v_add_u32 v249, {8*4096}, v248")
        k("v_and_b32 v250, 31, v1")
        k("s_lshl_b32 s33, s67, 5")
        k("s_add_u32 s33, s33, s35")
        k("v_add_u32 v250, s33, v250")
        k("v_lshlrev_b32 v250, 2, v250")
        k("v_and_b32 v251, 31, v1")
        k("v_lshlrev_b32 v251, 4, v251")
        k("s_lshl_b32 s44, s65, 9")
        k(f"s_add_u32 s44, s44, {FL_Z}")
        k("v_add_u32 v251, s44, v251")
        k("v_and_b32 v252, 7, v1")
        k("v_lshlrev_b32 v252, 4, v252")
        k("s_lshl_b32 s45, s64, 7")
        k("v_add_u32 v252, s45, v252")
        k("s_lshl_b32 s33, s14, 14")
        k("v_add_u32 v253, s33, v3")
    k("s_lshl_b32 s35, s14, 11")
    k(f"s_add_u32 m0, s35, {XL}")
    k("buffer_load_dwordx4 v6, s[16:19], 0 offen lds")
    k(f"s_add_u32 m0, s35, {XL + 1024}")
    k("buffer_load_dwordx4 v7, s[16:19], 0 offen lds")
    for i in range(64): k(f"v_mov_b32 v{ACC + i}, 0")
    k("s_waitcnt lgkmcnt(0)")
    srd(k, 20, 6, 7, 2048 * 896)
    k("s_lshr_b32 s30, s64, 1\n s_lshl_b32 s30, s30, 8\n s_add_u32 s30, s30, %d" % FL_H)
    k("s_mul_i32 s31, s14, 7\n s_lshr_b32 s31, s31, 1\n s_lshl_b32 s31, s31, 4\n s_add_u32 s30, s30, s31")
    k("s_mov_b32 s33, 0")
    wait_flags2(k, 60, [((30,), 4)], 48, 8, 49, 33)
    stamp(k, 6)
    n0 = len(k.lines)
    for j in range(NBR): loadB(j)
    if "nosc1b" in EXP:
        for i in range(n0, len(k.lines)): k.lines[i] = k.lines[i].replace(" sc1", "")
    fifo = [("B", j) for j in range(NBR) for _ in range(2)]
    lfifo = []
    LAST_LDS = FIRST_LDS + NLDS
    def areg_final(j):
        if j < NPRE: return AP + 8*j
        if j < LAST_LDS: return AR + 8*((j - NPRE) % 4)
        return AP + 8*(j - LAST_LDS)
    def allowed(q, wanted):
        idx = [i for i, e in enumerate(q) if e in wanted]
        return None if not idx else len(q) - 1 - max(idx)
    def loadA_to(f):
        k(f"buffer_load_dwordx4 {vr(f,4)}, v3, s[52:55], s40 offen sc1")
        k(f"buffer_load_dwordx4 {vr(f+4,4)}, v3, s[52:55], s41 offen sc1")
        advA()
    for j in range(NK):
        want = [("B", j), ("A", j)]
        if NPRE <= j and FIRST_LDS <= j + 4 < LAST_LDS: want.append(("L", j + 4))
        n = allowed(fifo, want)
        if j <= NK - 3: k(f"s_waitcnt vmcnt({n})")
        m = allowed(lfifo, [("S", j)])
        if m is not None: k(f"s_waitcnt lgkmcnt({m})")
        fb = BR + 8*(j % NBR)
        fa = areg_final(j)
        for ti in range(2):
            for di in range(2):
                c = ACC + (2*ti + di) * 16
                k(f"v_mfma_f32_32x32x16_bf16 {vr(c,16)}, {vr(fa + 4*di,4)}, {vr(fb + 4*ti,4)}, {vr(c,16)}")
        if "g2st" in EXP and j in (0, 5, 10, 14): stamp(k, {0: 1, 5: 2, 10: 3, 14: 4}[j])
        if j == NK - 3:
            k("s_waitcnt vmcnt(0)")
            fifo.clear(); fifo.append(("B", NK - 2)); fifo.append(("B", NK - 1)); fifo_done = True
            k("v_xor_b32 v254, s48, v254")
            k("v_xor_b32 v255, s48, v255")
            k("v_or_b32 v254, v254, v255")
            k("v_cmp_ne_u32 vcc, 0, v254")
            k("s_mov_b32 s33, 0")
            k("s_nop 3")
            k("s_cbranch_vccnz L_g2_nz")
            k("buffer_load_dwordx4 v[80:83], v248, s[56:59], 0 offen sc1")
            k("buffer_load_dwordx4 v[84:87], v249, s[56:59], 0 offen sc1")
            k("buffer_load_dword v11, v250, s[36:39], 0 offen sc1")
            k("s_mov_b32 s33, 1")
            k.label("L_g2_nz")
        if j + NBR < NK:
            loadB(j + NBR); fifo += [("B", j + NBR)] * 2
        if j < NLDS:
            loadA_lds(FIRST_LDS + j); fifo += [("L", FIRST_LDS + j)] * 2
        elif j < NLDS + (NK - LAST_LDS):
            jn = LAST_LDS + (j - NLDS)
            loadA_to(areg_final(jn)); fifo += [("A", jn)] * 2
        jn = j + 4
        if j >= NPRE and FIRST_LDS <= jn < LAST_LDS:
            f = AR + 8*((jn - NPRE) % 4)
            o = (jn - FIRST_LDS) * 2048
            k(f"ds_read_b128 {vr(f,4)}, v253 offset:{ALDS + o}")
            k(f"ds_read_b128 {vr(f+4,4)}, v253 offset:{ALDS + o + 1024}")
            lfifo += [("S", jn)] * 2
        if j == NK - NBR - 1:
            k("buffer_load_dword v254, v251, s[60:63], 0 offen sc1")
            k(f"buffer_load_dword v255, v252, s[60:63], 0 offen offset:{FL_LN} sc1")
            fifo += [("F", 0)] * 2
            stamp(k, 7)
    stamp(k, 9)
    k("s_cmp_eq_u32 s33, 1")
    k("s_cbranch_scc1 L_g2_zok")
    k("s_mov_b32 s33, 0")
    wait_flags2(k, 60, [((44,), 32), ((45,), 8)], 48, 240, 49, 33)
    k("buffer_load_dwordx4 v[80:83], v248, s[56:59], 0 offen sc1")
    k("buffer_load_dwordx4 v[84:87], v249, s[56:59], 0 offen sc1")
    k("buffer_load_dword v11, v250, s[36:39], 0 offen sc1")
    k.label("L_g2_zok")
    stamp(k, 10)
    k("s_barrier")
    for tp in range(1, 4):
        k(f"s_xor_b32 s34, s14, {tp}")
        k("s_mul_i32 s34, s34, 12288")
        k(f"v_add_u32 v4, s34, v3")
        for q in range(4):
            k(f"ds_write_b128 v4, {vr(ACC + 16*tp + 4*q, 4)} offset:{RED + 4096*(tp-1) + 1024*q}")
    with k.sched():
        k("v_lshrrev_b32 v5, 5, v1")
        k("v_bfe_u32 v6, v1, 2, 2")
        k("v_lshl_add_u32 v5, v5, 2, v6")
        k("v_lshlrev_b32 v5, 7, v5")
        k("v_bfe_u32 v6, v1, 4, 1")
        k("v_lshl_add_u32 v5, v6, 5, v5")
        k("v_and_b32 v7, 3, v1")
        k("v_lshl_add_u32 v5, v7, 3, v5")
        k("s_lshl_b32 s46, s66, 12\n s_lshl_b32 s47, s67, 6\n s_add_u32 s46, s46, s47")
        k("v_add_u32 v5, s46, v5")
        k("v_and_b32 v8, 31, v1")
        k("s_lshl_b32 s30, s67, 5")
        k("v_add_u32 v8, s30, v8")
        k("v_bfe_u32 v9, v8, 1, 3")
        k("s_lshl_b32 s31, s66, 2")
        k("v_xor_b32 v9, s31, v9")
        k("v_lshlrev_b32 v10, 7, v8")
        k("v_lshrrev_b32 v12, 5, v1")
        k("v_lshl_add_u32 v10, v12, 3, v10")
        k(f"v_add_u32 v10, {XL}, v10")
        for q in range(4):
            k(f"v_xor_b32 v{96+q}, {q}, v9")
            k(f"v_lshl_add_u32 v{96+q}, v{96+q}, 4, v10")
        k("s_mul_i32 s34, s14, 12288")
        k("v_add_u32 v4, s34, v3")
        k("s_lshl_b32 s35, s14, 11")
        k(f"s_add_u32 s35, s35, {OL}")
        k("v_and_b32 v13, 31, v1")
        k("v_bfe_u32 v14, v13, 1, 2")
        k("v_lshlrev_b32 v13, 6, v13")
        k("v_lshl_add_u32 v13, v12, 3, v13")
        k("v_add_u32 v13, s35, v13")
        for q in range(4):
            k(f"v_xor_b32 v{100+q}, {q}, v14")
            k(f"v_lshl_add_u32 v{100+q}, v{100+q}, 4, v13")
        k("v_add_u32 v104, s35, v3")
        k("v_bfe_u32 v105, v1, 3, 2")
        k("v_xor_b32 v105, v105, v1")
        k("v_and_b32 v105, 3, v105")
        k("v_lshrrev_b32 v106, 2, v1")
        k("s_lshl_b32 s32, s64, 6\n s_add_u32 s32, s32, s30")
        k("v_add_u32 v106, s32, v106")
        k("v_mul_u32_u24 v106, 896, v106")
        k("v_lshl_add_u32 v106, v105, 4, v106")
        k("s_lshl_b32 s33, s65, 7\n s_lshl_b32 s40, s66, 6\n s_add_u32 s33, s33, s40")
        k("v_add_u32 v106, s33, v106")
        k(f"v_add_u32 v107, {16*896}, v106")
    k("s_lshl_b32 s34, s14, 11")
    k(f"s_add_u32 s34, s34, {ZL}")
    k("v_add_u32 v15, s34, v3")
    k("s_waitcnt vmcnt(0)")
    k("ds_write_b128 v15, v[80:83]")
    k("ds_write_b128 v15, v[84:87] offset:1024")
    k("s_waitcnt lgkmcnt(0)")
    k("s_barrier")
    for sl in range(3):
        for q in range(4):
            k(f"ds_read_b128 {vr(112 + 16*sl + 4*q, 4)}, v4 offset:{RED + 4096*sl + 1024*q}")
    for q in range(4):
        k(f"ds_read_b64_tr_b16 {vr(80 + 2*q, 2)}, v5 offset:{ZL + 1024*q}")
    k("s_waitcnt lgkmcnt(4)")
    for q in range(4):
        k(f"ds_read_b64 {vr(88 + 2*q, 2)}, v{96+q}")
    with k.sched():
        for r in range(16):
            k(f"v_add_f32 v{ACC + r}, v{ACC + r}, v{112 + r}")
            k(f"v_add_f32 v{128 + r}, v{128 + r}, v{144 + r}")
            k(f"v_add_f32 v{ACC + r}, v{ACC + r}, v{128 + r}")
    k("s_waitcnt lgkmcnt(0)")
    with k.sched():
        for j in range(8):
            a = 112 + 2*j; b = 128 + 2*j
            k(f"v_lshlrev_b32 v{a}, 16, v{88 + j}")
            k(f"v_and_b32 v{a+1}, 0xffff0000, v{88 + j}")
            k(f"v_lshlrev_b32 v{b}, 16, v{80 + j}")
            k(f"v_and_b32 v{b+1}, 0xffff0000, v{80 + j}")
            k(f"v_add_f32 v{a}, v{a}, v{b}")
            k(f"v_add_f32 v{a+1}, v{a+1}, v{b+1}")
            k(f"v_fma_f32 v{a}, v{ACC + 2*j}, v11, v{a}")
            k(f"v_fma_f32 v{a+1}, v{ACC + 2*j + 1}, v11, v{a+1}")
            k(f"v_cvt_pk_bf16_f32 v{144 + j}, v{a}, v{a+1}")
    for q in range(4):
        k(f"ds_write_b64 v{100+q}, {vr(144 + 2*q, 2)}")
    k("s_waitcnt lgkmcnt(0)")
    k("ds_read_b128 v[112:115], v104")
    k("ds_read_b128 v[116:119], v104 offset:1024")
    k("s_waitcnt lgkmcnt(0)")
    k("buffer_store_dwordx4 v[112:115], v106, s[20:23], 0 offen")
    k("buffer_store_dwordx4 v[116:119], v107, s[20:23], 0 offen")
    stamp(k, 11)
    stamp_flush(k, 0, 8)
    k("s_endpgm")


def ln8_issue(k, blk_s, xsrd):
    k(f"s_lshl_b32 s30, s{blk_s}, 3")
    k("s_lshl_b32 s31, s14, 1")
    k("s_add_u32 s30, s30, s31")
    k("v_lshrrev_b32 v36, 5, v1")
    k("v_add_u32 v36, s30, v36")
    k("v_and_b32 v37, 31, v1")
    k("v_mul_u32_u24 v38, 896, v36")
    k("v_lshl_add_u32 v38, v37, 4, v38")
    for i in range(4): k(f"v_mov_b32 v{44 + i}, 0")
    k(f"buffer_load_dwordx4 v[40:43], v38, s[{xsrd}:{xsrd+3}], 0 offen")
    k("s_mov_b32 exec_lo, 0x00ffffff\n s_mov_b32 exec_hi, 0x00ffffff")
    k(f"buffer_load_dwordx4 v[44:47], v38, s[{xsrd}:{xsrd+3}], 0 offen offset:512")
    k("s_mov_b64 exec, -1")

def ln8_compute(k, blk_s, xtsrd, rssrd, ldsbase):
    F = 48
    def red32(reg, tmp):
        k(f"v_add_f32_dpp v{reg}, v{reg}, v{reg} quad_perm:[1,0,3,2] row_mask:0xf bank_mask:0xf")
        k(f"v_add_f32_dpp v{reg}, v{reg}, v{reg} quad_perm:[2,3,0,1] row_mask:0xf bank_mask:0xf")
        k(f"v_add_f32_dpp v{reg}, v{reg}, v{reg} row_half_mirror row_mask:0xf bank_mask:0xf")
        k(f"v_add_f32_dpp v{reg}, v{reg}, v{reg} row_mirror row_mask:0xf bank_mask:0xf")
        k(f"ds_swizzle_b32 v{tmp}, v{reg} offset:0x401F")
        k("s_waitcnt lgkmcnt(0)")
        k(f"v_add_f32 v{reg}, v{reg}, v{tmp}")
    with k.sched():
        for j in range(8):
            k(f"v_lshlrev_b32 v{F + 2*j}, 16, v{40 + j}")
            k(f"v_and_b32 v{F + 2*j + 1}, 0xffff0000, v{40 + j}")
        for j in range(4): k(f"v_add_f32 v{64 + j}, v{F + j}, v{F + 4 + j}")
        for j in range(8, 16): k(f"v_add_f32 v{64 + (j & 3)}, v{64 + (j & 3)}, v{F + j}")
        k("v_add_f32 v64, v64, v65\n v_add_f32 v66, v66, v67\n v_add_f32 v64, v64, v66")
    red32(64, 65)
    k("v_mul_f32 v64, 0xbb124925, v64")
    with k.sched():
        for j in range(8): k(f"v_add_f32 v{68 + j}, v{F + j}, v64")
        k("v_mul_f32 v65, v68, v68\n v_mul_f32 v66, v69, v69")
        for j in range(2, 8): k(f"v_fmac_f32 v{65 + (j & 1)}, v{68 + j}, v{68 + j}")
    k("s_mov_b32 exec_lo, 0x00ffffff\n s_mov_b32 exec_hi, 0x00ffffff")
    with k.sched():
        for j in range(8): k(f"v_add_f32 v{68 + j}, v{F + 8 + j}, v64")
        for j in range(8): k(f"v_fmac_f32 v{65 + (j & 1)}, v{68 + j}, v{68 + j}")
    k("s_mov_b64 exec, -1")
    k("v_add_f32 v65, v65, v66")
    red32(65, 66)
    k("v_mul_f32 v65, 0x3b124925, v65")
    k("v_cvt_pk_bf16_f32 v65, v65, v64")
    k("v_and_b32 v64, 0xffff0000, v65")
    k("v_lshlrev_b32 v65, 16, v65")
    k("v_add_f32 v65, 0x3727c5ac, v65")
    k("v_cvt_pk_bf16_f32 v65, v65, v65")
    k("v_lshlrev_b32 v65, 16, v65")
    k("v_sqrt_f32 v65, v65")
    k("v_cvt_pk_bf16_f32 v65, v65, v65")
    k("v_lshlrev_b32 v65, 16, v65")
    k("v_rcp_f32 v66, v65")
    k("v_fma_f32 v67, -v65, v66, 2.0")
    k("v_mul_f32 v66, v66, v67")
    k("v_lshlrev_b32 v39, 2, v36")
    k("s_mov_b32 exec_lo, 1\n s_mov_b32 exec_hi, 1")
    k(f"buffer_store_dword v66, v39, s[{rssrd}:{rssrd+3}], 0 offen sc1")
    k("s_mov_b64 exec, -1")
    with k.sched():
        for j in range(8):
            a = F + 2*j
            k(f"v_add_f32 v{a}, v{a}, v64")
            k(f"v_add_f32 v{a+1}, v{a+1}, v64")
            k(f"v_cvt_pk_bf16_f32 v{40 + j}, v{a}, v{a+1}")
            k(f"v_lshlrev_b32 v{a}, 16, v{40 + j}")
            k(f"v_and_b32 v{a+1}, 0xffff0000, v{40 + j}")
            k(f"v_mul_f32 v{a}, v{a}, v66")
            k(f"v_mul_f32 v{a+1}, v{a+1}, v66")
            k(f"v_cvt_pk_bf16_f32 v{40 + j}, v{a}, v{a+1}")
        k("v_and_b32 v68, 7, v36")
        k("v_mul_u32_u24 v68, 960, v68")
        k("v_lshl_add_u32 v68, v37, 4, v68")
        k(f"v_add_u32 v68, {ldsbase}, v68")
        k("v_bfe_u32 v69, v1, 2, 2")
        k("v_mul_u32_u24 v69, 960, v69")
        k("v_lshrrev_b32 v70, 4, v1")
        k("v_lshl_add_u32 v69, v70, 5, v69")
        k("v_and_b32 v70, 3, v1")
        k("v_lshl_add_u32 v69, v70, 3, v69")
        k("s_lshl_b32 s44, s14, 7")
        k(f"s_add_u32 s44, s44, {ldsbase}")
        k("v_add_u32 v69, s44, v69")
        k("v_lshlrev_b32 v70, 4, v1")
    k("ds_write_b128 v68, v[40:43]")
    k("s_mov_b32 exec_lo, 0x00ffffff\n s_mov_b32 exec_hi, 0x00ffffff")
    k("ds_write_b128 v68, v[44:47] offset:512")
    k("s_mov_b64 exec, -1")
    k(f"s_mul_i32 s44, s{blk_s}, 7168")
    k("s_lshl_b32 s45, s14, 10")
    k("s_add_u32 s44, s44, s45")
    k("s_waitcnt lgkmcnt(0)")
    k("s_barrier")
    k("ds_read_b64_tr_b16 v[72:73], v69")
    k(f"ds_read_b64_tr_b16 v[74:75], v69 offset:{4*960}")
    k("ds_read_b64_tr_b16 v[76:77], v69 offset:512")
    k(f"ds_read_b64_tr_b16 v[78:79], v69 offset:{4*960 + 512}")
    k("s_waitcnt lgkmcnt(2)")
    k(f"buffer_store_dwordx4 v[72:75], v70, s[{xtsrd}:{xtsrd+3}], s44 offen sc1")
    L = uid("ln8")
    k("s_cmp_eq_u32 s14, 3")
    k(f"s_cbranch_scc1 {L}")
    k("s_add_u32 s44, s44, 4096")
    k("s_waitcnt lgkmcnt(0)")
    k(f"buffer_store_dwordx4 v[76:79], v70, s[{xtsrd}:{xtsrd+3}], s44 offen sc1")
    k.label(L)
    k("s_waitcnt lgkmcnt(0)")

def role_ln(k):
    stamp(k, 8); stamp(k, 0)
    k("s_setprio 1")
    k("s_load_dwordx2 s[4:5], s[0:1], 0")
    k("s_load_dwordx2 s[6:7], s[0:1], 88")
    k("s_load_dwordx4 s[8:11], s[0:1], 104")
    k("v_and_b32 v1, 63, v0")
    k("v_lshrrev_b32 v2, 6, v0")
    k("v_readfirstlane_b32 s14, v2")
    k("s_min_u32 s33, s3, 55")
    k("s_mul_i32 s30, s33, 28672")
    k("s_mul_i32 s31, s14, 7168")
    k("s_add_u32 s30, s30, s31")
    k("v_lshlrev_b32 v7, 4, v1")
    k("s_waitcnt lgkmcnt(0)")
    srd(k, 20, 6, 7, 1792 * 896)
    W2L = 32768
    for j in range(7):
        k(f"s_add_u32 m0, s31, {W2L + 1024*j}")
        k(f"s_add_u32 s32, s30, {1024*j}")
        k(f"buffer_load_dwordx4 v7, s[20:23], s32 offen lds")
    srd(k, 16, 4, 5, 2048 * 896)
    k("s_and_b32 s47, s3, 31")
    k("s_add_u32 s47, s47, 224")
    ln8_issue(k, 47, 16)
    srd(k, 52, 8, 9, 256)
    k("v_mov_b32 v120, 0")
    k("buffer_load_dword v121, v120, s[52:55], 0 offen sc1")
    srd(k, 24, 10, 11, XT_SZ, XT_OFF)
    srd(k, 36, 10, 11, RS_SZ, RS_OFF)
    srd(k, 40, 10, 11, W2F_SZ, W2F_OFF)
    srd(k, 56, 10, 11, FL_SZ, FL_OFF)
    with k.sched():
        k("v_lshrrev_b32 v80, 5, v1")
        k("v_bfe_u32 v81, v1, 2, 2")
        k("v_lshl_add_u32 v80, v80, 2, v81")
        k("v_mul_u32_u24 v80, 896, v80")
        k("v_bfe_u32 v82, v1, 4, 1")
        k("v_lshl_add_u32 v80, v82, 5, v80")
        k("v_and_b32 v83, 3, v1")
        k("v_lshl_add_u32 v80, v83, 3, v80")
        k(f"v_add_u32 v80, {W2L}, v80")
        k("s_lshr_b32 s30, s14, 1")
        k("s_and_b32 s31, s14, 1")
        k("s_mul_i32 s31, s31, 7")
        k(f"s_mul_i32 s32, s30, {16*896}")
        k("s_lshl_b32 s34, s31, 6")
        k("s_add_u32 s32, s32, s34")
        k("v_add_u32 v80, s32, v80")
        k("s_lshl_b32 s35, s33, 1")
        k("s_add_u32 s35, s35, s30")
        k("s_mul_i32 s35, s35, 14")
        k("s_add_u32 s35, s35, s31")
        k("s_lshl_b32 s35, s35, 10")
    k("s_waitcnt vmcnt(3)")
    k("s_barrier")
    stamp(k, 1)
    for j in range(7):
        k(f"ds_read_b64_tr_b16 {vr(84 + 4*j, 2)}, v80 offset:{64*j}")
        k(f"ds_read_b64_tr_b16 {vr(84 + 4*j + 2, 2)}, v80 offset:{64*j + 8*896}")
    k("s_waitcnt lgkmcnt(0) vmcnt(0)")
    k("v_readfirstlane_b32 s48, v121")
    k("s_cmp_ge_u32 s3, 56")
    k("s_cbranch_scc1 L_ln_now2")
    for j in range(7):
        k(f"buffer_store_dwordx4 {vr(84 + 4*j, 4)}, v7, s[40:43], s35 offen sc1")
        k(f"s_add_u32 s35, s35, 1024")
    k.label("L_ln_now2")
    k("s_cmp_lg_u32 s48, 0")
    k("s_cbranch_scc1 L_ln_haven")
    get_nonce(k, 52, 48, 112)
    k.label("L_ln_haven")
    k("s_cmp_ge_u32 s3, 32")
    k("s_cbranch_scc1 L_ln_noln")
    ln8_compute(k, 47, 24, 36, 0)
    k("s_lshl_b32 s30, s47, 4")
    signal(k, 56, 30, 48, 112, FL_LN)
    k.label("L_ln_noln")
    stamp(k, 2)
    k("s_lshl_b32 s30, s3, 4")
    signal(k, 56, 30, 48, 112, FL_W2)
    stamp(k, 3)
    if "pf" in EXP:
        wait_flags(k, 56, FL_W2, 4, 56, 48, 112, 49)
        k("s_and_b32 s30, s3, 31\n s_lshr_b32 s30, s30, 3\n s_lshr_b32 s31, s3, 5\n s_lshl_b32 s31, s31, 2\n s_add_u32 s30, s30, s31")
        k("s_lshr_b32 s31, s30, 1\n s_mul_i32 s31, s31, 28\n s_add_u32 s31, s31, s14\n s_mul_i32 s31, s31, 14336")
        k("s_and_b32 s30, s30, 1\n s_mul_i32 s30, s30, 7168\n s_add_u32 s30, s30, s31")
        k("s_mov_b32 s31, 0")
        k.label("L_ln_pf")
        for j in range(7):
            k(f"buffer_load_dwordx4 {vr(40 + 4*j, 4)}, v7, s[40:43], s30 offen offset:{1024*(j % 4)} sc1") if j < 4 else None
        k("s_add_u32 s32, s30, 4096")
        for j in range(4, 7):
            k(f"buffer_load_dwordx4 {vr(40 + 4*j, 4)}, v7, s[40:43], s32 offen offset:{1024*(j - 4)} sc1")
        k("s_add_u32 s30, s30, %d" % (4*14336))
        k("s_waitcnt vmcnt(7)")
        k("s_add_u32 s31, s31, 1")
        k("s_cmp_lt_u32 s31, 7")
        k("s_cbranch_scc1 L_ln_pf")
    stamp(k, 4)
    stamp_flush(k, 0, 4)
    k("s_endpgm")

def cmul(k, o, x, y, t):
    k(f"v_mul_f32 v{t}, v{x+1}, v{y+1}")
    k(f"v_mul_f32 v{t+1}, v{x+1}, v{y}")
    if o == x:
        k(f"v_fma_f32 v{o+1}, v{x}, v{y+1}, v{t+1}")
        k(f"v_fma_f32 v{o}, v{x}, v{y}, -v{t}")
    else:
        k(f"v_fma_f32 v{o}, v{x}, v{y}, -v{t}")
        k(f"v_fma_f32 v{o+1}, v{x}, v{y+1}, v{t+1}")

def role_s(k):
    stamp(k, 8); stamp(k, 0)
    k("s_setprio 3")
    k("s_load_dwordx16 s[56:71], s[0:1], 8")
    k("s_load_dwordx4 s[8:11], s[0:1], 104")
    k("s_load_dwordx2 s[4:5], s[0:1], 0")
    k("v_and_b32 v1, 63, v0")
    k("v_lshrrev_b32 v2, 6, v0")
    k("v_readfirstlane_b32 s14, v2")
    k("s_lshr_b32 s15, s14, 1")
    k("s_and_b32 s28, s14, 1")
    k("s_and_b32 s29, s3, 7")
    k("s_lshr_b32 s30, s3, 3")
    k("s_lshr_b32 s31, s30, 2\n s_lshl_b32 s31, s31, 3\n s_add_u32 s29, s29, s31")
    k("s_lshl_b32 s29, s29, 2\n s_and_b32 s30, s30, 3\n s_add_u32 s47, s29, s30")
    k("s_lshl_b32 s29, s47, 1")
    k("s_add_u32 s29, s29, s15")
    k("s_lshl_b32 s30, s29, 9")
    k("s_lshl_b32 s31, s28, 8")
    k("s_add_u32 s30, s30, s31")
    k("v_lshlrev_b32 v3, 2, v1")
    k("v_add_u32 v3, s30, v3")
    k("s_lshl_b32 s31, s29, 1")
    k("v_mov_b32 v4, s31")
    k("s_waitcnt lgkmcnt(0)")
    srd(k, 40, 4, 5, 2048 * 896)
    ln8_issue(k, 3, 40)
    PSZ = 448 * 512
    for i in range(6):
        srd(k, 16, 56 + 2*i, 57 + 2*i, PSZ)
        k(f"buffer_load_dword v{8 + i}, v3, s[16:19], 0 offen")
    srd(k, 20, 68, 69, 896)
    k("buffer_load_ushort v14, v4, s[20:23], 0 offen")
    srd(k, 20, 70, 71, 896)
    k("buffer_load_ushort v7, v4, s[20:23], 0 offen")
    srd(k, 52, 8, 9, 256)
    k("v_mov_b32 v190, 0")
    k("buffer_load_dword v191, v190, s[52:55], 0 offen sc1")
    srd(k, 20, 10, 11, XT_SZ, XT_OFF)
    srd(k, 24, 10, 11, ZT_SZ, ZT_OFF)
    srd(k, 36, 10, 11, FL_SZ, FL_OFF)
    srd(k, 40, 10, 11, RS_SZ, RS_OFF)
    TB = 75776; XB = 65536
    CSTR = 4160; CH = 37888
    WA = 144
    RA = 152
    GA = 160
    k("s_lshl_b32 s33, s14, 14")
    k("s_mul_i32 s31, s15, 1536")
    k(f"s_add_u32 s31, s31, {TB}")
    k("s_lshl_b32 s30, s28, 6")
    k("v_add_u32 v2, s30, v1")
    k("v_lshlrev_b32 v3, 4, v1")
    k("s_waitcnt vmcnt(9)")
    ln8_compute(k, 3, 20, 40, 65536)
    stamp(k, 11)
    with k.sched():
        k("v_and_b32 v16, 7, v1")
        k("v_lshlrev_b32 v17, 7, v1")
        k("v_add_u32 v17, s33, v17")
        for v_ in range(8):
            k(f"v_xor_b32 v{WA + v_}, {v_}, v16")
            k(f"v_lshl_add_u32 v{WA + v_}, v{WA + v_}, 4, v17")
        k("v_bfe_u32 v18, v1, 5, 1")
        k("v_bfe_u32 v19, v1, 3, 1")
        k("v_lshl_add_u32 v18, v18, 2, v19")
        k("v_bfe_u32 v19, v1, 2, 1")
        k("v_bfe_u32 v20, v1, 4, 1")
        k("v_bfe_u32 v21, v1, 1, 1")
        k("v_lshl_add_u32 v20, v20, 1, v21")
        k("v_lshl_add_u32 v19, v19, 2, v20")
        k("v_and_b32 v21, 1, v1")
        k("v_lshlrev_b32 v21, 3, v21")
        k("v_add_u32 v21, s33, v21")
        for j in range(2):
            k(f"v_add_u32 v{22+j}, {2*j}, v18")
            k(f"v_xor_b32 v{24+j}, v19, v{22+j}")
            k(f"v_lshl_add_u32 v{24+j}, v{24+j}, 4, v21")
            k(f"v_lshl_add_u32 v{RA+j}, v{22+j}, 7, v{24+j}")
        for c in range(2):
            b_ = 28 + 20*c
            k(f"v_lshlrev_b32 v{b_+16}, 3, v2")
            k(f"v_sub_u32 v{b_+16}, {2047 - 1024*c}, v{b_+16}")
            for e in range(8): k(f"v_subrev_u32 v{b_ + e}, {e}, v{b_+16}")
            g = GA + 8*c
            for e in range(8): k(f"v_cvt_f32_u32 v{g + e}, v{b_ + e}")
            for e in range(0, 8, 2): k(f"v_cvt_pk_bf16_f32 v{b_ + 8 + e//2}, v{g + e}, v{g + e + 1}")
            for e in range(8):
                if e % 2 == 0: k(f"v_and_b32 v{g + e}, 0xffff, v{b_ + 8 + e//2}")
                else: k(f"v_lshrrev_b32 v{g + e}, 16, v{b_ + 8 + e//2}")
            for e in range(8): k(f"v_add_u32 v{g + e}, {(-0x4300 + 128) & 0xffffffff}, v{g + e}")
            for e in range(8):
                k(f"v_cmp_gt_u32 vcc, 128, v{b_ + e}")
                k(f"v_cndmask_b32 v{g + e}, v{g + e}, v{b_ + e}, vcc")
            for e in range(8): k(f"v_lshl_add_u32 v{g + e}, v{g + e}, 1, s31")
    ACC = 112
    for i in range(16): k(f"v_mov_b32 v{ACC + i}, 0")
    k("s_waitcnt vmcnt(2)")
    stamp(k, 1)
    k("v_readfirstlane_b32 s48, v191")
    k("v_lshlrev_b32 v14, 16, v14")
    k("v_mul_f32 v15, 0x3fb8aa3b, v14")
    k("s_mov_b32 s34, 0x3fb8aa3b")
    k("v_fma_f32 v16, v14, s34, -v15")
    k("s_mov_b32 s34, 0x32a57060")
    k("v_fma_f32 v16, v14, s34, v16")
    k("v_exp_f32 v15, v15")
    k("v_mul_f32 v16, 0x3f317218, v16")
    k("v_fma_f32 v15, v15, v16, v15")
    k("v_cvt_pk_bf16_f32 v15, v15, v15")
    k("v_lshlrev_b32 v15, 16, v15")
    E1, Z2, Z4, E256 = 20, 22, 24, 26
    Q = [28, 30, 32, 34]
    E32 = 36
    TT = [64 + 2*i for i in range(8)]
    tc = [0]
    def T():
        tc[0] += 1
        return TT[tc[0] % len(TT)]
    SA = 80
    SB = 176
    k("s_cmp_lg_u32 s48, 0")
    k("s_cbranch_scc1 L_s_haven")
    get_nonce(k, 52, 48, 104)
    k.label("L_s_haven")
    k("s_lshl_b32 s30, s3, 4")
    signal(k, 36, 30, 48, 104, FL_LN)
    k(f"s_setprio {PRIO[2]}")
    stamp(k, 12)
    k("s_mov_b32 s35, 0")
    k("s_mov_b32 s34, 16")
    k.label("L_s_item")
    with k.sched():
        for i in range(6):
            k(f"v_lshlrev_b32 v{50 + i}, s34, v{8 + i}")
            k(f"v_and_b32 v{50 + i}, 0xffff0000, v{50 + i}")
        k("v_mul_f32 v18, v15, v50")
        k("v_mul_f32 v18, 0x3fb8aa3b, v18")
        k("v_mul_f32 v19, v15, v51")
        k("v_mul_f32 v19, 0.15915494, v19")
        k("v_mul_f32 v52, v15, v52")
        k("v_mul_f32 v53, v15, v53")
        P0 = 16
        cmul(k, P0, 54, 52, T())
        def E(dst, l):
            tmp = T()
            lit = {1: "1.0", 8: "0x41000000", 16: "0x41800000", 24: "0x41c00000", 32: "0x42000000", 256: "0x43800000"}[l]
            k(f"v_mul_f32 v{tmp}, {lit}, v18")
            k(f"v_mul_f32 v{tmp+1}, {lit}, v19")
            k(f"v_exp_f32 v{tmp}, v{tmp}")
            k(f"v_fract_f32 v{tmp+1}, v{tmp+1}")
            k(f"v_cos_f32 v{dst}, v{tmp+1}")
            k(f"v_sin_f32 v{dst+1}, v{tmp+1}")
            k(f"v_mul_f32 v{dst}, v{dst}, v{tmp}")
            k(f"v_mul_f32 v{dst+1}, v{dst+1}, v{tmp}")
        E(E1, 1); E(E256, 256); E(E32, 32); E(Q[1], 8); E(Q[2], 16); E(Q[3], 24)
        k(f"v_mov_b32 v{Q[0]}, 1.0")
        k(f"v_mov_b32 v{Q[0]+1}, 0")
        cmul(k, Z2, E1, E1, T())
        cmul(k, Z4, Z2, Z2, T())
        def pairA(h, ra, rb):
            p = h >> 3; dw = (h & 7) >> 1
            base = SA + 8*p
            if rb is None:
                k(f"v_cvt_pk_bf16_f32 v{base + dw}, v{ra}, 0")
                k(f"v_cvt_pk_bf16_f32 v{base + 4 + dw}, -v{ra+1}, 0")
            else:
                k(f"v_cvt_pk_bf16_f32 v{base + dw}, v{ra}, v{rb}")
                k(f"v_cvt_pk_bf16_f32 v{base + 4 + dw}, -v{ra+1}, -v{rb+1}")
        def flushA(p):
            base = SA + 8*p
            if "nokw" in EXP: return
            k(f"ds_write_b128 v{WA + p}, {vr(base, 4)}")
            k(f"ds_write_b128 v{WA + 4 + p}, {vr(base + 4, 4)}")
        def pairB(i):
            p = i >> 1; base = SB + 8*(p & 1); dw = 2*(i & 1)
            k(f"v_cvt_pk_bf16_f32 v{base + dw}, v{Q[0]}, v{Q[1]}")
            k(f"v_cvt_pk_bf16_f32 v{base + dw + 1}, v{Q[2]}, v{Q[3]}")
            k(f"v_cvt_pk_bf16_f32 v{base + 4 + dw}, v{Q[0]+1}, v{Q[1]+1}")
            k(f"v_cvt_pk_bf16_f32 v{base + 4 + dw + 1}, v{Q[2]+1}, v{Q[3]+1}")
            if (i & 1) and "nokw" not in EXP:
                k(f"ds_write_b128 v{WA + p}, {vr(base, 4)} offset:8192")
                k(f"ds_write_b128 v{WA + 4 + p}, {vr(base + 4, 4)} offset:8192")
        PE, PO = 38, 40
        U0, U1, S0, S1 = 42, 44, 46, 48
        steps = []
        def low():
            cmul(k, PO, P0, E1, T()); pairA(0, P0, PO)
            yield
            for h in (2, 4, 6):
                cmul(k, PE, PO, E1, T())
                yield
                cmul(k, PO, PE, E1, T()); pairA(h, PE, PO)
                yield
            flushA(0)
            yield
        def high():
            cmul(k, U0, P0, E256, T())
            cmul(k, S0, U0, Z2, T()); pairA(8, U0, S0)
            yield
            cmul(k, U1, U0, E256, T())
            cmul(k, S1, S0, Z2, T())
            yield
            cmul(k, S0, S1, Z2, T()); pairA(10, S1, S0)
            cmul(k, U0, U1, E256, T())
            yield
            cmul(k, S1, U1, Z4, T()); pairA(12, U1, S1)
            cmul(k, U1, U0, E256, T())
            yield
            cmul(k, S0, U0, Z4, T()); pairA(14, U0, S0)
            flushA(1)
            cmul(k, U0, U1, E256, T()); pairA(16, U1, U0)
            yield
            cmul(k, U1, U0, E256, T())
            cmul(k, U0, U1, E256, T()); pairA(18, U1, U0)
            yield
            cmul(k, U1, U0, E256, T()); pairA(20, U1, None)
            k(f"v_mov_b32 v{SA + 16 + 3}, 0\n v_mov_b32 v{SA + 16 + 7}, 0")
            flushA(2)
            yield
        gl, gh = low(), high()
        pairB(0)
        for i in range(1, 8):
            for c in range(4): cmul(k, Q[c], Q[c], E32, T())
            pairB(i)
            next(gl, None); next(gh, None)
        for _ in gl: pass
        for _ in gh: pass
    k("s_waitcnt lgkmcnt(0)")
    for half in range(2):
        for ks in range(4*half, 4*half + 4):
            fa = 64 + 8 * (ks % 4)
            k(f"ds_read_b64_tr_b16 {vr(fa,2)}, v{RA} offset:{1024*ks}")
            k(f"ds_read_b64_tr_b16 {vr(fa+2,2)}, v{RA+1} offset:{1024*ks}")
            k(f"ds_read_b64_tr_b16 {vr(fa+4,2)}, v{RA} offset:{1024*ks + 8192}")
            k(f"ds_read_b64_tr_b16 {vr(fa+6,2)}, v{RA+1} offset:{1024*ks + 8192}")
        for ks in range(4*half, 4*half + 4):
            fa = 64 + 8 * (ks % 4)
            k(f"s_waitcnt lgkmcnt({4*(3 - (ks % 4))})")
            k(f"v_mfma_f32_32x32x16_bf16 {vr(ACC,16)}, {vr(fa,4)}, {vr(fa+4,4)}, {vr(ACC,16)}")
    k("s_mov_b32 s34, 0")
    k("s_add_u32 s35, s35, 1")
    k("s_cmp_lt_u32 s35, 2")
    k("s_cbranch_scc1 L_s_item")
    stamp(k, 2)
    k(f"s_setprio {PRIO[3]}")
    k("s_mul_i32 s30, s15, 3072")
    k(f"s_add_u32 s30, s30, {XB}")
    k("v_add_u32 v4, s30, v3")
    k("s_cmp_eq_u32 s28, 0")
    k("s_cbranch_scc1 L_kg_a")
    k("s_nop 7\n s_nop 3")
    for q in range(3): k(f"ds_write_b128 v4, {vr(ACC + 4*q, 4)} offset:{1024*q}")
    k("s_waitcnt lgkmcnt(0)")
    k.label("L_kg_a")
    k("s_barrier")
    k("s_cmp_eq_u32 s28, 0")
    k("s_cbranch_scc0 L_kg_b")
    for q in range(3): k(f"ds_read_b128 {vr(64 + 4*q, 4)}, v4 offset:{1024*q}")
    k("v_and_b32 v6, 31, v1")
    k("v_lshrrev_b32 v12, 5, v1")
    k("v_lshlrev_b32 v8, 4, v6")
    k("v_lshl_add_u32 v8, v12, 3, v8")
    k("v_add_u32 v8, s31, v8")
    k("v_lshlrev_b32 v9, 3, v6\n v_add_u32 v9, s31, v9")
    k("v_lshlrev_b32 v10, 2, v6\n v_add_u32 v10, s31, v10")
    k("v_lshlrev_b32 v11, 1, v6\n v_add_u32 v11, s31, v11")
    k("s_waitcnt lgkmcnt(0)")
    for r in range(12): k(f"v_add_f32 v{ACC + r}, v{ACC + r}, v{64 + r}")
    for j in range(6): k(f"v_cvt_pk_bf16_f32 v{80 + j}, v{ACC + 2*j}, v{ACC + 2*j + 1}")
    k("ds_write_b64 v8, v[80:81]")
    k("s_mov_b64 s[40:41], exec")
    k("s_mov_b32 exec_lo, -1\n s_mov_b32 exec_hi, 0")
    k("ds_write_b64 v9, v[82:83] offset:512")
    k("ds_write_b16 v11, v84 offset:1024")
    k("ds_write_b16_d16_hi v11, v84 offset:1088")
    k("ds_write_b16 v11, v85 offset:1152")
    k("ds_write_b16_d16_hi v11, v85 offset:1216")
    k("s_mov_b32 exec_lo, 0\n s_mov_b32 exec_hi, -1")
    k("ds_write_b32 v10, v82 offset:768")
    k("ds_write_b32 v10, v83 offset:896")
    k("ds_write_b16 v11, v84 offset:1280")
    k("s_mov_b64 exec, s[40:41]")
    k("s_waitcnt lgkmcnt(0)")
    k.label("L_kg_b")
    k("s_xor_b32 s46, s14, 1")
    wait_flags2(k, 36, [(FL_LN + 1024*i, 64) for i in range(4)], 48, 90, 49, 46)
    k("s_barrier")
    k("v_mul_u32_u24 v8, 7168, v2")
    k("s_lshl_b32 s30, s29, 4")
    k("v_add_u32 v8, s30, v8")
    k(f"v_add_u32 v9, {128*7168}, v8")
    k("buffer_load_dwordx4 v[16:19], v8, s[20:23], 0 offen sc1")
    k("buffer_load_dwordx4 v[20:23], v9, s[20:23], 0 offen sc1")
    k(f"s_mul_i32 s33, s15, {CH}")
    k(f"s_add_u32 s34, s33, {8*CSTR}")
    k("s_barrier")
    stamp(k, 3)
    for c in range(2):
        for e in range(8):
            if e % 2 == 0: k(f"ds_read_u16 v{64 + 8*c + e//2}, v{GA + 8*c + e}")
            else: k(f"ds_read_u16_d16_hi v{80 + 4*c + e//2}, v{GA + 8*c + e}")
    for i in range(4): k(f"v_mov_b32 v{28 + i}, 0")
    k("v_add_u32 v25, s34, v3")
    k("v_subrev_u32 v26, 32, v1")
    k(f"v_mul_u32_u24 v26, {CSTR}, v26")
    k("v_add_u32 v26, s33, v26")
    k("v_add_u32 v26, 4096, v26")
    k("v_cmp_gt_u32 vcc, 32, v1")
    k("v_cndmask_b32 v25, v26, v25, vcc")
    k("v_lshlrev_b32 v27, 4, v2")
    k("v_add_u32 v27, s33, v27")
    k("s_waitcnt lgkmcnt(0)")
    for c in range(2):
        for j in range(4):
            k(f"v_and_b32 v{80 + 4*c + j}, 0xffff0000, v{80 + 4*c + j}")
            k(f"v_or_b32 v{64 + 8*c + j}, v{64 + 8*c + j}, v{80 + 4*c + j}")
    k("ds_write_b128 v27, v[64:67]")
    k("ds_write_b128 v27, v[72:75] offset:2048")
    k("v_cmp_gt_u32 vcc, 40, v1")
    k("s_and_saveexec_b64 s[40:41], vcc")
    k("ds_write_b128 v25, v[28:31]")
    k("s_mov_b64 exec, s[40:41]")
    k("s_waitcnt lgkmcnt(0)")
    k("s_barrier")
    k("ds_read_b128 v[68:71], v27 offset:16")
    k("ds_read_b128 v[76:79], v27 offset:2064")
    k("v_lshlrev_b32 v10, 4, v2")
    k("v_add_u32 v10, s34, v10")
    k("s_waitcnt vmcnt(0)")
    k("ds_write_b128 v10, v[16:19] offset:512")
    k("ds_write_b128 v10, v[20:23] offset:2560")
    k("s_waitcnt lgkmcnt(2)")
    for c in range(2):
        Dr = 64 + 8*c
        Ee = 96 + 24*c; Eo = Ee + 8; Do = Ee + 16
        with k.sched():
            for i in range(7): k(f"v_alignbit_b32 v{Ee + i}, v{Dr + i + 1}, v{Dr + i}, 16")
            for i in range(6): k(f"v_alignbit_b32 v{Eo + i}, v{Dr + i + 2}, v{Dr + i + 1}, 16")
            for i in range(6): k(f"v_mov_b32 v{Do + i}, v{Dr + i + 1}")
            src = {1: Ee, 2: Do, 3: Eo, 4: Dr + 2, 5: Ee + 2, 6: Do + 2, 7: Eo + 2}
            for s_ in range(1, 8):
                k(f"ds_write_b128 v27, {vr(src[s_], 4)} offset:{s_*CSTR + 2048*c}")
    stamp(k, 4)
    with k.sched():
        k("v_and_b32 v10, 7, v1")
        k("v_sub_u32 v10, 7, v10")
        k(f"v_mul_u32_u24 v10, {CSTR}, v10")
        k("v_bfe_u32 v11, v1, 3, 1")
        k("v_bfe_u32 v12, v1, 5, 1")
        k("v_bfe_u32 v13, v1, 4, 1")
        k("v_lshl_add_u32 v14, v12, 1, v11")
        k("v_sub_u32 v14, v13, v14")
        k("v_lshlrev_b32 v14, 4, v14")
        k("v_add_u32 v10, v10, v14")
        k(f"s_add_u32 s30, s33, {255*16 - 64*56}")
        k("s_lshl_b32 s31, s28, 8")
        k("s_sub_u32 s30, s30, s31")
        k("v_add_u32 v4, s30, v10")
        k("v_and_b32 v15, 15, v1")
        k("v_sub_u32 v15, v15, v12")
        k("v_lshlrev_b32 v15, 5, v15")
        k("v_lshl_add_u32 v15, v13, 4, v15")
        k("s_add_u32 s32, s34, 512")
        k("s_sub_u32 s32, s32, s31")
        k("v_add_u32 v5, s32, v15")
    ACC = 32
    FA = [64, 128]
    for i in range(32): k(f"v_mov_b32 v{ACC + i}, 0")
    k("s_waitcnt lgkmcnt(0)")
    k("s_barrier")
    stamp(k, 5)
    def rd(fs, p1):
        k(f"ds_read_b128 {vr(fs + 4*p1, 4)}, v4 offset:{512*(7 - p1)}")
        k(f"ds_read_b128 {vr(fs + 32 + 4*p1, 4)}, v5 offset:{512*p1}")
    def adv():
        k("v_subrev_u32 v4, 64, v4")
        k("v_subrev_u32 v5, 64, v5")
    def mm(fs, nxt):
        n = 0
        for p1 in range(8):
            for be in range(8 - p1):
                c = ACC + 4*(p1 + be)
                k(f"v_mfma_f32_16x16x32_bf16 {vr(c,4)}, {vr(fs + 4*p1,4)}, {vr(fs + 32 + 4*be,4)}, {vr(c,4)}")
                n += 1
                if nxt is not None and n % 4 == 0 and n // 4 <= 8: rd(nxt, n // 4 - 1)
        if nxt is not None: adv()
    for p1 in range(8): rd(FA[0], p1)
    adv()
    k("s_mov_b32 s35, 0")
    k.label("L_cv_loop")
    if "noconv" in EXP: k("s_branch L_cv_done")
    k("s_waitcnt lgkmcnt(0)")
    mm(FA[0], FA[1])
    k("s_waitcnt lgkmcnt(0)")
    mm(FA[1], FA[0])
    k("s_add_u32 s35, s35, 1")
    k("s_cmp_lt_u32 s35, 2")
    k("s_cbranch_scc1 L_cv_loop")
    k.label("L_cv_done")
    stamp(k, 6)
    k("s_setprio 3")
    k("s_waitcnt lgkmcnt(0)")
    k("s_barrier")
    k("s_lshl_b32 s30, s14, 12")
    k("v_add_u32 v6, s30, v3")
    k("s_xor_b32 s31, s14, 1")
    k("s_lshl_b32 s31, s31, 12")
    k("v_add_u32 v11, s31, v3")
    k("s_cmp_eq_u32 s28, 0")
    k("s_cbranch_scc0 L_cv_w1")
    for q in range(4): k(f"ds_write_b128 v6, {vr(ACC + 16 + 4*q, 4)} offset:{1024*q}")
    k("s_branch L_cv_w2")
    k.label("L_cv_w1")
    for q in range(4): k(f"ds_write_b128 v6, {vr(ACC + 4*q, 4)} offset:{1024*q}")
    for r in range(16): k(f"v_mov_b32 v{ACC + r}, v{ACC + 16 + r}")
    k.label("L_cv_w2")
    k("v_and_b32 v8, 15, v1")
    k("v_lshlrev_b32 v8, 5, v8")
    k("v_lshrrev_b32 v9, 4, v1")
    k("v_lshl_add_u32 v8, v9, 3, v8")
    k("s_lshl_b32 s30, s28, 11")
    k("s_add_u32 s30, s30, s34")
    k("s_add_u32 s30, s30, 512")
    k("v_add_u32 v9, s30, v8")
    for q in range(4): k(f"ds_read_b64 {vr(80 + 2*q, 2)}, v9 offset:{512*q}")
    k("v_lshlrev_b32 v7, 16, v7")
    k("s_waitcnt lgkmcnt(0)")
    k("s_barrier")
    stamp(k, 7)
    for q in range(4): k(f"ds_read_b128 {vr(64 + 4*q, 4)}, v11 offset:{1024*q}")
    k("s_waitcnt lgkmcnt(0)")
    with k.sched():
        for r in range(16): k(f"v_add_f32 v{ACC + r}, v{ACC + r}, v{64 + r}")
        for q in range(4):
            for hh in range(2):
                src = 80 + 2*q + hh
                t = 96 + 4*q + 2*hh
                k(f"v_lshlrev_b32 v{t}, 16, v{src}")
                k(f"v_and_b32 v{t+1}, 0xffff0000, v{src}")
                k(f"v_fmac_f32 v{ACC + 4*q + 2*hh}, v{t}, v7")
                k(f"v_fmac_f32 v{ACC + 4*q + 2*hh + 1}, v{t+1}, v7")
        for j in range(8): k(f"v_cvt_pk_bf16_f32 v{112 + j}, v{ACC + 2*j}, v{ACC + 2*j + 1}")
    k("s_lshl_b32 s30, s14, 11")
    k("s_add_u32 s30, s30, 16384")
    k("v_add_u32 v9, s30, v8")
    for q in range(4): k(f"ds_write_b64 v9, {vr(112 + 2*q, 2)} offset:{512*q}")
    k("v_add_u32 v9, s30, v3")
    k("s_waitcnt lgkmcnt(0)")
    k("ds_read_b128 v[72:75], v9")
    k("ds_read_b128 v[76:79], v9 offset:1024")
    k("s_lshl_b32 s30, s29, 12")
    k("s_lshl_b32 s31, s28, 11")
    k("s_add_u32 s30, s30, s31")
    k("s_waitcnt lgkmcnt(0)")
    k("buffer_store_dwordx4 v[72:75], v3, s[24:27], s30 offen sc1")
    k("buffer_store_dwordx4 v[76:79], v3, s[24:27], s30 offen offset:1024 sc1")
    stamp(k, 9)
    k("s_lshl_b32 s30, s47, 4")
    signal(k, 36, 30, 48, 90, FL_Z)
    stamp(k, 10)
    stamp_flush(k, 0, 8)
    k("s_endpgm")

def kd(name, vgpr, sgpr=102):
    return f""".amdhsa_kernel {name}
  .amdhsa_next_free_vgpr {vgpr}
  .amdhsa_next_free_sgpr {sgpr}
  .amdhsa_accum_offset {vgpr}
  .amdhsa_group_segment_fixed_size 0
  .amdhsa_kernarg_size 120
  .amdhsa_user_sgpr_count 2
  .amdhsa_user_sgpr_kernarg_segment_ptr 1
  .amdhsa_system_sgpr_workgroup_id_x 1
.end_amdhsa_kernel
"""

def header(launches):
    h = open("cdna_kernels/" + NAME + ".s.ref").read().split("; Override")[0]
    for (kn, g, b, lds) in launches:
        if len(launches) == 1 and PLAIN: h += f"; @launch grid=({g},1,1) block=({b},1,1) lds={lds}\n"
        else: h += f"; @launch kernel={kn} grid=({g},1,1) block=({b},1,1) lds={lds}\n"
    h += '.amdgcn_target "amdgcn-amd-amdhsa--gfx950"\n.text\n'
    return h

def kern_text(name, k):
    return f".globl {name}\n.p2align 8\n.type {name},@function\n{name}:\n" + k.text()

def pretouch(k):
    k("s_load_dwordx2 s[20:21], s[0:1], 112")
    k("s_load_dwordx2 s[22:23], s[0:1], 96")
    k("v_and_b32 v250, 63, v0")
    k("v_lshlrev_b32 v251, 19, v250")
    k("v_lshlrev_b32 v252, 15, v250")
    k("s_waitcnt lgkmcnt(0)")
    k("s_mov_b32 s16, s20\n s_mov_b32 s17, s21\n s_mov_b32 s18, 0x1200000\n s_mov_b32 s19, 0x00020000")
    k("buffer_load_dword v253, v251, s[16:19], 0 offen")
    k("s_mov_b32 s16, s22\n s_mov_b32 s17, s23\n s_mov_b32 s18, 1835008\n s_mov_b32 s19, 0x00020000")
    k("buffer_load_dword v254, v252, s[16:19], 0 offen")

def main(path):
    K1 = NAME + "_kernel"
    k1 = Kern()
    if "touch" in EXP:
        k1("s_cmp_lt_u32 s2, 224")
        k1("s_cbranch_scc1 L_notouch")
        k1("s_cmp_ge_u32 s2, 256")
        k1("s_cbranch_scc1 L_notouch")
        pretouch(k1)
        k1("s_waitcnt vmcnt(0)")
        k1.label("L_notouch")
    k1("s_cmp_lt_u32 s2, 224")
    k1("s_cbranch_scc1 L_g1")
    k1("s_cmp_lt_u32 s2, 256")
    k1("s_cbranch_scc1 L_lna")
    k1("s_cmp_lt_u32 s2, 480")
    k1("s_cbranch_scc1 L_s")
    k1("s_cmp_lt_u32 s2, 512")
    k1("s_cbranch_scc1 L_lnb")
    k1("s_endpgm")
    k1.label("L_lna")
    k1("s_sub_u32 s3, s2, 224")
    k1("s_branch L_ln")
    k1.label("L_lnb")
    k1("s_sub_u32 s3, s2, 448")
    k1.label("L_ln")
    role_ln(k1)
    k1.label("L_g1")
    k1("s_mov_b32 s3, s2")
    role_g1(k1)
    k1.label("L_s")
    k1("s_sub_u32 s3, s2, 256")
    if "noS" in EXP: k1("s_endpgm")
    role_s(k1)
    launches = [(K1, 512, 256, 81920)]
    txt = header(launches)
    txt += kern_text(K1, k1)
    txt += '.section .rodata,"a"\n.p2align 6\n' + kd(K1, 256)
    open(path, "w").write(txt)

if __name__ == "__main__":
    for a in list(sys.argv):
        if a.startswith("--exp="):
            EXP = a[6:].split(","); sys.argv.remove(a)
    for a in list(sys.argv):
        if a.startswith("--prio="):
            PRIO = [int(x) for x in a[7:].split(",")]; sys.argv.remove(a)
    if "--plain" in sys.argv:
        PLAIN = True; sys.argv.remove("--plain")
    if "--stamp" in sys.argv:
        STAMP = True; sys.argv.remove("--stamp")
    main(sys.argv[1] if len(sys.argv) > 1 else "cdna_kernels/" + NAME + ".s")
```

```python
import sys
from asmlib import Kern

NAME = "parallel_sum__ssm_conv_s4__dense_activation_relu__prompt"

XT_OFF = 0x000000
RS_OFF = 0x1C0000
HF_OFF = 0x400000
W2F_OFF = 0xC00000
ZT_OFF = 0xE00000
FL_OFF = 0x1000000
TS_OFF = 0x1100000
XT_SZ = 64 * 448 * 64
RS_SZ = 2048 * 4
HF_SZ = 64 * 112 * 1024
W2F_SZ = 112 * 14 * 1024
ZT_SZ = 448 * 4096
FL_SZ = 0x10000
FL_LN = 0
FL_W2 = 4096
FL_H = 5120
FL_Z = 9216

STAMP = False
NEPRE = 8
PRIO = [3, 1, 0, 2]
PLAIN = False
EXP = []
SPIN_LIMIT = 200000

def srd(k, d, lo, hi, size, off=0):
    if off:
        k(f"s_add_u32 s{d}, s{lo}, {off}")
        k(f"s_addc_u32 s{d+1}, s{hi}, 0")
    else:
        k(f"s_mov_b32 s{d}, s{lo}")
        k(f"s_mov_b32 s{d+1}, s{hi}")
    k(f"s_mov_b32 s{d+2}, {size}")
    k(f"s_mov_b32 s{d+3}, 0x00020000")

def vr(a, n=1):
    return f"v{a}" if n == 1 else f"v[{a}:{a+n-1}]"

def stamp(k, i):
    if not STAMP: return
    if i == 8: k("s_memrealtime s[96:97]")
    else:
        j = i if i < 8 else i - 1
        k(f"s_memtime s[{72+2*j}:{73+2*j}]")

def stamp_flush(k, kern_idx, n):
    if not STAMP: return
    k("s_memrealtime s[98:99]")
    k("s_waitcnt lgkmcnt(0)")
    k("s_load_dwordx2 s[68:69], s[0:1], 112")
    k("s_waitcnt lgkmcnt(0)")
    k(f"s_add_u32 s64, s68, {TS_OFF + kern_idx * 0x10000}")
    k("s_addc_u32 s65, s69, 0")
    k("s_mov_b32 s66, 0x10000")
    k("s_mov_b32 s67, 0x00020000")
    k("s_lshl_b32 s68, s2, 6")
    k("v_cmp_eq_u32 vcc, 0, v0")
    k("s_and_saveexec_b64 s[70:71], vcc")
    k("v_mov_b32 v1, s68")
    for i in range(12):
        k(f"v_mov_b32 v2, s{72+2*i}")
        k(f"buffer_store_dword v2, v1, s[64:67], 0 offen offset:{4*i}")
    k("s_getreg_b32 s69, hwreg(HW_REG_HW_ID)")
    k("v_mov_b32 v2, s69")
    k("buffer_store_dword v2, v1, s[64:67], 0 offen offset:48")
    k("s_getreg_b32 s69, hwreg(HW_REG_XCC_ID)")
    k("v_mov_b32 v2, s69")
    k("buffer_store_dword v2, v1, s[64:67], 0 offen offset:52")
    k("v_mov_b32 v2, s96")
    k("buffer_store_dword v2, v1, s[64:67], 0 offen offset:56")
    k("v_mov_b32 v2, s98")
    k("buffer_store_dword v2, v1, s[64:67], 0 offen offset:60")
    k("s_mov_b64 exec, s[70:71]")

_uid = [0]
def uid(p):
    _uid[0] += 1
    return f"L_{p}{_uid[0]}"

def get_nonce(k, dbg_srd, sdst, vtmp):
    L = uid("nonce"); E = uid("nonce_e")
    k(f"v_mov_b32 v{vtmp}, 0")
    k(f"s_mov_b32 s{sdst+1}, 0")
    k.label(L)
    k(f"buffer_load_dword v{vtmp+1}, v{vtmp}, s[{dbg_srd}:{dbg_srd+3}], 0 offen sc1")
    k("s_waitcnt vmcnt(0)")
    k(f"v_readfirstlane_b32 s{sdst}, v{vtmp+1}")
    k("s_nop 3")
    k(f"s_cmp_lg_u32 s{sdst}, 0")
    k(f"s_cbranch_scc1 {E}")
    k(f"s_add_u32 s{sdst+1}, s{sdst+1}, 1")
    k(f"s_cmp_lt_u32 s{sdst+1}, {SPIN_LIMIT}")
    k("s_sleep 1")
    k(f"s_cbranch_scc1 {L}")
    k.label(E)

def wait_flags(k, fl_srd, base_off, stride_shift, nflags, snonce, vtmp, scnt, wave0=None):
    L = uid("wf"); E = uid("wf_e")
    if wave0 is not None:
        k(f"s_cmp_lg_u32 s{wave0}, 0")
        k(f"s_cbranch_scc1 {E}")
    k(f"v_and_b32 v{vtmp}, 63, v0")
    k(f"v_min_u32 v{vtmp}, {nflags - 1}, v{vtmp}")
    k(f"v_lshlrev_b32 v{vtmp}, {stride_shift}, v{vtmp}")
    k(f"v_add_u32 v{vtmp}, {base_off}, v{vtmp}") if isinstance(base_off, int) else k(f"v_add_u32 v{vtmp}, s{base_off[0]}, v{vtmp}")
    k(f"s_mov_b32 s{scnt}, 0")
    k.label(L)
    k(f"buffer_load_dword v{vtmp+1}, v{vtmp}, s[{fl_srd}:{fl_srd+3}], 0 offen sc1")
    k("s_waitcnt vmcnt(0)")
    k(f"v_cmp_ne_u32 vcc, s{snonce}, v{vtmp+1}")
    k("s_nop 4")
    k(f"s_cbranch_vccz {E}")
    k(f"s_add_u32 s{scnt}, s{scnt}, 1")
    k(f"s_cmp_lt_u32 s{scnt}, {SPIN_LIMIT}")
    k("s_sleep 2")
    k(f"s_cbranch_scc1 {L}")
    k.label(E)

def signal(k, fl_srd, soff, snonce, vtmp, imm=0):
    k("s_waitcnt vmcnt(0)")
    k("s_barrier")
    k("v_cmp_eq_u32 vcc, 0, v0")
    k("s_and_saveexec_b64 s[44:45], vcc")
    k(f"s_add_u32 s{soff}, s{soff}, {imm}")
    k(f"v_mov_b32 v{vtmp}, s{soff}")
    k(f"v_mov_b32 v{vtmp+1}, s{snonce}")
    k(f"buffer_store_dword v{vtmp+1}, v{vtmp}, s[{fl_srd}:{fl_srd+3}], 0 offen sc1")
    k("s_mov_b64 exec, s[44:45]")

def wait_flags2(k, fl_srd, sets, snonce, vtmp, scnt, wave0):
    L = uid("wf"); E = uid("wf_e")
    k(f"s_cmp_lg_u32 s{wave0}, 0")
    k(f"s_cbranch_scc1 {E}")
    n = len(sets)
    for i, (base_off, nflags) in enumerate(sets):
        v = vtmp + 2*i
        k(f"v_and_b32 v{v}, 63, v0")
        k(f"v_min_u32 v{v}, {nflags - 1}, v{v}")
        k(f"v_lshlrev_b32 v{v}, 4, v{v}")
        k(f"v_add_u32 v{v}, {base_off}, v{v}") if isinstance(base_off, int) else k(f"v_add_u32 v{v}, s{base_off[0]}, v{v}")
    k(f"s_mov_b32 s{scnt}, 0")
    k.label(L)
    for i in range(n):
        k(f"buffer_load_dword v{vtmp+2*i+1}, v{vtmp+2*i}, s[{fl_srd}:{fl_srd+3}], 0 offen sc1")
    k("s_waitcnt vmcnt(0)")
    for i in range(1, n):
        k(f"v_xor_b32 v{vtmp+2*i+1}, s{snonce}, v{vtmp+2*i+1}")
    k(f"v_xor_b32 v{vtmp+1}, s{snonce}, v{vtmp+1}")
    for i in range(1, n):
        k(f"v_or_b32 v{vtmp+1}, v{vtmp+1}, v{vtmp+2*i+1}")
    k(f"v_cmp_ne_u32 vcc, 0, v{vtmp+1}")
    k("s_nop 4")
    k(f"s_cbranch_vccz {E}")
    k(f"s_add_u32 s{scnt}, s{scnt}, 1")
    k(f"s_cmp_lt_u32 s{scnt}, {SPIN_LIMIT}")
    k("s_sleep 1")
    k(f"s_cbranch_scc1 {L}")
    k.label(E)

def role_g1(k):
    stamp(k, 8); stamp(k, 0)
    k("s_load_dwordx2 s[4:5], s[0:1], 0")
    k(f"s_setprio {PRIO[0]}")
    k("s_load_dwordx2 s[6:7], s[0:1], 80")
    k("s_load_dwordx2 s[8:9], s[0:1], 112")
    k("s_load_dwordx2 s[50:51], s[0:1], 104")
    k("s_and_b32 s10, s3, 7")
    k("s_lshr_b32 s11, s3, 3")
    k("s_and_b32 s30, s11, 3")
    k("s_lshr_b32 s31, s11, 2")
    if "map81" in EXP:
        k("s_and_b32 s12, s11, 1\n s_lshl_b32 s13, s10, 1\n s_add_u32 s12, s12, s13")
        k("s_lshr_b32 s13, s11, 1")
        k("s_and_b32 s30, s11, 1\n s_lshl_b32 s30, s30, 1\n s_lshr_b32 s31, s11, 2")
    else:
        k("s_lshr_b32 s12, s10, 1")
        k("s_lshl_b32 s12, s12, 2")
        k("s_add_u32 s12, s12, s30")
        k("s_and_b32 s13, s10, 1")
        k("s_mul_i32 s13, s13, 7")
        k("s_add_u32 s13, s13, s31")
    k("s_mul_i32 s32, s30, 7\n s_add_u32 s32, s32, 1\n s_lshr_b32 s32, s32, 1")
    k("s_lshl_b32 s31, s31, 1\n s_add_u32 s45, s32, s31")
    k("s_cmp_ge_u32 s45, 14\n s_cselect_b32 s32, 14, 0\n s_sub_u32 s45, s45, s32")
    if "norot" in EXP: k("s_mov_b32 s45, 0")
    k("v_and_b32 v1, 63, v0")
    k("v_lshrrev_b32 v2, 6, v0")
    k("v_readfirstlane_b32 s14, v2")
    k("s_and_b32 s15, s14, 1")
    k("s_lshr_b32 s28, s14, 1")
    k("s_lshl_b32 s29, s14, 11")
    VX0, VX1, VW0, VW1 = 4, 5, 6, 7
    with k.sched():
        k("s_lshl_b32 s30, s12, 7")
        k("s_lshl_b32 s31, s14, 5")
        k("s_add_u32 s30, s30, s31")
        k("v_lshrrev_b32 v3, 2, v1")
        k("v_add_u32 v3, s30, v3")
        k("v_mul_u32_u24 v3, 896, v3")
        k("v_lshrrev_b32 v8, 4, v1")
        k("v_xor_b32 v9, v1, v8")
        k("v_and_b32 v9, 3, v9")
        k(f"v_lshl_add_u32 v{VX0}, v9, 4, v3")
        k(f"v_add_u32 v{VX1}, 14336, v{VX0}")
        k("s_lshl_b32 s33, s14, 3")
        k("v_add_u32 v10, s33, v8")
        k("v_mul_u32_u24 v10, 3584, v10")
        k("v_lshlrev_b32 v11, 2, v8")
        k("v_xor_b32 v11, v1, v11")
        k("v_and_b32 v11, 15, v11")
        k("v_lshl_add_u32 v10, v11, 4, v10")
        k("s_lshl_b32 s34, s13, 8")
        k(f"v_add_u32 v{VW0}, s34, v10")
        k(f"v_add_u32 v{VW1}, 14336, v{VW0}")
    k("s_memrealtime s[46:47]")
    k("s_waitcnt lgkmcnt(0)")
    srd(k, 16, 4, 5, 2048 * 896)
    srd(k, 20, 6, 7, 448 * 3584)
    srd(k, 24, 8, 9, HF_SZ, HF_OFF)
    srd(k, 52, 50, 51, 256)
    srd(k, 60, 8, 9, FL_SZ, FL_OFF)
    k("s_cmp_lg_u32 s3, 0")
    k("s_cbranch_scc1 L_g1_nn")
    k("s_or_b32 s46, s46, 1")
    k("v_cmp_eq_u32 vcc, 0, v0")
    k("s_and_saveexec_b64 s[30:31], vcc")
    k("v_mov_b32 v100, 0")
    k("v_mov_b32 v101, s46")
    k("buffer_store_dword v101, v100, s[52:55], 0 offen sc1")
    k("s_mov_b64 exec, s[30:31]")
    k("s_waitcnt vmcnt(0)")
    k.label("L_g1_nn")
    k("v_mov_b32 v176, 0")
    def set_stage():
        k("s_mul_i32 s40, s45, 114688")
        k("s_lshl_b32 s41, s45, 6")
    def adv_stage():
        k("s_add_u32 s45, s45, 1\n s_cmp_eq_u32 s45, 14\n s_cselect_b32 s45, 0, s45")
    def dma_w(j, slot):
        k(f"s_add_u32 m0, s29, {16384*slot + 1024*j}")
        k(f"buffer_load_dwordx4 v{[VW0, VW1][j]}, s[20:23], s40 offen lds")
    def dma_x(j, slot):
        k(f"s_add_u32 m0, s29, {16384*slot + 8192 + 1024*j}")
        k(f"buffer_load_dwordx4 v{[VX0, VX1][j]}, s[16:19], s41 offen lds")
    for s in range(3):
        set_stage(); dma_w(0, s); dma_w(1, s); dma_x(0, s); dma_x(1, s); adv_stage()
    set_stage(); dma_w(0, 3); dma_w(1, 3)
    AA = [10, 11]; BB0 = [12, 13]; BB1 = [14, 15]
    AAh = [16, 17]; BB0h = [18, 19]; BB1h = [20, 21]
    with k.sched():
        k("v_lshrrev_b32 v3, 5, v1")
        k("v_bfe_u32 v8, v1, 2, 2")
        k("v_lshl_add_u32 v3, v3, 3, v8")
        k("v_lshlrev_b32 v3, 8, v3")
        k("v_bfe_u32 v9, v1, 4, 1")
        k("v_lshlrev_b32 v9, 1, v9")
        k("v_bfe_u32 v22, v1, 1, 1")
        k("v_add_u32 v9, v9, v22")
        k("v_lshl_add_u32 v3, v9, 4, v3")
        k("v_and_b32 v22, 1, v1")
        k("v_lshl_add_u32 v3, v22, 3, v3")
        for ai in range(2):
            k(f"s_xor_b32 s{30+ai}, s28, {ai}")
            k(f"s_lshl_b32 s{32+ai}, s15, 1")
            k(f"s_add_u32 s{30+ai}, s{30+ai}, s{32+ai}")
            k(f"v_xor_b32 v{24+ai}, s{30+ai}, v8")
            k(f"v_lshl_add_u32 v{AA[ai]}, v{24+ai}, 6, v3")
            k(f"v_add_u32 v{AAh[ai]}, 65536, v{AA[ai]}")
        k("v_and_b32 v26, 31, v1")
        k("v_lshrrev_b32 v27, 5, v1")
        k("v_xor_b32 v27, v27, v8")
        k("v_lshlrev_b32 v27, 4, v27")
        k("v_lshl_add_u32 v26, v26, 6, v27")
        for bi in range(2):
            k(f"s_xor_b32 s{34+bi}, s15, {bi}")
            k(f"s_lshl_b32 s{34+bi}, s{34+bi}, 11")
            k(f"s_lshl_b32 s{36+bi}, s28, 12")
            k(f"s_add_u32 s{34+bi}, s{34+bi}, s{36+bi}")
            k(f"s_add_u32 s{34+bi}, s{34+bi}, 8192")
            k(f"v_add_u32 v{BB0[bi]}, s{34+bi}, v26")
            k(f"v_xor_b32 v{BB1[bi]}, 32, v{BB0[bi]}")
            k(f"v_add_u32 v{BB0h[bi]}, 65536, v{BB0[bi]}")
            k(f"v_add_u32 v{BB1h[bi]}, 65536, v{BB1[bi]}")
    SEL = 160; SW = 164; SX = 168
    k("v_and_b32 v22, 15, v1")
    k("v_bfe_u32 v23, v1, 4, 1")
    k("v_cmp_eq_u32 vcc, v22, v23")
    k("v_mov_b32 v22, 0x3f803f80")
    k(f"v_cndmask_b32 v{SEL}, 0, v22, vcc")
    for i in range(1, 4): k(f"v_mov_b32 v{SEL + i}, v{SEL}")
    for i in range(4):
        k(f"v_mov_b32 v{SW + i}, 0")
        k(f"v_mov_b32 v{SX + i}, 0")
    FR = [24, 40]
    ACC = 56
    for i in range(64): k(f"v_mov_b32 v{ACC + i}, 0")
    def rdA(slot, kap, fs, ai):
        if "nords" in EXP: return
        hi = slot >= 4; sb = 0 if hi else slot * 16384
        a_ = (AAh if hi else AA)[ai]
        k(f"ds_read_b64_tr_b16 {vr(fs + 4*ai, 2)}, v{a_} offset:{sb + kap*4096}")
        k(f"ds_read_b64_tr_b16 {vr(fs + 4*ai + 2, 2)}, v{a_} offset:{sb + kap*4096 + 1024}")
    def rdB(slot, kap, fs, bi):
        if "nords" in EXP: return
        hi = slot >= 4; sb = 0 if hi else slot * 16384
        b_ = ((BB1h if hi else BB1) if kap else (BB0h if hi else BB0))[bi]
        k(f"ds_read_b128 {vr(fs + 8 + 4*bi, 4)}, v{b_} offset:{sb}")
    def mf(fs, ai, bi):
        if "nomf" in EXP: return
        c = ACC + (2*ai + bi) * 16
        k(f"v_mfma_f32_32x32x16_bf16 {vr(c,16)}, {vr(fs + 4*ai,4)}, {vr(fs + 8 + 4*bi,4)}, {vr(c,16)}")
    def sums(fs, which):
        if "nomf" in EXP: return
        src = fs if which == 0 else fs + 8
        dst = SW if which == 0 else SX
        k(f"v_mfma_f32_16x16x32_bf16 {vr(dst,4)}, {vr(src,4)}, {vr(SEL,4)}, {vr(dst,4)}")
    def stage_body(slot, cd, ab, wait, last=False):
        nslot = (slot + 1) % 5
        k("s_waitcnt lgkmcnt(0)")
        mf(FR[0], 0, 0)
        rdA(slot, 1, FR[1], 0); rdB(slot, 1, FR[1], 0)
        mf(FR[0], 0, 1)
        rdA(slot, 1, FR[1], 1); rdB(slot, 1, FR[1], 1)
        sums(FR[0], 0)
        if cd: dma_x(0, (slot + 3) % 5)
        mf(FR[0], 1, 0)
        if cd: dma_x(1, (slot + 3) % 5)
        sums(FR[0], 1)
        if cd: adv_stage(); set_stage()
        mf(FR[0], 1, 1)
        if not last:
            k(f"s_waitcnt vmcnt({wait}) lgkmcnt(0)")
            k("s_barrier")
        else:
            k("s_waitcnt lgkmcnt(0)")
        mf(FR[1], 0, 0)
        if not last: rdA(nslot, 0, FR[0], 0); rdB(nslot, 0, FR[0], 0)
        mf(FR[1], 0, 1)
        if not last: rdA(nslot, 0, FR[0], 1); rdB(nslot, 0, FR[0], 1)
        sums(FR[1], 0)
        if ab: dma_w(0, (slot + 4) % 5)
        mf(FR[1], 1, 0)
        if ab: dma_w(1, (slot + 4) % 5)
        sums(FR[1], 1)
        mf(FR[1], 1, 1)
    with k.sched():
        k("v_and_b32 v120, 1, v1")
        k("v_lshlrev_b32 v120, 6, v120")
        k("v_lshrrev_b32 v121, 4, v1")
        k("v_lshl_add_u32 v122, v121, 4, v120")
        k("s_lshl_b32 s30, s28, 1\n s_add_u32 s30, s30, s15\n s_lshl_b32 s30, s30, 7")
        k("s_lshl_b32 s31, s15, 1\n s_add_u32 s31, s31, s28\n s_lshl_b32 s31, s31, 7\n s_add_u32 s31, s31, 512")
        k("v_add_u32 v120, s30, v122")
        k("v_add_u32 v121, s31, v122")
        k("v_and_b32 v126, 31, v1")
        k("v_lshlrev_b32 v126, 2, v126")
        for bi in range(2):
            k(f"s_xor_b32 s32, s15, {bi}\n s_lshl_b32 s33, s28, 1\n s_add_u32 s32, s32, s33\n s_lshl_b32 s32, s32, 7")
            k(f"v_add_u32 v{122+bi}, s32, v126")
        for ai in range(2):
            k(f"s_xor_b32 s34, s28, {ai}\n s_lshl_b32 s35, s15, 1\n s_add_u32 s34, s34, s35\n s_lshl_b32 s34, s34, 7\n s_add_u32 s34, s34, 512")
            k(f"v_add_u32 v{124+ai}, s34, v126")
    for bi in range(2):
        k(f"s_xor_b32 s{36+bi}, s15, {bi}\n s_lshl_b32 s31, s28, 1\n s_add_u32 s{36+bi}, s{36+bi}, s31\n s_lshl_b32 s31, s12, 2\n s_add_u32 s{36+bi}, s{36+bi}, s31\n s_mul_i32 s{36+bi}, s{36+bi}, {112*1024}")
    for ai in range(2):
        k(f"s_xor_b32 s{38+ai}, s28, {ai}\n s_lshl_b32 s31, s15, 1\n s_add_u32 s{38+ai}, s{38+ai}, s31\n s_lshl_b32 s31, s13, 2\n s_add_u32 s{38+ai}, s{38+ai}, s31\n s_lshl_b32 s{38+ai}, s{38+ai}, 11")
    for i in range(16): k(f"v_mov_b32 v{128 + i}, 0")
    k("v_cmp_gt_u32 vcc, 32, v1")
    k("s_mov_b64 s[42:43], vcc")
    k("v_and_b32 v126, 15, v1")
    k("v_cmp_gt_u32 vcc, 2, v126")
    k("s_mov_b64 s[50:51], vcc")
    k("v_min_u32 v126, 55, v1")
    k("v_lshlrev_b32 v126, 4, v126")
    k(f"v_add_u32 v126, {FL_W2}, v126")
    g2_setup(k)
    k("s_mov_b32 s44, 0")
    stamp(k, 1)
    k("s_waitcnt vmcnt(10)")
    k("s_barrier")
    stamp(k, 2)
    for ai in range(2): rdA(0, 0, FR[0], ai)
    for bi in range(2): rdB(0, 0, FR[0], bi)
    k.label("L_g1_loop")
    for sl in range(5): stage_body(sl, True, True, 8)
    k("s_add_u32 s44, s44, 1")
    k("s_cmp_lt_u32 s44, 2")
    k("s_cbranch_scc1 L_g1_loop")
    stage_body(0, True, False, 8)
    stage_body(1, False, False, 4)
    k("buffer_load_dword v177, v176, s[52:55], 0 offen sc1")
    stage_body(2, False, False, 0)
    stage_body(3, False, False, 0, last=True)
    stamp(k, 3)
    k("buffer_load_dword v127, v126, s[60:63], 0 offen sc1")
    k("s_nop 4")
    for r in range(4): k(f"v_mul_f32 v{SX + r}, 0x3b124925, v{SX + r}")
    k(f"v_cvt_pk_bf16_f32 v24, v{SX}, v{SX+1}")
    k(f"v_cvt_pk_bf16_f32 v25, v{SX+2}, v{SX+3}")
    k(f"v_lshlrev_b32 v{SX}, 16, v24")
    k(f"v_and_b32 v{SX+1}, 0xffff0000, v24")
    k(f"v_lshlrev_b32 v{SX+2}, 16, v25")
    k(f"v_and_b32 v{SX+3}, 0xffff0000, v25")
    k("s_mov_b64 exec, s[50:51]")
    k(f"ds_write_b128 v120, {vr(SX,4)}")
    k(f"ds_write_b128 v121, {vr(SW,4)}")
    k("s_mov_b64 exec, -1")
    k("v_readfirstlane_b32 s48, v177")
    k("s_nop 3")
    k("s_cmp_lg_u32 s48, 0")
    k("s_cbranch_scc1 L_g1_haven")
    get_nonce(k, 52, 48, 48)
    k.label("L_g1_haven")
    srd(k, 52, 8, 9, W2F_SZ, W2F_OFF)
    k("s_waitcnt lgkmcnt(0)")
    k("s_barrier")
    for bi in range(2): k(f"ds_read_b32 v{40+bi}, v{122+bi}")
    for ai in range(2): k(f"ds_read_b32 v{42+ai}, v{124+ai}")
    k("v_lshlrev_b32 v3, 4, v1")
    k("s_waitcnt lgkmcnt(0)")
    with k.sched():
        for bi in range(2):
            k(f"v_cvt_pk_bf16_f32 v{44+bi}, -v{40+bi}, -v{40+bi}")
            k(f"v_cndmask_b32 v{136 + 4*bi}, 0, v{44+bi}, s[42:43]")
        for ai in range(2):
            k(f"v_cvt_pk_bf16_f32 v{46+ai}, v{42+ai}, v{42+ai}")
            k(f"v_lshlrev_b32 v{46+ai}, 16, v{46+ai}")
            k(f"v_sub_f32 v{46+ai}, v{42+ai}, v{46+ai}")
            k(f"v_cvt_pk_bf16_f32 v{46+ai}, v{42+ai}, v{46+ai}")
            k(f"v_cndmask_b32 v{128 + 4*ai}, 0, v{46+ai}, s[42:43]")
    for ai in range(2):
        for bi in range(2):
            c = ACC + (2*ai + bi) * 16
            k(f"v_mfma_f32_32x32x16_bf16 {vr(c,16)}, {vr(128 + 4*ai,4)}, {vr(136 + 4*bi,4)}, {vr(c,16)}")
    for ai in range(2):
        for bi in range(2):
            c = ACC + (2*ai + bi) * 16
            t = 24 + 8*(2*ai + bi)
            for j in range(8):
                k(f"v_cvt_pk_bf16_f32 v{t + j}, v{c + 2*j}, v{c + 2*j + 1}")
            for j in range(8):
                k(f"v_pk_max_i16 v{t + j}, v{t + j}, 0")
            hf = " sc1"
            k(f"s_add_u32 s30, s{36+bi}, s{38+ai}")
            k(f"buffer_store_dwordx4 {vr(t,4)}, v3, s[24:27], s30 offen{hf}")
            k(f"buffer_store_dwordx4 {vr(t+4,4)}, v3, s[24:27], s30 offen offset:1024{hf}")
    stamp(k, 4)
    role_g2(k)

def g2_setup(k):
    k("s_load_dwordx2 s[6:7], s[0:1], 96")
    k("s_and_b32 s10, s3, 7")
    k("s_lshr_b32 s11, s3, 3")
    k("s_and_b32 s30, s11, 3")
    k("s_lshl_b32 s65, s10, 2")
    k("s_add_u32 s64, s30, s65")
    k("s_lshr_b32 s65, s11, 2")
    k("s_and_b32 s66, s14, 1")
    k("s_lshr_b32 s67, s14, 1")
    k("s_mul_i32 s30, s14, 28")
    k("s_mul_i32 s31, s30, 14\n s_lshl_b32 s32, s65, 1\n s_add_u32 s31, s31, s32")
    k("s_add_u32 s68, s31, s66\n s_lshl_b32 s68, s68, 10")
    k("s_xor_b32 s32, s66, 1\n s_add_u32 s69, s31, s32\n s_lshl_b32 s69, s69, 10")
    k("s_lshl_b32 s32, s64, 1")
    k("s_add_u32 s33, s32, s67\n s_mul_i32 s33, s33, 112\n s_add_u32 s70, s33, s30\n s_lshl_b32 s70, s70, 10")
    k("s_xor_b32 s33, s67, 1\n s_add_u32 s33, s33, s32\n s_mul_i32 s33, s33, 112\n s_add_u32 s71, s33, s30\n s_lshl_b32 s71, s71, 10")

def role_g2(k):
    ACC = 16; BR = 80; NBR = 6; NK = 28; NPRE = 11; NLDS = 8
    AP = 128; AR = 216
    RED = 0; ZL = 49152; XL = 65536 + 0; OL = 73728
    ALDS = 0
    FIRST_LDS = NPRE + 4
    k("s_waitcnt vmcnt(8)")
    k("v_cmp_ne_u32 vcc, s48, v127")
    k("s_nop 4")
    k("s_cbranch_vccz L_g2_w2ok")
    k("s_mov_b32 s44, 0")
    wait_flags2(k, 60, [(FL_W2, 56)], 48, 50, 49, 44)
    k.label("L_g2_w2ok")
    def aregs(j):
        if j < NPRE: return AP + 8*j
        return AR + 8*((j - NPRE) % 4)
    def advA(n=1):
        k("s_add_u32 s68, s68, 14336\n s_add_u32 s69, s69, 14336")
    def loadA(j):
        f = aregs(j)
        k(f"buffer_load_dwordx4 {vr(f,4)}, v3, s[52:55], s68 offen sc1")
        k(f"buffer_load_dwordx4 {vr(f+4,4)}, v3, s[52:55], s69 offen sc1")
        advA()
    def loadA_lds(j):
        o = (j - FIRST_LDS) * 2048
        k(f"s_add_u32 m0, s34, {ALDS + o}")
        k(f"buffer_load_dwordx4 v3, s[52:55], s68 offen sc1 lds")
        k(f"s_add_u32 m0, s34, {ALDS + o + 1024}")
        k(f"buffer_load_dwordx4 v3, s[52:55], s69 offen sc1 lds")
        advA()
    def loadB(j):
        f = BR + 8*(j % NBR)
        k(f"buffer_load_dwordx4 {vr(f,4)}, v3, s[24:27], s70 offen sc1")
        k(f"buffer_load_dwordx4 {vr(f+4,4)}, v3, s[24:27], s71 offen sc1")
        k("s_add_u32 s70, s70, 1024\n s_add_u32 s71, s71, 1024")
    NE = NEPRE
    for j in range(NE): loadA(j)
    npre = 2*NE
    k(f"s_waitcnt vmcnt({npre})")
    k("s_barrier")
    k("s_lshl_b32 s30, s12, 8\n s_lshl_b32 s31, s13, 4\n s_add_u32 s30, s30, s31\n s_add_u32 s30, s30, %d" % FL_H)
    k("v_cmp_eq_u32 vcc, 0, v0")
    k("s_and_saveexec_b64 s[44:45], vcc")
    k("v_mov_b32 v40, s30")
    k("v_mov_b32 v41, s48")
    k("buffer_store_dword v41, v40, s[60:63], 0 offen sc1")
    k("s_mov_b64 exec, s[44:45]")
    stamp(k, 5)
    k("s_setprio %d" % PRIO[1])
    for j in range(NE, FIRST_LDS): loadA(j)
    k("s_lshl_b32 s34, s14, 14")
    srd(k, 16, 4, 5, 2048 * 896)
    srd(k, 36, 8, 9, RS_SZ, RS_OFF)
    srd(k, 56, 8, 9, ZT_SZ, ZT_OFF)
    with k.sched():
        k("v_lshrrev_b32 v4, 3, v1")
        k("s_lshl_b32 s35, s14, 4")
        k("v_add_u32 v4, s35, v4")
        k("v_lshrrev_b32 v5, 1, v4")
        k("v_xor_b32 v5, v5, v1")
        k("v_and_b32 v5, 7, v5")
        k("s_lshl_b32 s35, s64, 6")
        k("v_add_u32 v6, s35, v4")
        k("v_mul_u32_u24 v6, 896, v6")
        k("v_lshl_add_u32 v6, v5, 4, v6")
        k("s_lshl_b32 s30, s65, 7")
        k("v_add_u32 v6, s30, v6")
        k("v_xor_b32 v7, 64, v6")
        k(f"v_add_u32 v7, {8*896}, v7")
        k("s_lshl_b32 s31, s65, 6")
        k("v_add_u32 v248, s31, v4")
        k("v_lshlrev_b32 v248, 12, v248")
        k("v_and_b32 v9, 7, v1")
        k("v_lshl_add_u32 v248, v9, 4, v248")
        k("s_lshl_b32 s32, s64, 7")
        k("v_add_u32 v248, s32, v248")
        k(f"v_add_u32 v249, {8*4096}, v248")
        k("v_and_b32 v250, 31, v1")
        k("s_lshl_b32 s33, s67, 5")
        k("s_add_u32 s33, s33, s35")
        k("v_add_u32 v250, s33, v250")
        k("v_lshlrev_b32 v250, 2, v250")
        k("v_and_b32 v251, 31, v1")
        k("v_lshlrev_b32 v251, 4, v251")
        k("s_lshl_b32 s44, s65, 9")
        k(f"s_add_u32 s44, s44, {FL_Z}")
        k("v_add_u32 v251, s44, v251")
        k("v_and_b32 v252, 7, v1")
        k("v_lshlrev_b32 v252, 4, v252")
        k("s_lshl_b32 s45, s64, 7")
        k("v_add_u32 v252, s45, v252")
        k("s_lshl_b32 s33, s14, 14")
        k("v_add_u32 v253, s33, v3")
    k("s_lshl_b32 s35, s14, 11")
    k(f"s_add_u32 m0, s35, {XL}")
    k("buffer_load_dwordx4 v6, s[16:19], 0 offen lds")
    k(f"s_add_u32 m0, s35, {XL + 1024}")
    k("buffer_load_dwordx4 v7, s[16:19], 0 offen lds")
    for i in range(64): k(f"v_mov_b32 v{ACC + i}, 0")
    k("s_waitcnt lgkmcnt(0)")
    srd(k, 20, 6, 7, 2048 * 896)
    k("s_lshr_b32 s30, s64, 1\n s_lshl_b32 s30, s30, 8\n s_add_u32 s30, s30, %d" % FL_H)
    k("s_mul_i32 s31, s14, 7\n s_lshr_b32 s31, s31, 1\n s_lshl_b32 s31, s31, 4\n s_add_u32 s30, s30, s31")
    k("s_mov_b32 s33, 0")
    wait_flags2(k, 60, [((30,), 4)], 48, 8, 49, 33)
    stamp(k, 6)
    LA = NBR - 1
    for j in range(LA): loadB(j)
    fifo = [("B", j) for j in range(LA) for _ in range(2)]
    lfifo = []
    LAST_LDS = FIRST_LDS + NLDS
    def areg_final(j):
        if j < NPRE: return AP + 8*j
        if j < LAST_LDS: return AR + 8*((j - NPRE) % 4)
        return AP + 8*(j - LAST_LDS)
    def allowed(q, wanted):
        idx = [i for i, e in enumerate(q) if e in wanted]
        return None if not idx else len(q) - 1 - max(idx)
    for j in range(NK):
        want = [("B", j), ("A", j)]
        jl = j + 3
        do_lds = (j - 1 >= NPRE) and FIRST_LDS <= jl < LAST_LDS
        if do_lds: want.append(("L", jl))
        n = allowed(fifo, want)
        if j <= NK - 3: k(f"s_waitcnt vmcnt({n})")
        m = allowed(lfifo, [("S", j)])
        if m is not None: k(f"s_waitcnt lgkmcnt({m})")
        fb = BR + 8*(j % NBR); fa = areg_final(j)
        fill = [[], [], [], []]
        jb = j + LA
        if jb < NK:
            f = BR + 8*(jb % NBR)
            fill[0] += [f"buffer_load_dwordx4 {vr(f,4)}, v3, s[24:27], s70 offen sc1", "s_add_u32 s70, s70, 1024"]
            fill[1] += [f"buffer_load_dwordx4 {vr(f+4,4)}, v3, s[24:27], s71 offen sc1", "s_add_u32 s71, s71, 1024"]
            fifo += [("B", jb)] * 2
        if j < NLDS:
            o = j * 2048
            fill[2] += [f"s_add_u32 m0, s34, {ALDS + o}", f"buffer_load_dwordx4 v3, s[52:55], s68 offen sc1 lds", "s_add_u32 s68, s68, 14336"]
            fill[3] += [f"s_add_u32 m0, s34, {ALDS + o + 1024}", f"buffer_load_dwordx4 v3, s[52:55], s69 offen sc1 lds", "s_add_u32 s69, s69, 14336"]
            fifo += [("L", FIRST_LDS + j)] * 2
        elif j < NLDS + (NK - LAST_LDS):
            jn = LAST_LDS + (j - NLDS); f = areg_final(jn)
            fill[2] += [f"buffer_load_dwordx4 {vr(f,4)}, v3, s[52:55], s68 offen sc1", "s_add_u32 s68, s68, 14336"]
            fill[3] += [f"buffer_load_dwordx4 {vr(f+4,4)}, v3, s[52:55], s69 offen sc1", "s_add_u32 s69, s69, 14336"]
            fifo += [("A", jn)] * 2
        if do_lds:
            f = AR + 8*((jl - NPRE) % 4); o = (jl - FIRST_LDS) * 2048
            fill[2] += [f"ds_read_b128 {vr(f,4)}, v253 offset:{ALDS + o}"]
            fill[3] += [f"ds_read_b128 {vr(f+4,4)}, v253 offset:{ALDS + o + 1024}"]
            lfifo += [("S", jl)] * 2
        q = 0
        for ti in range(2):
            for di in range(2):
                c = ACC + (2*ti + di) * 16
                k(f"v_mfma_f32_32x32x16_bf16 {vr(c,16)}, {vr(fa + 4*di,4)}, {vr(fb + 4*ti,4)}, {vr(c,16)}")
                for ins in fill[q]: k(ins)
                q += 1
        if "g2st" in EXP and j in (0, 5, 10, 14): stamp(k, {0: 1, 5: 2, 10: 3, 14: 4}[j])
        if j == NK - LA - 1:
            k("buffer_load_dword v254, v251, s[60:63], 0 offen sc1")
            k(f"buffer_load_dword v255, v252, s[60:63], 0 offen offset:{FL_LN} sc1")
            fifo += [("F", 0)] * 2
            stamp(k, 7)
        if j == NK - 3:
            k("s_waitcnt vmcnt(0)")
            k("v_xor_b32 v254, s48, v254")
            k("v_xor_b32 v255, s48, v255")
            k("v_or_b32 v254, v254, v255")
            k("v_cmp_ne_u32 vcc, 0, v254")
            k("s_mov_b32 s33, 0")
            k("s_nop 3")
            k("s_cbranch_vccnz L_g2_nz")
            k("buffer_load_dwordx4 v[80:83], v248, s[56:59], 0 offen sc1")
            k("buffer_load_dwordx4 v[84:87], v249, s[56:59], 0 offen sc1")
            k("buffer_load_dword v11, v250, s[36:39], 0 offen sc1")
            k("s_mov_b32 s33, 1")
            k.label("L_g2_nz")
    stamp(k, 9)
    k("s_cmp_eq_u32 s33, 1")
    k("s_cbranch_scc1 L_g2_zok")
    k("s_mov_b32 s33, 0")
    if "noS" not in EXP: wait_flags2(k, 60, [((44,), 32), ((45,), 8)], 48, 240, 49, 33)
    k("buffer_load_dwordx4 v[80:83], v248, s[56:59], 0 offen sc1")
    k("buffer_load_dwordx4 v[84:87], v249, s[56:59], 0 offen sc1")
    k("buffer_load_dword v11, v250, s[36:39], 0 offen sc1")
    k.label("L_g2_zok")
    stamp(k, 10)
    k("s_barrier")
    for tp in range(1, 4):
        k(f"s_xor_b32 s34, s14, {tp}")
        k("s_mul_i32 s34, s34, 12288")
        k(f"v_add_u32 v4, s34, v3")
        for q in range(4):
            k(f"ds_write_b128 v4, {vr(ACC + 16*tp + 4*q, 4)} offset:{RED + 4096*(tp-1) + 1024*q}")
    with k.sched():
        k("v_lshrrev_b32 v5, 5, v1")
        k("v_bfe_u32 v6, v1, 2, 2")
        k("v_lshl_add_u32 v5, v5, 2, v6")
        k("v_lshlrev_b32 v5, 7, v5")
        k("v_bfe_u32 v6, v1, 4, 1")
        k("v_lshl_add_u32 v5, v6, 5, v5")
        k("v_and_b32 v7, 3, v1")
        k("v_lshl_add_u32 v5, v7, 3, v5")
        k("s_lshl_b32 s46, s66, 12\n s_lshl_b32 s47, s67, 6\n s_add_u32 s46, s46, s47")
        k("v_add_u32 v5, s46, v5")
        k("v_and_b32 v8, 31, v1")
        k("s_lshl_b32 s30, s67, 5")
        k("v_add_u32 v8, s30, v8")
        k("v_bfe_u32 v9, v8, 1, 3")
        k("s_lshl_b32 s31, s66, 2")
        k("v_xor_b32 v9, s31, v9")
        k("v_lshlrev_b32 v10, 7, v8")
        k("v_lshrrev_b32 v12, 5, v1")
        k("v_lshl_add_u32 v10, v12, 3, v10")
        k(f"v_add_u32 v10, {XL}, v10")
        for q in range(4):
            k(f"v_xor_b32 v{96+q}, {q}, v9")
            k(f"v_lshl_add_u32 v{96+q}, v{96+q}, 4, v10")
        k("s_mul_i32 s34, s14, 12288")
        k("v_add_u32 v4, s34, v3")
        k("s_lshl_b32 s35, s14, 11")
        k(f"s_add_u32 s35, s35, {OL}")
        k("v_and_b32 v13, 31, v1")
        k("v_bfe_u32 v14, v13, 1, 2")
        k("v_lshlrev_b32 v13, 6, v13")
        k("v_lshl_add_u32 v13, v12, 3, v13")
        k("v_add_u32 v13, s35, v13")
        for q in range(4):
            k(f"v_xor_b32 v{100+q}, {q}, v14")
            k(f"v_lshl_add_u32 v{100+q}, v{100+q}, 4, v13")
        k("v_add_u32 v104, s35, v3")
        k("v_bfe_u32 v105, v1, 3, 2")
        k("v_xor_b32 v105, v105, v1")
        k("v_and_b32 v105, 3, v105")
        k("v_lshrrev_b32 v106, 2, v1")
        k("s_lshl_b32 s32, s64, 6\n s_add_u32 s32, s32, s30")
        k("v_add_u32 v106, s32, v106")
        k("v_mul_u32_u24 v106, 896, v106")
        k("v_lshl_add_u32 v106, v105, 4, v106")
        k("s_lshl_b32 s33, s65, 7\n s_lshl_b32 s40, s66, 6\n s_add_u32 s33, s33, s40")
        k("v_add_u32 v106, s33, v106")
        k(f"v_add_u32 v107, {16*896}, v106")
    k("s_lshl_b32 s34, s14, 11")
    k(f"s_add_u32 s34, s34, {ZL}")
    k("v_add_u32 v15, s34, v3")
    k("s_waitcnt vmcnt(0)")
    k("ds_write_b128 v15, v[80:83]")
    k("ds_write_b128 v15, v[84:87] offset:1024")
    k("s_waitcnt lgkmcnt(0)")
    k("s_barrier")
    for sl in range(3):
        for q in range(4):
            k(f"ds_read_b128 {vr(112 + 16*sl + 4*q, 4)}, v4 offset:{RED + 4096*sl + 1024*q}")
    for q in range(4):
        k(f"ds_read_b64_tr_b16 {vr(80 + 2*q, 2)}, v5 offset:{ZL + 1024*q}")
    k("s_waitcnt lgkmcnt(4)")
    for q in range(4):
        k(f"ds_read_b64 {vr(88 + 2*q, 2)}, v{96+q}")
    with k.sched():
        for r in range(16):
            k(f"v_add_f32 v{ACC + r}, v{ACC + r}, v{112 + r}")
            k(f"v_add_f32 v{128 + r}, v{128 + r}, v{144 + r}")
            k(f"v_add_f32 v{ACC + r}, v{ACC + r}, v{128 + r}")
    k("s_waitcnt lgkmcnt(0)")
    with k.sched():
        for j in range(8):
            a = 112 + 2*j; b = 128 + 2*j
            k(f"v_lshlrev_b32 v{a}, 16, v{88 + j}")
            k(f"v_and_b32 v{a+1}, 0xffff0000, v{88 + j}")
            k(f"v_lshlrev_b32 v{b}, 16, v{80 + j}")
            k(f"v_and_b32 v{b+1}, 0xffff0000, v{80 + j}")
            k(f"v_add_f32 v{a}, v{a}, v{b}")
            k(f"v_add_f32 v{a+1}, v{a+1}, v{b+1}")
            k(f"v_fma_f32 v{a}, v{ACC + 2*j}, v11, v{a}")
            k(f"v_fma_f32 v{a+1}, v{ACC + 2*j + 1}, v11, v{a+1}")
            k(f"v_cvt_pk_bf16_f32 v{144 + j}, v{a}, v{a+1}")
    for q in range(4):
        k(f"ds_write_b64 v{100+q}, {vr(144 + 2*q, 2)}")
    k("s_waitcnt lgkmcnt(0)")
    k("ds_read_b128 v[112:115], v104")
    k("ds_read_b128 v[116:119], v104 offset:1024")
    k("s_waitcnt lgkmcnt(0)")
    of = " sc1" if "osc1" in EXP else (" nt" if "ont" in EXP else "")
    k(f"buffer_store_dwordx4 v[112:115], v106, s[20:23], 0 offen{of}")
    k(f"buffer_store_dwordx4 v[116:119], v107, s[20:23], 0 offen{of}")
    stamp(k, 11)
    stamp_flush(k, 0, 8)
    k("s_endpgm")


def ln8_issue(k, blk_s, xsrd):
    k(f"s_lshl_b32 s30, s{blk_s}, 3")
    k("s_lshl_b32 s31, s14, 1")
    k("s_add_u32 s30, s30, s31")
    k("v_lshrrev_b32 v36, 5, v1")
    k("v_add_u32 v36, s30, v36")
    k("v_and_b32 v37, 31, v1")
    k("v_mul_u32_u24 v38, 896, v36")
    k("v_lshl_add_u32 v38, v37, 4, v38")
    for i in range(4): k(f"v_mov_b32 v{44 + i}, 0")
    k(f"buffer_load_dwordx4 v[40:43], v38, s[{xsrd}:{xsrd+3}], 0 offen")
    k("s_mov_b32 exec_lo, 0x00ffffff\n s_mov_b32 exec_hi, 0x00ffffff")
    k(f"buffer_load_dwordx4 v[44:47], v38, s[{xsrd}:{xsrd+3}], 0 offen offset:512")
    k("s_mov_b64 exec, -1")

def ln8_compute(k, blk_s, xtsrd, rssrd, ldsbase):
    F = 48
    def red32(reg, tmp):
        k(f"v_add_f32_dpp v{reg}, v{reg}, v{reg} quad_perm:[1,0,3,2] row_mask:0xf bank_mask:0xf")
        k(f"v_add_f32_dpp v{reg}, v{reg}, v{reg} quad_perm:[2,3,0,1] row_mask:0xf bank_mask:0xf")
        k(f"v_add_f32_dpp v{reg}, v{reg}, v{reg} row_half_mirror row_mask:0xf bank_mask:0xf")
        k(f"v_add_f32_dpp v{reg}, v{reg}, v{reg} row_mirror row_mask:0xf bank_mask:0xf")
        k(f"ds_swizzle_b32 v{tmp}, v{reg} offset:0x401F")
        k("s_waitcnt lgkmcnt(0)")
        k(f"v_add_f32 v{reg}, v{reg}, v{tmp}")
    with k.sched():
        for j in range(8):
            k(f"v_lshlrev_b32 v{F + 2*j}, 16, v{40 + j}")
            k(f"v_and_b32 v{F + 2*j + 1}, 0xffff0000, v{40 + j}")
        for j in range(4): k(f"v_add_f32 v{64 + j}, v{F + j}, v{F + 4 + j}")
        for j in range(8, 16): k(f"v_add_f32 v{64 + (j & 3)}, v{64 + (j & 3)}, v{F + j}")
        k("v_add_f32 v64, v64, v65\n v_add_f32 v66, v66, v67\n v_add_f32 v64, v64, v66")
    red32(64, 65)
    k("v_mul_f32 v64, 0xbb124925, v64")
    with k.sched():
        for j in range(8): k(f"v_add_f32 v{68 + j}, v{F + j}, v64")
        k("v_mul_f32 v65, v68, v68\n v_mul_f32 v66, v69, v69")
        for j in range(2, 8): k(f"v_fmac_f32 v{65 + (j & 1)}, v{68 + j}, v{68 + j}")
    k("s_mov_b32 exec_lo, 0x00ffffff\n s_mov_b32 exec_hi, 0x00ffffff")
    with k.sched():
        for j in range(8): k(f"v_add_f32 v{68 + j}, v{F + 8 + j}, v64")
        for j in range(8): k(f"v_fmac_f32 v{65 + (j & 1)}, v{68 + j}, v{68 + j}")
    k("s_mov_b64 exec, -1")
    k("v_add_f32 v65, v65, v66")
    red32(65, 66)
    k("v_mul_f32 v65, 0x3b124925, v65")
    k("v_cvt_pk_bf16_f32 v65, v65, v64")
    k("v_and_b32 v64, 0xffff0000, v65")
    k("v_lshlrev_b32 v65, 16, v65")
    k("v_add_f32 v65, 0x3727c5ac, v65")
    k("v_cvt_pk_bf16_f32 v65, v65, v65")
    k("v_lshlrev_b32 v65, 16, v65")
    k("v_sqrt_f32 v65, v65")
    k("v_cvt_pk_bf16_f32 v65, v65, v65")
    k("v_lshlrev_b32 v65, 16, v65")
    k("v_rcp_f32 v66, v65")
    k("v_fma_f32 v67, -v65, v66, 2.0")
    k("v_mul_f32 v66, v66, v67")
    k("v_lshlrev_b32 v39, 2, v36")
    k("s_mov_b32 exec_lo, 1\n s_mov_b32 exec_hi, 1")
    k(f"buffer_store_dword v66, v39, s[{rssrd}:{rssrd+3}], 0 offen sc1")
    k("s_mov_b64 exec, -1")
    with k.sched():
        for j in range(8):
            a = F + 2*j
            k(f"v_add_f32 v{a}, v{a}, v64")
            k(f"v_add_f32 v{a+1}, v{a+1}, v64")
            k(f"v_cvt_pk_bf16_f32 v{40 + j}, v{a}, v{a+1}")
            k(f"v_lshlrev_b32 v{a}, 16, v{40 + j}")
            k(f"v_and_b32 v{a+1}, 0xffff0000, v{40 + j}")
            k(f"v_mul_f32 v{a}, v{a}, v66")
            k(f"v_mul_f32 v{a+1}, v{a+1}, v66")
            k(f"v_cvt_pk_bf16_f32 v{40 + j}, v{a}, v{a+1}")
        k("v_and_b32 v68, 7, v36")
        k("v_mul_u32_u24 v68, 960, v68")
        k("v_lshl_add_u32 v68, v37, 4, v68")
        k(f"v_add_u32 v68, {ldsbase}, v68")
        k("v_bfe_u32 v69, v1, 2, 2")
        k("v_mul_u32_u24 v69, 960, v69")
        k("v_lshrrev_b32 v70, 4, v1")
        k("v_lshl_add_u32 v69, v70, 5, v69")
        k("v_and_b32 v70, 3, v1")
        k("v_lshl_add_u32 v69, v70, 3, v69")
        k("s_lshl_b32 s44, s14, 7")
        k(f"s_add_u32 s44, s44, {ldsbase}")
        k("v_add_u32 v69, s44, v69")
        k("v_lshlrev_b32 v70, 4, v1")
    k("ds_write_b128 v68, v[40:43]")
    k("s_mov_b32 exec_lo, 0x00ffffff\n s_mov_b32 exec_hi, 0x00ffffff")
    k("ds_write_b128 v68, v[44:47] offset:512")
    k("s_mov_b64 exec, -1")
    k(f"s_mul_i32 s44, s{blk_s}, 7168")
    k("s_lshl_b32 s45, s14, 10")
    k("s_add_u32 s44, s44, s45")
    k("s_waitcnt lgkmcnt(0)")
    k("s_barrier")
    k("ds_read_b64_tr_b16 v[72:73], v69")
    k(f"ds_read_b64_tr_b16 v[74:75], v69 offset:{4*960}")
    k("ds_read_b64_tr_b16 v[76:77], v69 offset:512")
    k(f"ds_read_b64_tr_b16 v[78:79], v69 offset:{4*960 + 512}")
    k("s_waitcnt lgkmcnt(2)")
    k(f"buffer_store_dwordx4 v[72:75], v70, s[{xtsrd}:{xtsrd+3}], s44 offen sc1")
    L = uid("ln8")
    k("s_cmp_eq_u32 s14, 3")
    k(f"s_cbranch_scc1 {L}")
    k("s_add_u32 s44, s44, 4096")
    k("s_waitcnt lgkmcnt(0)")
    k(f"buffer_store_dwordx4 v[76:79], v70, s[{xtsrd}:{xtsrd+3}], s44 offen sc1")
    k.label(L)
    k("s_waitcnt lgkmcnt(0)")

def role_ln(k):
    stamp(k, 8); stamp(k, 0)
    k("s_setprio 1")
    k("s_load_dwordx2 s[4:5], s[0:1], 0")
    k("s_load_dwordx2 s[6:7], s[0:1], 88")
    k("s_load_dwordx4 s[8:11], s[0:1], 104")
    k("v_and_b32 v1, 63, v0")
    k("v_lshrrev_b32 v2, 6, v0")
    k("v_readfirstlane_b32 s14, v2")
    k("s_min_u32 s33, s3, 55")
    k("s_mul_i32 s30, s33, 28672")
    k("s_mul_i32 s31, s14, 7168")
    k("s_add_u32 s30, s30, s31")
    k("v_lshlrev_b32 v7, 4, v1")
    k("s_waitcnt lgkmcnt(0)")
    srd(k, 20, 6, 7, 1792 * 896)
    W2L = 32768
    for j in range(7):
        k(f"s_add_u32 m0, s31, {W2L + 1024*j}")
        k(f"s_add_u32 s32, s30, {1024*j}")
        k(f"buffer_load_dwordx4 v7, s[20:23], s32 offen lds")
    srd(k, 16, 4, 5, 2048 * 896)
    k("s_and_b32 s47, s3, 31")
    k("s_add_u32 s47, s47, 224")
    ln8_issue(k, 47, 16)
    srd(k, 52, 8, 9, 256)
    k("v_mov_b32 v120, 0")
    srd(k, 24, 10, 11, XT_SZ, XT_OFF)
    srd(k, 36, 10, 11, RS_SZ, RS_OFF)
    srd(k, 40, 10, 11, W2F_SZ, W2F_OFF)
    srd(k, 56, 10, 11, FL_SZ, FL_OFF)
    with k.sched():
        k("v_lshrrev_b32 v80, 5, v1")
        k("v_bfe_u32 v81, v1, 2, 2")
        k("v_lshl_add_u32 v80, v80, 2, v81")
        k("v_mul_u32_u24 v80, 896, v80")
        k("v_bfe_u32 v82, v1, 4, 1")
        k("v_lshl_add_u32 v80, v82, 5, v80")
        k("v_and_b32 v83, 3, v1")
        k("v_lshl_add_u32 v80, v83, 3, v80")
        k(f"v_add_u32 v80, {W2L}, v80")
        k("s_lshr_b32 s30, s14, 1")
        k("s_and_b32 s31, s14, 1")
        k("s_mul_i32 s31, s31, 7")
        k(f"s_mul_i32 s32, s30, {16*896}")
        k("s_lshl_b32 s34, s31, 6")
        k("s_add_u32 s32, s32, s34")
        k("v_add_u32 v80, s32, v80")
        k("s_lshl_b32 s35, s33, 1")
        k("s_add_u32 s35, s35, s30")
        k("s_mul_i32 s35, s35, 14")
        k("s_add_u32 s35, s35, s31")
        k("s_lshl_b32 s35, s35, 10")
    k("s_waitcnt vmcnt(2)")
    k("buffer_load_dword v121, v120, s[52:55], 0 offen sc1")
    k("s_barrier")
    stamp(k, 1)
    for j in range(7):
        k(f"ds_read_b64_tr_b16 {vr(84 + 4*j, 2)}, v80 offset:{64*j}")
        k(f"ds_read_b64_tr_b16 {vr(84 + 4*j + 2, 2)}, v80 offset:{64*j + 8*896}")
    k("s_waitcnt lgkmcnt(0) vmcnt(0)")
    k("v_readfirstlane_b32 s48, v121")
    k("s_cmp_ge_u32 s3, 56")
    k("s_cbranch_scc1 L_ln_now2")
    for j in range(7):
        k(f"buffer_store_dwordx4 {vr(84 + 4*j, 4)}, v7, s[40:43], s35 offen sc1")
        k(f"s_add_u32 s35, s35, 1024")
    k.label("L_ln_now2")
    k("s_cmp_lg_u32 s48, 0")
    k("s_cbranch_scc1 L_ln_haven")
    get_nonce(k, 52, 48, 112)
    k.label("L_ln_haven")
    k("s_cmp_ge_u32 s3, 32")
    k("s_cbranch_scc1 L_ln_noln")
    ln8_compute(k, 47, 24, 36, 0)
    k("s_lshl_b32 s30, s47, 4")
    signal(k, 56, 30, 48, 112, FL_LN)
    k.label("L_ln_noln")
    stamp(k, 2)
    k("s_lshl_b32 s30, s3, 4")
    signal(k, 56, 30, 48, 112, FL_W2)
    stamp(k, 3)
    if "pf" in EXP:
        wait_flags(k, 56, FL_W2, 4, 56, 48, 112, 49)
        k("s_and_b32 s30, s3, 31\n s_lshr_b32 s30, s30, 3\n s_lshr_b32 s31, s3, 5\n s_lshl_b32 s31, s31, 2\n s_add_u32 s30, s30, s31")
        k("s_lshr_b32 s31, s30, 1\n s_mul_i32 s31, s31, 28\n s_add_u32 s31, s31, s14\n s_mul_i32 s31, s31, 14336")
        k("s_and_b32 s30, s30, 1\n s_mul_i32 s30, s30, 7168\n s_add_u32 s30, s30, s31")
        k("s_mov_b32 s31, 0")
        k.label("L_ln_pf")
        for j in range(7):
            k(f"buffer_load_dwordx4 {vr(40 + 4*j, 4)}, v7, s[40:43], s30 offen offset:{1024*(j % 4)} sc1") if j < 4 else None
        k("s_add_u32 s32, s30, 4096")
        for j in range(4, 7):
            k(f"buffer_load_dwordx4 {vr(40 + 4*j, 4)}, v7, s[40:43], s32 offen offset:{1024*(j - 4)} sc1")
        k("s_add_u32 s30, s30, %d" % (4*14336))
        k("s_waitcnt vmcnt(7)")
        k("s_add_u32 s31, s31, 1")
        k("s_cmp_lt_u32 s31, 7")
        k("s_cbranch_scc1 L_ln_pf")
    stamp(k, 4)
    stamp_flush(k, 0, 4)
    k("s_endpgm")

def cmul(k, o, x, y, t):
    k(f"v_mul_f32 v{t}, v{x+1}, v{y+1}")
    k(f"v_mul_f32 v{t+1}, v{x+1}, v{y}")
    if o == x:
        k(f"v_fma_f32 v{o+1}, v{x}, v{y+1}, v{t+1}")
        k(f"v_fma_f32 v{o}, v{x}, v{y}, -v{t}")
    else:
        k(f"v_fma_f32 v{o}, v{x}, v{y}, -v{t}")
        k(f"v_fma_f32 v{o+1}, v{x}, v{y+1}, v{t+1}")

def role_s(k):
    stamp(k, 8); stamp(k, 0)
    k("s_setprio 3")
    k("s_load_dwordx16 s[56:71], s[0:1], 8")
    k("s_load_dwordx4 s[8:11], s[0:1], 104")
    k("s_load_dwordx2 s[4:5], s[0:1], 0")
    k("v_and_b32 v1, 63, v0")
    k("v_lshrrev_b32 v2, 6, v0")
    k("v_readfirstlane_b32 s14, v2")
    k("s_lshr_b32 s15, s14, 1")
    k("s_and_b32 s28, s14, 1")
    k("s_and_b32 s29, s3, 7")
    k("s_lshr_b32 s30, s3, 3")
    k("s_lshr_b32 s31, s30, 2\n s_lshl_b32 s31, s31, 3\n s_add_u32 s29, s29, s31")
    k("s_lshl_b32 s29, s29, 2\n s_and_b32 s30, s30, 3\n s_add_u32 s47, s29, s30")
    k("s_lshl_b32 s29, s47, 1")
    k("s_add_u32 s29, s29, s15")
    k("s_lshl_b32 s30, s29, 9")
    k("s_lshl_b32 s31, s28, 8")
    k("s_add_u32 s30, s30, s31")
    k("v_lshlrev_b32 v3, 2, v1")
    k("v_add_u32 v3, s30, v3")
    k("s_lshl_b32 s31, s29, 1")
    k("v_mov_b32 v4, s31")
    k("s_waitcnt lgkmcnt(0)")
    srd(k, 40, 4, 5, 2048 * 896)
    ln8_issue(k, 3, 40)
    PSZ = 448 * 512
    for i in range(6):
        srd(k, 16, 56 + 2*i, 57 + 2*i, PSZ)
        k(f"buffer_load_dword v{8 + i}, v3, s[16:19], 0 offen")
    srd(k, 20, 68, 69, 896)
    k("buffer_load_ushort v14, v4, s[20:23], 0 offen")
    srd(k, 20, 70, 71, 896)
    k("buffer_load_ushort v7, v4, s[20:23], 0 offen")
    srd(k, 52, 8, 9, 256)
    k("v_mov_b32 v190, 0")
    srd(k, 20, 10, 11, XT_SZ, XT_OFF)
    srd(k, 24, 10, 11, ZT_SZ, ZT_OFF)
    srd(k, 36, 10, 11, FL_SZ, FL_OFF)
    srd(k, 40, 10, 11, RS_SZ, RS_OFF)
    TB = 75776; XB = 65536
    CSTR = 4160; CH = 37888
    WA = 144
    RA = 152
    GA = 160
    k("s_lshl_b32 s33, s14, 14")
    k("s_mul_i32 s31, s15, 1536")
    k(f"s_add_u32 s31, s31, {TB}")
    k("s_lshl_b32 s30, s28, 6")
    k("v_add_u32 v2, s30, v1")
    k("v_lshlrev_b32 v3, 4, v1")
    with k.sched():
        k("v_and_b32 v16, 7, v1")
        k("v_lshlrev_b32 v17, 7, v1")
        k("v_add_u32 v17, s33, v17")
        for v_ in range(8):
            k(f"v_xor_b32 v{WA + v_}, {v_}, v16")
            k(f"v_lshl_add_u32 v{WA + v_}, v{WA + v_}, 4, v17")
        k("v_bfe_u32 v18, v1, 5, 1")
        k("v_bfe_u32 v19, v1, 3, 1")
        k("v_lshl_add_u32 v18, v18, 2, v19")
        k("v_bfe_u32 v19, v1, 2, 1")
        k("v_bfe_u32 v20, v1, 4, 1")
        k("v_bfe_u32 v21, v1, 1, 1")
        k("v_lshl_add_u32 v20, v20, 1, v21")
        k("v_lshl_add_u32 v19, v19, 2, v20")
        k("v_and_b32 v21, 1, v1")
        k("v_lshlrev_b32 v21, 3, v21")
        k("v_add_u32 v21, s33, v21")
        for j in range(2):
            k(f"v_add_u32 v{22+j}, {2*j}, v18")
            k(f"v_xor_b32 v{24+j}, v19, v{22+j}")
            k(f"v_lshl_add_u32 v{24+j}, v{24+j}, 4, v21")
            k(f"v_lshl_add_u32 v{RA+j}, v{22+j}, 7, v{24+j}")
        k("v_lshlrev_b32 v156, 4, v1")
        k("v_mul_u32_u24 v157, 7168, v2")
        k("s_lshl_b32 s45, s29, 4")
        k("v_add_u32 v157, s45, v157")
        k(f"v_add_u32 v158, {128*7168}, v157")
        for c in range(2):
            b_ = 80 + 20*c
            k(f"v_lshlrev_b32 v{b_+16}, 3, v2")
            k(f"v_sub_u32 v{b_+16}, {2047 - 1024*c}, v{b_+16}")
            for e in range(8): k(f"v_subrev_u32 v{b_ + e}, {e}, v{b_+16}")
            g = GA + 8*c
            for e in range(8): k(f"v_cvt_f32_u32 v{g + e}, v{b_ + e}")
            for e in range(0, 8, 2): k(f"v_cvt_pk_bf16_f32 v{b_ + 8 + e//2}, v{g + e}, v{g + e + 1}")
            for e in range(8):
                if e % 2 == 0: k(f"v_and_b32 v{g + e}, 0xffff, v{b_ + 8 + e//2}")
                else: k(f"v_lshrrev_b32 v{g + e}, 16, v{b_ + 8 + e//2}")
            for e in range(8): k(f"v_add_u32 v{g + e}, {(-0x4300 + 128) & 0xffffffff}, v{g + e}")
            for e in range(8):
                k(f"v_cmp_gt_u32 vcc, 128, v{b_ + e}")
                k(f"v_cndmask_b32 v{g + e}, v{g + e}, v{b_ + e}, vcc")
            for e in range(8): k(f"v_lshl_add_u32 v{g + e}, v{g + e}, 1, s31")
    ACC = 112
    for i in range(16): k(f"v_mov_b32 v{ACC + i}, 0")
    k("s_waitcnt vmcnt(8)")
    k("buffer_load_dword v191, v190, s[52:55], 0 offen sc1")
    ln8_compute(k, 3, 20, 40, 65536)
    stamp(k, 11)
    k("s_waitcnt vmcnt(2)")
    stamp(k, 1)
    k("v_readfirstlane_b32 s48, v191")
    k("v_lshlrev_b32 v14, 16, v14")
    k("v_mul_f32 v15, 0x3fb8aa3b, v14")
    k("s_mov_b32 s34, 0x3fb8aa3b")
    k("v_fma_f32 v16, v14, s34, -v15")
    k("s_mov_b32 s34, 0x32a57060")
    k("v_fma_f32 v16, v14, s34, v16")
    k("v_exp_f32 v15, v15")
    k("v_mul_f32 v16, 0x3f317218, v16")
    k("v_fma_f32 v15, v15, v16, v15")
    k("v_cvt_pk_bf16_f32 v15, v15, v15")
    k("v_lshlrev_b32 v15, 16, v15")
    E1, Z2, Z4, E256 = 20, 22, 24, 26
    Q = [28, 30, 32, 34]
    E32 = 36
    TT = [64 + 2*i for i in range(8)]
    tc = [0]
    def T():
        tc[0] += 1
        return TT[tc[0] % len(TT)]
    SA = 80
    SB = 176
    k("s_cmp_lg_u32 s48, 0")
    k("s_cbranch_scc1 L_s_haven")
    get_nonce(k, 52, 48, 104)
    k.label("L_s_haven")
    if "siglate" not in EXP:
        k("s_lshl_b32 s30, s3, 4")
        signal(k, 36, 30, 48, 104, FL_LN)
    k(f"s_setprio {PRIO[2]}")
    k("s_mov_b32 s35, 0")
    k("s_mov_b32 s34, 16")
    k.label("L_s_item")
    with k.sched():
        for i in range(6):
            k(f"v_lshlrev_b32 v{50 + i}, s34, v{8 + i}")
            k(f"v_and_b32 v{50 + i}, 0xffff0000, v{50 + i}")
        k("v_mul_f32 v18, v15, v50")
        k("v_mul_f32 v18, 0x3fb8aa3b, v18")
        k("v_mul_f32 v19, v15, v51")
        k("v_mul_f32 v19, 0.15915494, v19")
        k("v_mul_f32 v52, v15, v52")
        k("v_mul_f32 v53, v15, v53")
        P0 = 16
        cmul(k, P0, 54, 52, T())
        def E(dst, l):
            tmp = T()
            lit = {1: "1.0", 8: "0x41000000", 16: "0x41800000", 24: "0x41c00000", 32: "0x42000000", 256: "0x43800000"}[l]
            k(f"v_mul_f32 v{tmp}, {lit}, v18")
            k(f"v_mul_f32 v{tmp+1}, {lit}, v19")
            k(f"v_exp_f32 v{tmp}, v{tmp}")
            k(f"v_fract_f32 v{tmp+1}, v{tmp+1}")
            k(f"v_cos_f32 v{dst}, v{tmp+1}")
            k(f"v_sin_f32 v{dst+1}, v{tmp+1}")
            k(f"v_mul_f32 v{dst}, v{dst}, v{tmp}")
            k(f"v_mul_f32 v{dst+1}, v{dst+1}, v{tmp}")
        E(E1, 1); E(E256, 256); E(E32, 32); E(Q[1], 8); E(Q[2], 16); E(Q[3], 24)
        k(f"v_mov_b32 v{Q[0]}, 1.0")
        k(f"v_mov_b32 v{Q[0]+1}, 0")
        cmul(k, Z2, E1, E1, T())
        cmul(k, Z4, Z2, Z2, T())
        def pairA(h, ra, rb):
            p = h >> 3; dw = (h & 7) >> 1
            base = SA + 8*p
            if rb is None:
                k(f"v_cvt_pk_bf16_f32 v{base + dw}, v{ra}, 0")
                k(f"v_cvt_pk_bf16_f32 v{base + 4 + dw}, -v{ra+1}, 0")
            else:
                k(f"v_cvt_pk_bf16_f32 v{base + dw}, v{ra}, v{rb}")
                k(f"v_cvt_pk_bf16_f32 v{base + 4 + dw}, -v{ra+1}, -v{rb+1}")
        def flushA(p):
            base = SA + 8*p
            if "nokw" in EXP: return
            k(f"ds_write_b128 v{WA + p}, {vr(base, 4)}")
            k(f"ds_write_b128 v{WA + 4 + p}, {vr(base + 4, 4)}")
        def pairB(i):
            p = i >> 1; base = SB + 8*(p & 1); dw = 2*(i & 1)
            k(f"v_cvt_pk_bf16_f32 v{base + dw}, v{Q[0]}, v{Q[1]}")
            k(f"v_cvt_pk_bf16_f32 v{base + dw + 1}, v{Q[2]}, v{Q[3]}")
            k(f"v_cvt_pk_bf16_f32 v{base + 4 + dw}, v{Q[0]+1}, v{Q[1]+1}")
            k(f"v_cvt_pk_bf16_f32 v{base + 4 + dw + 1}, v{Q[2]+1}, v{Q[3]+1}")
            if (i & 1) and "nokw" not in EXP:
                k(f"ds_write_b128 v{WA + p}, {vr(base, 4)} offset:8192")
                k(f"ds_write_b128 v{WA + 4 + p}, {vr(base + 4, 4)} offset:8192")
        PE, PO = 38, 40
        U0, U1, S0, S1 = 42, 44, 46, 48
        steps = []
        def low():
            cmul(k, PO, P0, E1, T()); pairA(0, P0, PO)
            yield
            for h in (2, 4, 6):
                cmul(k, PE, PO, E1, T())
                yield
                cmul(k, PO, PE, E1, T()); pairA(h, PE, PO)
                yield
            flushA(0)
            yield
        def high():
            cmul(k, U0, P0, E256, T())
            cmul(k, S0, U0, Z2, T()); pairA(8, U0, S0)
            yield
            cmul(k, U1, U0, E256, T())
            cmul(k, S1, S0, Z2, T())
            yield
            cmul(k, S0, S1, Z2, T()); pairA(10, S1, S0)
            cmul(k, U0, U1, E256, T())
            yield
            cmul(k, S1, U1, Z4, T()); pairA(12, U1, S1)
            cmul(k, U1, U0, E256, T())
            yield
            cmul(k, S0, U0, Z4, T()); pairA(14, U0, S0)
            flushA(1)
            cmul(k, U0, U1, E256, T()); pairA(16, U1, U0)
            yield
            cmul(k, U1, U0, E256, T())
            cmul(k, U0, U1, E256, T()); pairA(18, U1, U0)
            yield
            cmul(k, U1, U0, E256, T()); pairA(20, U1, None)
            k(f"v_mov_b32 v{SA + 16 + 3}, 0\n v_mov_b32 v{SA + 16 + 7}, 0")
            flushA(2)
            yield
        gl, gh = low(), high()
        pairB(0)
        for i in range(1, 8):
            for c in range(4): cmul(k, Q[c], Q[c], E32, T())
            pairB(i)
            next(gl, None); next(gh, None)
        for _ in gl: pass
        for _ in gh: pass
    k("s_waitcnt lgkmcnt(0)")
    for half in range(2):
        for ks in range(4*half, 4*half + 4):
            fa = 64 + 8 * (ks % 4)
            k(f"ds_read_b64_tr_b16 {vr(fa,2)}, v{RA} offset:{1024*ks}")
            k(f"ds_read_b64_tr_b16 {vr(fa+2,2)}, v{RA+1} offset:{1024*ks}")
            k(f"ds_read_b64_tr_b16 {vr(fa+4,2)}, v{RA} offset:{1024*ks + 8192}")
            k(f"ds_read_b64_tr_b16 {vr(fa+6,2)}, v{RA+1} offset:{1024*ks + 8192}")
        for ks in range(4*half, 4*half + 4):
            fa = 64 + 8 * (ks % 4)
            k(f"s_waitcnt lgkmcnt({4*(3 - (ks % 4))})")
            k(f"v_mfma_f32_32x32x16_bf16 {vr(ACC,16)}, {vr(fa,4)}, {vr(fa+4,4)}, {vr(ACC,16)}")
    if "siglate" in EXP:
        k("s_cmp_lg_u32 s35, 0")
        k("s_cbranch_scc1 L_s_nosig")
        k("s_lshl_b32 s30, s3, 4")
        signal(k, 36, 30, 48, 104, FL_LN)
        stamp(k, 12)
        k.label("L_s_nosig")
    k("s_cmp_lg_u32 s35, 0")
    k("s_cbranch_scc1 L_s_nou")
    k("s_setprio 3")
    for i in range(4):
        k(f"buffer_load_dword v{104+i}, v156, s[36:39], 0 offen offset:{FL_LN + 1024*i} sc1")
    k(f"s_setprio {PRIO[2]}")
    k.label("L_s_nou")
    if "spf" in EXP:
        k("s_cmp_lg_u32 s35, 0")
        k("s_cbranch_scc1 L_s_nopf")
        k("v_min_u32 v104, 55, v1")
        k("v_lshlrev_b32 v104, 4, v104")
        k(f"v_add_u32 v104, {FL_W2}, v104")
        k("buffer_load_dword v105, v104, s[36:39], 0 offen sc1")
        srd(k, 40, 10, 11, W2F_SZ, W2F_OFF)
        k("s_lshr_b32 s30, s3, 3\n s_mul_i32 s44, s14, 28\n s_add_u32 s30, s30, s44\n s_mul_i32 s30, s30, 14336")
        k("s_waitcnt vmcnt(0)")
        k("v_cmp_ne_u32 vcc, s48, v105")
        k("s_nop 4")
        k("s_cbranch_vccnz L_s_nopf")
        for i in range(14):
            k(f"buffer_load_dwordx4 v[104:107], v3, s[40:43], s30 offen offset:{1024*(i % 4)} sc1")
            if i % 4 == 3: k("s_add_u32 s30, s30, 4096")
        k.label("L_s_nopf")
    k("s_mov_b32 s34, 0")
    k("s_add_u32 s35, s35, 1")
    k("s_cmp_lt_u32 s35, 2")
    k("s_cbranch_scc1 L_s_item")
    stamp(k, 2)
    k(f"s_setprio {PRIO[3]}")
    k("s_waitcnt vmcnt(0)")
    for i in range(4): k(f"v_xor_b32 v{104+i}, s48, v{104+i}")
    k("v_or_b32 v104, v104, v105\n v_or_b32 v106, v106, v107\n v_or_b32 v104, v104, v106")
    k("v_cmp_ne_u32 vcc, 0, v104")
    k("s_nop 4")
    k("s_cbranch_vccz L_s_haveu")
    k("s_mov_b32 s45, 0")
    wait_flags2(k, 36, [(FL_LN + 1024*i, 64) for i in range(4)], 48, 90, 49, 45)
    k.label("L_s_haveu")
    k("buffer_load_dwordx4 v[104:107], v157, s[20:23], 0 offen sc1")
    k("buffer_load_dwordx4 v[108:111], v158, s[20:23], 0 offen sc1")
    k("s_mul_i32 s30, s15, 3072")
    k(f"s_add_u32 s30, s30, {XB}")
    k("v_add_u32 v4, s30, v3")
    k("s_cmp_eq_u32 s28, 0")
    k("s_cbranch_scc1 L_kg_a")
    k("s_nop 7\n s_nop 3")
    for q in range(3): k(f"ds_write_b128 v4, {vr(ACC + 4*q, 4)} offset:{1024*q}")
    k("s_waitcnt lgkmcnt(0)")
    k.label("L_kg_a")
    k("s_barrier")
    k("s_cmp_eq_u32 s28, 0")
    k("s_cbranch_scc0 L_kg_b")
    for q in range(3): k(f"ds_read_b128 {vr(64 + 4*q, 4)}, v4 offset:{1024*q}")
    k("v_and_b32 v6, 31, v1")
    k("v_lshrrev_b32 v12, 5, v1")
    k("v_lshlrev_b32 v8, 4, v6")
    k("v_lshl_add_u32 v8, v12, 3, v8")
    k("v_add_u32 v8, s31, v8")
    k("v_lshlrev_b32 v9, 3, v6\n v_add_u32 v9, s31, v9")
    k("v_lshlrev_b32 v10, 2, v6\n v_add_u32 v10, s31, v10")
    k("v_lshlrev_b32 v11, 1, v6\n v_add_u32 v11, s31, v11")
    k("s_waitcnt lgkmcnt(0)")
    for r in range(12): k(f"v_add_f32 v{ACC + r}, v{ACC + r}, v{64 + r}")
    for j in range(6): k(f"v_cvt_pk_bf16_f32 v{80 + j}, v{ACC + 2*j}, v{ACC + 2*j + 1}")
    k("ds_write_b64 v8, v[80:81]")
    k("s_mov_b64 s[40:41], exec")
    k("s_mov_b32 exec_lo, -1\n s_mov_b32 exec_hi, 0")
    k("ds_write_b64 v9, v[82:83] offset:512")
    k("ds_write_b16 v11, v84 offset:1024")
    k("ds_write_b16_d16_hi v11, v84 offset:1088")
    k("ds_write_b16 v11, v85 offset:1152")
    k("ds_write_b16_d16_hi v11, v85 offset:1216")
    k("s_mov_b32 exec_lo, 0\n s_mov_b32 exec_hi, -1")
    k("ds_write_b32 v10, v82 offset:768")
    k("ds_write_b32 v10, v83 offset:896")
    k("ds_write_b16 v11, v84 offset:1280")
    k("s_mov_b64 exec, s[40:41]")
    k("s_waitcnt lgkmcnt(0)")
    k.label("L_kg_b")
    k(f"s_mul_i32 s33, s15, {CH}")
    k(f"s_add_u32 s34, s33, {8*CSTR}")
    k("s_barrier")
    stamp(k, 3)
    for c in range(2):
        for e in range(8):
            if e % 2 == 0: k(f"ds_read_u16 v{64 + 8*c + e//2}, v{GA + 8*c + e}")
            else: k(f"ds_read_u16_d16_hi v{80 + 4*c + e//2}, v{GA + 8*c + e}")
    for i in range(4): k(f"v_mov_b32 v{28 + i}, 0")
    k("v_add_u32 v25, s34, v3")
    k("v_subrev_u32 v26, 32, v1")
    k(f"v_mul_u32_u24 v26, {CSTR}, v26")
    k("v_add_u32 v26, s33, v26")
    k("v_add_u32 v26, 4096, v26")
    k("v_cmp_gt_u32 vcc, 32, v1")
    k("v_cndmask_b32 v25, v26, v25, vcc")
    k("v_lshlrev_b32 v27, 4, v2")
    k("v_add_u32 v27, s33, v27")
    k("s_waitcnt lgkmcnt(0)")
    for c in range(2):
        for j in range(4):
            k(f"v_and_b32 v{80 + 4*c + j}, 0xffff0000, v{80 + 4*c + j}")
            k(f"v_or_b32 v{64 + 8*c + j}, v{64 + 8*c + j}, v{80 + 4*c + j}")
    k("ds_write_b128 v27, v[64:67]")
    k("ds_write_b128 v27, v[72:75] offset:2048")
    k("v_cmp_gt_u32 vcc, 40, v1")
    k("s_and_saveexec_b64 s[40:41], vcc")
    k("ds_write_b128 v25, v[28:31]")
    k("s_mov_b64 exec, s[40:41]")
    k("s_waitcnt lgkmcnt(0)")
    k("s_barrier")
    k("ds_read_b128 v[68:71], v27 offset:16")
    k("ds_read_b128 v[76:79], v27 offset:2064")
    k("v_lshlrev_b32 v10, 4, v2")
    k("v_add_u32 v10, s34, v10")
    k("s_waitcnt vmcnt(0)")
    k("ds_write_b128 v10, v[104:107] offset:512")
    k("ds_write_b128 v10, v[108:111] offset:2560")
    k("s_waitcnt lgkmcnt(2)")
    for c in range(2):
        Dr = 64 + 8*c
        Ee = 96 + 24*c; Eo = Ee + 8; Do = Ee + 16
        with k.sched():
            for i in range(7): k(f"v_alignbit_b32 v{Ee + i}, v{Dr + i + 1}, v{Dr + i}, 16")
            for i in range(6): k(f"v_alignbit_b32 v{Eo + i}, v{Dr + i + 2}, v{Dr + i + 1}, 16")
            for i in range(6): k(f"v_mov_b32 v{Do + i}, v{Dr + i + 1}")
            src = {1: Ee, 2: Do, 3: Eo, 4: Dr + 2, 5: Ee + 2, 6: Do + 2, 7: Eo + 2}
            for s_ in range(1, 8):
                k(f"ds_write_b128 v27, {vr(src[s_], 4)} offset:{s_*CSTR + 2048*c}")
    stamp(k, 4)
    with k.sched():
        k("v_and_b32 v10, 7, v1")
        k("v_sub_u32 v10, 7, v10")
        k(f"v_mul_u32_u24 v10, {CSTR}, v10")
        k("v_bfe_u32 v11, v1, 3, 1")
        k("v_bfe_u32 v12, v1, 5, 1")
        k("v_bfe_u32 v13, v1, 4, 1")
        k("v_lshl_add_u32 v14, v12, 1, v11")
        k("v_sub_u32 v14, v13, v14")
        k("v_lshlrev_b32 v14, 4, v14")
        k("v_add_u32 v10, v10, v14")
        k(f"s_add_u32 s30, s33, {255*16 - 64*56}")
        k("s_lshl_b32 s31, s28, 8")
        k("s_sub_u32 s30, s30, s31")
        k("v_add_u32 v4, s30, v10")
        k("v_and_b32 v15, 15, v1")
        k("v_sub_u32 v15, v15, v12")
        k("v_lshlrev_b32 v15, 5, v15")
        k("v_lshl_add_u32 v15, v13, 4, v15")
        k("s_add_u32 s32, s34, 512")
        k("s_sub_u32 s32, s32, s31")
        k("v_add_u32 v5, s32, v15")
    ACC = 32
    FA = [64, 128]
    for i in range(32): k(f"v_mov_b32 v{ACC + i}, 0")
    k("s_waitcnt lgkmcnt(0)")
    k("s_barrier")
    stamp(k, 5)
    def rd(fs, p1):
        k(f"ds_read_b128 {vr(fs + 4*p1, 4)}, v4 offset:{512*(7 - p1)}")
        k(f"ds_read_b128 {vr(fs + 32 + 4*p1, 4)}, v5 offset:{512*p1}")
    def adv():
        k("v_subrev_u32 v4, 64, v4")
        k("v_subrev_u32 v5, 64, v5")
    def mm(fs, nxt):
        n = 0
        for p1 in range(8):
            for be in range(8 - p1):
                c = ACC + 4*(p1 + be)
                k(f"v_mfma_f32_16x16x32_bf16 {vr(c,4)}, {vr(fs + 4*p1,4)}, {vr(fs + 32 + 4*be,4)}, {vr(c,4)}")
                n += 1
                if nxt is not None and n % 4 == 0 and n // 4 <= 8: rd(nxt, n // 4 - 1)
        if nxt is not None: adv()
    for p1 in range(8): rd(FA[0], p1)
    adv()
    k("s_mov_b32 s35, 0")
    k.label("L_cv_loop")
    if "noconv" in EXP: k("s_branch L_cv_done")
    k("s_waitcnt lgkmcnt(0)")
    mm(FA[0], FA[1])
    k("s_waitcnt lgkmcnt(0)")
    mm(FA[1], FA[0])
    k("s_add_u32 s35, s35, 1")
    k("s_cmp_lt_u32 s35, 2")
    k("s_cbranch_scc1 L_cv_loop")
    k.label("L_cv_done")
    stamp(k, 6)
    k("s_setprio 3")
    k("s_waitcnt lgkmcnt(0)")
    k("s_barrier")
    k("s_lshl_b32 s30, s14, 12")
    k("v_add_u32 v6, s30, v3")
    k("s_xor_b32 s31, s14, 1")
    k("s_lshl_b32 s31, s31, 12")
    k("v_add_u32 v11, s31, v3")
    k("s_cmp_eq_u32 s28, 0")
    k("s_cbranch_scc0 L_cv_w1")
    for q in range(4): k(f"ds_write_b128 v6, {vr(ACC + 16 + 4*q, 4)} offset:{1024*q}")
    k("s_branch L_cv_w2")
    k.label("L_cv_w1")
    for q in range(4): k(f"ds_write_b128 v6, {vr(ACC + 4*q, 4)} offset:{1024*q}")
    for r in range(16): k(f"v_mov_b32 v{ACC + r}, v{ACC + 16 + r}")
    k.label("L_cv_w2")
    k("v_and_b32 v8, 15, v1")
    k("v_lshlrev_b32 v8, 5, v8")
    k("v_lshrrev_b32 v9, 4, v1")
    k("v_lshl_add_u32 v8, v9, 3, v8")
    k("s_lshl_b32 s30, s28, 11")
    k("s_add_u32 s30, s30, s34")
    k("s_add_u32 s30, s30, 512")
    k("v_add_u32 v9, s30, v8")
    for q in range(4): k(f"ds_read_b64 {vr(80 + 2*q, 2)}, v9 offset:{512*q}")
    k("v_lshlrev_b32 v7, 16, v7")
    k("s_waitcnt lgkmcnt(0)")
    k("s_barrier")
    stamp(k, 7)
    for q in range(4): k(f"ds_read_b128 {vr(64 + 4*q, 4)}, v11 offset:{1024*q}")
    k("s_waitcnt lgkmcnt(0)")
    with k.sched():
        for r in range(16): k(f"v_add_f32 v{ACC + r}, v{ACC + r}, v{64 + r}")
        for q in range(4):
            for hh in range(2):
                src = 80 + 2*q + hh
                t = 96 + 4*q + 2*hh
                k(f"v_lshlrev_b32 v{t}, 16, v{src}")
                k(f"v_and_b32 v{t+1}, 0xffff0000, v{src}")
                k(f"v_fmac_f32 v{ACC + 4*q + 2*hh}, v{t}, v7")
                k(f"v_fmac_f32 v{ACC + 4*q + 2*hh + 1}, v{t+1}, v7")
        for j in range(8): k(f"v_cvt_pk_bf16_f32 v{112 + j}, v{ACC + 2*j}, v{ACC + 2*j + 1}")
    k("s_lshl_b32 s30, s14, 11")
    k("s_add_u32 s30, s30, 16384")
    k("v_add_u32 v9, s30, v8")
    for q in range(4): k(f"ds_write_b64 v9, {vr(112 + 2*q, 2)} offset:{512*q}")
    k("v_add_u32 v9, s30, v3")
    k("s_waitcnt lgkmcnt(0)")
    k("ds_read_b128 v[72:75], v9")
    k("ds_read_b128 v[76:79], v9 offset:1024")
    k("s_lshl_b32 s30, s29, 12")
    k("s_lshl_b32 s31, s28, 11")
    k("s_add_u32 s30, s30, s31")
    k("s_waitcnt lgkmcnt(0)")
    k("buffer_store_dwordx4 v[72:75], v3, s[24:27], s30 offen sc1")
    k("buffer_store_dwordx4 v[76:79], v3, s[24:27], s30 offen offset:1024 sc1")
    stamp(k, 9)
    k("s_lshl_b32 s30, s47, 4")
    signal(k, 36, 30, 48, 90, FL_Z)
    stamp(k, 10)
    stamp_flush(k, 0, 8)
    k("s_endpgm")

def kd(name, vgpr, sgpr=102):
    return f""".amdhsa_kernel {name}
  .amdhsa_next_free_vgpr {vgpr}
  .amdhsa_next_free_sgpr {sgpr}
  .amdhsa_accum_offset {vgpr}
  .amdhsa_group_segment_fixed_size 0
  .amdhsa_kernarg_size 120
  .amdhsa_user_sgpr_count 2
  .amdhsa_user_sgpr_kernarg_segment_ptr 1
  .amdhsa_system_sgpr_workgroup_id_x 1
.end_amdhsa_kernel
"""

def header(launches):
    h = open("cdna_kernels/" + NAME + ".s.ref").read().split("; Override")[0]
    for (kn, g, b, lds) in launches:
        if len(launches) == 1 and PLAIN: h += f"; @launch grid=({g},1,1) block=({b},1,1) lds={lds}\n"
        else: h += f"; @launch kernel={kn} grid=({g},1,1) block=({b},1,1) lds={lds}\n"
    h += '.amdgcn_target "amdgcn-amd-amdhsa--gfx950"\n.text\n'
    return h

def kern_text(name, k):
    return f".globl {name}\n.p2align 8\n.type {name},@function\n{name}:\n" + k.text()

def pretouch(k):
    k("s_load_dwordx2 s[20:21], s[0:1], 112")
    k("s_load_dwordx2 s[22:23], s[0:1], 96")
    k("v_and_b32 v250, 63, v0")
    k("v_lshlrev_b32 v251, 19, v250")
    k("v_lshlrev_b32 v252, 15, v250")
    k("s_waitcnt lgkmcnt(0)")
    k("s_mov_b32 s16, s20\n s_mov_b32 s17, s21\n s_mov_b32 s18, 0x1200000\n s_mov_b32 s19, 0x00020000")
    k("buffer_load_dword v253, v251, s[16:19], 0 offen")
    k("s_mov_b32 s16, s22\n s_mov_b32 s17, s23\n s_mov_b32 s18, 1835008\n s_mov_b32 s19, 0x00020000")
    k("buffer_load_dword v254, v252, s[16:19], 0 offen")

def main(path):
    K1 = NAME + "_kernel"
    k1 = Kern()
    if "touch" in EXP:
        k1("s_cmp_lt_u32 s2, 224")
        k1("s_cbranch_scc1 L_notouch")
        k1("s_cmp_ge_u32 s2, 256")
        k1("s_cbranch_scc1 L_notouch")
        pretouch(k1)
        k1("s_waitcnt vmcnt(0)")
        k1.label("L_notouch")
    k1("s_cmp_lt_u32 s2, 224")
    k1("s_cbranch_scc1 L_g1")
    k1("s_cmp_lt_u32 s2, 256")
    k1("s_cbranch_scc1 L_lna")
    k1("s_cmp_lt_u32 s2, 480")
    k1("s_cbranch_scc1 L_s")
    k1("s_cmp_lt_u32 s2, 512")
    k1("s_cbranch_scc1 L_lnb")
    k1("s_endpgm")
    k1.label("L_lna")
    k1("s_sub_u32 s3, s2, 224")
    k1("s_branch L_ln")
    k1.label("L_lnb")
    k1("s_sub_u32 s3, s2, 448")
    k1.label("L_ln")
    role_ln(k1)
    k1.label("L_g1")
    k1("s_mov_b32 s3, s2")
    role_g1(k1)
    k1.label("L_s")
    k1("s_sub_u32 s3, s2, 256")
    if "noS" in EXP: k1("s_endpgm")
    role_s(k1)
    launches = [(K1, 512, 256, 81920)]
    txt = header(launches)
    txt += kern_text(K1, k1)
    txt += '.section .rodata,"a"\n.p2align 6\n' + kd(K1, 256)
    open(path, "w").write(txt)

if __name__ == "__main__":
    for a in list(sys.argv):
        if a.startswith("--exp="):
            EXP = a[6:].split(","); sys.argv.remove(a)
    for a in list(sys.argv):
        if a.startswith("--prio="):
            PRIO = [int(x) for x in a[7:].split(",")]; sys.argv.remove(a)
    for a in list(sys.argv):
        if a.startswith("--ne="):
            NEPRE = int(a[5:]); sys.argv.remove(a)
    if "--plain" in sys.argv:
        PLAIN = True; sys.argv.remove("--plain")
    if "--stamp" in sys.argv:
        STAMP = True; sys.argv.remove("--stamp")
    main(sys.argv[1] if len(sys.argv) > 1 else "cdna_kernels/" + NAME + ".s")
```

```python
import sys
from asmlib import Kern

NAME = "parallel_sum__ssm_conv_s4__dense_activation_relu__prompt"

XT_OFF = 0x000000
RS_OFF = 0x1C0000
HF_OFF = 0x400000
W2F_OFF = 0xC00000
ZT_OFF = 0xE00000
FL_OFF = 0x1000000
TS_OFF = 0x1100000
XT_SZ = 64 * 448 * 64
RS_SZ = 2048 * 4
HF_SZ = 64 * 112 * 1024
W2F_SZ = 112 * 14 * 1024
ZT_SZ = 448 * 4096
FL_SZ = 0x10000
FL_LN = 0
FL_W2 = 4096
FL_H = 5120
FL_Z = 9216

STAMP = False
NEPRE = 3
PRIO = [3, 1, 0, 2]
PLAIN = False
EXP = []
SPIN_LIMIT = 200000

def srd(k, d, lo, hi, size, off=0):
    if off:
        k(f"s_add_u32 s{d}, s{lo}, {off}")
        k(f"s_addc_u32 s{d+1}, s{hi}, 0")
    else:
        k(f"s_mov_b32 s{d}, s{lo}")
        k(f"s_mov_b32 s{d+1}, s{hi}")
    k(f"s_mov_b32 s{d+2}, {size}")
    k(f"s_mov_b32 s{d+3}, 0x00020000")

def vr(a, n=1):
    return f"v{a}" if n == 1 else f"v[{a}:{a+n-1}]"

def stamp(k, i):
    if not STAMP: return
    if i == 8: k("s_memrealtime s[96:97]")
    else:
        j = i if i < 8 else i - 1
        k(f"s_memtime s[{72+2*j}:{73+2*j}]")

def stamp_flush(k, kern_idx, n):
    if not STAMP: return
    k("s_memrealtime s[98:99]")
    k("s_waitcnt lgkmcnt(0)")
    k("s_load_dwordx2 s[68:69], s[0:1], 112")
    k("s_waitcnt lgkmcnt(0)")
    k(f"s_add_u32 s64, s68, {TS_OFF + kern_idx * 0x10000}")
    k("s_addc_u32 s65, s69, 0")
    k("s_mov_b32 s66, 0x10000")
    k("s_mov_b32 s67, 0x00020000")
    k("s_lshl_b32 s68, s2, 6")
    k("v_cmp_eq_u32 vcc, 0, v0")
    k("s_and_saveexec_b64 s[70:71], vcc")
    k("v_mov_b32 v1, s68")
    for i in range(12):
        k(f"v_mov_b32 v2, s{72+2*i}")
        k(f"buffer_store_dword v2, v1, s[64:67], 0 offen offset:{4*i}")
    k("s_getreg_b32 s69, hwreg(HW_REG_HW_ID)")
    k("v_mov_b32 v2, s69")
    k("buffer_store_dword v2, v1, s[64:67], 0 offen offset:48")
    k("s_getreg_b32 s69, hwreg(HW_REG_XCC_ID)")
    k("v_mov_b32 v2, s69")
    k("buffer_store_dword v2, v1, s[64:67], 0 offen offset:52")
    k("v_mov_b32 v2, s96")
    k("buffer_store_dword v2, v1, s[64:67], 0 offen offset:56")
    k("v_mov_b32 v2, s98")
    k("buffer_store_dword v2, v1, s[64:67], 0 offen offset:60")
    k("s_mov_b64 exec, s[70:71]")

_uid = [0]
def uid(p):
    _uid[0] += 1
    return f"L_{p}{_uid[0]}"

def get_nonce(k, dbg_srd, sdst, vtmp):
    L = uid("nonce"); E = uid("nonce_e")
    k(f"v_mov_b32 v{vtmp}, 0")
    k(f"s_mov_b32 s{sdst+1}, 0")
    k.label(L)
    k(f"buffer_load_dword v{vtmp+1}, v{vtmp}, s[{dbg_srd}:{dbg_srd+3}], 0 offen sc1")
    k("s_waitcnt vmcnt(0)")
    k(f"v_readfirstlane_b32 s{sdst}, v{vtmp+1}")
    k("s_nop 3")
    k(f"s_cmp_lg_u32 s{sdst}, 0")
    k(f"s_cbranch_scc1 {E}")
    k(f"s_add_u32 s{sdst+1}, s{sdst+1}, 1")
    k(f"s_cmp_lt_u32 s{sdst+1}, {SPIN_LIMIT}")
    k("s_sleep 1")
    k(f"s_cbranch_scc1 {L}")
    k.label(E)

def wait_flags(k, fl_srd, base_off, stride_shift, nflags, snonce, vtmp, scnt, wave0=None):
    L = uid("wf"); E = uid("wf_e")
    if wave0 is not None:
        k(f"s_cmp_lg_u32 s{wave0}, 0")
        k(f"s_cbranch_scc1 {E}")
    k(f"v_and_b32 v{vtmp}, 63, v0")
    k(f"v_min_u32 v{vtmp}, {nflags - 1}, v{vtmp}")
    k(f"v_lshlrev_b32 v{vtmp}, {stride_shift}, v{vtmp}")
    k(f"v_add_u32 v{vtmp}, {base_off}, v{vtmp}") if isinstance(base_off, int) else k(f"v_add_u32 v{vtmp}, s{base_off[0]}, v{vtmp}")
    k(f"s_mov_b32 s{scnt}, 0")
    k.label(L)
    k(f"buffer_load_dword v{vtmp+1}, v{vtmp}, s[{fl_srd}:{fl_srd+3}], 0 offen sc1")
    k("s_waitcnt vmcnt(0)")
    k(f"v_cmp_ne_u32 vcc, s{snonce}, v{vtmp+1}")
    k("s_nop 4")
    k(f"s_cbranch_vccz {E}")
    k(f"s_add_u32 s{scnt}, s{scnt}, 1")
    k(f"s_cmp_lt_u32 s{scnt}, {SPIN_LIMIT}")
    k("s_sleep 2")
    k(f"s_cbranch_scc1 {L}")
    k.label(E)

def signal(k, fl_srd, soff, snonce, vtmp, imm=0):
    k("s_waitcnt vmcnt(0)")
    k("s_barrier")
    k("v_cmp_eq_u32 vcc, 0, v0")
    k("s_and_saveexec_b64 s[44:45], vcc")
    k(f"s_add_u32 s{soff}, s{soff}, {imm}")
    k(f"v_mov_b32 v{vtmp}, s{soff}")
    k(f"v_mov_b32 v{vtmp+1}, s{snonce}")
    k(f"buffer_store_dword v{vtmp+1}, v{vtmp}, s[{fl_srd}:{fl_srd+3}], 0 offen sc1")
    k("s_mov_b64 exec, s[44:45]")

def wait_flags2(k, fl_srd, sets, snonce, vtmp, scnt, wave0):
    L = uid("wf"); E = uid("wf_e")
    k(f"s_cmp_lg_u32 s{wave0}, 0")
    k(f"s_cbranch_scc1 {E}")
    n = len(sets)
    for i, (base_off, nflags) in enumerate(sets):
        v = vtmp + 2*i
        k(f"v_and_b32 v{v}, 63, v0")
        k(f"v_min_u32 v{v}, {nflags - 1}, v{v}")
        k(f"v_lshlrev_b32 v{v}, 4, v{v}")
        k(f"v_add_u32 v{v}, {base_off}, v{v}") if isinstance(base_off, int) else k(f"v_add_u32 v{v}, s{base_off[0]}, v{v}")
    k(f"s_mov_b32 s{scnt}, 0")
    k.label(L)
    for i in range(n):
        k(f"buffer_load_dword v{vtmp+2*i+1}, v{vtmp+2*i}, s[{fl_srd}:{fl_srd+3}], 0 offen sc1")
    k("s_waitcnt vmcnt(0)")
    for i in range(1, n):
        k(f"v_xor_b32 v{vtmp+2*i+1}, s{snonce}, v{vtmp+2*i+1}")
    k(f"v_xor_b32 v{vtmp+1}, s{snonce}, v{vtmp+1}")
    for i in range(1, n):
        k(f"v_or_b32 v{vtmp+1}, v{vtmp+1}, v{vtmp+2*i+1}")
    k(f"v_cmp_ne_u32 vcc, 0, v{vtmp+1}")
    k("s_nop 4")
    k(f"s_cbranch_vccz {E}")
    k(f"s_add_u32 s{scnt}, s{scnt}, 1")
    k(f"s_cmp_lt_u32 s{scnt}, {SPIN_LIMIT}")
    k("s_sleep 1")
    k(f"s_cbranch_scc1 {L}")
    k.label(E)

def role_g1(k):
    stamp(k, 8); stamp(k, 0)
    k("s_load_dwordx2 s[4:5], s[0:1], 0")
    k(f"s_setprio {PRIO[0]}")
    k("s_load_dwordx2 s[6:7], s[0:1], 80")
    k("s_load_dwordx2 s[8:9], s[0:1], 112")
    k("s_load_dwordx2 s[50:51], s[0:1], 104")
    k("s_and_b32 s10, s3, 7")
    k("s_lshr_b32 s11, s3, 3")
    k("s_and_b32 s30, s11, 3")
    k("s_lshr_b32 s31, s11, 2")
    if "map81" in EXP:
        k("s_and_b32 s12, s11, 1\n s_lshl_b32 s13, s10, 1\n s_add_u32 s12, s12, s13")
        k("s_lshr_b32 s13, s11, 1")
        k("s_and_b32 s30, s11, 1\n s_lshl_b32 s30, s30, 1\n s_lshr_b32 s31, s11, 2")
    else:
        k("s_lshr_b32 s12, s10, 1")
        k("s_lshl_b32 s12, s12, 2")
        k("s_add_u32 s12, s12, s30")
        k("s_and_b32 s13, s10, 1")
        k("s_mul_i32 s13, s13, 7")
        k("s_add_u32 s13, s13, s31")
    k("s_mul_i32 s32, s30, 7\n s_add_u32 s32, s32, 1\n s_lshr_b32 s32, s32, 1")
    k("s_lshl_b32 s31, s31, 1\n s_add_u32 s45, s32, s31")
    k("s_cmp_ge_u32 s45, 14\n s_cselect_b32 s32, 14, 0\n s_sub_u32 s45, s45, s32")
    if "norot" in EXP: k("s_mov_b32 s45, 0")
    k("v_and_b32 v1, 63, v0")
    k("v_lshrrev_b32 v2, 6, v0")
    k("v_readfirstlane_b32 s14, v2")
    k("s_and_b32 s15, s14, 1")
    k("s_lshr_b32 s28, s14, 1")
    k("s_lshl_b32 s29, s14, 11")
    VX0, VX1, VW0, VW1 = 4, 5, 6, 7
    with k.sched():
        k("s_lshl_b32 s30, s12, 7")
        k("s_lshl_b32 s31, s14, 5")
        k("s_add_u32 s30, s30, s31")
        k("v_lshrrev_b32 v3, 2, v1")
        k("v_add_u32 v3, s30, v3")
        k("v_mul_u32_u24 v3, 896, v3")
        k("v_lshrrev_b32 v8, 4, v1")
        k("v_xor_b32 v9, v1, v8")
        k("v_and_b32 v9, 3, v9")
        k(f"v_lshl_add_u32 v{VX0}, v9, 4, v3")
        k(f"v_add_u32 v{VX1}, 14336, v{VX0}")
        k("s_lshl_b32 s33, s14, 3")
        k("v_add_u32 v10, s33, v8")
        k("v_mul_u32_u24 v10, 3584, v10")
        k("v_lshlrev_b32 v11, 2, v8")
        k("v_xor_b32 v11, v1, v11")
        k("v_and_b32 v11, 15, v11")
        k("v_lshl_add_u32 v10, v11, 4, v10")
        k("s_lshl_b32 s34, s13, 8")
        k(f"v_add_u32 v{VW0}, s34, v10")
        k(f"v_add_u32 v{VW1}, 14336, v{VW0}")
    k("s_memrealtime s[46:47]")
    k("s_waitcnt lgkmcnt(0)")
    srd(k, 16, 4, 5, 2048 * 896)
    srd(k, 20, 6, 7, 448 * 3584)
    srd(k, 24, 8, 9, HF_SZ, HF_OFF)
    srd(k, 52, 50, 51, 256)
    srd(k, 60, 8, 9, FL_SZ, FL_OFF)
    k("s_cmp_lg_u32 s3, 0")
    k("s_cbranch_scc1 L_g1_nn")
    k("s_or_b32 s46, s46, 1")
    k("v_cmp_eq_u32 vcc, 0, v0")
    k("s_and_saveexec_b64 s[30:31], vcc")
    k("v_mov_b32 v100, 0")
    k("v_mov_b32 v101, s46")
    k("buffer_store_dword v101, v100, s[52:55], 0 offen sc1")
    k("s_mov_b64 exec, s[30:31]")
    k("s_waitcnt vmcnt(0)")
    k.label("L_g1_nn")
    k("v_mov_b32 v176, 0")
    def set_stage():
        k("s_mul_i32 s40, s45, 114688")
        k("s_lshl_b32 s41, s45, 6")
    def adv_stage():
        k("s_add_u32 s45, s45, 1\n s_cmp_eq_u32 s45, 14\n s_cselect_b32 s45, 0, s45")
    def dma_w(j, slot):
        k(f"s_add_u32 m0, s29, {16384*slot + 1024*j}")
        k(f"buffer_load_dwordx4 v{[VW0, VW1][j]}, s[20:23], s40 offen lds")
    def dma_x(j, slot):
        k(f"s_add_u32 m0, s29, {16384*slot + 8192 + 1024*j}")
        k(f"buffer_load_dwordx4 v{[VX0, VX1][j]}, s[16:19], s41 offen lds")
    for s in range(3):
        set_stage(); dma_w(0, s); dma_w(1, s); dma_x(0, s); dma_x(1, s); adv_stage()
    set_stage(); dma_w(0, 3); dma_w(1, 3)
    AA = [10, 11]; BB0 = [12, 13]; BB1 = [14, 15]
    AAh = [16, 17]; BB0h = [18, 19]; BB1h = [20, 21]
    with k.sched():
        k("v_lshrrev_b32 v3, 5, v1")
        k("v_bfe_u32 v8, v1, 2, 2")
        k("v_lshl_add_u32 v3, v3, 3, v8")
        k("v_lshlrev_b32 v3, 8, v3")
        k("v_bfe_u32 v9, v1, 4, 1")
        k("v_lshlrev_b32 v9, 1, v9")
        k("v_bfe_u32 v22, v1, 1, 1")
        k("v_add_u32 v9, v9, v22")
        k("v_lshl_add_u32 v3, v9, 4, v3")
        k("v_and_b32 v22, 1, v1")
        k("v_lshl_add_u32 v3, v22, 3, v3")
        for ai in range(2):
            k(f"s_xor_b32 s{30+ai}, s28, {ai}")
            k(f"s_lshl_b32 s{32+ai}, s15, 1")
            k(f"s_add_u32 s{30+ai}, s{30+ai}, s{32+ai}")
            k(f"v_xor_b32 v{24+ai}, s{30+ai}, v8")
            k(f"v_lshl_add_u32 v{AA[ai]}, v{24+ai}, 6, v3")
            k(f"v_add_u32 v{AAh[ai]}, 65536, v{AA[ai]}")
        k("v_and_b32 v26, 31, v1")
        k("v_lshrrev_b32 v27, 5, v1")
        k("v_xor_b32 v27, v27, v8")
        k("v_lshlrev_b32 v27, 4, v27")
        k("v_lshl_add_u32 v26, v26, 6, v27")
        for bi in range(2):
            k(f"s_xor_b32 s{34+bi}, s15, {bi}")
            k(f"s_lshl_b32 s{34+bi}, s{34+bi}, 11")
            k(f"s_lshl_b32 s{36+bi}, s28, 12")
            k(f"s_add_u32 s{34+bi}, s{34+bi}, s{36+bi}")
            k(f"s_add_u32 s{34+bi}, s{34+bi}, 8192")
            k(f"v_add_u32 v{BB0[bi]}, s{34+bi}, v26")
            k(f"v_xor_b32 v{BB1[bi]}, 32, v{BB0[bi]}")
            k(f"v_add_u32 v{BB0h[bi]}, 65536, v{BB0[bi]}")
            k(f"v_add_u32 v{BB1h[bi]}, 65536, v{BB1[bi]}")
    SEL = 160; SW = 164; SX = 168
    k("v_and_b32 v22, 15, v1")
    k("v_bfe_u32 v23, v1, 4, 1")
    k("v_cmp_eq_u32 vcc, v22, v23")
    k("v_mov_b32 v22, 0x3f803f80")
    k(f"v_cndmask_b32 v{SEL}, 0, v22, vcc")
    for i in range(1, 4): k(f"v_mov_b32 v{SEL + i}, v{SEL}")
    for i in range(4):
        k(f"v_mov_b32 v{SW + i}, 0")
        k(f"v_mov_b32 v{SX + i}, 0")
    FR = [24, 40]
    ACC = 56
    for i in range(64): k(f"v_mov_b32 v{ACC + i}, 0")
    def rdA(slot, kap, fs, ai):
        if "nords" in EXP: return
        hi = slot >= 4; sb = 0 if hi else slot * 16384
        a_ = (AAh if hi else AA)[ai]
        k(f"ds_read_b64_tr_b16 {vr(fs + 4*ai, 2)}, v{a_} offset:{sb + kap*4096}")
        k(f"ds_read_b64_tr_b16 {vr(fs + 4*ai + 2, 2)}, v{a_} offset:{sb + kap*4096 + 1024}")
    def rdB(slot, kap, fs, bi):
        if "nords" in EXP: return
        hi = slot >= 4; sb = 0 if hi else slot * 16384
        b_ = ((BB1h if hi else BB1) if kap else (BB0h if hi else BB0))[bi]
        k(f"ds_read_b128 {vr(fs + 8 + 4*bi, 4)}, v{b_} offset:{sb}")
    def mf(fs, ai, bi):
        if "nomf" in EXP: return
        c = ACC + (2*ai + bi) * 16
        k(f"v_mfma_f32_32x32x16_bf16 {vr(c,16)}, {vr(fs + 4*ai,4)}, {vr(fs + 8 + 4*bi,4)}, {vr(c,16)}")
    def sums(fs, which):
        if "nomf" in EXP: return
        src = fs if which == 0 else fs + 8
        dst = SW if which == 0 else SX
        k(f"v_mfma_f32_16x16x32_bf16 {vr(dst,4)}, {vr(src,4)}, {vr(SEL,4)}, {vr(dst,4)}")
    def stage_body(slot, cd, ab, wait, last=False):
        nslot = (slot + 1) % 5
        k("s_waitcnt lgkmcnt(0)")
        mf(FR[0], 0, 0)
        rdA(slot, 1, FR[1], 0); rdB(slot, 1, FR[1], 0)
        mf(FR[0], 0, 1)
        rdA(slot, 1, FR[1], 1); rdB(slot, 1, FR[1], 1)
        sums(FR[0], 0)
        if cd: dma_x(0, (slot + 3) % 5)
        mf(FR[0], 1, 0)
        if cd: dma_x(1, (slot + 3) % 5)
        sums(FR[0], 1)
        if cd: adv_stage(); set_stage()
        mf(FR[0], 1, 1)
        if not last:
            k(f"s_waitcnt vmcnt({wait}) lgkmcnt(0)")
            k("s_barrier")
        else:
            k("s_waitcnt lgkmcnt(0)")
        mf(FR[1], 0, 0)
        if not last: rdA(nslot, 0, FR[0], 0); rdB(nslot, 0, FR[0], 0)
        mf(FR[1], 0, 1)
        if not last: rdA(nslot, 0, FR[0], 1); rdB(nslot, 0, FR[0], 1)
        sums(FR[1], 0)
        if ab: dma_w(0, (slot + 4) % 5)
        mf(FR[1], 1, 0)
        if ab: dma_w(1, (slot + 4) % 5)
        sums(FR[1], 1)
        mf(FR[1], 1, 1)
    with k.sched():
        k("v_and_b32 v120, 1, v1")
        k("v_lshlrev_b32 v120, 6, v120")
        k("v_lshrrev_b32 v121, 4, v1")
        k("v_lshl_add_u32 v122, v121, 4, v120")
        k("s_lshl_b32 s30, s28, 1\n s_add_u32 s30, s30, s15\n s_lshl_b32 s30, s30, 7")
        k("s_lshl_b32 s31, s15, 1\n s_add_u32 s31, s31, s28\n s_lshl_b32 s31, s31, 7\n s_add_u32 s31, s31, 512")
        k("v_add_u32 v120, s30, v122")
        k("v_add_u32 v121, s31, v122")
        k("v_and_b32 v126, 31, v1")
        k("v_lshlrev_b32 v126, 2, v126")
        for bi in range(2):
            k(f"s_xor_b32 s32, s15, {bi}\n s_lshl_b32 s33, s28, 1\n s_add_u32 s32, s32, s33\n s_lshl_b32 s32, s32, 7")
            k(f"v_add_u32 v{122+bi}, s32, v126")
        for ai in range(2):
            k(f"s_xor_b32 s34, s28, {ai}\n s_lshl_b32 s35, s15, 1\n s_add_u32 s34, s34, s35\n s_lshl_b32 s34, s34, 7\n s_add_u32 s34, s34, 512")
            k(f"v_add_u32 v{124+ai}, s34, v126")
    for bi in range(2):
        k(f"s_xor_b32 s{36+bi}, s15, {bi}\n s_lshl_b32 s31, s28, 1\n s_add_u32 s{36+bi}, s{36+bi}, s31\n s_lshl_b32 s31, s12, 2\n s_add_u32 s{36+bi}, s{36+bi}, s31\n s_mul_i32 s{36+bi}, s{36+bi}, {112*1024}")
    for ai in range(2):
        k(f"s_xor_b32 s{38+ai}, s28, {ai}\n s_lshl_b32 s31, s15, 1\n s_add_u32 s{38+ai}, s{38+ai}, s31\n s_lshl_b32 s31, s13, 2\n s_add_u32 s{38+ai}, s{38+ai}, s31\n s_lshl_b32 s{38+ai}, s{38+ai}, 11")
    for i in range(16): k(f"v_mov_b32 v{128 + i}, 0")
    k("v_cmp_gt_u32 vcc, 32, v1")
    k("s_mov_b64 s[42:43], vcc")
    k("v_and_b32 v126, 15, v1")
    k("v_cmp_gt_u32 vcc, 2, v126")
    k("s_mov_b64 s[50:51], vcc")
    k("v_min_u32 v126, 55, v1")
    k("v_lshlrev_b32 v126, 4, v126")
    k(f"v_add_u32 v126, {FL_W2}, v126")
    g2_setup(k)
    k("s_mov_b32 s44, 0")
    stamp(k, 1)
    k("s_waitcnt vmcnt(10)")
    k("s_barrier")
    stamp(k, 2)
    for ai in range(2): rdA(0, 0, FR[0], ai)
    for bi in range(2): rdB(0, 0, FR[0], bi)
    k.label("L_g1_loop")
    for sl in range(5): stage_body(sl, True, True, 8)
    k("s_add_u32 s44, s44, 1")
    k("s_cmp_lt_u32 s44, 2")
    k("s_cbranch_scc1 L_g1_loop")
    stage_body(0, True, False, 8)
    stage_body(1, False, False, 4)
    k("buffer_load_dword v177, v176, s[52:55], 0 offen sc1")
    stage_body(2, False, False, 0)
    stage_body(3, False, False, 0, last=True)
    stamp(k, 3)
    k("buffer_load_dword v127, v126, s[60:63], 0 offen sc1")
    k("s_nop 4")
    for r in range(4): k(f"v_mul_f32 v{SX + r}, 0x3b124925, v{SX + r}")
    k(f"v_cvt_pk_bf16_f32 v24, v{SX}, v{SX+1}")
    k(f"v_cvt_pk_bf16_f32 v25, v{SX+2}, v{SX+3}")
    k(f"v_lshlrev_b32 v{SX}, 16, v24")
    k(f"v_and_b32 v{SX+1}, 0xffff0000, v24")
    k(f"v_lshlrev_b32 v{SX+2}, 16, v25")
    k(f"v_and_b32 v{SX+3}, 0xffff0000, v25")
    k("s_mov_b64 exec, s[50:51]")
    k(f"ds_write_b128 v120, {vr(SX,4)}")
    k(f"ds_write_b128 v121, {vr(SW,4)}")
    k("s_mov_b64 exec, -1")
    k("v_readfirstlane_b32 s48, v177")
    k("s_nop 3")
    k("s_cmp_lg_u32 s48, 0")
    k("s_cbranch_scc1 L_g1_haven")
    get_nonce(k, 52, 48, 48)
    k.label("L_g1_haven")
    srd(k, 52, 8, 9, W2F_SZ, W2F_OFF)
    k("s_waitcnt lgkmcnt(0)")
    k("s_barrier")
    for bi in range(2): k(f"ds_read_b32 v{40+bi}, v{122+bi}")
    for ai in range(2): k(f"ds_read_b32 v{42+ai}, v{124+ai}")
    k("v_lshlrev_b32 v3, 4, v1")
    k("s_waitcnt lgkmcnt(0)")
    with k.sched():
        for bi in range(2):
            k(f"v_cvt_pk_bf16_f32 v{44+bi}, -v{40+bi}, -v{40+bi}")
            k(f"v_cndmask_b32 v{136 + 4*bi}, 0, v{44+bi}, s[42:43]")
        for ai in range(2):
            k(f"v_cvt_pk_bf16_f32 v{46+ai}, v{42+ai}, v{42+ai}")
            k(f"v_lshlrev_b32 v{46+ai}, 16, v{46+ai}")
            k(f"v_sub_f32 v{46+ai}, v{42+ai}, v{46+ai}")
            k(f"v_cvt_pk_bf16_f32 v{46+ai}, v{42+ai}, v{46+ai}")
            k(f"v_cndmask_b32 v{128 + 4*ai}, 0, v{46+ai}, s[42:43]")
    for ai in range(2):
        for bi in range(2):
            c = ACC + (2*ai + bi) * 16
            k(f"v_mfma_f32_32x32x16_bf16 {vr(c,16)}, {vr(128 + 4*ai,4)}, {vr(136 + 4*bi,4)}, {vr(c,16)}")
    for ai in range(2):
        for bi in range(2):
            c = ACC + (2*ai + bi) * 16
            t = 24 + 8*(2*ai + bi)
            for j in range(8):
                k(f"v_cvt_pk_bf16_f32 v{t + j}, v{c + 2*j}, v{c + 2*j + 1}")
            for j in range(8):
                k(f"v_pk_max_i16 v{t + j}, v{t + j}, 0")
            hf = " sc1"
            k(f"s_add_u32 s30, s{36+bi}, s{38+ai}")
            k(f"buffer_store_dwordx4 {vr(t,4)}, v3, s[24:27], s30 offen{hf}")
            k(f"buffer_store_dwordx4 {vr(t+4,4)}, v3, s[24:27], s30 offen offset:1024{hf}")
    stamp(k, 4)
    role_g2(k)

def g2_setup(k):
    k("s_load_dwordx2 s[6:7], s[0:1], 96")
    k("s_and_b32 s10, s3, 7")
    k("s_lshr_b32 s11, s3, 3")
    k("s_and_b32 s30, s11, 3")
    k("s_lshl_b32 s65, s10, 2")
    k("s_add_u32 s64, s30, s65")
    k("s_lshr_b32 s65, s11, 2")
    k("s_and_b32 s66, s14, 1")
    k("s_lshr_b32 s67, s14, 1")
    k("s_mul_i32 s30, s14, 28")
    k("s_mul_i32 s31, s30, 14\n s_lshl_b32 s32, s65, 1\n s_add_u32 s31, s31, s32")
    k("s_add_u32 s68, s31, s66\n s_lshl_b32 s68, s68, 10")
    k("s_xor_b32 s32, s66, 1\n s_add_u32 s69, s31, s32\n s_lshl_b32 s69, s69, 10")
    k("s_lshl_b32 s32, s64, 1")
    k("s_add_u32 s33, s32, s67\n s_mul_i32 s33, s33, 112\n s_add_u32 s70, s33, s30\n s_lshl_b32 s70, s70, 10")
    k("s_xor_b32 s33, s67, 1\n s_add_u32 s33, s33, s32\n s_mul_i32 s33, s33, 112\n s_add_u32 s71, s33, s30\n s_lshl_b32 s71, s71, 10")

def role_g2(k):
    ACC = 16; BR = 80; NBR = 6; NK = 28; NPRE = 11; NLDS = 8
    AP = 128; AR = 216
    RED = 0; ZL = 49152; XL = 65536 + 0; OL = 73728
    ALDS = 0
    FIRST_LDS = NPRE + 4
    k("s_waitcnt vmcnt(8)")
    k("v_cmp_ne_u32 vcc, s48, v127")
    k("s_nop 4")
    k("s_cbranch_vccz L_g2_w2ok")
    k("s_mov_b32 s44, 0")
    wait_flags2(k, 60, [(FL_W2, 56)], 48, 50, 49, 44)
    k.label("L_g2_w2ok")
    def aregs(j):
        if j < NPRE: return AP + 8*j
        return AR + 8*((j - NPRE) % 4)
    def advA(n=1):
        k("s_add_u32 s68, s68, 14336\n s_add_u32 s69, s69, 14336")
    def loadA(j):
        f = aregs(j)
        k(f"buffer_load_dwordx4 {vr(f,4)}, v3, s[52:55], s68 offen sc1")
        k(f"buffer_load_dwordx4 {vr(f+4,4)}, v3, s[52:55], s69 offen sc1")
        advA()
    def loadA_lds(j):
        o = (j - FIRST_LDS) * 2048
        k(f"s_add_u32 m0, s34, {ALDS + o}")
        k(f"buffer_load_dwordx4 v3, s[52:55], s68 offen sc1 lds")
        k(f"s_add_u32 m0, s34, {ALDS + o + 1024}")
        k(f"buffer_load_dwordx4 v3, s[52:55], s69 offen sc1 lds")
        advA()
    def loadB(j):
        f = BR + 8*(j % NBR)
        k(f"buffer_load_dwordx4 {vr(f,4)}, v3, s[24:27], s70 offen sc1")
        k(f"buffer_load_dwordx4 {vr(f+4,4)}, v3, s[24:27], s71 offen sc1")
        k("s_add_u32 s70, s70, 1024\n s_add_u32 s71, s71, 1024")
    NE = NEPRE
    for j in range(NE): loadA(j)
    npre = 2*NE
    k("s_waitcnt vmcnt(0)")
    k("s_barrier")
    k("s_lshl_b32 s30, s12, 8\n s_lshl_b32 s31, s13, 4\n s_add_u32 s30, s30, s31\n s_add_u32 s30, s30, %d" % FL_H)
    k("v_cmp_eq_u32 vcc, 0, v0")
    k("s_and_saveexec_b64 s[44:45], vcc")
    k("v_mov_b32 v40, s30")
    k("v_mov_b32 v41, s48")
    k("buffer_store_dword v41, v40, s[60:63], 0 offen sc1")
    k("s_mov_b64 exec, s[44:45]")
    stamp(k, 5)
    k("s_setprio %d" % PRIO[1])
    for j in range(NE, FIRST_LDS): loadA(j)
    k("s_lshl_b32 s34, s14, 14")
    srd(k, 16, 4, 5, 2048 * 896)
    srd(k, 36, 8, 9, RS_SZ, RS_OFF)
    srd(k, 56, 8, 9, ZT_SZ, ZT_OFF)
    with k.sched():
        k("v_lshrrev_b32 v4, 3, v1")
        k("s_lshl_b32 s35, s14, 4")
        k("v_add_u32 v4, s35, v4")
        k("v_lshrrev_b32 v5, 1, v4")
        k("v_xor_b32 v5, v5, v1")
        k("v_and_b32 v5, 7, v5")
        k("s_lshl_b32 s35, s64, 6")
        k("v_add_u32 v6, s35, v4")
        k("v_mul_u32_u24 v6, 896, v6")
        k("v_lshl_add_u32 v6, v5, 4, v6")
        k("s_lshl_b32 s30, s65, 7")
        k("v_add_u32 v6, s30, v6")
        k("v_xor_b32 v7, 64, v6")
        k(f"v_add_u32 v7, {8*896}, v7")
        k("s_lshl_b32 s31, s65, 6")
        k("v_add_u32 v248, s31, v4")
        k("v_lshlrev_b32 v248, 12, v248")
        k("v_and_b32 v9, 7, v1")
        k("v_lshl_add_u32 v248, v9, 4, v248")
        k("s_lshl_b32 s32, s64, 7")
        k("v_add_u32 v248, s32, v248")
        k(f"v_add_u32 v249, {8*4096}, v248")
        k("v_and_b32 v250, 31, v1")
        k("s_lshl_b32 s33, s67, 5")
        k("s_add_u32 s33, s33, s35")
        k("v_add_u32 v250, s33, v250")
        k("v_lshlrev_b32 v250, 2, v250")
        k("v_and_b32 v251, 31, v1")
        k("v_lshlrev_b32 v251, 4, v251")
        k("s_lshl_b32 s44, s65, 9")
        k(f"s_add_u32 s44, s44, {FL_Z}")
        k("v_add_u32 v251, s44, v251")
        k("v_and_b32 v252, 7, v1")
        k("v_lshlrev_b32 v252, 4, v252")
        k("s_lshl_b32 s45, s64, 7")
        k("v_add_u32 v252, s45, v252")
        k("s_lshl_b32 s33, s14, 14")
        k("v_add_u32 v253, s33, v3")
    k("s_lshl_b32 s35, s14, 11")
    k(f"s_add_u32 m0, s35, {XL}")
    k("buffer_load_dwordx4 v6, s[16:19], 0 offen lds")
    k(f"s_add_u32 m0, s35, {XL + 1024}")
    k("buffer_load_dwordx4 v7, s[16:19], 0 offen lds")
    with k.sched():
        k("v_lshrrev_b32 v5, 5, v1")
        k("v_bfe_u32 v6, v1, 2, 2")
        k("v_lshl_add_u32 v5, v5, 2, v6")
        k("v_lshlrev_b32 v5, 7, v5")
        k("v_bfe_u32 v6, v1, 4, 1")
        k("v_lshl_add_u32 v5, v6, 5, v5")
        k("v_and_b32 v7, 3, v1")
        k("v_lshl_add_u32 v5, v7, 3, v5")
        k("s_lshl_b32 s30, s66, 15\n s_lshl_b32 s31, s67, 6\n s_add_u32 s30, s30, s31\n s_add_u32 s30, s30, 12288")
        k("v_add_u32 v5, s30, v5")
        k("v_and_b32 v4, 31, v1")
        k("s_lshl_b32 s32, s67, 5")
        k("v_add_u32 v4, s32, v4")
        k("v_bfe_u32 v10, v4, 1, 3")
        k("s_lshl_b32 s33, s66, 2")
        k("v_xor_b32 v10, s33, v10")
        k("v_lshlrev_b32 v10, 4, v10")
        k("v_lshlrev_b32 v12, 7, v4")
        k("v_lshrrev_b32 v13, 5, v1")
        k("v_lshl_add_u32 v12, v13, 3, v12")
        k(f"v_add_u32 v12, {XL}, v12")
        k("s_lshl_b32 s44, s14, 11") if False else None
        k("v_and_b32 v14, 31, v1")
        k("v_bfe_u32 v15, v14, 1, 2")
        k("v_lshlrev_b32 v15, 4, v15")
        k("v_lshlrev_b32 v14, 6, v14")
        k("v_lshl_add_u32 v14, v13, 3, v14")
        k(f"v_add_u32 v14, {OL}, v14")
        k("v_add_u32 v14, s35, v14")
        k("v_bfe_u32 v6, v1, 3, 2")
        k("v_xor_b32 v6, v6, v1")
        k("v_and_b32 v6, 3, v6")
        k("v_lshrrev_b32 v7, 2, v1")
        k("s_lshl_b32 s30, s64, 6\n s_add_u32 s30, s30, s32")
        k("v_add_u32 v7, s30, v7")
        k("v_mul_u32_u24 v7, 896, v7")
        k("v_lshl_add_u32 v7, v6, 4, v7")
        k("s_lshl_b32 s31, s65, 7\n s_lshl_b32 s33, s66, 6\n s_add_u32 s31, s31, s33")
        k("v_add_u32 v7, s31, v7")
    for i in range(64): k(f"v_mov_b32 v{ACC + i}, 0")
    k("s_waitcnt lgkmcnt(0)")
    srd(k, 20, 6, 7, 2048 * 896)
    k("s_lshr_b32 s30, s64, 1\n s_lshl_b32 s30, s30, 8\n s_add_u32 s30, s30, %d" % FL_H)
    k("s_mul_i32 s31, s14, 7\n s_lshr_b32 s31, s31, 1\n s_lshl_b32 s31, s31, 4\n s_add_u32 s30, s30, s31")
    k("s_mov_b32 s33, 0")
    wait_flags2(k, 60, [((30,), 4)], 48, 8, 49, 33)
    stamp(k, 6)
    LA = NBR - 1
    for j in range(LA): loadB(j)
    fifo = [("B", j) for j in range(LA) for _ in range(2)]
    lfifo = []
    LAST_LDS = FIRST_LDS + NLDS
    def areg_final(j):
        if j < NPRE: return AP + 8*j
        if j < LAST_LDS: return AR + 8*((j - NPRE) % 4)
        return AP + 8*(j - LAST_LDS)
    def allowed(q, wanted):
        idx = [i for i, e in enumerate(q) if e in wanted]
        return None if not idx else len(q) - 1 - max(idx)
    for j in range(NK):
        want = [("B", j), ("A", j)]
        jl = j + 3
        do_lds = (j - 1 >= NPRE) and FIRST_LDS <= jl < LAST_LDS
        if do_lds: want.append(("L", jl))
        n = allowed(fifo, want)
        if j <= NK - 3: k(f"s_waitcnt vmcnt({n})")
        m = allowed(lfifo, [("S", j)])
        if m is not None: k(f"s_waitcnt lgkmcnt({m})")
        fb = BR + 8*(j % NBR); fa = areg_final(j)
        fill = [[], [], [], []]
        jb = j + LA
        if jb < NK:
            f = BR + 8*(jb % NBR)
            fill[0] += [f"buffer_load_dwordx4 {vr(f,4)}, v3, s[24:27], s70 offen sc1", "s_add_u32 s70, s70, 1024"]
            fill[1] += [f"buffer_load_dwordx4 {vr(f+4,4)}, v3, s[24:27], s71 offen sc1", "s_add_u32 s71, s71, 1024"]
            fifo += [("B", jb)] * 2
        if j < NLDS:
            o = j * 2048
            fill[2] += [f"s_add_u32 m0, s34, {ALDS + o}", f"buffer_load_dwordx4 v3, s[52:55], s68 offen sc1 lds", "s_add_u32 s68, s68, 14336"]
            fill[3] += [f"s_add_u32 m0, s34, {ALDS + o + 1024}", f"buffer_load_dwordx4 v3, s[52:55], s69 offen sc1 lds", "s_add_u32 s69, s69, 14336"]
            fifo += [("L", FIRST_LDS + j)] * 2
        elif j < NLDS + (NK - LAST_LDS):
            jn = LAST_LDS + (j - NLDS); f = areg_final(jn)
            fill[2] += [f"buffer_load_dwordx4 {vr(f,4)}, v3, s[52:55], s68 offen sc1", "s_add_u32 s68, s68, 14336"]
            fill[3] += [f"buffer_load_dwordx4 {vr(f+4,4)}, v3, s[52:55], s69 offen sc1", "s_add_u32 s69, s69, 14336"]
            fifo += [("A", jn)] * 2
        if do_lds:
            f = AR + 8*((jl - NPRE) % 4); o = (jl - FIRST_LDS) * 2048
            fill[2] += [f"ds_read_b128 {vr(f,4)}, v253 offset:{ALDS + o}"]
            fill[3] += [f"ds_read_b128 {vr(f+4,4)}, v253 offset:{ALDS + o + 1024}"]
            lfifo += [("S", jl)] * 2
        q = 0
        for ti in range(2):
            for di in range(2):
                c = ACC + (2*ti + di) * 16
                k(f"v_mfma_f32_32x32x16_bf16 {vr(c,16)}, {vr(fa + 4*di,4)}, {vr(fb + 4*ti,4)}, {vr(c,16)}")
                for ins in fill[q]: k(ins)
                q += 1
        if "g2st" in EXP and j in (0, 5, 10, 14): stamp(k, {0: 1, 5: 2, 10: 3, 14: 4}[j])
        if j == NK - LA - 1:
            k("buffer_load_dword v254, v251, s[60:63], 0 offen sc1")
            k(f"buffer_load_dword v255, v252, s[60:63], 0 offen offset:{FL_LN} sc1")
            fifo += [("F", 0)] * 2
            stamp(k, 7)
        if j == NK - 3:
            k("s_waitcnt vmcnt(0)")
            k("v_xor_b32 v254, s48, v254")
            k("v_xor_b32 v255, s48, v255")
            k("v_or_b32 v254, v254, v255")
            k("v_cmp_ne_u32 vcc, 0, v254")
            k("s_mov_b32 s33, 0")
            k("s_nop 3")
            k("s_cbranch_vccnz L_g2_nz")
            k("buffer_load_dwordx4 v[80:83], v248, s[56:59], 0 offen sc1")
            k("buffer_load_dwordx4 v[84:87], v249, s[56:59], 0 offen sc1")
            k("buffer_load_dword v11, v250, s[36:39], 0 offen sc1")
            k("s_mov_b32 s33, 1")
            k.label("L_g2_nz")
    stamp(k, 9)
    k("s_cmp_eq_u32 s33, 1")
    k("s_cbranch_scc1 L_g2_zok")
    k("s_mov_b32 s33, 0")
    if "noS" not in EXP: wait_flags2(k, 60, [((44,), 32), ((45,), 8)], 48, 240, 49, 33)
    k("buffer_load_dwordx4 v[80:83], v248, s[56:59], 0 offen sc1")
    k("buffer_load_dwordx4 v[84:87], v249, s[56:59], 0 offen sc1")
    k("buffer_load_dword v11, v250, s[36:39], 0 offen sc1")
    k.label("L_g2_zok")
    k("s_nop 7")
    k("s_nop 3")
    stamp(k, 10)
    for tp in range(1, 4):
        for q in range(4):
            k(f"ds_write_b128 v253, {vr(ACC + 16*tp + 4*q, 4)} offset:{4096*(tp-1) + 1024*q}")
    for tp in range(1, 4):
        k(f"s_xor_b32 s30, s14, {tp}\n s_lshl_b32 s30, s30, 14")
        k(f"v_add_u32 v{96+tp}, s30, v3")
    for q in range(4):
        k(f"v_xor_b32 v{100+q}, {16*q}, v10")
        k(f"v_add_u32 v{100+q}, v{100+q}, v12")
    k("s_waitcnt vmcnt(0)")
    k("ds_write_b128 v253, v[80:83] offset:12288")
    k("ds_write_b128 v253, v[84:87] offset:13312")
    k("s_waitcnt lgkmcnt(0)")
    k("s_barrier")
    for sl in range(3):
        for q in range(4):
            k(f"ds_read_b128 {vr(112 + 16*sl + 4*q, 4)}, v{97+sl} offset:{4096*sl + 1024*q}")
    for q in range(4):
        k(f"ds_read_b64_tr_b16 {vr(80 + 2*q, 2)}, v5 offset:{16384*(q >> 1) + 1024*(q & 1)}")
    k("s_waitcnt lgkmcnt(4)")
    for q in range(4):
        k(f"ds_read_b64 {vr(88 + 2*q, 2)}, v{100+q}")
    with k.sched():
        for r in range(16):
            k(f"v_add_f32 v{ACC + r}, v{ACC + r}, v{112 + r}")
            k(f"v_add_f32 v{128 + r}, v{128 + r}, v{144 + r}")
            k(f"v_add_f32 v{ACC + r}, v{ACC + r}, v{128 + r}")
    k("s_waitcnt lgkmcnt(0)")
    with k.sched():
        for j in range(8):
            a = 112 + 2*j; b = 128 + 2*j
            k(f"v_lshlrev_b32 v{a}, 16, v{88 + j}")
            k(f"v_and_b32 v{a+1}, 0xffff0000, v{88 + j}")
            k(f"v_lshlrev_b32 v{b}, 16, v{80 + j}")
            k(f"v_and_b32 v{b+1}, 0xffff0000, v{80 + j}")
            k(f"v_add_f32 v{a}, v{a}, v{b}")
            k(f"v_add_f32 v{a+1}, v{a+1}, v{b+1}")
            k(f"v_fma_f32 v{a}, v{ACC + 2*j}, v11, v{a}")
            k(f"v_fma_f32 v{a+1}, v{ACC + 2*j + 1}, v11, v{a+1}")
            k(f"v_cvt_pk_bf16_f32 v{144 + j}, v{a}, v{a+1}")
    for q in range(4):
        k(f"v_xor_b32 v{100+q}, {16*q}, v15")
        k(f"v_add_u32 v{100+q}, v{100+q}, v14")
    for q in range(4):
        k(f"ds_write_b64 v{100+q}, {vr(144 + 2*q, 2)}")
    k("s_lshl_b32 s35, s14, 11")
    k(f"s_add_u32 s35, s35, {OL}")
    k("v_add_u32 v104, s35, v3")
    k(f"v_add_u32 v107, {16*896}, v7")
    k("v_mov_b32 v106, v7")
    k("s_waitcnt lgkmcnt(0)")
    k("ds_read_b128 v[112:115], v104")
    k("ds_read_b128 v[116:119], v104 offset:1024")
    k("s_waitcnt lgkmcnt(0)")
    of = "" if "oplain" in EXP else " sc1"
    k(f"buffer_store_dwordx4 v[112:115], v106, s[20:23], 0 offen{of}")
    k(f"buffer_store_dwordx4 v[116:119], v107, s[20:23], 0 offen{of}")
    stamp(k, 11)
    stamp_flush(k, 0, 8)
    k("s_endpgm")


def ln8_issue(k, blk_s, xsrd):
    k(f"s_lshl_b32 s30, s{blk_s}, 3")
    k("s_lshl_b32 s31, s14, 1")
    k("s_add_u32 s30, s30, s31")
    k("v_lshrrev_b32 v36, 5, v1")
    k("v_add_u32 v36, s30, v36")
    k("v_and_b32 v37, 31, v1")
    k("v_mul_u32_u24 v38, 896, v36")
    k("v_lshl_add_u32 v38, v37, 4, v38")
    for i in range(4): k(f"v_mov_b32 v{44 + i}, 0")
    k(f"buffer_load_dwordx4 v[40:43], v38, s[{xsrd}:{xsrd+3}], 0 offen")
    k("s_mov_b32 exec_lo, 0x00ffffff\n s_mov_b32 exec_hi, 0x00ffffff")
    k(f"buffer_load_dwordx4 v[44:47], v38, s[{xsrd}:{xsrd+3}], 0 offen offset:512")
    k("s_mov_b64 exec, -1")

def ln8_compute(k, blk_s, xtsrd, rssrd, ldsbase):
    F = 48
    def red32(reg, tmp):
        k(f"v_add_f32_dpp v{reg}, v{reg}, v{reg} quad_perm:[1,0,3,2] row_mask:0xf bank_mask:0xf")
        k(f"v_add_f32_dpp v{reg}, v{reg}, v{reg} quad_perm:[2,3,0,1] row_mask:0xf bank_mask:0xf")
        k(f"v_add_f32_dpp v{reg}, v{reg}, v{reg} row_half_mirror row_mask:0xf bank_mask:0xf")
        k(f"v_add_f32_dpp v{reg}, v{reg}, v{reg} row_mirror row_mask:0xf bank_mask:0xf")
        k(f"ds_swizzle_b32 v{tmp}, v{reg} offset:0x401F")
        k("s_waitcnt lgkmcnt(0)")
        k(f"v_add_f32 v{reg}, v{reg}, v{tmp}")
    with k.sched():
        for j in range(8):
            k(f"v_lshlrev_b32 v{F + 2*j}, 16, v{40 + j}")
            k(f"v_and_b32 v{F + 2*j + 1}, 0xffff0000, v{40 + j}")
        for j in range(4): k(f"v_add_f32 v{64 + j}, v{F + j}, v{F + 4 + j}")
        for j in range(8, 16): k(f"v_add_f32 v{64 + (j & 3)}, v{64 + (j & 3)}, v{F + j}")
        k("v_add_f32 v64, v64, v65\n v_add_f32 v66, v66, v67\n v_add_f32 v64, v64, v66")
    red32(64, 65)
    k("v_mul_f32 v64, 0xbb124925, v64")
    with k.sched():
        for j in range(8): k(f"v_add_f32 v{68 + j}, v{F + j}, v64")
        k("v_mul_f32 v65, v68, v68\n v_mul_f32 v66, v69, v69")
        for j in range(2, 8): k(f"v_fmac_f32 v{65 + (j & 1)}, v{68 + j}, v{68 + j}")
    k("s_mov_b32 exec_lo, 0x00ffffff\n s_mov_b32 exec_hi, 0x00ffffff")
    with k.sched():
        for j in range(8): k(f"v_add_f32 v{68 + j}, v{F + 8 + j}, v64")
        for j in range(8): k(f"v_fmac_f32 v{65 + (j & 1)}, v{68 + j}, v{68 + j}")
    k("s_mov_b64 exec, -1")
    k("v_add_f32 v65, v65, v66")
    red32(65, 66)
    k("v_mul_f32 v65, 0x3b124925, v65")
    k("v_cvt_pk_bf16_f32 v65, v65, v64")
    k("v_and_b32 v64, 0xffff0000, v65")
    k("v_lshlrev_b32 v65, 16, v65")
    k("v_add_f32 v65, 0x3727c5ac, v65")
    k("v_cvt_pk_bf16_f32 v65, v65, v65")
    k("v_lshlrev_b32 v65, 16, v65")
    k("v_sqrt_f32 v65, v65")
    k("v_cvt_pk_bf16_f32 v65, v65, v65")
    k("v_lshlrev_b32 v65, 16, v65")
    k("v_rcp_f32 v66, v65")
    k("v_fma_f32 v67, -v65, v66, 2.0")
    k("v_mul_f32 v66, v66, v67")
    k("v_lshlrev_b32 v39, 2, v36")
    k("s_mov_b32 exec_lo, 1\n s_mov_b32 exec_hi, 1")
    k(f"buffer_store_dword v66, v39, s[{rssrd}:{rssrd+3}], 0 offen sc1")
    k("s_mov_b64 exec, -1")
    with k.sched():
        for j in range(8):
            a = F + 2*j
            k(f"v_add_f32 v{a}, v{a}, v64")
            k(f"v_add_f32 v{a+1}, v{a+1}, v64")
            k(f"v_cvt_pk_bf16_f32 v{40 + j}, v{a}, v{a+1}")
            k(f"v_lshlrev_b32 v{a}, 16, v{40 + j}")
            k(f"v_and_b32 v{a+1}, 0xffff0000, v{40 + j}")
            k(f"v_mul_f32 v{a}, v{a}, v66")
            k(f"v_mul_f32 v{a+1}, v{a+1}, v66")
            k(f"v_cvt_pk_bf16_f32 v{40 + j}, v{a}, v{a+1}")
        k("v_and_b32 v68, 7, v36")
        k("v_mul_u32_u24 v68, 960, v68")
        k("v_lshl_add_u32 v68, v37, 4, v68")
        k(f"v_add_u32 v68, {ldsbase}, v68")
        k("v_bfe_u32 v69, v1, 2, 2")
        k("v_mul_u32_u24 v69, 960, v69")
        k("v_lshrrev_b32 v70, 4, v1")
        k("v_lshl_add_u32 v69, v70, 5, v69")
        k("v_and_b32 v70, 3, v1")
        k("v_lshl_add_u32 v69, v70, 3, v69")
        k("s_lshl_b32 s44, s14, 7")
        k(f"s_add_u32 s44, s44, {ldsbase}")
        k("v_add_u32 v69, s44, v69")
        k("v_lshlrev_b32 v70, 4, v1")
    k("ds_write_b128 v68, v[40:43]")
    k("s_mov_b32 exec_lo, 0x00ffffff\n s_mov_b32 exec_hi, 0x00ffffff")
    k("ds_write_b128 v68, v[44:47] offset:512")
    k("s_mov_b64 exec, -1")
    k(f"s_mul_i32 s44, s{blk_s}, 7168")
    k("s_lshl_b32 s45, s14, 10")
    k("s_add_u32 s44, s44, s45")
    k("s_waitcnt lgkmcnt(0)")
    k("s_barrier")
    k("ds_read_b64_tr_b16 v[72:73], v69")
    k(f"ds_read_b64_tr_b16 v[74:75], v69 offset:{4*960}")
    k("ds_read_b64_tr_b16 v[76:77], v69 offset:512")
    k(f"ds_read_b64_tr_b16 v[78:79], v69 offset:{4*960 + 512}")
    k("s_waitcnt lgkmcnt(2)")
    k(f"buffer_store_dwordx4 v[72:75], v70, s[{xtsrd}:{xtsrd+3}], s44 offen sc1")
    L = uid("ln8")
    k("s_cmp_eq_u32 s14, 3")
    k(f"s_cbranch_scc1 {L}")
    k("s_add_u32 s44, s44, 4096")
    k("s_waitcnt lgkmcnt(0)")
    k(f"buffer_store_dwordx4 v[76:79], v70, s[{xtsrd}:{xtsrd+3}], s44 offen sc1")
    k.label(L)
    k("s_waitcnt lgkmcnt(0)")

def role_ln(k):
    stamp(k, 8); stamp(k, 0)
    k("s_setprio 1")
    k("s_load_dwordx2 s[4:5], s[0:1], 0")
    k("s_load_dwordx2 s[6:7], s[0:1], 88")
    k("s_load_dwordx4 s[8:11], s[0:1], 104")
    k("v_and_b32 v1, 63, v0")
    k("v_lshrrev_b32 v2, 6, v0")
    k("v_readfirstlane_b32 s14, v2")
    k("s_min_u32 s33, s3, 55")
    k("s_mul_i32 s30, s33, 28672")
    k("s_mul_i32 s31, s14, 7168")
    k("s_add_u32 s30, s30, s31")
    k("v_lshlrev_b32 v7, 4, v1")
    k("s_waitcnt lgkmcnt(0)")
    srd(k, 20, 6, 7, 1792 * 896)
    W2L = 32768
    for j in range(7):
        k(f"s_add_u32 m0, s31, {W2L + 1024*j}")
        k(f"s_add_u32 s32, s30, {1024*j}")
        k(f"buffer_load_dwordx4 v7, s[20:23], s32 offen lds")
    srd(k, 16, 4, 5, 2048 * 896)
    k("s_and_b32 s47, s3, 31")
    k("s_add_u32 s47, s47, 224")
    ln8_issue(k, 47, 16)
    srd(k, 52, 8, 9, 256)
    k("v_mov_b32 v120, 0")
    srd(k, 24, 10, 11, XT_SZ, XT_OFF)
    srd(k, 36, 10, 11, RS_SZ, RS_OFF)
    srd(k, 40, 10, 11, W2F_SZ, W2F_OFF)
    srd(k, 56, 10, 11, FL_SZ, FL_OFF)
    with k.sched():
        k("v_lshrrev_b32 v80, 5, v1")
        k("v_bfe_u32 v81, v1, 2, 2")
        k("v_lshl_add_u32 v80, v80, 2, v81")
        k("v_mul_u32_u24 v80, 896, v80")
        k("v_bfe_u32 v82, v1, 4, 1")
        k("v_lshl_add_u32 v80, v82, 5, v80")
        k("v_and_b32 v83, 3, v1")
        k("v_lshl_add_u32 v80, v83, 3, v80")
        k(f"v_add_u32 v80, {W2L}, v80")
        k("s_lshr_b32 s30, s14, 1")
        k("s_and_b32 s31, s14, 1")
        k("s_mul_i32 s31, s31, 7")
        k(f"s_mul_i32 s32, s30, {16*896}")
        k("s_lshl_b32 s34, s31, 6")
        k("s_add_u32 s32, s32, s34")
        k("v_add_u32 v80, s32, v80")
        k("s_lshl_b32 s35, s33, 1")
        k("s_add_u32 s35, s35, s30")
        k("s_mul_i32 s35, s35, 14")
        k("s_add_u32 s35, s35, s31")
        k("s_lshl_b32 s35, s35, 10")
    k("s_waitcnt vmcnt(2)")
    k("buffer_load_dword v121, v120, s[52:55], 0 offen sc1")
    k("s_barrier")
    stamp(k, 1)
    for j in range(7):
        k(f"ds_read_b64_tr_b16 {vr(84 + 4*j, 2)}, v80 offset:{64*j}")
        k(f"ds_read_b64_tr_b16 {vr(84 + 4*j + 2, 2)}, v80 offset:{64*j + 8*896}")
    k("s_waitcnt lgkmcnt(0) vmcnt(0)")
    k("v_readfirstlane_b32 s48, v121")
    k("s_cmp_ge_u32 s3, 56")
    k("s_cbranch_scc1 L_ln_now2")
    for j in range(7):
        k(f"buffer_store_dwordx4 {vr(84 + 4*j, 4)}, v7, s[40:43], s35 offen sc1")
        k(f"s_add_u32 s35, s35, 1024")
    k.label("L_ln_now2")
    k("s_cmp_lg_u32 s48, 0")
    k("s_cbranch_scc1 L_ln_haven")
    get_nonce(k, 52, 48, 112)
    k.label("L_ln_haven")
    k("s_cmp_ge_u32 s3, 32")
    k("s_cbranch_scc1 L_ln_noln")
    ln8_compute(k, 47, 24, 36, 0)
    k("s_lshl_b32 s30, s47, 4")
    signal(k, 56, 30, 48, 112, FL_LN)
    k.label("L_ln_noln")
    stamp(k, 2)
    k("s_lshl_b32 s30, s3, 4")
    signal(k, 56, 30, 48, 112, FL_W2)
    stamp(k, 3)
    if "pf" in EXP:
        wait_flags(k, 56, FL_W2, 4, 56, 48, 112, 49)
        k("s_and_b32 s30, s3, 31\n s_lshr_b32 s30, s30, 3\n s_lshr_b32 s31, s3, 5\n s_lshl_b32 s31, s31, 2\n s_add_u32 s30, s30, s31")
        k("s_lshr_b32 s31, s30, 1\n s_mul_i32 s31, s31, 28\n s_add_u32 s31, s31, s14\n s_mul_i32 s31, s31, 14336")
        k("s_and_b32 s30, s30, 1\n s_mul_i32 s30, s30, 7168\n s_add_u32 s30, s30, s31")
        k("s_mov_b32 s31, 0")
        k.label("L_ln_pf")
        for j in range(7):
            k(f"buffer_load_dwordx4 {vr(40 + 4*j, 4)}, v7, s[40:43], s30 offen offset:{1024*(j % 4)} sc1") if j < 4 else None
        k("s_add_u32 s32, s30, 4096")
        for j in range(4, 7):
            k(f"buffer_load_dwordx4 {vr(40 + 4*j, 4)}, v7, s[40:43], s32 offen offset:{1024*(j - 4)} sc1")
        k("s_add_u32 s30, s30, %d" % (4*14336))
        k("s_waitcnt vmcnt(7)")
        k("s_add_u32 s31, s31, 1")
        k("s_cmp_lt_u32 s31, 7")
        k("s_cbranch_scc1 L_ln_pf")
    stamp(k, 4)
    stamp_flush(k, 0, 4)
    k("s_endpgm")

def cmul(k, o, x, y, t):
    k(f"v_mul_f32 v{t}, v{x+1}, v{y+1}")
    k(f"v_mul_f32 v{t+1}, v{x+1}, v{y}")
    if o == x:
        k(f"v_fma_f32 v{o+1}, v{x}, v{y+1}, v{t+1}")
        k(f"v_fma_f32 v{o}, v{x}, v{y}, -v{t}")
    else:
        k(f"v_fma_f32 v{o}, v{x}, v{y}, -v{t}")
        k(f"v_fma_f32 v{o+1}, v{x}, v{y+1}, v{t+1}")

def role_s(k):
    stamp(k, 8); stamp(k, 0)
    k("s_setprio 3")
    k("s_load_dwordx16 s[56:71], s[0:1], 8")
    k("s_load_dwordx4 s[8:11], s[0:1], 104")
    k("s_load_dwordx2 s[4:5], s[0:1], 0")
    k("v_and_b32 v1, 63, v0")
    k("v_lshrrev_b32 v2, 6, v0")
    k("v_readfirstlane_b32 s14, v2")
    k("s_lshr_b32 s15, s14, 1")
    k("s_and_b32 s28, s14, 1")
    k("s_and_b32 s29, s3, 7")
    k("s_lshr_b32 s30, s3, 3")
    k("s_lshr_b32 s31, s30, 2\n s_lshl_b32 s31, s31, 3\n s_add_u32 s29, s29, s31")
    k("s_lshl_b32 s29, s29, 2\n s_and_b32 s30, s30, 3\n s_add_u32 s47, s29, s30")
    k("s_lshl_b32 s29, s47, 1")
    k("s_add_u32 s29, s29, s15")
    k("s_lshl_b32 s30, s29, 9")
    k("s_lshl_b32 s31, s28, 8")
    k("s_add_u32 s30, s30, s31")
    k("v_lshlrev_b32 v3, 2, v1")
    k("v_add_u32 v3, s30, v3")
    k("s_lshl_b32 s31, s29, 1")
    k("v_mov_b32 v4, s31")
    k("s_waitcnt lgkmcnt(0)")
    srd(k, 40, 4, 5, 2048 * 896)
    ln8_issue(k, 3, 40)
    PSZ = 448 * 512
    for i in range(6):
        srd(k, 16, 56 + 2*i, 57 + 2*i, PSZ)
        k(f"buffer_load_dword v{8 + i}, v3, s[16:19], 0 offen")
    srd(k, 20, 68, 69, 896)
    k("buffer_load_ushort v14, v4, s[20:23], 0 offen")
    srd(k, 20, 70, 71, 896)
    k("buffer_load_ushort v7, v4, s[20:23], 0 offen")
    srd(k, 52, 8, 9, 256)
    k("v_mov_b32 v190, 0")
    srd(k, 20, 10, 11, XT_SZ, XT_OFF)
    srd(k, 24, 10, 11, ZT_SZ, ZT_OFF)
    srd(k, 36, 10, 11, FL_SZ, FL_OFF)
    srd(k, 40, 10, 11, RS_SZ, RS_OFF)
    TB = 75776; XB = 65536
    CSTR = 4160; CH = 37888
    WA = 144
    RA = 152
    GA = 160
    k("s_lshl_b32 s33, s14, 14")
    k("s_mul_i32 s31, s15, 1536")
    k(f"s_add_u32 s31, s31, {TB}")
    k("s_lshl_b32 s30, s28, 6")
    k("v_add_u32 v2, s30, v1")
    k("v_lshlrev_b32 v3, 4, v1")
    with k.sched():
        k("v_and_b32 v16, 7, v1")
        k("v_lshlrev_b32 v17, 7, v1")
        k("v_add_u32 v17, s33, v17")
        for v_ in range(8):
            k(f"v_xor_b32 v{WA + v_}, {v_}, v16")
            k(f"v_lshl_add_u32 v{WA + v_}, v{WA + v_}, 4, v17")
        k("v_bfe_u32 v18, v1, 5, 1")
        k("v_bfe_u32 v19, v1, 3, 1")
        k("v_lshl_add_u32 v18, v18, 2, v19")
        k("v_bfe_u32 v19, v1, 2, 1")
        k("v_bfe_u32 v20, v1, 4, 1")
        k("v_bfe_u32 v21, v1, 1, 1")
        k("v_lshl_add_u32 v20, v20, 1, v21")
        k("v_lshl_add_u32 v19, v19, 2, v20")
        k("v_and_b32 v21, 1, v1")
        k("v_lshlrev_b32 v21, 3, v21")
        k("v_add_u32 v21, s33, v21")
        for j in range(2):
            k(f"v_add_u32 v{22+j}, {2*j}, v18")
            k(f"v_xor_b32 v{24+j}, v19, v{22+j}")
            k(f"v_lshl_add_u32 v{24+j}, v{24+j}, 4, v21")
            k(f"v_lshl_add_u32 v{RA+j}, v{22+j}, 7, v{24+j}")
        k("v_lshlrev_b32 v156, 4, v1")
        k("v_mul_u32_u24 v157, 7168, v2")
        k("s_lshl_b32 s45, s29, 4")
        k("v_add_u32 v157, s45, v157")
        k(f"v_add_u32 v158, {128*7168}, v157")
        for c in range(2):
            b_ = 80 + 20*c
            k(f"v_lshlrev_b32 v{b_+16}, 3, v2")
            k(f"v_sub_u32 v{b_+16}, {2047 - 1024*c}, v{b_+16}")
            for e in range(8): k(f"v_subrev_u32 v{b_ + e}, {e}, v{b_+16}")
            g = GA + 8*c
            for e in range(8): k(f"v_cvt_f32_u32 v{g + e}, v{b_ + e}")
            for e in range(0, 8, 2): k(f"v_cvt_pk_bf16_f32 v{b_ + 8 + e//2}, v{g + e}, v{g + e + 1}")
            for e in range(8):
                if e % 2 == 0: k(f"v_and_b32 v{g + e}, 0xffff, v{b_ + 8 + e//2}")
                else: k(f"v_lshrrev_b32 v{g + e}, 16, v{b_ + 8 + e//2}")
            for e in range(8): k(f"v_add_u32 v{g + e}, {(-0x4300 + 128) & 0xffffffff}, v{g + e}")
            for e in range(8):
                k(f"v_cmp_gt_u32 vcc, 128, v{b_ + e}")
                k(f"v_cndmask_b32 v{g + e}, v{g + e}, v{b_ + e}, vcc")
            for e in range(8): k(f"v_lshl_add_u32 v{g + e}, v{g + e}, 1, s31")
    ACC = 112
    for i in range(16): k(f"v_mov_b32 v{ACC + i}, 0")
    k("s_waitcnt vmcnt(8)")
    k("buffer_load_dword v191, v190, s[52:55], 0 offen sc1")
    ln8_compute(k, 3, 20, 40, 65536)
    stamp(k, 11)
    k("s_waitcnt vmcnt(2)")
    stamp(k, 1)
    k("v_readfirstlane_b32 s48, v191")
    k("v_lshlrev_b32 v14, 16, v14")
    k("v_mul_f32 v15, 0x3fb8aa3b, v14")
    k("s_mov_b32 s34, 0x3fb8aa3b")
    k("v_fma_f32 v16, v14, s34, -v15")
    k("s_mov_b32 s34, 0x32a57060")
    k("v_fma_f32 v16, v14, s34, v16")
    k("v_exp_f32 v15, v15")
    k("v_mul_f32 v16, 0x3f317218, v16")
    k("v_fma_f32 v15, v15, v16, v15")
    k("v_cvt_pk_bf16_f32 v15, v15, v15")
    k("v_lshlrev_b32 v15, 16, v15")
    E1, Z2, Z4, E256 = 20, 22, 24, 26
    Q = [28, 30, 32, 34]
    E32 = 36
    TT = [64 + 2*i for i in range(8)]
    tc = [0]
    def T():
        tc[0] += 1
        return TT[tc[0] % len(TT)]
    SA = 80
    SB = 176
    k("s_cmp_lg_u32 s48, 0")
    k("s_cbranch_scc1 L_s_haven")
    get_nonce(k, 52, 48, 104)
    k.label("L_s_haven")
    if "siglate" not in EXP:
        k("s_lshl_b32 s30, s3, 4")
        signal(k, 36, 30, 48, 104, FL_LN)
    k(f"s_setprio {PRIO[2]}")
    k("s_mov_b32 s35, 0")
    k("s_mov_b32 s34, 16")
    k.label("L_s_item")
    with k.sched():
        for i in range(6):
            k(f"v_lshlrev_b32 v{50 + i}, s34, v{8 + i}")
            k(f"v_and_b32 v{50 + i}, 0xffff0000, v{50 + i}")
        k("v_mul_f32 v18, v15, v50")
        k("v_mul_f32 v18, 0x3fb8aa3b, v18")
        k("v_mul_f32 v19, v15, v51")
        k("v_mul_f32 v19, 0.15915494, v19")
        k("v_mul_f32 v52, v15, v52")
        k("v_mul_f32 v53, v15, v53")
        P0 = 16
        cmul(k, P0, 54, 52, T())
        def E(dst, l):
            tmp = T()
            lit = {1: "1.0", 8: "0x41000000", 16: "0x41800000", 24: "0x41c00000", 32: "0x42000000", 256: "0x43800000"}[l]
            k(f"v_mul_f32 v{tmp}, {lit}, v18")
            k(f"v_mul_f32 v{tmp+1}, {lit}, v19")
            k(f"v_exp_f32 v{tmp}, v{tmp}")
            k(f"v_fract_f32 v{tmp+1}, v{tmp+1}")
            k(f"v_cos_f32 v{dst}, v{tmp+1}")
            k(f"v_sin_f32 v{dst+1}, v{tmp+1}")
            k(f"v_mul_f32 v{dst}, v{dst}, v{tmp}")
            k(f"v_mul_f32 v{dst+1}, v{dst+1}, v{tmp}")
        E(E1, 1); E(E256, 256); E(E32, 32); E(Q[1], 8); E(Q[2], 16); E(Q[3], 24)
        k(f"v_mov_b32 v{Q[0]}, 1.0")
        k(f"v_mov_b32 v{Q[0]+1}, 0")
        cmul(k, Z2, E1, E1, T())
        cmul(k, Z4, Z2, Z2, T())
        def pairA(h, ra, rb):
            p = h >> 3; dw = (h & 7) >> 1
            base = SA + 8*p
            if rb is None:
                k(f"v_cvt_pk_bf16_f32 v{base + dw}, v{ra}, 0")
                k(f"v_cvt_pk_bf16_f32 v{base + 4 + dw}, -v{ra+1}, 0")
            else:
                k(f"v_cvt_pk_bf16_f32 v{base + dw}, v{ra}, v{rb}")
                k(f"v_cvt_pk_bf16_f32 v{base + 4 + dw}, -v{ra+1}, -v{rb+1}")
        def flushA(p):
            base = SA + 8*p
            if "nokw" in EXP: return
            k(f"ds_write_b128 v{WA + p}, {vr(base, 4)}")
            k(f"ds_write_b128 v{WA + 4 + p}, {vr(base + 4, 4)}")
        def pairB(i):
            p = i >> 1; base = SB + 8*(p & 1); dw = 2*(i & 1)
            k(f"v_cvt_pk_bf16_f32 v{base + dw}, v{Q[0]}, v{Q[1]}")
            k(f"v_cvt_pk_bf16_f32 v{base + dw + 1}, v{Q[2]}, v{Q[3]}")
            k(f"v_cvt_pk_bf16_f32 v{base + 4 + dw}, v{Q[0]+1}, v{Q[1]+1}")
            k(f"v_cvt_pk_bf16_f32 v{base + 4 + dw + 1}, v{Q[2]+1}, v{Q[3]+1}")
            if (i & 1) and "nokw" not in EXP:
                k(f"ds_write_b128 v{WA + p}, {vr(base, 4)} offset:8192")
                k(f"ds_write_b128 v{WA + 4 + p}, {vr(base + 4, 4)} offset:8192")
        PE, PO = 38, 40
        U0, U1, S0, S1 = 42, 44, 46, 48
        steps = []
        def low():
            cmul(k, PO, P0, E1, T()); pairA(0, P0, PO)
            yield
            for h in (2, 4, 6):
                cmul(k, PE, PO, E1, T())
                yield
                cmul(k, PO, PE, E1, T()); pairA(h, PE, PO)
                yield
            flushA(0)
            yield
        def high():
            cmul(k, U0, P0, E256, T())
            cmul(k, S0, U0, Z2, T()); pairA(8, U0, S0)
            yield
            cmul(k, U1, U0, E256, T())
            cmul(k, S1, S0, Z2, T())
            yield
            cmul(k, S0, S1, Z2, T()); pairA(10, S1, S0)
            cmul(k, U0, U1, E256, T())
            yield
            cmul(k, S1, U1, Z4, T()); pairA(12, U1, S1)
            cmul(k, U1, U0, E256, T())
            yield
            cmul(k, S0, U0, Z4, T()); pairA(14, U0, S0)
            flushA(1)
            cmul(k, U0, U1, E256, T()); pairA(16, U1, U0)
            yield
            cmul(k, U1, U0, E256, T())
            cmul(k, U0, U1, E256, T()); pairA(18, U1, U0)
            yield
            cmul(k, U1, U0, E256, T()); pairA(20, U1, None)
            k(f"v_mov_b32 v{SA + 16 + 3}, 0\n v_mov_b32 v{SA + 16 + 7}, 0")
            flushA(2)
            yield
        gl, gh = low(), high()
        pairB(0)
        for i in range(1, 8):
            for c in range(4): cmul(k, Q[c], Q[c], E32, T())
            pairB(i)
            next(gl, None); next(gh, None)
        for _ in gl: pass
        for _ in gh: pass
    k("s_waitcnt lgkmcnt(0)")
    for half in range(2):
        for ks in range(4*half, 4*half + 4):
            fa = 64 + 8 * (ks % 4)
            k(f"ds_read_b64_tr_b16 {vr(fa,2)}, v{RA} offset:{1024*ks}")
            k(f"ds_read_b64_tr_b16 {vr(fa+2,2)}, v{RA+1} offset:{1024*ks}")
            k(f"ds_read_b64_tr_b16 {vr(fa+4,2)}, v{RA} offset:{1024*ks + 8192}")
            k(f"ds_read_b64_tr_b16 {vr(fa+6,2)}, v{RA+1} offset:{1024*ks + 8192}")
        for ks in range(4*half, 4*half + 4):
            fa = 64 + 8 * (ks % 4)
            k(f"s_waitcnt lgkmcnt({4*(3 - (ks % 4))})")
            k(f"v_mfma_f32_32x32x16_bf16 {vr(ACC,16)}, {vr(fa,4)}, {vr(fa+4,4)}, {vr(ACC,16)}")
    if "siglate" in EXP:
        k("s_cmp_lg_u32 s35, 0")
        k("s_cbranch_scc1 L_s_nosig")
        k("s_lshl_b32 s30, s3, 4")
        signal(k, 36, 30, 48, 104, FL_LN)
        stamp(k, 12)
        k.label("L_s_nosig")
    k("s_cmp_lg_u32 s35, 0")
    k("s_cbranch_scc1 L_s_nou")
    k("s_setprio 3")
    for i in range(4):
        k(f"buffer_load_dword v{104+i}, v156, s[36:39], 0 offen offset:{FL_LN + 1024*i} sc1")
    k(f"s_setprio {PRIO[2]}")
    k.label("L_s_nou")
    if "spf" in EXP:
        k("s_cmp_lg_u32 s35, 0")
        k("s_cbranch_scc1 L_s_nopf")
        k("v_min_u32 v104, 55, v1")
        k("v_lshlrev_b32 v104, 4, v104")
        k(f"v_add_u32 v104, {FL_W2}, v104")
        k("buffer_load_dword v105, v104, s[36:39], 0 offen sc1")
        srd(k, 40, 10, 11, W2F_SZ, W2F_OFF)
        k("s_lshr_b32 s30, s3, 3\n s_mul_i32 s44, s14, 28\n s_add_u32 s30, s30, s44\n s_mul_i32 s30, s30, 14336")
        k("s_waitcnt vmcnt(0)")
        k("v_cmp_ne_u32 vcc, s48, v105")
        k("s_nop 4")
        k("s_cbranch_vccnz L_s_nopf")
        for i in range(14):
            k(f"buffer_load_dwordx4 v[104:107], v3, s[40:43], s30 offen offset:{1024*(i % 4)} sc1")
            if i % 4 == 3: k("s_add_u32 s30, s30, 4096")
        k.label("L_s_nopf")
    k("s_mov_b32 s34, 0")
    k("s_add_u32 s35, s35, 1")
    k("s_cmp_lt_u32 s35, 2")
    k("s_cbranch_scc1 L_s_item")
    stamp(k, 2)
    k(f"s_setprio {PRIO[3]}")
    k("s_waitcnt vmcnt(0)")
    for i in range(4): k(f"v_xor_b32 v{104+i}, s48, v{104+i}")
    k("v_or_b32 v104, v104, v105\n v_or_b32 v106, v106, v107\n v_or_b32 v104, v104, v106")
    k("v_cmp_ne_u32 vcc, 0, v104")
    k("s_nop 4")
    k("s_cbranch_vccz L_s_haveu")
    k("s_mov_b32 s45, 0")
    wait_flags2(k, 36, [(FL_LN + 1024*i, 64) for i in range(4)], 48, 90, 49, 45)
    k.label("L_s_haveu")
    k("buffer_load_dwordx4 v[104:107], v157, s[20:23], 0 offen sc1")
    k("buffer_load_dwordx4 v[108:111], v158, s[20:23], 0 offen sc1")
    k("s_mul_i32 s30, s15, 3072")
    k(f"s_add_u32 s30, s30, {XB}")
    k("v_add_u32 v4, s30, v3")
    k("s_cmp_eq_u32 s28, 0")
    k("s_cbranch_scc1 L_kg_a")
    k("s_nop 7\n s_nop 3")
    for q in range(3): k(f"ds_write_b128 v4, {vr(ACC + 4*q, 4)} offset:{1024*q}")
    k("s_waitcnt lgkmcnt(0)")
    k.label("L_kg_a")
    k("s_barrier")
    k("s_cmp_eq_u32 s28, 0")
    k("s_cbranch_scc0 L_kg_b")
    for q in range(3): k(f"ds_read_b128 {vr(64 + 4*q, 4)}, v4 offset:{1024*q}")
    k("v_and_b32 v6, 31, v1")
    k("v_lshrrev_b32 v12, 5, v1")
    k("v_lshlrev_b32 v8, 4, v6")
    k("v_lshl_add_u32 v8, v12, 3, v8")
    k("v_add_u32 v8, s31, v8")
    k("v_lshlrev_b32 v9, 3, v6\n v_add_u32 v9, s31, v9")
    k("v_lshlrev_b32 v10, 2, v6\n v_add_u32 v10, s31, v10")
    k("v_lshlrev_b32 v11, 1, v6\n v_add_u32 v11, s31, v11")
    k("s_waitcnt lgkmcnt(0)")
    for r in range(12): k(f"v_add_f32 v{ACC + r}, v{ACC + r}, v{64 + r}")
    for j in range(6): k(f"v_cvt_pk_bf16_f32 v{80 + j}, v{ACC + 2*j}, v{ACC + 2*j + 1}")
    k("ds_write_b64 v8, v[80:81]")
    k("s_mov_b64 s[40:41], exec")
    k("s_mov_b32 exec_lo, -1\n s_mov_b32 exec_hi, 0")
    k("ds_write_b64 v9, v[82:83] offset:512")
    k("ds_write_b16 v11, v84 offset:1024")
    k("ds_write_b16_d16_hi v11, v84 offset:1088")
    k("ds_write_b16 v11, v85 offset:1152")
    k("ds_write_b16_d16_hi v11, v85 offset:1216")
    k("s_mov_b32 exec_lo, 0\n s_mov_b32 exec_hi, -1")
    k("ds_write_b32 v10, v82 offset:768")
    k("ds_write_b32 v10, v83 offset:896")
    k("ds_write_b16 v11, v84 offset:1280")
    k("s_mov_b64 exec, s[40:41]")
    k("s_waitcnt lgkmcnt(0)")
    k.label("L_kg_b")
    k(f"s_mul_i32 s33, s15, {CH}")
    k(f"s_add_u32 s34, s33, {8*CSTR}")
    k("s_barrier")
    stamp(k, 3)
    for c in range(2):
        for e in range(8):
            if e % 2 == 0: k(f"ds_read_u16 v{64 + 8*c + e//2}, v{GA + 8*c + e}")
            else: k(f"ds_read_u16_d16_hi v{80 + 4*c + e//2}, v{GA + 8*c + e}")
    for i in range(4): k(f"v_mov_b32 v{28 + i}, 0")
    k("v_add_u32 v25, s34, v3")
    k("v_subrev_u32 v26, 32, v1")
    k(f"v_mul_u32_u24 v26, {CSTR}, v26")
    k("v_add_u32 v26, s33, v26")
    k("v_add_u32 v26, 4096, v26")
    k("v_cmp_gt_u32 vcc, 32, v1")
    k("v_cndmask_b32 v25, v26, v25, vcc")
    k("v_lshlrev_b32 v27, 4, v2")
    k("v_add_u32 v27, s33, v27")
    k("s_waitcnt lgkmcnt(0)")
    for c in range(2):
        for j in range(4):
            k(f"v_and_b32 v{80 + 4*c + j}, 0xffff0000, v{80 + 4*c + j}")
            k(f"v_or_b32 v{64 + 8*c + j}, v{64 + 8*c + j}, v{80 + 4*c + j}")
    k("ds_write_b128 v27, v[64:67]")
    k("ds_write_b128 v27, v[72:75] offset:2048")
    k("v_cmp_gt_u32 vcc, 40, v1")
    k("s_and_saveexec_b64 s[40:41], vcc")
    k("ds_write_b128 v25, v[28:31]")
    k("s_mov_b64 exec, s[40:41]")
    k("s_waitcnt lgkmcnt(0)")
    k("s_barrier")
    k("ds_read_b128 v[68:71], v27 offset:16")
    k("ds_read_b128 v[76:79], v27 offset:2064")
    k("v_lshlrev_b32 v10, 4, v2")
    k("v_add_u32 v10, s34, v10")
    k("s_waitcnt vmcnt(0)")
    k("ds_write_b128 v10, v[104:107] offset:512")
    k("ds_write_b128 v10, v[108:111] offset:2560")
    k("s_waitcnt lgkmcnt(2)")
    for c in range(2):
        Dr = 64 + 8*c
        Ee = 96 + 24*c; Eo = Ee + 8; Do = Ee + 16
        with k.sched():
            for i in range(7): k(f"v_alignbit_b32 v{Ee + i}, v{Dr + i + 1}, v{Dr + i}, 16")
            for i in range(6): k(f"v_alignbit_b32 v{Eo + i}, v{Dr + i + 2}, v{Dr + i + 1}, 16")
            for i in range(6): k(f"v_mov_b32 v{Do + i}, v{Dr + i + 1}")
            src = {1: Ee, 2: Do, 3: Eo, 4: Dr + 2, 5: Ee + 2, 6: Do + 2, 7: Eo + 2}
            for s_ in range(1, 8):
                k(f"ds_write_b128 v27, {vr(src[s_], 4)} offset:{s_*CSTR + 2048*c}")
    stamp(k, 4)
    with k.sched():
        k("v_and_b32 v10, 7, v1")
        k("v_sub_u32 v10, 7, v10")
        k(f"v_mul_u32_u24 v10, {CSTR}, v10")
        k("v_bfe_u32 v11, v1, 3, 1")
        k("v_bfe_u32 v12, v1, 5, 1")
        k("v_bfe_u32 v13, v1, 4, 1")
        k("v_lshl_add_u32 v14, v12, 1, v11")
        k("v_sub_u32 v14, v13, v14")
        k("v_lshlrev_b32 v14, 4, v14")
        k("v_add_u32 v10, v10, v14")
        k(f"s_add_u32 s30, s33, {255*16 - 64*56}")
        k("s_lshl_b32 s31, s28, 8")
        k("s_sub_u32 s30, s30, s31")
        k("v_add_u32 v4, s30, v10")
        k("v_and_b32 v15, 15, v1")
        k("v_sub_u32 v15, v15, v12")
        k("v_lshlrev_b32 v15, 5, v15")
        k("v_lshl_add_u32 v15, v13, 4, v15")
        k("s_add_u32 s32, s34, 512")
        k("s_sub_u32 s32, s32, s31")
        k("v_add_u32 v5, s32, v15")
    ACC = 32
    FA = [64, 128]
    for i in range(32): k(f"v_mov_b32 v{ACC + i}, 0")
    k("s_waitcnt lgkmcnt(0)")
    k("s_barrier")
    stamp(k, 5)
    def rd(fs, p1):
        k(f"ds_read_b128 {vr(fs + 4*p1, 4)}, v4 offset:{512*(7 - p1)}")
        k(f"ds_read_b128 {vr(fs + 32 + 4*p1, 4)}, v5 offset:{512*p1}")
    def adv():
        k("v_subrev_u32 v4, 64, v4")
        k("v_subrev_u32 v5, 64, v5")
    def mm(fs, nxt):
        n = 0
        for p1 in range(8):
            for be in range(8 - p1):
                c = ACC + 4*(p1 + be)
                k(f"v_mfma_f32_16x16x32_bf16 {vr(c,4)}, {vr(fs + 4*p1,4)}, {vr(fs + 32 + 4*be,4)}, {vr(c,4)}")
                n += 1
                if nxt is not None and n % 4 == 0 and n // 4 <= 8: rd(nxt, n // 4 - 1)
        if nxt is not None: adv()
    for p1 in range(8): rd(FA[0], p1)
    adv()
    k("s_mov_b32 s35, 0")
    k.label("L_cv_loop")
    if "noconv" in EXP: k("s_branch L_cv_done")
    k("s_waitcnt lgkmcnt(0)")
    mm(FA[0], FA[1])
    k("s_waitcnt lgkmcnt(0)")
    mm(FA[1], FA[0])
    k("s_add_u32 s35, s35, 1")
    k("s_cmp_lt_u32 s35, 2")
    k("s_cbranch_scc1 L_cv_loop")
    k.label("L_cv_done")
    stamp(k, 6)
    k("s_setprio 3")
    k("s_waitcnt lgkmcnt(0)")
    k("s_barrier")
    k("s_lshl_b32 s30, s14, 12")
    k("v_add_u32 v6, s30, v3")
    k("s_xor_b32 s31, s14, 1")
    k("s_lshl_b32 s31, s31, 12")
    k("v_add_u32 v11, s31, v3")
    k("s_cmp_eq_u32 s28, 0")
    k("s_cbranch_scc0 L_cv_w1")
    for q in range(4): k(f"ds_write_b128 v6, {vr(ACC + 16 + 4*q, 4)} offset:{1024*q}")
    k("s_branch L_cv_w2")
    k.label("L_cv_w1")
    for q in range(4): k(f"ds_write_b128 v6, {vr(ACC + 4*q, 4)} offset:{1024*q}")
    for r in range(16): k(f"v_mov_b32 v{ACC + r}, v{ACC + 16 + r}")
    k.label("L_cv_w2")
    k("v_and_b32 v8, 15, v1")
    k("v_lshlrev_b32 v8, 5, v8")
    k("v_lshrrev_b32 v9, 4, v1")
    k("v_lshl_add_u32 v8, v9, 3, v8")
    k("s_lshl_b32 s30, s28, 11")
    k("s_add_u32 s30, s30, s34")
    k("s_add_u32 s30, s30, 512")
    k("v_add_u32 v9, s30, v8")
    for q in range(4): k(f"ds_read_b64 {vr(80 + 2*q, 2)}, v9 offset:{512*q}")
    k("v_lshlrev_b32 v7, 16, v7")
    k("s_waitcnt lgkmcnt(0)")
    k("s_barrier")
    stamp(k, 7)
    for q in range(4): k(f"ds_read_b128 {vr(64 + 4*q, 4)}, v11 offset:{1024*q}")
    k("s_waitcnt lgkmcnt(0)")
    with k.sched():
        for r in range(16): k(f"v_add_f32 v{ACC + r}, v{ACC + r}, v{64 + r}")
        for q in range(4):
            for hh in range(2):
                src = 80 + 2*q + hh
                t = 96 + 4*q + 2*hh
                k(f"v_lshlrev_b32 v{t}, 16, v{src}")
                k(f"v_and_b32 v{t+1}, 0xffff0000, v{src}")
                k(f"v_fmac_f32 v{ACC + 4*q + 2*hh}, v{t}, v7")
                k(f"v_fmac_f32 v{ACC + 4*q + 2*hh + 1}, v{t+1}, v7")
        for j in range(8): k(f"v_cvt_pk_bf16_f32 v{112 + j}, v{ACC + 2*j}, v{ACC + 2*j + 1}")
    k("s_lshl_b32 s30, s14, 11")
    k("s_add_u32 s30, s30, 16384")
    k("v_add_u32 v9, s30, v8")
    for q in range(4): k(f"ds_write_b64 v9, {vr(112 + 2*q, 2)} offset:{512*q}")
    k("v_add_u32 v9, s30, v3")
    k("s_waitcnt lgkmcnt(0)")
    k("ds_read_b128 v[72:75], v9")
    k("ds_read_b128 v[76:79], v9 offset:1024")
    k("s_lshl_b32 s30, s29, 12")
    k("s_lshl_b32 s31, s28, 11")
    k("s_add_u32 s30, s30, s31")
    k("s_waitcnt lgkmcnt(0)")
    k("buffer_store_dwordx4 v[72:75], v3, s[24:27], s30 offen sc1")
    k("buffer_store_dwordx4 v[76:79], v3, s[24:27], s30 offen offset:1024 sc1")
    stamp(k, 9)
    k("s_lshl_b32 s30, s47, 4")
    signal(k, 36, 30, 48, 90, FL_Z)
    stamp(k, 10)
    stamp_flush(k, 0, 8)
    k("s_endpgm")

def kd(name, vgpr, sgpr=102):
    return f""".amdhsa_kernel {name}
  .amdhsa_next_free_vgpr {vgpr}
  .amdhsa_next_free_sgpr {sgpr}
  .amdhsa_accum_offset {vgpr}
  .amdhsa_group_segment_fixed_size 0
  .amdhsa_kernarg_size 120
  .amdhsa_user_sgpr_count 2
  .amdhsa_user_sgpr_kernarg_segment_ptr 1
  .amdhsa_system_sgpr_workgroup_id_x 1
.end_amdhsa_kernel
"""

def header(launches):
    h = open("cdna_kernels/" + NAME + ".s.ref").read().split("; Override")[0]
    for (kn, g, b, lds) in launches:
        if len(launches) == 1 and PLAIN: h += f"; @launch grid=({g},1,1) block=({b},1,1) lds={lds}\n"
        else: h += f"; @launch kernel={kn} grid=({g},1,1) block=({b},1,1) lds={lds}\n"
    h += '.amdgcn_target "amdgcn-amd-amdhsa--gfx950"\n.text\n'
    return h

def kern_text(name, k):
    return f".globl {name}\n.p2align 8\n.type {name},@function\n{name}:\n" + k.text()

def pretouch(k):
    k("s_load_dwordx2 s[20:21], s[0:1], 112")
    k("s_load_dwordx2 s[22:23], s[0:1], 96")
    k("v_and_b32 v250, 63, v0")
    k("v_lshlrev_b32 v251, 19, v250")
    k("v_lshlrev_b32 v252, 15, v250")
    k("s_waitcnt lgkmcnt(0)")
    k("s_mov_b32 s16, s20\n s_mov_b32 s17, s21\n s_mov_b32 s18, 0x1200000\n s_mov_b32 s19, 0x00020000")
    k("buffer_load_dword v253, v251, s[16:19], 0 offen")
    k("s_mov_b32 s16, s22\n s_mov_b32 s17, s23\n s_mov_b32 s18, 1835008\n s_mov_b32 s19, 0x00020000")
    k("buffer_load_dword v254, v252, s[16:19], 0 offen")

def main(path):
    K1 = NAME + "_kernel"
    k1 = Kern()
    if "touch" in EXP:
        k1("s_cmp_lt_u32 s2, 224")
        k1("s_cbranch_scc1 L_notouch")
        k1("s_cmp_ge_u32 s2, 256")
        k1("s_cbranch_scc1 L_notouch")
        pretouch(k1)
        k1("s_waitcnt vmcnt(0)")
        k1.label("L_notouch")
    k1("s_cmp_lt_u32 s2, 224")
    k1("s_cbranch_scc1 L_g1")
    k1("s_cmp_lt_u32 s2, 256")
    k1("s_cbranch_scc1 L_lna")
    k1("s_cmp_lt_u32 s2, 480")
    k1("s_cbranch_scc1 L_s")
    k1("s_cmp_lt_u32 s2, 512")
    k1("s_cbranch_scc1 L_lnb")
    k1("s_endpgm")
    k1.label("L_lna")
    k1("s_sub_u32 s3, s2, 224")
    k1("s_branch L_ln")
    k1.label("L_lnb")
    k1("s_sub_u32 s3, s2, 448")
    k1.label("L_ln")
    role_ln(k1)
    k1.label("L_g1")
    k1("s_mov_b32 s3, s2")
    role_g1(k1)
    k1.label("L_s")
    k1("s_sub_u32 s3, s2, 256")
    if "noS" in EXP: k1("s_endpgm")
    role_s(k1)
    launches = [(K1, 512, 256, 81920)]
    txt = header(launches)
    txt += kern_text(K1, k1)
    txt += '.section .rodata,"a"\n.p2align 6\n' + kd(K1, 256)
    open(path, "w").write(txt)

if __name__ == "__main__":
    for a in list(sys.argv):
        if a.startswith("--exp="):
            EXP = a[6:].split(","); sys.argv.remove(a)
    for a in list(sys.argv):
        if a.startswith("--prio="):
            PRIO = [int(x) for x in a[7:].split(",")]; sys.argv.remove(a)
    for a in list(sys.argv):
        if a.startswith("--ne="):
            NEPRE = int(a[5:]); sys.argv.remove(a)
    if "--plain" in sys.argv:
        PLAIN = True; sys.argv.remove("--plain")
    if "--stamp" in sys.argv:
        STAMP = True; sys.argv.remove("--stamp")
    main(sys.argv[1] if len(sys.argv) > 1 else "cdna_kernels/" + NAME + ".s")
```

```python
import sys
from asmlib import Kern

NAME = "parallel_sum__ssm_conv_s4__dense_activation_relu__prompt"

XT_OFF = 0x000000
RS_OFF = 0x1C0000
HF_OFF = 0x400000
W2F_OFF = 0xC00000
ZT_OFF = 0xE00000
FL_OFF = 0x1000000
TS_OFF = 0x1100000
XT_SZ = 64 * 448 * 64
RS_SZ = 2048 * 4
HF_SZ = 64 * 112 * 1024
W2F_SZ = 112 * 14 * 1024
ZT_SZ = 448 * 4096
FL_SZ = 0x10000
FL_LN = 0
FL_W2 = 4096
FL_H = 5120
FL_Z = 9216

STAMP = False
NEPRE = 3
PRIO = [3, 1, 0, 2]
PLAIN = False
EXP = []
SPIN_LIMIT = 200000

def srd(k, d, lo, hi, size, off=0):
    if off:
        k(f"s_add_u32 s{d}, s{lo}, {off}")
        k(f"s_addc_u32 s{d+1}, s{hi}, 0")
    else:
        k(f"s_mov_b32 s{d}, s{lo}")
        k(f"s_mov_b32 s{d+1}, s{hi}")
    k(f"s_mov_b32 s{d+2}, {size}")
    k(f"s_mov_b32 s{d+3}, 0x00020000")

def vr(a, n=1):
    return f"v{a}" if n == 1 else f"v[{a}:{a+n-1}]"

def stamp(k, i):
    if not STAMP: return
    if i == 8: k("s_memrealtime s[96:97]")
    else:
        j = i if i < 8 else i - 1
        k(f"s_memtime s[{72+2*j}:{73+2*j}]")

def stamp_flush(k, kern_idx, n):
    if not STAMP: return
    k("s_memrealtime s[98:99]")
    k("s_waitcnt lgkmcnt(0)")
    k("s_load_dwordx2 s[68:69], s[0:1], 112")
    k("s_waitcnt lgkmcnt(0)")
    k(f"s_add_u32 s64, s68, {TS_OFF + kern_idx * 0x10000}")
    k("s_addc_u32 s65, s69, 0")
    k("s_mov_b32 s66, 0x10000")
    k("s_mov_b32 s67, 0x00020000")
    k("s_lshl_b32 s68, s2, 6")
    k("v_cmp_eq_u32 vcc, 0, v0")
    k("s_and_saveexec_b64 s[70:71], vcc")
    k("v_mov_b32 v1, s68")
    for i in range(12):
        k(f"v_mov_b32 v2, s{72+2*i}")
        k(f"buffer_store_dword v2, v1, s[64:67], 0 offen offset:{4*i}")
    k("s_getreg_b32 s69, hwreg(HW_REG_HW_ID)")
    k("v_mov_b32 v2, s69")
    k("buffer_store_dword v2, v1, s[64:67], 0 offen offset:48")
    k("s_getreg_b32 s69, hwreg(HW_REG_XCC_ID)")
    k("v_mov_b32 v2, s69")
    k("buffer_store_dword v2, v1, s[64:67], 0 offen offset:52")
    k("v_mov_b32 v2, s96")
    k("buffer_store_dword v2, v1, s[64:67], 0 offen offset:56")
    k("v_mov_b32 v2, s98")
    k("buffer_store_dword v2, v1, s[64:67], 0 offen offset:60")
    k("s_mov_b64 exec, s[70:71]")

_uid = [0]
def uid(p):
    _uid[0] += 1
    return f"L_{p}{_uid[0]}"

def get_nonce(k, dbg_srd, sdst, vtmp):
    L = uid("nonce"); E = uid("nonce_e")
    k(f"v_mov_b32 v{vtmp}, 0")
    k(f"s_mov_b32 s{sdst+1}, 0")
    k.label(L)
    k(f"buffer_load_dword v{vtmp+1}, v{vtmp}, s[{dbg_srd}:{dbg_srd+3}], 0 offen sc1")
    k("s_waitcnt vmcnt(0)")
    k(f"v_readfirstlane_b32 s{sdst}, v{vtmp+1}")
    k("s_nop 3")
    k(f"s_cmp_lg_u32 s{sdst}, 0")
    k(f"s_cbranch_scc1 {E}")
    k(f"s_add_u32 s{sdst+1}, s{sdst+1}, 1")
    k(f"s_cmp_lt_u32 s{sdst+1}, {SPIN_LIMIT}")
    k("s_sleep 1")
    k(f"s_cbranch_scc1 {L}")
    k.label(E)

def wait_flags(k, fl_srd, base_off, stride_shift, nflags, snonce, vtmp, scnt, wave0=None):
    L = uid("wf"); E = uid("wf_e")
    if wave0 is not None:
        k(f"s_cmp_lg_u32 s{wave0}, 0")
        k(f"s_cbranch_scc1 {E}")
    k(f"v_and_b32 v{vtmp}, 63, v0")
    k(f"v_min_u32 v{vtmp}, {nflags - 1}, v{vtmp}")
    k(f"v_lshlrev_b32 v{vtmp}, {stride_shift}, v{vtmp}")
    k(f"v_add_u32 v{vtmp}, {base_off}, v{vtmp}") if isinstance(base_off, int) else k(f"v_add_u32 v{vtmp}, s{base_off[0]}, v{vtmp}")
    k(f"s_mov_b32 s{scnt}, 0")
    k.label(L)
    k(f"buffer_load_dword v{vtmp+1}, v{vtmp}, s[{fl_srd}:{fl_srd+3}], 0 offen sc1")
    k("s_waitcnt vmcnt(0)")
    k(f"v_cmp_ne_u32 vcc, s{snonce}, v{vtmp+1}")
    k("s_nop 4")
    k(f"s_cbranch_vccz {E}")
    k(f"s_add_u32 s{scnt}, s{scnt}, 1")
    k(f"s_cmp_lt_u32 s{scnt}, {SPIN_LIMIT}")
    k("s_sleep 2")
    k(f"s_cbranch_scc1 {L}")
    k.label(E)

def signal(k, fl_srd, soff, snonce, vtmp, imm=0):
    k("s_waitcnt vmcnt(0)")
    k("s_barrier")
    k("v_cmp_eq_u32 vcc, 0, v0")
    k("s_and_saveexec_b64 s[44:45], vcc")
    k(f"s_add_u32 s{soff}, s{soff}, {imm}")
    k(f"v_mov_b32 v{vtmp}, s{soff}")
    k(f"v_mov_b32 v{vtmp+1}, s{snonce}")
    k(f"buffer_store_dword v{vtmp+1}, v{vtmp}, s[{fl_srd}:{fl_srd+3}], 0 offen sc1")
    k("s_mov_b64 exec, s[44:45]")

def wait_flags2(k, fl_srd, sets, snonce, vtmp, scnt, wave0):
    L = uid("wf"); E = uid("wf_e")
    k(f"s_cmp_lg_u32 s{wave0}, 0")
    k(f"s_cbranch_scc1 {E}")
    n = len(sets)
    for i, (base_off, nflags) in enumerate(sets):
        v = vtmp + 2*i
        k(f"v_and_b32 v{v}, 63, v0")
        k(f"v_min_u32 v{v}, {nflags - 1}, v{v}")
        k(f"v_lshlrev_b32 v{v}, 4, v{v}")
        k(f"v_add_u32 v{v}, {base_off}, v{v}") if isinstance(base_off, int) else k(f"v_add_u32 v{v}, s{base_off[0]}, v{v}")
    k(f"s_mov_b32 s{scnt}, 0")
    k.label(L)
    for i in range(n):
        k(f"buffer_load_dword v{vtmp+2*i+1}, v{vtmp+2*i}, s[{fl_srd}:{fl_srd+3}], 0 offen sc1")
    k("s_waitcnt vmcnt(0)")
    for i in range(1, n):
        k(f"v_xor_b32 v{vtmp+2*i+1}, s{snonce}, v{vtmp+2*i+1}")
    k(f"v_xor_b32 v{vtmp+1}, s{snonce}, v{vtmp+1}")
    for i in range(1, n):
        k(f"v_or_b32 v{vtmp+1}, v{vtmp+1}, v{vtmp+2*i+1}")
    k(f"v_cmp_ne_u32 vcc, 0, v{vtmp+1}")
    k("s_nop 4")
    k(f"s_cbranch_vccz {E}")
    k(f"s_add_u32 s{scnt}, s{scnt}, 1")
    k(f"s_cmp_lt_u32 s{scnt}, {SPIN_LIMIT}")
    k("s_sleep 1")
    k(f"s_cbranch_scc1 {L}")
    k.label(E)

def role_g1(k):
    stamp(k, 8); stamp(k, 0)
    k("s_load_dwordx2 s[4:5], s[0:1], 0")
    k(f"s_setprio {PRIO[0]}")
    k("s_load_dwordx2 s[6:7], s[0:1], 80")
    k("s_load_dwordx2 s[8:9], s[0:1], 112")
    k("s_load_dwordx2 s[50:51], s[0:1], 104")
    k("s_and_b32 s10, s3, 7")
    k("s_lshr_b32 s11, s3, 3")
    k("s_and_b32 s30, s11, 3")
    k("s_lshr_b32 s31, s11, 2")
    if "map81" in EXP:
        k("s_and_b32 s12, s11, 1\n s_lshl_b32 s13, s10, 1\n s_add_u32 s12, s12, s13")
        k("s_lshr_b32 s13, s11, 1")
        k("s_and_b32 s30, s11, 1\n s_lshl_b32 s30, s30, 1\n s_lshr_b32 s31, s11, 2")
    else:
        k("s_lshr_b32 s12, s10, 1")
        k("s_lshl_b32 s12, s12, 2")
        k("s_add_u32 s12, s12, s30")
        k("s_and_b32 s13, s10, 1")
        k("s_mul_i32 s13, s13, 7")
        k("s_add_u32 s13, s13, s31")
    k("s_mul_i32 s32, s30, 7\n s_add_u32 s32, s32, 1\n s_lshr_b32 s32, s32, 1")
    k("s_lshl_b32 s31, s31, 1\n s_add_u32 s45, s32, s31")
    k("s_cmp_ge_u32 s45, 14\n s_cselect_b32 s32, 14, 0\n s_sub_u32 s45, s45, s32")
    if "norot" in EXP: k("s_mov_b32 s45, 0")
    if "rot1" in EXP:
        k("s_and_b32 s45, s11, 3\n s_lshl_b32 s45, s45, 1\n s_lshr_b32 s32, s11, 2\n s_add_u32 s45, s45, s32")
    if "rot2" in EXP:
        k("s_and_b32 s45, s11, 1\n s_mul_i32 s45, s45, 7\n s_lshr_b32 s32, s11, 2\n s_add_u32 s45, s45, s32")
    k("v_and_b32 v1, 63, v0")
    k("v_lshrrev_b32 v2, 6, v0")
    k("v_readfirstlane_b32 s14, v2")
    k("s_and_b32 s15, s14, 1")
    k("s_lshr_b32 s28, s14, 1")
    k("s_lshl_b32 s29, s14, 11")
    VX0, VX1, VW0, VW1 = 4, 5, 6, 7
    with k.sched():
        k("s_lshl_b32 s30, s12, 7")
        k("s_lshl_b32 s31, s14, 5")
        k("s_add_u32 s30, s30, s31")
        k("v_lshrrev_b32 v3, 2, v1")
        k("v_add_u32 v3, s30, v3")
        k("v_mul_u32_u24 v3, 896, v3")
        k("v_lshrrev_b32 v8, 4, v1")
        k("v_xor_b32 v9, v1, v8")
        k("v_and_b32 v9, 3, v9")
        k(f"v_lshl_add_u32 v{VX0}, v9, 4, v3")
        k(f"v_add_u32 v{VX1}, 14336, v{VX0}")
        k("s_lshl_b32 s33, s14, 3")
        k("v_add_u32 v10, s33, v8")
        k("v_mul_u32_u24 v10, 3584, v10")
        k("v_lshlrev_b32 v11, 2, v8")
        k("v_xor_b32 v11, v1, v11")
        k("v_and_b32 v11, 15, v11")
        k("v_lshl_add_u32 v10, v11, 4, v10")
        k("s_lshl_b32 s34, s13, 8")
        k(f"v_add_u32 v{VW0}, s34, v10")
        k(f"v_add_u32 v{VW1}, 14336, v{VW0}")
    k("s_memrealtime s[46:47]")
    k("s_waitcnt lgkmcnt(0)")
    srd(k, 16, 4, 5, 2048 * 896)
    srd(k, 20, 6, 7, 448 * 3584)
    srd(k, 24, 8, 9, HF_SZ, HF_OFF)
    srd(k, 52, 50, 51, 256)
    srd(k, 60, 8, 9, FL_SZ, FL_OFF)
    k("s_cmp_lg_u32 s3, 0")
    k("s_cbranch_scc1 L_g1_nn")
    k("s_or_b32 s46, s46, 1")
    k("v_cmp_eq_u32 vcc, 0, v0")
    k("s_and_saveexec_b64 s[30:31], vcc")
    k("v_mov_b32 v100, 0")
    k("v_mov_b32 v101, s46")
    k("buffer_store_dword v101, v100, s[52:55], 0 offen sc1")
    k("s_mov_b64 exec, s[30:31]")
    k("s_waitcnt vmcnt(0)")
    k.label("L_g1_nn")
    k("v_mov_b32 v176, 0")
    def set_stage():
        k("s_mul_i32 s40, s45, 114688")
        k("s_lshl_b32 s41, s45, 6")
    def adv_stage():
        k("s_add_u32 s45, s45, 1\n s_cmp_eq_u32 s45, 14\n s_cselect_b32 s45, 0, s45")
    def dma_w(j, slot):
        k(f"s_add_u32 m0, s29, {16384*slot + 1024*j}")
        k(f"buffer_load_dwordx4 v{[VW0, VW1][j]}, s[20:23], s40 offen lds")
    def dma_x(j, slot):
        k(f"s_add_u32 m0, s29, {16384*slot + 8192 + 1024*j}")
        k(f"buffer_load_dwordx4 v{[VX0, VX1][j]}, s[16:19], s41 offen lds")
    for s in range(3):
        set_stage(); dma_w(0, s); dma_w(1, s); dma_x(0, s); dma_x(1, s); adv_stage()
    set_stage(); dma_w(0, 3); dma_w(1, 3)
    AA = [10, 11]; BB0 = [12, 13]; BB1 = [14, 15]
    AAh = [16, 17]; BB0h = [18, 19]; BB1h = [20, 21]
    with k.sched():
        k("v_lshrrev_b32 v3, 5, v1")
        k("v_bfe_u32 v8, v1, 2, 2")
        k("v_lshl_add_u32 v3, v3, 3, v8")
        k("v_lshlrev_b32 v3, 8, v3")
        k("v_bfe_u32 v9, v1, 4, 1")
        k("v_lshlrev_b32 v9, 1, v9")
        k("v_bfe_u32 v22, v1, 1, 1")
        k("v_add_u32 v9, v9, v22")
        k("v_lshl_add_u32 v3, v9, 4, v3")
        k("v_and_b32 v22, 1, v1")
        k("v_lshl_add_u32 v3, v22, 3, v3")
        for ai in range(2):
            k(f"s_xor_b32 s{30+ai}, s28, {ai}")
            k(f"s_lshl_b32 s{32+ai}, s15, 1")
            k(f"s_add_u32 s{30+ai}, s{30+ai}, s{32+ai}")
            k(f"v_xor_b32 v{24+ai}, s{30+ai}, v8")
            k(f"v_lshl_add_u32 v{AA[ai]}, v{24+ai}, 6, v3")
            k(f"v_add_u32 v{AAh[ai]}, 65536, v{AA[ai]}")
        k("v_and_b32 v26, 31, v1")
        k("v_lshrrev_b32 v27, 5, v1")
        k("v_xor_b32 v27, v27, v8")
        k("v_lshlrev_b32 v27, 4, v27")
        k("v_lshl_add_u32 v26, v26, 6, v27")
        for bi in range(2):
            k(f"s_xor_b32 s{34+bi}, s15, {bi}")
            k(f"s_lshl_b32 s{34+bi}, s{34+bi}, 11")
            k(f"s_lshl_b32 s{36+bi}, s28, 12")
            k(f"s_add_u32 s{34+bi}, s{34+bi}, s{36+bi}")
            k(f"s_add_u32 s{34+bi}, s{34+bi}, 8192")
            k(f"v_add_u32 v{BB0[bi]}, s{34+bi}, v26")
            k(f"v_xor_b32 v{BB1[bi]}, 32, v{BB0[bi]}")
            k(f"v_add_u32 v{BB0h[bi]}, 65536, v{BB0[bi]}")
            k(f"v_add_u32 v{BB1h[bi]}, 65536, v{BB1[bi]}")
    SEL = 160; SW = 164; SX = 168
    k("v_and_b32 v22, 15, v1")
    k("v_bfe_u32 v23, v1, 4, 1")
    k("v_cmp_eq_u32 vcc, v22, v23")
    k("v_mov_b32 v22, 0x3f803f80")
    k(f"v_cndmask_b32 v{SEL}, 0, v22, vcc")
    for i in range(1, 4): k(f"v_mov_b32 v{SEL + i}, v{SEL}")
    for i in range(4):
        k(f"v_mov_b32 v{SW + i}, 0")
        k(f"v_mov_b32 v{SX + i}, 0")
    FR = [24, 40]
    ACC = 56
    for i in range(64): k(f"v_mov_b32 v{ACC + i}, 0")
    def rdA(slot, kap, fs, ai):
        if "nords" in EXP: return
        hi = slot >= 4; sb = 0 if hi else slot * 16384
        a_ = (AAh if hi else AA)[ai]
        k(f"ds_read_b64_tr_b16 {vr(fs + 4*ai, 2)}, v{a_} offset:{sb + kap*4096}")
        k(f"ds_read_b64_tr_b16 {vr(fs + 4*ai + 2, 2)}, v{a_} offset:{sb + kap*4096 + 1024}")
    def rdB(slot, kap, fs, bi):
        if "nords" in EXP: return
        hi = slot >= 4; sb = 0 if hi else slot * 16384
        b_ = ((BB1h if hi else BB1) if kap else (BB0h if hi else BB0))[bi]
        k(f"ds_read_b128 {vr(fs + 8 + 4*bi, 4)}, v{b_} offset:{sb}")
    def mf(fs, ai, bi):
        if "nomf" in EXP: return
        c = ACC + (2*ai + bi) * 16
        k(f"v_mfma_f32_32x32x16_bf16 {vr(c,16)}, {vr(fs + 4*ai,4)}, {vr(fs + 8 + 4*bi,4)}, {vr(c,16)}")
    def sums(fs, which):
        if "nomf" in EXP: return
        src = fs if which == 0 else fs + 8
        dst = SW if which == 0 else SX
        k(f"v_mfma_f32_16x16x32_bf16 {vr(dst,4)}, {vr(src,4)}, {vr(SEL,4)}, {vr(dst,4)}")
    def stage_body(slot, cd, ab, wait, last=False):
        nslot = (slot + 1) % 5
        k("s_waitcnt lgkmcnt(0)")
        mf(FR[0], 0, 0)
        rdA(slot, 1, FR[1], 0); rdB(slot, 1, FR[1], 0)
        mf(FR[0], 0, 1)
        rdA(slot, 1, FR[1], 1); rdB(slot, 1, FR[1], 1)
        sums(FR[0], 0)
        if cd: dma_x(0, (slot + 3) % 5)
        mf(FR[0], 1, 0)
        if cd: dma_x(1, (slot + 3) % 5)
        sums(FR[0], 1)
        if cd: adv_stage(); set_stage()
        mf(FR[0], 1, 1)
        if not last:
            k(f"s_waitcnt vmcnt({wait}) lgkmcnt(0)")
            k("s_barrier")
        else:
            k("s_waitcnt lgkmcnt(0)")
        mf(FR[1], 0, 0)
        if not last: rdA(nslot, 0, FR[0], 0); rdB(nslot, 0, FR[0], 0)
        mf(FR[1], 0, 1)
        if not last: rdA(nslot, 0, FR[0], 1); rdB(nslot, 0, FR[0], 1)
        sums(FR[1], 0)
        if ab: dma_w(0, (slot + 4) % 5)
        mf(FR[1], 1, 0)
        if ab: dma_w(1, (slot + 4) % 5)
        sums(FR[1], 1)
        mf(FR[1], 1, 1)
    with k.sched():
        k("v_and_b32 v120, 1, v1")
        k("v_lshlrev_b32 v120, 6, v120")
        k("v_lshrrev_b32 v121, 4, v1")
        k("v_lshl_add_u32 v122, v121, 4, v120")
        k("s_lshl_b32 s30, s28, 1\n s_add_u32 s30, s30, s15\n s_lshl_b32 s30, s30, 7")
        k("s_lshl_b32 s31, s15, 1\n s_add_u32 s31, s31, s28\n s_lshl_b32 s31, s31, 7\n s_add_u32 s31, s31, 512")
        k("v_add_u32 v120, s30, v122")
        k("v_add_u32 v121, s31, v122")
        k("v_and_b32 v126, 31, v1")
        k("v_lshlrev_b32 v126, 2, v126")
        for bi in range(2):
            k(f"s_xor_b32 s32, s15, {bi}\n s_lshl_b32 s33, s28, 1\n s_add_u32 s32, s32, s33\n s_lshl_b32 s32, s32, 7")
            k(f"v_add_u32 v{122+bi}, s32, v126")
        for ai in range(2):
            k(f"s_xor_b32 s34, s28, {ai}\n s_lshl_b32 s35, s15, 1\n s_add_u32 s34, s34, s35\n s_lshl_b32 s34, s34, 7\n s_add_u32 s34, s34, 512")
            k(f"v_add_u32 v{124+ai}, s34, v126")
    for bi in range(2):
        k(f"s_xor_b32 s{36+bi}, s15, {bi}\n s_lshl_b32 s31, s28, 1\n s_add_u32 s{36+bi}, s{36+bi}, s31\n s_lshl_b32 s31, s12, 2\n s_add_u32 s{36+bi}, s{36+bi}, s31\n s_mul_i32 s{36+bi}, s{36+bi}, {112*1024}")
    for ai in range(2):
        k(f"s_xor_b32 s{38+ai}, s28, {ai}\n s_lshl_b32 s31, s15, 1\n s_add_u32 s{38+ai}, s{38+ai}, s31\n s_lshl_b32 s31, s13, 2\n s_add_u32 s{38+ai}, s{38+ai}, s31\n s_lshl_b32 s{38+ai}, s{38+ai}, 11")
    for i in range(16): k(f"v_mov_b32 v{128 + i}, 0")
    k("v_cmp_gt_u32 vcc, 32, v1")
    k("s_mov_b64 s[42:43], vcc")
    k("v_and_b32 v126, 15, v1")
    k("v_cmp_gt_u32 vcc, 2, v126")
    k("s_mov_b64 s[50:51], vcc")
    k("v_min_u32 v126, 55, v1")
    k("v_lshlrev_b32 v126, 4, v126")
    k(f"v_add_u32 v126, {FL_W2}, v126")
    g2_setup(k)
    k("s_mov_b32 s44, 0")
    if "flow" in EXP: k("s_setprio 3")
    stamp(k, 1)
    k("s_waitcnt vmcnt(10)")
    k("s_barrier")
    stamp(k, 2)
    for ai in range(2): rdA(0, 0, FR[0], ai)
    for bi in range(2): rdB(0, 0, FR[0], bi)
    k.label("L_g1_loop")
    for sl in range(5): stage_body(sl, True, True, 8)
    k("s_add_u32 s44, s44, 1")
    k("s_cmp_lt_u32 s44, 2")
    k("s_cbranch_scc1 L_g1_loop")
    stage_body(0, True, False, 8)
    stage_body(1, False, False, 4)
    k("buffer_load_dword v177, v176, s[52:55], 0 offen sc1")
    stage_body(2, False, False, 0)
    stage_body(3, False, False, 0, last=True)
    stamp(k, 3)
    k("buffer_load_dword v127, v126, s[60:63], 0 offen sc1")
    k("s_nop 4")
    for r in range(4): k(f"v_mul_f32 v{SX + r}, 0x3b124925, v{SX + r}")
    k(f"v_cvt_pk_bf16_f32 v24, v{SX}, v{SX+1}")
    k(f"v_cvt_pk_bf16_f32 v25, v{SX+2}, v{SX+3}")
    k(f"v_lshlrev_b32 v{SX}, 16, v24")
    k(f"v_and_b32 v{SX+1}, 0xffff0000, v24")
    k(f"v_lshlrev_b32 v{SX+2}, 16, v25")
    k(f"v_and_b32 v{SX+3}, 0xffff0000, v25")
    k("s_mov_b64 exec, s[50:51]")
    k(f"ds_write_b128 v120, {vr(SX,4)}")
    k(f"ds_write_b128 v121, {vr(SW,4)}")
    k("s_mov_b64 exec, -1")
    k("v_readfirstlane_b32 s48, v177")
    k("s_nop 3")
    k("s_cmp_lg_u32 s48, 0")
    k("s_cbranch_scc1 L_g1_haven")
    get_nonce(k, 52, 48, 48)
    k.label("L_g1_haven")
    srd(k, 52, 8, 9, W2F_SZ, W2F_OFF)
    k("s_waitcnt lgkmcnt(0)")
    k("s_barrier")
    for bi in range(2): k(f"ds_read_b32 v{40+bi}, v{122+bi}")
    for ai in range(2): k(f"ds_read_b32 v{42+ai}, v{124+ai}")
    k("v_lshlrev_b32 v3, 4, v1")
    k("s_waitcnt lgkmcnt(0)")
    with k.sched():
        for bi in range(2):
            k(f"v_cvt_pk_bf16_f32 v{44+bi}, -v{40+bi}, -v{40+bi}")
            k(f"v_cndmask_b32 v{136 + 4*bi}, 0, v{44+bi}, s[42:43]")
        for ai in range(2):
            k(f"v_cvt_pk_bf16_f32 v{46+ai}, v{42+ai}, v{42+ai}")
            k(f"v_lshlrev_b32 v{46+ai}, 16, v{46+ai}")
            k(f"v_sub_f32 v{46+ai}, v{42+ai}, v{46+ai}")
            k(f"v_cvt_pk_bf16_f32 v{46+ai}, v{42+ai}, v{46+ai}")
            k(f"v_cndmask_b32 v{128 + 4*ai}, 0, v{46+ai}, s[42:43]")
    for ai in range(2):
        for bi in range(2):
            c = ACC + (2*ai + bi) * 16
            k(f"v_mfma_f32_32x32x16_bf16 {vr(c,16)}, {vr(128 + 4*ai,4)}, {vr(136 + 4*bi,4)}, {vr(c,16)}")
    for ai in range(2):
        for bi in range(2):
            c = ACC + (2*ai + bi) * 16
            t = 24 + 8*(2*ai + bi)
            for j in range(8):
                k(f"v_cvt_pk_bf16_f32 v{t + j}, v{c + 2*j}, v{c + 2*j + 1}")
            for j in range(8):
                k(f"v_pk_max_i16 v{t + j}, v{t + j}, 0")
            hf = " sc1"
            k(f"s_add_u32 s30, s{36+bi}, s{38+ai}")
            k(f"buffer_store_dwordx4 {vr(t,4)}, v3, s[24:27], s30 offen{hf}")
            k(f"buffer_store_dwordx4 {vr(t+4,4)}, v3, s[24:27], s30 offen offset:1024{hf}")
    stamp(k, 4)
    role_g2(k)

def g2_setup(k):
    k("s_load_dwordx2 s[6:7], s[0:1], 96")
    k("s_and_b32 s10, s3, 7")
    k("s_lshr_b32 s11, s3, 3")
    k("s_and_b32 s30, s11, 3")
    k("s_lshl_b32 s65, s10, 2")
    k("s_add_u32 s64, s30, s65")
    k("s_lshr_b32 s65, s11, 2")
    k("s_and_b32 s66, s14, 1")
    k("s_lshr_b32 s67, s14, 1")
    k("s_mul_i32 s30, s14, 28")
    k("s_mul_i32 s31, s30, 14\n s_lshl_b32 s32, s65, 1\n s_add_u32 s31, s31, s32")
    k("s_add_u32 s68, s31, s66\n s_lshl_b32 s68, s68, 10")
    k("s_xor_b32 s32, s66, 1\n s_add_u32 s69, s31, s32\n s_lshl_b32 s69, s69, 10")
    k("s_lshl_b32 s32, s64, 1")
    k("s_add_u32 s33, s32, s67\n s_mul_i32 s33, s33, 112\n s_add_u32 s70, s33, s30\n s_lshl_b32 s70, s70, 10")
    k("s_xor_b32 s33, s67, 1\n s_add_u32 s33, s33, s32\n s_mul_i32 s33, s33, 112\n s_add_u32 s71, s33, s30\n s_lshl_b32 s71, s71, 10")

def role_g2(k):
    ACC = 16; BR = 80; NBR = 6; NK = 28; NPRE = 11; NLDS = 8
    AP = 128; AR = 216
    RED = 0; ZL = 49152; XL = 65536 + 0; OL = 73728
    ALDS = 0
    FIRST_LDS = NPRE + 4
    k("s_waitcnt vmcnt(8)")
    k("v_cmp_ne_u32 vcc, s48, v127")
    k("s_nop 4")
    k("s_cbranch_vccz L_g2_w2ok")
    k("s_mov_b32 s44, 0")
    wait_flags2(k, 60, [(FL_W2, 56)], 48, 50, 49, 44)
    k.label("L_g2_w2ok")
    def aregs(j):
        if j < NPRE: return AP + 8*j
        return AR + 8*((j - NPRE) % 4)
    def advA(n=1):
        k("s_add_u32 s68, s68, 14336\n s_add_u32 s69, s69, 14336")
    def loadA(j):
        f = aregs(j)
        k(f"buffer_load_dwordx4 {vr(f,4)}, v3, s[52:55], s68 offen sc1")
        k(f"buffer_load_dwordx4 {vr(f+4,4)}, v3, s[52:55], s69 offen sc1")
        advA()
    def loadA_lds(j):
        o = (j - FIRST_LDS) * 2048
        k(f"s_add_u32 m0, s34, {ALDS + o}")
        k(f"buffer_load_dwordx4 v3, s[52:55], s68 offen sc1 lds")
        k(f"s_add_u32 m0, s34, {ALDS + o + 1024}")
        k(f"buffer_load_dwordx4 v3, s[52:55], s69 offen sc1 lds")
        advA()
    def loadB(j):
        f = BR + 8*(j % NBR)
        k(f"buffer_load_dwordx4 {vr(f,4)}, v3, s[24:27], s70 offen sc1")
        k(f"buffer_load_dwordx4 {vr(f+4,4)}, v3, s[24:27], s71 offen sc1")
        k("s_add_u32 s70, s70, 1024\n s_add_u32 s71, s71, 1024")
    NE = NEPRE
    for j in range(NE): loadA(j)
    npre = 2*NE
    k("s_waitcnt vmcnt(0)")
    k("s_barrier")
    k("s_lshl_b32 s30, s12, 8\n s_lshl_b32 s31, s13, 4\n s_add_u32 s30, s30, s31\n s_add_u32 s30, s30, %d" % FL_H)
    k("v_cmp_eq_u32 vcc, 0, v0")
    k("s_and_saveexec_b64 s[44:45], vcc")
    k("v_mov_b32 v40, s30")
    k("v_mov_b32 v41, s48")
    k("buffer_store_dword v41, v40, s[60:63], 0 offen sc1")
    k("s_mov_b64 exec, s[44:45]")
    stamp(k, 5)
    k("s_setprio %d" % PRIO[1])
    for j in range(NE, FIRST_LDS): loadA(j)
    k("s_lshl_b32 s34, s14, 14")
    srd(k, 16, 4, 5, 2048 * 896)
    srd(k, 36, 8, 9, RS_SZ, RS_OFF)
    srd(k, 56, 8, 9, ZT_SZ, ZT_OFF)
    with k.sched():
        k("v_lshrrev_b32 v4, 3, v1")
        k("s_lshl_b32 s35, s14, 4")
        k("v_add_u32 v4, s35, v4")
        k("v_lshrrev_b32 v5, 1, v4")
        k("v_xor_b32 v5, v5, v1")
        k("v_and_b32 v5, 7, v5")
        k("s_lshl_b32 s35, s64, 6")
        k("v_add_u32 v6, s35, v4")
        k("v_mul_u32_u24 v6, 896, v6")
        k("v_lshl_add_u32 v6, v5, 4, v6")
        k("s_lshl_b32 s30, s65, 7")
        k("v_add_u32 v6, s30, v6")
        k("v_xor_b32 v7, 64, v6")
        k(f"v_add_u32 v7, {8*896}, v7")
        k("s_lshl_b32 s31, s65, 6")
        k("v_add_u32 v248, s31, v4")
        k("v_lshlrev_b32 v248, 12, v248")
        k("v_and_b32 v9, 7, v1")
        k("v_lshl_add_u32 v248, v9, 4, v248")
        k("s_lshl_b32 s32, s64, 7")
        k("v_add_u32 v248, s32, v248")
        k(f"v_add_u32 v249, {8*4096}, v248")
        k("v_and_b32 v250, 31, v1")
        k("s_lshl_b32 s33, s67, 5")
        k("s_add_u32 s33, s33, s35")
        k("v_add_u32 v250, s33, v250")
        k("v_lshlrev_b32 v250, 2, v250")
        k("v_and_b32 v251, 31, v1")
        k("v_lshlrev_b32 v251, 4, v251")
        k("s_lshl_b32 s44, s65, 9")
        k(f"s_add_u32 s44, s44, {FL_Z}")
        k("v_add_u32 v251, s44, v251")
        k("v_and_b32 v252, 7, v1")
        k("v_lshlrev_b32 v252, 4, v252")
        k("s_lshl_b32 s45, s64, 7")
        k("v_add_u32 v252, s45, v252")
        k("s_lshl_b32 s33, s14, 14")
        k("v_add_u32 v253, s33, v3")
    k("s_lshl_b32 s35, s14, 11")
    k(f"s_add_u32 m0, s35, {XL}")
    k("buffer_load_dwordx4 v6, s[16:19], 0 offen lds")
    k(f"s_add_u32 m0, s35, {XL + 1024}")
    k("buffer_load_dwordx4 v7, s[16:19], 0 offen lds")
    with k.sched():
        k("v_lshrrev_b32 v5, 5, v1")
        k("v_bfe_u32 v6, v1, 2, 2")
        k("v_lshl_add_u32 v5, v5, 2, v6")
        k("v_lshlrev_b32 v5, 7, v5")
        k("v_bfe_u32 v6, v1, 4, 1")
        k("v_lshl_add_u32 v5, v6, 5, v5")
        k("v_and_b32 v7, 3, v1")
        k("v_lshl_add_u32 v5, v7, 3, v5")
        k("s_lshl_b32 s30, s66, 15\n s_lshl_b32 s31, s67, 6\n s_add_u32 s30, s30, s31\n s_add_u32 s30, s30, 12288")
        k("v_add_u32 v5, s30, v5")
        k("v_and_b32 v4, 31, v1")
        k("s_lshl_b32 s32, s67, 5")
        k("v_add_u32 v4, s32, v4")
        k("v_bfe_u32 v10, v4, 1, 3")
        k("s_lshl_b32 s33, s66, 2")
        k("v_xor_b32 v10, s33, v10")
        k("v_lshlrev_b32 v10, 4, v10")
        k("v_lshlrev_b32 v12, 7, v4")
        k("v_lshrrev_b32 v13, 5, v1")
        k("v_lshl_add_u32 v12, v13, 3, v12")
        k(f"v_add_u32 v12, {XL}, v12")
        k("s_lshl_b32 s44, s14, 11") if False else None
        k("v_and_b32 v14, 31, v1")
        k("v_bfe_u32 v15, v14, 1, 2")
        k("v_lshlrev_b32 v15, 4, v15")
        k("v_lshlrev_b32 v14, 6, v14")
        k("v_lshl_add_u32 v14, v13, 3, v14")
        k(f"v_add_u32 v14, {OL}, v14")
        k("v_add_u32 v14, s35, v14")
        k("v_bfe_u32 v6, v1, 3, 2")
        k("v_xor_b32 v6, v6, v1")
        k("v_and_b32 v6, 3, v6")
        k("v_lshrrev_b32 v7, 2, v1")
        k("s_lshl_b32 s30, s64, 6\n s_add_u32 s30, s30, s32")
        k("v_add_u32 v7, s30, v7")
        k("v_mul_u32_u24 v7, 896, v7")
        k("v_lshl_add_u32 v7, v6, 4, v7")
        k("s_lshl_b32 s31, s65, 7\n s_lshl_b32 s33, s66, 6\n s_add_u32 s31, s31, s33")
        k("v_add_u32 v7, s31, v7")
    for i in range(64): k(f"v_mov_b32 v{ACC + i}, 0")
    k("s_waitcnt lgkmcnt(0)")
    srd(k, 20, 6, 7, 2048 * 896)
    k("s_lshr_b32 s30, s64, 1\n s_lshl_b32 s30, s30, 8\n s_add_u32 s30, s30, %d" % FL_H)
    k("s_mul_i32 s31, s14, 7\n s_lshr_b32 s31, s31, 1\n s_lshl_b32 s31, s31, 4\n s_add_u32 s30, s30, s31")
    k("s_mov_b32 s33, 0")
    wait_flags2(k, 60, [((30,), 4)], 48, 8, 49, 33)
    stamp(k, 6)
    LA = NBR - 1
    for j in range(LA): loadB(j)
    fifo = [("B", j) for j in range(LA) for _ in range(2)]
    lfifo = []
    LAST_LDS = FIRST_LDS + NLDS
    def areg_final(j):
        if j < NPRE: return AP + 8*j
        if j < LAST_LDS: return AR + 8*((j - NPRE) % 4)
        return AP + 8*(j - LAST_LDS)
    def allowed(q, wanted):
        idx = [i for i, e in enumerate(q) if e in wanted]
        return None if not idx else len(q) - 1 - max(idx)
    for j in range(NK):
        want = [("B", j), ("A", j)]
        jl = j + 3
        do_lds = (j - 1 >= NPRE) and FIRST_LDS <= jl < LAST_LDS
        if do_lds: want.append(("L", jl))
        n = allowed(fifo, want)
        if j <= NK - 3: k(f"s_waitcnt vmcnt({n})")
        m = allowed(lfifo, [("S", j)])
        if m is not None: k(f"s_waitcnt lgkmcnt({m})")
        fb = BR + 8*(j % NBR); fa = areg_final(j)
        fill = [[], [], [], []]
        jb = j + LA
        if jb < NK:
            f = BR + 8*(jb % NBR)
            fill[0] += [f"buffer_load_dwordx4 {vr(f,4)}, v3, s[24:27], s70 offen sc1", "s_add_u32 s70, s70, 1024"]
            fill[1] += [f"buffer_load_dwordx4 {vr(f+4,4)}, v3, s[24:27], s71 offen sc1", "s_add_u32 s71, s71, 1024"]
            fifo += [("B", jb)] * 2
        if j < NLDS:
            o = j * 2048
            fill[2] += [f"s_add_u32 m0, s34, {ALDS + o}", f"buffer_load_dwordx4 v3, s[52:55], s68 offen sc1 lds", "s_add_u32 s68, s68, 14336"]
            fill[3] += [f"s_add_u32 m0, s34, {ALDS + o + 1024}", f"buffer_load_dwordx4 v3, s[52:55], s69 offen sc1 lds", "s_add_u32 s69, s69, 14336"]
            fifo += [("L", FIRST_LDS + j)] * 2
        elif j < NLDS + (NK - LAST_LDS):
            jn = LAST_LDS + (j - NLDS); f = areg_final(jn)
            fill[2] += [f"buffer_load_dwordx4 {vr(f,4)}, v3, s[52:55], s68 offen sc1", "s_add_u32 s68, s68, 14336"]
            fill[3] += [f"buffer_load_dwordx4 {vr(f+4,4)}, v3, s[52:55], s69 offen sc1", "s_add_u32 s69, s69, 14336"]
            fifo += [("A", jn)] * 2
        if do_lds:
            f = AR + 8*((jl - NPRE) % 4); o = (jl - FIRST_LDS) * 2048
            fill[2] += [f"ds_read_b128 {vr(f,4)}, v253 offset:{ALDS + o}"]
            fill[3] += [f"ds_read_b128 {vr(f+4,4)}, v253 offset:{ALDS + o + 1024}"]
            lfifo += [("S", jl)] * 2
        q = 0
        for ti in range(2):
            for di in range(2):
                c = ACC + (2*ti + di) * 16
                k(f"v_mfma_f32_32x32x16_bf16 {vr(c,16)}, {vr(fa + 4*di,4)}, {vr(fb + 4*ti,4)}, {vr(c,16)}")
                for ins in fill[q]: k(ins)
                q += 1
        if "g2st" in EXP and j in (0, 5, 10, 14): stamp(k, {0: 1, 5: 2, 10: 3, 14: 4}[j])
        if j == NK - LA - 1:
            k("buffer_load_dword v254, v251, s[60:63], 0 offen sc1")
            k(f"buffer_load_dword v255, v252, s[60:63], 0 offen offset:{FL_LN} sc1")
            fifo += [("F", 0)] * 2
            stamp(k, 7)
        if j == NK - 3:
            k("s_waitcnt vmcnt(0)")
            k("v_xor_b32 v254, s48, v254")
            k("v_xor_b32 v255, s48, v255")
            k("v_or_b32 v254, v254, v255")
            k("v_cmp_ne_u32 vcc, 0, v254")
            k("s_mov_b32 s33, 0")
            k("s_nop 3")
            k("s_cbranch_vccnz L_g2_nz")
            k("buffer_load_dwordx4 v[80:83], v248, s[56:59], 0 offen sc1")
            k("buffer_load_dwordx4 v[84:87], v249, s[56:59], 0 offen sc1")
            k("buffer_load_dword v11, v250, s[36:39], 0 offen sc1")
            k("s_mov_b32 s33, 1")
            k.label("L_g2_nz")
    stamp(k, 9)
    k("s_cmp_eq_u32 s33, 1")
    k("s_cbranch_scc1 L_g2_zok")
    k("s_mov_b32 s33, 0")
    if "noS" not in EXP: wait_flags2(k, 60, [((44,), 32), ((45,), 8)], 48, 240, 49, 33)
    k("buffer_load_dwordx4 v[80:83], v248, s[56:59], 0 offen sc1")
    k("buffer_load_dwordx4 v[84:87], v249, s[56:59], 0 offen sc1")
    k("buffer_load_dword v11, v250, s[36:39], 0 offen sc1")
    k.label("L_g2_zok")
    k("s_nop 7")
    k("s_nop 3")
    stamp(k, 10)
    for tp in range(1, 4):
        for q in range(4):
            k(f"ds_write_b128 v253, {vr(ACC + 16*tp + 4*q, 4)} offset:{4096*(tp-1) + 1024*q}")
    for tp in range(1, 4):
        k(f"s_xor_b32 s30, s14, {tp}\n s_lshl_b32 s30, s30, 14")
        k(f"v_add_u32 v{96+tp}, s30, v3")
    for q in range(4):
        k(f"v_xor_b32 v{100+q}, {16*q}, v10")
        k(f"v_add_u32 v{100+q}, v{100+q}, v12")
    k("s_waitcnt vmcnt(0)")
    k("ds_write_b128 v253, v[80:83] offset:12288")
    k("ds_write_b128 v253, v[84:87] offset:13312")
    k("s_waitcnt lgkmcnt(0)")
    k("s_barrier")
    for sl in range(3):
        for q in range(4):
            k(f"ds_read_b128 {vr(112 + 16*sl + 4*q, 4)}, v{97+sl} offset:{4096*sl + 1024*q}")
    for q in range(4):
        k(f"ds_read_b64_tr_b16 {vr(80 + 2*q, 2)}, v5 offset:{16384*(q >> 1) + 1024*(q & 1)}")
    k("s_waitcnt lgkmcnt(4)")
    for q in range(4):
        k(f"ds_read_b64 {vr(88 + 2*q, 2)}, v{100+q}")
    with k.sched():
        for r in range(16):
            k(f"v_add_f32 v{ACC + r}, v{ACC + r}, v{112 + r}")
            k(f"v_add_f32 v{128 + r}, v{128 + r}, v{144 + r}")
            k(f"v_add_f32 v{ACC + r}, v{ACC + r}, v{128 + r}")
    k("s_waitcnt lgkmcnt(0)")
    with k.sched():
        for j in range(8):
            a = 112 + 2*j; b = 128 + 2*j
            k(f"v_lshlrev_b32 v{a}, 16, v{88 + j}")
            k(f"v_and_b32 v{a+1}, 0xffff0000, v{88 + j}")
            k(f"v_lshlrev_b32 v{b}, 16, v{80 + j}")
            k(f"v_and_b32 v{b+1}, 0xffff0000, v{80 + j}")
            k(f"v_add_f32 v{a}, v{a}, v{b}")
            k(f"v_add_f32 v{a+1}, v{a+1}, v{b+1}")
            if "emu" not in EXP:
                k(f"v_fma_f32 v{a}, v{ACC + 2*j}, v11, v{a}")
                k(f"v_fma_f32 v{a+1}, v{ACC + 2*j + 1}, v11, v{a+1}")
            else:
                k(f"v_mul_f32 v{b}, v{ACC + 2*j}, v11")
                k(f"v_mul_f32 v{b+1}, v{ACC + 2*j + 1}, v11")
                k(f"v_cvt_pk_bf16_f32 v{152 + j}, v{a}, v{a+1}")
                k(f"v_cvt_pk_bf16_f32 v{160 + j}, v{b}, v{b+1}")
                k(f"v_lshlrev_b32 v{a}, 16, v{152 + j}")
                k(f"v_and_b32 v{a+1}, 0xffff0000, v{152 + j}")
                k(f"v_lshlrev_b32 v{b}, 16, v{160 + j}")
                k(f"v_and_b32 v{b+1}, 0xffff0000, v{160 + j}")
                k(f"v_add_f32 v{a}, v{a}, v{b}")
                k(f"v_add_f32 v{a+1}, v{a+1}, v{b+1}")
            k(f"v_cvt_pk_bf16_f32 v{144 + j}, v{a}, v{a+1}")
    for q in range(4):
        k(f"v_xor_b32 v{100+q}, {16*q}, v15")
        k(f"v_add_u32 v{100+q}, v{100+q}, v14")
    for q in range(4):
        k(f"ds_write_b64 v{100+q}, {vr(144 + 2*q, 2)}")
    k("s_lshl_b32 s35, s14, 11")
    k(f"s_add_u32 s35, s35, {OL}")
    k("v_add_u32 v104, s35, v3")
    k(f"v_add_u32 v107, {16*896}, v7")
    k("v_mov_b32 v106, v7")
    k("s_waitcnt lgkmcnt(0)")
    k("ds_read_b128 v[112:115], v104")
    k("ds_read_b128 v[116:119], v104 offset:1024")
    k("s_waitcnt lgkmcnt(0)")
    of = "" if "oplain" in EXP else " sc1"
    k(f"buffer_store_dwordx4 v[112:115], v106, s[20:23], 0 offen{of}")
    k(f"buffer_store_dwordx4 v[116:119], v107, s[20:23], 0 offen{of}")
    stamp(k, 11)
    stamp_flush(k, 0, 8)
    k("s_endpgm")


def ln8_issue(k, blk_s, xsrd):
    k(f"s_lshl_b32 s30, s{blk_s}, 3")
    k("s_lshl_b32 s31, s14, 1")
    k("s_add_u32 s30, s30, s31")
    k("v_lshrrev_b32 v36, 5, v1")
    k("v_add_u32 v36, s30, v36")
    k("v_and_b32 v37, 31, v1")
    k("v_mul_u32_u24 v38, 896, v36")
    k("v_lshl_add_u32 v38, v37, 4, v38")
    for i in range(4): k(f"v_mov_b32 v{44 + i}, 0")
    k(f"buffer_load_dwordx4 v[40:43], v38, s[{xsrd}:{xsrd+3}], 0 offen")
    k("s_mov_b32 exec_lo, 0x00ffffff\n s_mov_b32 exec_hi, 0x00ffffff")
    k(f"buffer_load_dwordx4 v[44:47], v38, s[{xsrd}:{xsrd+3}], 0 offen offset:512")
    k("s_mov_b64 exec, -1")

def ln8_compute(k, blk_s, xtsrd, rssrd, ldsbase):
    F = 48
    def red32(reg, tmp):
        k(f"v_add_f32_dpp v{reg}, v{reg}, v{reg} quad_perm:[1,0,3,2] row_mask:0xf bank_mask:0xf")
        k(f"v_add_f32_dpp v{reg}, v{reg}, v{reg} quad_perm:[2,3,0,1] row_mask:0xf bank_mask:0xf")
        k(f"v_add_f32_dpp v{reg}, v{reg}, v{reg} row_half_mirror row_mask:0xf bank_mask:0xf")
        k(f"v_add_f32_dpp v{reg}, v{reg}, v{reg} row_mirror row_mask:0xf bank_mask:0xf")
        k(f"ds_swizzle_b32 v{tmp}, v{reg} offset:0x401F")
        k("s_waitcnt lgkmcnt(0)")
        k(f"v_add_f32 v{reg}, v{reg}, v{tmp}")
    with k.sched():
        for j in range(8):
            k(f"v_lshlrev_b32 v{F + 2*j}, 16, v{40 + j}")
            k(f"v_and_b32 v{F + 2*j + 1}, 0xffff0000, v{40 + j}")
        for j in range(4): k(f"v_add_f32 v{64 + j}, v{F + j}, v{F + 4 + j}")
        for j in range(8, 16): k(f"v_add_f32 v{64 + (j & 3)}, v{64 + (j & 3)}, v{F + j}")
        k("v_add_f32 v64, v64, v65\n v_add_f32 v66, v66, v67\n v_add_f32 v64, v64, v66")
    red32(64, 65)
    k("v_mul_f32 v64, 0xbb124925, v64")
    with k.sched():
        for j in range(8): k(f"v_add_f32 v{68 + j}, v{F + j}, v64")
        k("v_mul_f32 v65, v68, v68\n v_mul_f32 v66, v69, v69")
        for j in range(2, 8): k(f"v_fmac_f32 v{65 + (j & 1)}, v{68 + j}, v{68 + j}")
    k("s_mov_b32 exec_lo, 0x00ffffff\n s_mov_b32 exec_hi, 0x00ffffff")
    with k.sched():
        for j in range(8): k(f"v_add_f32 v{68 + j}, v{F + 8 + j}, v64")
        for j in range(8): k(f"v_fmac_f32 v{65 + (j & 1)}, v{68 + j}, v{68 + j}")
    k("s_mov_b64 exec, -1")
    k("v_add_f32 v65, v65, v66")
    red32(65, 66)
    k("v_mul_f32 v65, 0x3b124925, v65")
    k("v_cvt_pk_bf16_f32 v65, v65, v64")
    k("v_and_b32 v64, 0xffff0000, v65")
    k("v_lshlrev_b32 v65, 16, v65")
    k("v_add_f32 v65, 0x3727c5ac, v65")
    k("v_cvt_pk_bf16_f32 v65, v65, v65")
    k("v_lshlrev_b32 v65, 16, v65")
    k("v_sqrt_f32 v65, v65")
    k("v_cvt_pk_bf16_f32 v65, v65, v65")
    k("v_lshlrev_b32 v65, 16, v65")
    k("v_rcp_f32 v66, v65")
    k("v_fma_f32 v67, -v65, v66, 2.0")
    k("v_mul_f32 v66, v66, v67")
    k("v_lshlrev_b32 v39, 2, v36")
    k("s_mov_b32 exec_lo, 1\n s_mov_b32 exec_hi, 1")
    k(f"buffer_store_dword v66, v39, s[{rssrd}:{rssrd+3}], 0 offen sc1")
    k("s_mov_b64 exec, -1")
    with k.sched():
        for j in range(8):
            a = F + 2*j
            k(f"v_add_f32 v{a}, v{a}, v64")
            k(f"v_add_f32 v{a+1}, v{a+1}, v64")
            k(f"v_cvt_pk_bf16_f32 v{40 + j}, v{a}, v{a+1}")
            k(f"v_lshlrev_b32 v{a}, 16, v{40 + j}")
            k(f"v_and_b32 v{a+1}, 0xffff0000, v{40 + j}")
            k(f"v_mul_f32 v{a}, v{a}, v66")
            k(f"v_mul_f32 v{a+1}, v{a+1}, v66")
            k(f"v_cvt_pk_bf16_f32 v{40 + j}, v{a}, v{a+1}")
        k("v_and_b32 v68, 7, v36")
        k("v_mul_u32_u24 v68, 960, v68")
        k("v_lshl_add_u32 v68, v37, 4, v68")
        k(f"v_add_u32 v68, {ldsbase}, v68")
        k("v_bfe_u32 v69, v1, 2, 2")
        k("v_mul_u32_u24 v69, 960, v69")
        k("v_lshrrev_b32 v70, 4, v1")
        k("v_lshl_add_u32 v69, v70, 5, v69")
        k("v_and_b32 v70, 3, v1")
        k("v_lshl_add_u32 v69, v70, 3, v69")
        k("s_lshl_b32 s44, s14, 7")
        k(f"s_add_u32 s44, s44, {ldsbase}")
        k("v_add_u32 v69, s44, v69")
        k("v_lshlrev_b32 v70, 4, v1")
    k("ds_write_b128 v68, v[40:43]")
    k("s_mov_b32 exec_lo, 0x00ffffff\n s_mov_b32 exec_hi, 0x00ffffff")
    k("ds_write_b128 v68, v[44:47] offset:512")
    k("s_mov_b64 exec, -1")
    k(f"s_mul_i32 s44, s{blk_s}, 7168")
    k("s_lshl_b32 s45, s14, 10")
    k("s_add_u32 s44, s44, s45")
    k("s_waitcnt lgkmcnt(0)")
    k("s_barrier")
    k("ds_read_b64_tr_b16 v[72:73], v69")
    k(f"ds_read_b64_tr_b16 v[74:75], v69 offset:{4*960}")
    k("ds_read_b64_tr_b16 v[76:77], v69 offset:512")
    k(f"ds_read_b64_tr_b16 v[78:79], v69 offset:{4*960 + 512}")
    k("s_waitcnt lgkmcnt(2)")
    k(f"buffer_store_dwordx4 v[72:75], v70, s[{xtsrd}:{xtsrd+3}], s44 offen sc1")
    L = uid("ln8")
    k("s_cmp_eq_u32 s14, 3")
    k(f"s_cbranch_scc1 {L}")
    k("s_add_u32 s44, s44, 4096")
    k("s_waitcnt lgkmcnt(0)")
    k(f"buffer_store_dwordx4 v[76:79], v70, s[{xtsrd}:{xtsrd+3}], s44 offen sc1")
    k.label(L)
    k("s_waitcnt lgkmcnt(0)")

def role_ln(k):
    stamp(k, 8); stamp(k, 0)
    k("s_setprio 1")
    k("s_load_dwordx2 s[4:5], s[0:1], 0")
    k("s_load_dwordx2 s[6:7], s[0:1], 88")
    k("s_load_dwordx4 s[8:11], s[0:1], 104")
    k("v_and_b32 v1, 63, v0")
    k("v_lshrrev_b32 v2, 6, v0")
    k("v_readfirstlane_b32 s14, v2")
    k("s_min_u32 s33, s3, 55")
    k("s_mul_i32 s30, s33, 28672")
    k("s_mul_i32 s31, s14, 7168")
    k("s_add_u32 s30, s30, s31")
    k("v_lshlrev_b32 v7, 4, v1")
    k("s_waitcnt lgkmcnt(0)")
    srd(k, 20, 6, 7, 1792 * 896)
    W2L = 32768
    for j in range(7):
        k(f"s_add_u32 m0, s31, {W2L + 1024*j}")
        k(f"s_add_u32 s32, s30, {1024*j}")
        k(f"buffer_load_dwordx4 v7, s[20:23], s32 offen lds")
    srd(k, 16, 4, 5, 2048 * 896)
    k("s_and_b32 s47, s3, 31")
    k("s_add_u32 s47, s47, 224")
    ln8_issue(k, 47, 16)
    srd(k, 52, 8, 9, 256)
    k("v_mov_b32 v120, 0")
    srd(k, 24, 10, 11, XT_SZ, XT_OFF)
    srd(k, 36, 10, 11, RS_SZ, RS_OFF)
    srd(k, 40, 10, 11, W2F_SZ, W2F_OFF)
    srd(k, 56, 10, 11, FL_SZ, FL_OFF)
    with k.sched():
        k("v_lshrrev_b32 v80, 5, v1")
        k("v_bfe_u32 v81, v1, 2, 2")
        k("v_lshl_add_u32 v80, v80, 2, v81")
        k("v_mul_u32_u24 v80, 896, v80")
        k("v_bfe_u32 v82, v1, 4, 1")
        k("v_lshl_add_u32 v80, v82, 5, v80")
        k("v_and_b32 v83, 3, v1")
        k("v_lshl_add_u32 v80, v83, 3, v80")
        k(f"v_add_u32 v80, {W2L}, v80")
        k("s_lshr_b32 s30, s14, 1")
        k("s_and_b32 s31, s14, 1")
        k("s_mul_i32 s31, s31, 7")
        k(f"s_mul_i32 s32, s30, {16*896}")
        k("s_lshl_b32 s34, s31, 6")
        k("s_add_u32 s32, s32, s34")
        k("v_add_u32 v80, s32, v80")
        k("s_lshl_b32 s35, s33, 1")
        k("s_add_u32 s35, s35, s30")
        k("s_mul_i32 s35, s35, 14")
        k("s_add_u32 s35, s35, s31")
        k("s_lshl_b32 s35, s35, 10")
    k("s_waitcnt vmcnt(2)")
    k("buffer_load_dword v121, v120, s[52:55], 0 offen sc1")
    k("s_barrier")
    stamp(k, 1)
    for j in range(7):
        k(f"ds_read_b64_tr_b16 {vr(84 + 4*j, 2)}, v80 offset:{64*j}")
        k(f"ds_read_b64_tr_b16 {vr(84 + 4*j + 2, 2)}, v80 offset:{64*j + 8*896}")
    k("s_waitcnt lgkmcnt(0) vmcnt(0)")
    k("v_readfirstlane_b32 s48, v121")
    k("s_cmp_ge_u32 s3, 56")
    k("s_cbranch_scc1 L_ln_now2")
    for j in range(7):
        k(f"buffer_store_dwordx4 {vr(84 + 4*j, 4)}, v7, s[40:43], s35 offen sc1")
        k(f"s_add_u32 s35, s35, 1024")
    k.label("L_ln_now2")
    k("s_cmp_lg_u32 s48, 0")
    k("s_cbranch_scc1 L_ln_haven")
    get_nonce(k, 52, 48, 112)
    k.label("L_ln_haven")
    k("s_cmp_ge_u32 s3, 32")
    k("s_cbranch_scc1 L_ln_noln")
    ln8_compute(k, 47, 24, 36, 0)
    k("s_lshl_b32 s30, s47, 4")
    signal(k, 56, 30, 48, 112, FL_LN)
    k.label("L_ln_noln")
    stamp(k, 2)
    k("s_lshl_b32 s30, s3, 4")
    signal(k, 56, 30, 48, 112, FL_W2)
    stamp(k, 3)
    if "pf" in EXP:
        wait_flags(k, 56, FL_W2, 4, 56, 48, 112, 49)
        k("s_and_b32 s30, s3, 31\n s_lshr_b32 s30, s30, 3\n s_lshr_b32 s31, s3, 5\n s_lshl_b32 s31, s31, 2\n s_add_u32 s30, s30, s31")
        k("s_lshr_b32 s31, s30, 1\n s_mul_i32 s31, s31, 28\n s_add_u32 s31, s31, s14\n s_mul_i32 s31, s31, 14336")
        k("s_and_b32 s30, s30, 1\n s_mul_i32 s30, s30, 7168\n s_add_u32 s30, s30, s31")
        k("s_mov_b32 s31, 0")
        k.label("L_ln_pf")
        for j in range(7):
            k(f"buffer_load_dwordx4 {vr(40 + 4*j, 4)}, v7, s[40:43], s30 offen offset:{1024*(j % 4)} sc1") if j < 4 else None
        k("s_add_u32 s32, s30, 4096")
        for j in range(4, 7):
            k(f"buffer_load_dwordx4 {vr(40 + 4*j, 4)}, v7, s[40:43], s32 offen offset:{1024*(j - 4)} sc1")
        k("s_add_u32 s30, s30, %d" % (4*14336))
        k("s_waitcnt vmcnt(7)")
        k("s_add_u32 s31, s31, 1")
        k("s_cmp_lt_u32 s31, 7")
        k("s_cbranch_scc1 L_ln_pf")
    stamp(k, 4)
    stamp_flush(k, 0, 4)
    k("s_endpgm")

def cmul(k, o, x, y, t):
    k(f"v_mul_f32 v{t}, v{x+1}, v{y+1}")
    k(f"v_mul_f32 v{t+1}, v{x+1}, v{y}")
    if o == x:
        k(f"v_fma_f32 v{o+1}, v{x}, v{y+1}, v{t+1}")
        k(f"v_fma_f32 v{o}, v{x}, v{y}, -v{t}")
    else:
        k(f"v_fma_f32 v{o}, v{x}, v{y}, -v{t}")
        k(f"v_fma_f32 v{o+1}, v{x}, v{y+1}, v{t+1}")

def role_s(k):
    stamp(k, 8); stamp(k, 0)
    k("s_setprio 3")
    k("s_load_dwordx16 s[56:71], s[0:1], 8")
    k("s_load_dwordx4 s[8:11], s[0:1], 104")
    k("s_load_dwordx2 s[4:5], s[0:1], 0")
    k("v_and_b32 v1, 63, v0")
    k("v_lshrrev_b32 v2, 6, v0")
    k("v_readfirstlane_b32 s14, v2")
    k("s_lshr_b32 s15, s14, 1")
    k("s_and_b32 s28, s14, 1")
    k("s_and_b32 s29, s3, 7")
    k("s_lshr_b32 s30, s3, 3")
    k("s_lshr_b32 s31, s30, 2\n s_lshl_b32 s31, s31, 3\n s_add_u32 s29, s29, s31")
    k("s_lshl_b32 s29, s29, 2\n s_and_b32 s30, s30, 3\n s_add_u32 s47, s29, s30")
    k("s_lshl_b32 s29, s47, 1")
    k("s_add_u32 s29, s29, s15")
    k("s_lshl_b32 s30, s29, 9")
    k("s_lshl_b32 s31, s28, 8")
    k("s_add_u32 s30, s30, s31")
    k("v_lshlrev_b32 v3, 2, v1")
    k("v_add_u32 v3, s30, v3")
    k("s_lshl_b32 s31, s29, 1")
    k("v_mov_b32 v4, s31")
    k("s_waitcnt lgkmcnt(0)")
    srd(k, 40, 4, 5, 2048 * 896)
    ln8_issue(k, 3, 40)
    PSZ = 448 * 512
    for i in range(6):
        srd(k, 16, 56 + 2*i, 57 + 2*i, PSZ)
        k(f"buffer_load_dword v{8 + i}, v3, s[16:19], 0 offen")
    srd(k, 20, 68, 69, 896)
    k("buffer_load_ushort v14, v4, s[20:23], 0 offen")
    srd(k, 20, 70, 71, 896)
    k("buffer_load_ushort v7, v4, s[20:23], 0 offen")
    srd(k, 52, 8, 9, 256)
    k("v_mov_b32 v190, 0")
    srd(k, 20, 10, 11, XT_SZ, XT_OFF)
    srd(k, 24, 10, 11, ZT_SZ, ZT_OFF)
    srd(k, 36, 10, 11, FL_SZ, FL_OFF)
    srd(k, 40, 10, 11, RS_SZ, RS_OFF)
    TB = 75776; XB = 65536
    CSTR = 4160; CH = 37888
    WA = 144
    RA = 152
    GA = 160
    k("s_lshl_b32 s33, s14, 14")
    k("s_mul_i32 s31, s15, 1536")
    k(f"s_add_u32 s31, s31, {TB}")
    k("s_lshl_b32 s30, s28, 6")
    k("v_add_u32 v2, s30, v1")
    k("v_lshlrev_b32 v3, 4, v1")
    with k.sched():
        k("v_and_b32 v16, 7, v1")
        k("v_lshlrev_b32 v17, 7, v1")
        k("v_add_u32 v17, s33, v17")
        for v_ in range(8):
            k(f"v_xor_b32 v{WA + v_}, {v_}, v16")
            k(f"v_lshl_add_u32 v{WA + v_}, v{WA + v_}, 4, v17")
        k("v_bfe_u32 v18, v1, 5, 1")
        k("v_bfe_u32 v19, v1, 3, 1")
        k("v_lshl_add_u32 v18, v18, 2, v19")
        k("v_bfe_u32 v19, v1, 2, 1")
        k("v_bfe_u32 v20, v1, 4, 1")
        k("v_bfe_u32 v21, v1, 1, 1")
        k("v_lshl_add_u32 v20, v20, 1, v21")
        k("v_lshl_add_u32 v19, v19, 2, v20")
        k("v_and_b32 v21, 1, v1")
        k("v_lshlrev_b32 v21, 3, v21")
        k("v_add_u32 v21, s33, v21")
        for j in range(2):
            k(f"v_add_u32 v{22+j}, {2*j}, v18")
            k(f"v_xor_b32 v{24+j}, v19, v{22+j}")
            k(f"v_lshl_add_u32 v{24+j}, v{24+j}, 4, v21")
            k(f"v_lshl_add_u32 v{RA+j}, v{22+j}, 7, v{24+j}")
        k("v_lshlrev_b32 v156, 4, v1")
        k("v_mul_u32_u24 v157, 7168, v2")
        k("s_lshl_b32 s45, s29, 4")
        k("v_add_u32 v157, s45, v157")
        k(f"v_add_u32 v158, {128*7168}, v157")
        for c in range(2):
            b_ = 80 + 20*c
            k(f"v_lshlrev_b32 v{b_+16}, 3, v2")
            k(f"v_sub_u32 v{b_+16}, {2047 - 1024*c}, v{b_+16}")
            for e in range(8): k(f"v_subrev_u32 v{b_ + e}, {e}, v{b_+16}")
            g = GA + 8*c
            for e in range(8): k(f"v_cvt_f32_u32 v{g + e}, v{b_ + e}")
            for e in range(0, 8, 2): k(f"v_cvt_pk_bf16_f32 v{b_ + 8 + e//2}, v{g + e}, v{g + e + 1}")
            for e in range(8):
                if e % 2 == 0: k(f"v_and_b32 v{g + e}, 0xffff, v{b_ + 8 + e//2}")
                else: k(f"v_lshrrev_b32 v{g + e}, 16, v{b_ + 8 + e//2}")
            for e in range(8): k(f"v_add_u32 v{g + e}, {(-0x4300 + 128) & 0xffffffff}, v{g + e}")
            for e in range(8):
                k(f"v_cmp_gt_u32 vcc, 128, v{b_ + e}")
                k(f"v_cndmask_b32 v{g + e}, v{g + e}, v{b_ + e}, vcc")
            for e in range(8): k(f"v_lshl_add_u32 v{g + e}, v{g + e}, 1, s31")
    ACC = 112
    for i in range(16): k(f"v_mov_b32 v{ACC + i}, 0")
    k("s_waitcnt vmcnt(8)")
    k("buffer_load_dword v191, v190, s[52:55], 0 offen sc1")
    ln8_compute(k, 3, 20, 40, 65536)
    stamp(k, 11)
    k("s_waitcnt vmcnt(2)")
    stamp(k, 1)
    k("v_readfirstlane_b32 s48, v191")
    k("v_lshlrev_b32 v14, 16, v14")
    k("v_mul_f32 v15, 0x3fb8aa3b, v14")
    k("s_mov_b32 s34, 0x3fb8aa3b")
    k("v_fma_f32 v16, v14, s34, -v15")
    k("s_mov_b32 s34, 0x32a57060")
    k("v_fma_f32 v16, v14, s34, v16")
    k("v_exp_f32 v15, v15")
    k("v_mul_f32 v16, 0x3f317218, v16")
    k("v_fma_f32 v15, v15, v16, v15")
    k("v_cvt_pk_bf16_f32 v15, v15, v15")
    k("v_lshlrev_b32 v15, 16, v15")
    E1, Z2, Z4, E256 = 20, 22, 24, 26
    Q = [28, 30, 32, 34]
    E32 = 36
    TT = [64 + 2*i for i in range(8)]
    tc = [0]
    def T():
        tc[0] += 1
        return TT[tc[0] % len(TT)]
    SA = 80
    SB = 176
    k("s_cmp_lg_u32 s48, 0")
    k("s_cbranch_scc1 L_s_haven")
    get_nonce(k, 52, 48, 104)
    k.label("L_s_haven")
    if "siglate" not in EXP:
        k("s_lshl_b32 s30, s3, 4")
        signal(k, 36, 30, 48, 104, FL_LN)
    k(f"s_setprio {PRIO[2]}")
    k("s_mov_b32 s35, 0")
    k("s_mov_b32 s34, 16")
    k.label("L_s_item")
    with k.sched():
        for i in range(6):
            k(f"v_lshlrev_b32 v{50 + i}, s34, v{8 + i}")
            k(f"v_and_b32 v{50 + i}, 0xffff0000, v{50 + i}")
        k("v_mul_f32 v18, v15, v50")
        k("v_mul_f32 v18, 0x3fb8aa3b, v18")
        k("v_mul_f32 v19, v15, v51")
        k("v_mul_f32 v19, 0.15915494, v19")
        k("v_mul_f32 v52, v15, v52")
        k("v_mul_f32 v53, v15, v53")
        P0 = 16
        cmul(k, P0, 54, 52, T())
        def E(dst, l):
            tmp = T()
            lit = {1: "1.0", 8: "0x41000000", 16: "0x41800000", 24: "0x41c00000", 32: "0x42000000", 256: "0x43800000"}[l]
            k(f"v_mul_f32 v{tmp}, {lit}, v18")
            k(f"v_mul_f32 v{tmp+1}, {lit}, v19")
            k(f"v_exp_f32 v{tmp}, v{tmp}")
            k(f"v_fract_f32 v{tmp+1}, v{tmp+1}")
            k(f"v_cos_f32 v{dst}, v{tmp+1}")
            k(f"v_sin_f32 v{dst+1}, v{tmp+1}")
            k(f"v_mul_f32 v{dst}, v{dst}, v{tmp}")
            k(f"v_mul_f32 v{dst+1}, v{dst+1}, v{tmp}")
        E(E1, 1); E(E256, 256); E(E32, 32); E(Q[1], 8); E(Q[2], 16); E(Q[3], 24)
        k(f"v_mov_b32 v{Q[0]}, 1.0")
        k(f"v_mov_b32 v{Q[0]+1}, 0")
        cmul(k, Z2, E1, E1, T())
        cmul(k, Z4, Z2, Z2, T())
        def pairA(h, ra, rb):
            p = h >> 3; dw = (h & 7) >> 1
            base = SA + 8*p
            if rb is None:
                k(f"v_cvt_pk_bf16_f32 v{base + dw}, v{ra}, 0")
                k(f"v_cvt_pk_bf16_f32 v{base + 4 + dw}, -v{ra+1}, 0")
            else:
                k(f"v_cvt_pk_bf16_f32 v{base + dw}, v{ra}, v{rb}")
                k(f"v_cvt_pk_bf16_f32 v{base + 4 + dw}, -v{ra+1}, -v{rb+1}")
        def flushA(p):
            base = SA + 8*p
            if "nokw" in EXP: return
            k(f"ds_write_b128 v{WA + p}, {vr(base, 4)}")
            k(f"ds_write_b128 v{WA + 4 + p}, {vr(base + 4, 4)}")
        def pairB(i):
            p = i >> 1; base = SB + 8*(p & 1); dw = 2*(i & 1)
            k(f"v_cvt_pk_bf16_f32 v{base + dw}, v{Q[0]}, v{Q[1]}")
            k(f"v_cvt_pk_bf16_f32 v{base + dw + 1}, v{Q[2]}, v{Q[3]}")
            k(f"v_cvt_pk_bf16_f32 v{base + 4 + dw}, v{Q[0]+1}, v{Q[1]+1}")
            k(f"v_cvt_pk_bf16_f32 v{base + 4 + dw + 1}, v{Q[2]+1}, v{Q[3]+1}")
            if (i & 1) and "nokw" not in EXP:
                k(f"ds_write_b128 v{WA + p}, {vr(base, 4)} offset:8192")
                k(f"ds_write_b128 v{WA + 4 + p}, {vr(base + 4, 4)} offset:8192")
        PE, PO = 38, 40
        U0, U1, S0, S1 = 42, 44, 46, 48
        steps = []
        def low():
            cmul(k, PO, P0, E1, T()); pairA(0, P0, PO)
            yield
            for h in (2, 4, 6):
                cmul(k, PE, PO, E1, T())
                yield
                cmul(k, PO, PE, E1, T()); pairA(h, PE, PO)
                yield
            flushA(0)
            yield
        def high():
            cmul(k, U0, P0, E256, T())
            cmul(k, S0, U0, Z2, T()); pairA(8, U0, S0)
            yield
            cmul(k, U1, U0, E256, T())
            cmul(k, S1, S0, Z2, T())
            yield
            cmul(k, S0, S1, Z2, T()); pairA(10, S1, S0)
            cmul(k, U0, U1, E256, T())
            yield
            cmul(k, S1, U1, Z4, T()); pairA(12, U1, S1)
            cmul(k, U1, U0, E256, T())
            yield
            cmul(k, S0, U0, Z4, T()); pairA(14, U0, S0)
            flushA(1)
            cmul(k, U0, U1, E256, T()); pairA(16, U1, U0)
            yield
            cmul(k, U1, U0, E256, T())
            cmul(k, U0, U1, E256, T()); pairA(18, U1, U0)
            yield
            cmul(k, U1, U0, E256, T()); pairA(20, U1, None)
            k(f"v_mov_b32 v{SA + 16 + 3}, 0\n v_mov_b32 v{SA + 16 + 7}, 0")
            flushA(2)
            yield
        gl, gh = low(), high()
        pairB(0)
        for i in range(1, 8):
            for c in range(4): cmul(k, Q[c], Q[c], E32, T())
            pairB(i)
            next(gl, None); next(gh, None)
        for _ in gl: pass
        for _ in gh: pass
    k("s_waitcnt lgkmcnt(0)")
    for half in range(2):
        for ks in range(4*half, 4*half + 4):
            fa = 64 + 8 * (ks % 4)
            k(f"ds_read_b64_tr_b16 {vr(fa,2)}, v{RA} offset:{1024*ks}")
            k(f"ds_read_b64_tr_b16 {vr(fa+2,2)}, v{RA+1} offset:{1024*ks}")
            k(f"ds_read_b64_tr_b16 {vr(fa+4,2)}, v{RA} offset:{1024*ks + 8192}")
            k(f"ds_read_b64_tr_b16 {vr(fa+6,2)}, v{RA+1} offset:{1024*ks + 8192}")
        for ks in range(4*half, 4*half + 4):
            fa = 64 + 8 * (ks % 4)
            k(f"s_waitcnt lgkmcnt({4*(3 - (ks % 4))})")
            k(f"v_mfma_f32_32x32x16_bf16 {vr(ACC,16)}, {vr(fa,4)}, {vr(fa+4,4)}, {vr(ACC,16)}")
    if "siglate" in EXP:
        k("s_cmp_lg_u32 s35, 0")
        k("s_cbranch_scc1 L_s_nosig")
        k("s_lshl_b32 s30, s3, 4")
        signal(k, 36, 30, 48, 104, FL_LN)
        stamp(k, 12)
        k.label("L_s_nosig")
    k("s_cmp_lg_u32 s35, 0")
    k("s_cbranch_scc1 L_s_nou")
    k("s_setprio 3")
    for i in range(4):
        k(f"buffer_load_dword v{104+i}, v156, s[36:39], 0 offen offset:{FL_LN + 1024*i} sc1")
    k(f"s_setprio {PRIO[2]}")
    k.label("L_s_nou")
    if "spf" in EXP:
        k("s_cmp_lg_u32 s35, 0")
        k("s_cbranch_scc1 L_s_nopf")
        k("v_min_u32 v104, 55, v1")
        k("v_lshlrev_b32 v104, 4, v104")
        k(f"v_add_u32 v104, {FL_W2}, v104")
        k("buffer_load_dword v105, v104, s[36:39], 0 offen sc1")
        srd(k, 40, 10, 11, W2F_SZ, W2F_OFF)
        k("s_lshr_b32 s30, s3, 3\n s_mul_i32 s44, s14, 28\n s_add_u32 s30, s30, s44\n s_mul_i32 s30, s30, 14336")
        k("s_waitcnt vmcnt(0)")
        k("v_cmp_ne_u32 vcc, s48, v105")
        k("s_nop 4")
        k("s_cbranch_vccnz L_s_nopf")
        for i in range(14):
            k(f"buffer_load_dwordx4 v[104:107], v3, s[40:43], s30 offen offset:{1024*(i % 4)} sc1")
            if i % 4 == 3: k("s_add_u32 s30, s30, 4096")
        k.label("L_s_nopf")
    k("s_mov_b32 s34, 0")
    k("s_add_u32 s35, s35, 1")
    k("s_cmp_lt_u32 s35, 2")
    k("s_cbranch_scc1 L_s_item")
    stamp(k, 2)
    k(f"s_setprio {PRIO[3]}")
    k("s_waitcnt vmcnt(0)")
    for i in range(4): k(f"v_xor_b32 v{104+i}, s48, v{104+i}")
    k("v_or_b32 v104, v104, v105\n v_or_b32 v106, v106, v107\n v_or_b32 v104, v104, v106")
    k("v_cmp_ne_u32 vcc, 0, v104")
    k("s_nop 4")
    k("s_cbranch_vccz L_s_haveu")
    k("s_mov_b32 s45, 0")
    wait_flags2(k, 36, [(FL_LN + 1024*i, 64) for i in range(4)], 48, 90, 49, 45)
    k.label("L_s_haveu")
    k("buffer_load_dwordx4 v[104:107], v157, s[20:23], 0 offen sc1")
    k("buffer_load_dwordx4 v[108:111], v158, s[20:23], 0 offen sc1")
    k("s_mul_i32 s30, s15, 3072")
    k(f"s_add_u32 s30, s30, {XB}")
    k("v_add_u32 v4, s30, v3")
    k("s_cmp_eq_u32 s28, 0")
    k("s_cbranch_scc1 L_kg_a")
    k("s_nop 7\n s_nop 3")
    for q in range(3): k(f"ds_write_b128 v4, {vr(ACC + 4*q, 4)} offset:{1024*q}")
    k("s_waitcnt lgkmcnt(0)")
    k.label("L_kg_a")
    k("s_barrier")
    k("s_cmp_eq_u32 s28, 0")
    k("s_cbranch_scc0 L_kg_b")
    for q in range(3): k(f"ds_read_b128 {vr(64 + 4*q, 4)}, v4 offset:{1024*q}")
    k("v_and_b32 v6, 31, v1")
    k("v_lshrrev_b32 v12, 5, v1")
    k("v_lshlrev_b32 v8, 4, v6")
    k("v_lshl_add_u32 v8, v12, 3, v8")
    k("v_add_u32 v8, s31, v8")
    k("v_lshlrev_b32 v9, 3, v6\n v_add_u32 v9, s31, v9")
    k("v_lshlrev_b32 v10, 2, v6\n v_add_u32 v10, s31, v10")
    k("v_lshlrev_b32 v11, 1, v6\n v_add_u32 v11, s31, v11")
    k("s_waitcnt lgkmcnt(0)")
    for r in range(12): k(f"v_add_f32 v{ACC + r}, v{ACC + r}, v{64 + r}")
    for j in range(6): k(f"v_cvt_pk_bf16_f32 v{80 + j}, v{ACC + 2*j}, v{ACC + 2*j + 1}")
    k("ds_write_b64 v8, v[80:81]")
    k("s_mov_b64 s[40:41], exec")
    k("s_mov_b32 exec_lo, -1\n s_mov_b32 exec_hi, 0")
    k("ds_write_b64 v9, v[82:83] offset:512")
    k("ds_write_b16 v11, v84 offset:1024")
    k("ds_write_b16_d16_hi v11, v84 offset:1088")
    k("ds_write_b16 v11, v85 offset:1152")
    k("ds_write_b16_d16_hi v11, v85 offset:1216")
    k("s_mov_b32 exec_lo, 0\n s_mov_b32 exec_hi, -1")
    k("ds_write_b32 v10, v82 offset:768")
    k("ds_write_b32 v10, v83 offset:896")
    k("ds_write_b16 v11, v84 offset:1280")
    k("s_mov_b64 exec, s[40:41]")
    k("s_waitcnt lgkmcnt(0)")
    k.label("L_kg_b")
    k(f"s_mul_i32 s33, s15, {CH}")
    k(f"s_add_u32 s34, s33, {8*CSTR}")
    k("s_barrier")
    stamp(k, 3)
    for c in range(2):
        for e in range(8):
            if e % 2 == 0: k(f"ds_read_u16 v{64 + 8*c + e//2}, v{GA + 8*c + e}")
            else: k(f"ds_read_u16_d16_hi v{80 + 4*c + e//2}, v{GA + 8*c + e}")
    for i in range(4): k(f"v_mov_b32 v{28 + i}, 0")
    k("v_add_u32 v25, s34, v3")
    k("v_subrev_u32 v26, 32, v1")
    k(f"v_mul_u32_u24 v26, {CSTR}, v26")
    k("v_add_u32 v26, s33, v26")
    k("v_add_u32 v26, 4096, v26")
    k("v_cmp_gt_u32 vcc, 32, v1")
    k("v_cndmask_b32 v25, v26, v25, vcc")
    k("v_lshlrev_b32 v27, 4, v2")
    k("v_add_u32 v27, s33, v27")
    k("s_waitcnt lgkmcnt(0)")
    for c in range(2):
        for j in range(4):
            k(f"v_and_b32 v{80 + 4*c + j}, 0xffff0000, v{80 + 4*c + j}")
            k(f"v_or_b32 v{64 + 8*c + j}, v{64 + 8*c + j}, v{80 + 4*c + j}")
    k("ds_write_b128 v27, v[64:67]")
    k("ds_write_b128 v27, v[72:75] offset:2048")
    k("v_cmp_gt_u32 vcc, 40, v1")
    k("s_and_saveexec_b64 s[40:41], vcc")
    k("ds_write_b128 v25, v[28:31]")
    k("s_mov_b64 exec, s[40:41]")
    k("s_waitcnt lgkmcnt(0)")
    k("s_barrier")
    k("ds_read_b128 v[68:71], v27 offset:16")
    k("ds_read_b128 v[76:79], v27 offset:2064")
    k("v_lshlrev_b32 v10, 4, v2")
    k("v_add_u32 v10, s34, v10")
    k("s_waitcnt vmcnt(0)")
    k("ds_write_b128 v10, v[104:107] offset:512")
    k("ds_write_b128 v10, v[108:111] offset:2560")
    k("s_waitcnt lgkmcnt(2)")
    for c in range(2):
        Dr = 64 + 8*c
        Ee = 96 + 24*c; Eo = Ee + 8; Do = Ee + 16
        with k.sched():
            for i in range(7): k(f"v_alignbit_b32 v{Ee + i}, v{Dr + i + 1}, v{Dr + i}, 16")
            for i in range(6): k(f"v_alignbit_b32 v{Eo + i}, v{Dr + i + 2}, v{Dr + i + 1}, 16")
            for i in range(6): k(f"v_mov_b32 v{Do + i}, v{Dr + i + 1}")
            src = {1: Ee, 2: Do, 3: Eo, 4: Dr + 2, 5: Ee + 2, 6: Do + 2, 7: Eo + 2}
            for s_ in range(1, 8):
                k(f"ds_write_b128 v27, {vr(src[s_], 4)} offset:{s_*CSTR + 2048*c}")
    stamp(k, 4)
    with k.sched():
        k("v_and_b32 v10, 7, v1")
        k("v_sub_u32 v10, 7, v10")
        k(f"v_mul_u32_u24 v10, {CSTR}, v10")
        k("v_bfe_u32 v11, v1, 3, 1")
        k("v_bfe_u32 v12, v1, 5, 1")
        k("v_bfe_u32 v13, v1, 4, 1")
        k("v_lshl_add_u32 v14, v12, 1, v11")
        k("v_sub_u32 v14, v13, v14")
        k("v_lshlrev_b32 v14, 4, v14")
        k("v_add_u32 v10, v10, v14")
        k(f"s_add_u32 s30, s33, {255*16 - 64*56}")
        k("s_lshl_b32 s31, s28, 8")
        k("s_sub_u32 s30, s30, s31")
        k("v_add_u32 v4, s30, v10")
        k("v_and_b32 v15, 15, v1")
        k("v_sub_u32 v15, v15, v12")
        k("v_lshlrev_b32 v15, 5, v15")
        k("v_lshl_add_u32 v15, v13, 4, v15")
        k("s_add_u32 s32, s34, 512")
        k("s_sub_u32 s32, s32, s31")
        k("v_add_u32 v5, s32, v15")
    ACC = 32
    FA = [64, 128]
    for i in range(32): k(f"v_mov_b32 v{ACC + i}, 0")
    k("s_waitcnt lgkmcnt(0)")
    k("s_barrier")
    stamp(k, 5)
    def rd(fs, p1):
        k(f"ds_read_b128 {vr(fs + 4*p1, 4)}, v4 offset:{512*(7 - p1)}")
        k(f"ds_read_b128 {vr(fs + 32 + 4*p1, 4)}, v5 offset:{512*p1}")
    def adv():
        k("v_subrev_u32 v4, 64, v4")
        k("v_subrev_u32 v5, 64, v5")
    def mm(fs, nxt):
        n = 0
        for p1 in range(8):
            for be in range(8 - p1):
                c = ACC + 4*(p1 + be)
                k(f"v_mfma_f32_16x16x32_bf16 {vr(c,4)}, {vr(fs + 4*p1,4)}, {vr(fs + 32 + 4*be,4)}, {vr(c,4)}")
                n += 1
                if nxt is not None and n % 4 == 0 and n // 4 <= 8: rd(nxt, n // 4 - 1)
        if nxt is not None: adv()
    for p1 in range(8): rd(FA[0], p1)
    adv()
    k("s_mov_b32 s35, 0")
    k.label("L_cv_loop")
    if "noconv" in EXP: k("s_branch L_cv_done")
    k("s_waitcnt lgkmcnt(0)")
    mm(FA[0], FA[1])
    k("s_waitcnt lgkmcnt(0)")
    mm(FA[1], FA[0])
    k("s_add_u32 s35, s35, 1")
    k("s_cmp_lt_u32 s35, 2")
    k("s_cbranch_scc1 L_cv_loop")
    k.label("L_cv_done")
    stamp(k, 6)
    k("s_setprio 3")
    k("s_waitcnt lgkmcnt(0)")
    k("s_barrier")
    k("s_lshl_b32 s30, s14, 12")
    k("v_add_u32 v6, s30, v3")
    k("s_xor_b32 s31, s14, 1")
    k("s_lshl_b32 s31, s31, 12")
    k("v_add_u32 v11, s31, v3")
    k("s_cmp_eq_u32 s28, 0")
    k("s_cbranch_scc0 L_cv_w1")
    for q in range(4): k(f"ds_write_b128 v6, {vr(ACC + 16 + 4*q, 4)} offset:{1024*q}")
    k("s_branch L_cv_w2")
    k.label("L_cv_w1")
    for q in range(4): k(f"ds_write_b128 v6, {vr(ACC + 4*q, 4)} offset:{1024*q}")
    for r in range(16): k(f"v_mov_b32 v{ACC + r}, v{ACC + 16 + r}")
    k.label("L_cv_w2")
    k("v_and_b32 v8, 15, v1")
    k("v_lshlrev_b32 v8, 5, v8")
    k("v_lshrrev_b32 v9, 4, v1")
    k("v_lshl_add_u32 v8, v9, 3, v8")
    k("s_lshl_b32 s30, s28, 11")
    k("s_add_u32 s30, s30, s34")
    k("s_add_u32 s30, s30, 512")
    k("v_add_u32 v9, s30, v8")
    for q in range(4): k(f"ds_read_b64 {vr(80 + 2*q, 2)}, v9 offset:{512*q}")
    k("v_lshlrev_b32 v7, 16, v7")
    k("s_waitcnt lgkmcnt(0)")
    k("s_barrier")
    stamp(k, 7)
    for q in range(4): k(f"ds_read_b128 {vr(64 + 4*q, 4)}, v11 offset:{1024*q}")
    k("s_waitcnt lgkmcnt(0)")
    with k.sched():
        for r in range(16): k(f"v_add_f32 v{ACC + r}, v{ACC + r}, v{64 + r}")
        for q in range(4):
            for hh in range(2):
                src = 80 + 2*q + hh
                t = 96 + 4*q + 2*hh
                c0 = ACC + 4*q + 2*hh
                k(f"v_lshlrev_b32 v{t}, 16, v{src}")
                k(f"v_and_b32 v{t+1}, 0xffff0000, v{src}")
                if "emu" not in EXP:
                    k(f"v_fmac_f32 v{c0}, v{t}, v7")
                    k(f"v_fmac_f32 v{c0+1}, v{t+1}, v7")
                else:
                    k(f"v_mul_f32 v{t}, v{t}, v7")
                    k(f"v_mul_f32 v{t+1}, v{t+1}, v7")
                    k(f"v_cvt_pk_bf16_f32 v{src}, v{t}, v{t+1}")
                    k(f"v_cvt_pk_bf16_f32 v{120 + 2*q + hh}, v{c0}, v{c0+1}")
                    k(f"v_lshlrev_b32 v{t}, 16, v{src}")
                    k(f"v_and_b32 v{t+1}, 0xffff0000, v{src}")
                    k(f"v_lshlrev_b32 v{c0}, 16, v{120 + 2*q + hh}")
                    k(f"v_and_b32 v{c0+1}, 0xffff0000, v{120 + 2*q + hh}")
                    k(f"v_add_f32 v{c0}, v{c0}, v{t}")
                    k(f"v_add_f32 v{c0+1}, v{c0+1}, v{t+1}")
        for j in range(8): k(f"v_cvt_pk_bf16_f32 v{112 + j}, v{ACC + 2*j}, v{ACC + 2*j + 1}")
    k("s_lshl_b32 s30, s14, 11")
    k("s_add_u32 s30, s30, 16384")
    k("v_add_u32 v9, s30, v8")
    for q in range(4): k(f"ds_write_b64 v9, {vr(112 + 2*q, 2)} offset:{512*q}")
    k("v_add_u32 v9, s30, v3")
    k("s_waitcnt lgkmcnt(0)")
    k("ds_read_b128 v[72:75], v9")
    k("ds_read_b128 v[76:79], v9 offset:1024")
    k("s_lshl_b32 s30, s29, 12")
    k("s_lshl_b32 s31, s28, 11")
    k("s_add_u32 s30, s30, s31")
    k("s_waitcnt lgkmcnt(0)")
    k("buffer_store_dwordx4 v[72:75], v3, s[24:27], s30 offen sc1")
    k("buffer_store_dwordx4 v[76:79], v3, s[24:27], s30 offen offset:1024 sc1")
    stamp(k, 9)
    k("s_lshl_b32 s30, s47, 4")
    signal(k, 36, 30, 48, 90, FL_Z)
    stamp(k, 10)
    stamp_flush(k, 0, 8)
    k("s_endpgm")

def kd(name, vgpr, sgpr=102):
    return f""".amdhsa_kernel {name}
  .amdhsa_next_free_vgpr {vgpr}
  .amdhsa_next_free_sgpr {sgpr}
  .amdhsa_accum_offset {vgpr}
  .amdhsa_group_segment_fixed_size 0
  .amdhsa_kernarg_size 120
  .amdhsa_user_sgpr_count 2
  .amdhsa_user_sgpr_kernarg_segment_ptr 1
  .amdhsa_system_sgpr_workgroup_id_x 1
.end_amdhsa_kernel
"""

def header(launches):
    h = open("cdna_kernels/" + NAME + ".s.ref").read().split("; Override")[0]
    for (kn, g, b, lds) in launches:
        if len(launches) == 1 and PLAIN: h += f"; @launch grid=({g},1,1) block=({b},1,1) lds={lds}\n"
        else: h += f"; @launch kernel={kn} grid=({g},1,1) block=({b},1,1) lds={lds}\n"
    h += """; One persistent launch, 512 co-resident workgroups (2 per CU), roles chosen by workgroup id:
"""
    h += '.amdgcn_target "amdgcn-amd-amdhsa--gfx950"\n.text\n'
    return h

def kern_text(name, k):
    return f".globl {name}\n.p2align 8\n.type {name},@function\n{name}:\n" + k.text()

def pretouch(k):
    k("s_load_dwordx2 s[20:21], s[0:1], 112")
    k("s_load_dwordx2 s[22:23], s[0:1], 96")
    k("v_and_b32 v250, 63, v0")
    k("v_lshlrev_b32 v251, 19, v250")
    k("v_lshlrev_b32 v252, 15, v250")
    k("s_waitcnt lgkmcnt(0)")
    k("s_mov_b32 s16, s20\n s_mov_b32 s17, s21\n s_mov_b32 s18, 0x1200000\n s_mov_b32 s19, 0x00020000")
    k("buffer_load_dword v253, v251, s[16:19], 0 offen")
    k("s_mov_b32 s16, s22\n s_mov_b32 s17, s23\n s_mov_b32 s18, 1835008\n s_mov_b32 s19, 0x00020000")
    k("buffer_load_dword v254, v252, s[16:19], 0 offen")

def main(path):
    K1 = NAME + "_kernel"
    k1 = Kern()
    if "touch" in EXP:
        k1("s_cmp_lt_u32 s2, 224")
        k1("s_cbranch_scc1 L_notouch")
        k1("s_cmp_ge_u32 s2, 256")
        k1("s_cbranch_scc1 L_notouch")
        pretouch(k1)
        k1("s_waitcnt vmcnt(0)")
        k1.label("L_notouch")
    k1("s_cmp_lt_u32 s2, 224")
    k1("s_cbranch_scc1 L_g1")
    k1("s_cmp_lt_u32 s2, 256")
    k1("s_cbranch_scc1 L_lna")
    k1("s_cmp_lt_u32 s2, 480")
    k1("s_cbranch_scc1 L_s")
    k1("s_cmp_lt_u32 s2, 512")
    k1("s_cbranch_scc1 L_lnb")
    k1("s_endpgm")
    k1.label("L_lna")
    k1("s_sub_u32 s3, s2, 224")
    k1("s_branch L_ln")
    k1.label("L_lnb")
    k1("s_sub_u32 s3, s2, 448")
    k1.label("L_ln")
    role_ln(k1)
    k1.label("L_g1")
    k1("s_mov_b32 s3, s2")
    role_g1(k1)
    k1.label("L_s")
    k1("s_sub_u32 s3, s2, 256")
    if "noS" in EXP: k1("s_endpgm")
    role_s(k1)
    launches = [(K1, 512, 256, 81920)]
    txt = header(launches)
    txt += kern_text(K1, k1)
    txt += '.section .rodata,"a"\n.p2align 6\n' + kd(K1, 256)
    open(path, "w").write(txt)

if __name__ == "__main__":
    for a in list(sys.argv):
        if a.startswith("--exp="):
            EXP = a[6:].split(","); sys.argv.remove(a)
    for a in list(sys.argv):
        if a.startswith("--prio="):
            PRIO = [int(x) for x in a[7:].split(",")]; sys.argv.remove(a)
    for a in list(sys.argv):
        if a.startswith("--ne="):
            NEPRE = int(a[5:]); sys.argv.remove(a)
    if "--plain" in sys.argv:
        PLAIN = True; sys.argv.remove("--plain")
    if "--stamp" in sys.argv:
        STAMP = True; sys.argv.remove("--stamp")
    main(sys.argv[1] if len(sys.argv) > 1 else "cdna_kernels/" + NAME + ".s")
```

```python
import sys
from asmlib import Kern

NAME = "parallel_sum__ssm_conv_s4__dense_activation_relu__prompt"

XT_OFF = 0x000000
RS_OFF = 0x1C0000
HF_OFF = 0x400000
W2F_OFF = 0xC00000
ZT_OFF = 0xE00000
FL_OFF = 0x1000000
TS_OFF = 0x1100000
XT_SZ = 64 * 448 * 64
RS_SZ = 2048 * 4
HF_SZ = 64 * 112 * 1024
W2F_SZ = 112 * 14 * 1024
ZT_SZ = 448 * 4096
FL_SZ = 0x10000
FL_LN = 0
FL_W2 = 4096
FL_H = 5120
FL_Z = 9216

STAMP = False
NEPRE = 3
PRIO = [3, 1, 0, 2]
PLAIN = False
EXP = []
SPIN_LIMIT = 200000

def srd(k, d, lo, hi, size, off=0):
    if off:
        k(f"s_add_u32 s{d}, s{lo}, {off}")
        k(f"s_addc_u32 s{d+1}, s{hi}, 0")
    else:
        k(f"s_mov_b32 s{d}, s{lo}")
        k(f"s_mov_b32 s{d+1}, s{hi}")
    k(f"s_mov_b32 s{d+2}, {size}")
    k(f"s_mov_b32 s{d+3}, 0x00020000")

def vr(a, n=1):
    return f"v{a}" if n == 1 else f"v[{a}:{a+n-1}]"

def stamp(k, i):
    if not STAMP: return
    if i == 8: k("s_memrealtime s[96:97]")
    else:
        j = i if i < 8 else i - 1
        k(f"s_memtime s[{72+2*j}:{73+2*j}]")

def stamp_flush(k, kern_idx, n):
    if not STAMP: return
    k("s_memrealtime s[98:99]")
    k("s_waitcnt lgkmcnt(0)")
    k("s_load_dwordx2 s[68:69], s[0:1], 112")
    k("s_waitcnt lgkmcnt(0)")
    k(f"s_add_u32 s64, s68, {TS_OFF + kern_idx * 0x10000}")
    k("s_addc_u32 s65, s69, 0")
    k("s_mov_b32 s66, 0x10000")
    k("s_mov_b32 s67, 0x00020000")
    k("s_lshl_b32 s68, s2, 6")
    k("v_cmp_eq_u32 vcc, 0, v0")
    k("s_and_saveexec_b64 s[70:71], vcc")
    k("v_mov_b32 v1, s68")
    for i in range(12):
        k(f"v_mov_b32 v2, s{72+2*i}")
        k(f"buffer_store_dword v2, v1, s[64:67], 0 offen offset:{4*i}")
    k("s_getreg_b32 s69, hwreg(HW_REG_HW_ID)")
    k("v_mov_b32 v2, s69")
    k("buffer_store_dword v2, v1, s[64:67], 0 offen offset:48")
    k("s_getreg_b32 s69, hwreg(HW_REG_XCC_ID)")
    k("v_mov_b32 v2, s69")
    k("buffer_store_dword v2, v1, s[64:67], 0 offen offset:52")
    k("v_mov_b32 v2, s96")
    k("buffer_store_dword v2, v1, s[64:67], 0 offen offset:56")
    k("v_mov_b32 v2, s98")
    k("buffer_store_dword v2, v1, s[64:67], 0 offen offset:60")
    k("s_mov_b64 exec, s[70:71]")

_uid = [0]
def uid(p):
    _uid[0] += 1
    return f"L_{p}{_uid[0]}"

def get_nonce(k, dbg_srd, sdst, vtmp):
    L = uid("nonce"); E = uid("nonce_e")
    k(f"v_mov_b32 v{vtmp}, 0")
    k(f"s_mov_b32 s{sdst+1}, 0")
    k.label(L)
    k(f"buffer_load_dword v{vtmp+1}, v{vtmp}, s[{dbg_srd}:{dbg_srd+3}], 0 offen sc1")
    k("s_waitcnt vmcnt(0)")
    k(f"v_readfirstlane_b32 s{sdst}, v{vtmp+1}")
    k("s_nop 3")
    k(f"s_cmp_lg_u32 s{sdst}, 0")
    k(f"s_cbranch_scc1 {E}")
    k(f"s_add_u32 s{sdst+1}, s{sdst+1}, 1")
    k(f"s_cmp_lt_u32 s{sdst+1}, {SPIN_LIMIT}")
    k("s_sleep 1")
    k(f"s_cbranch_scc1 {L}")
    k.label(E)

def wait_flags(k, fl_srd, base_off, stride_shift, nflags, snonce, vtmp, scnt, wave0=None):
    L = uid("wf"); E = uid("wf_e")
    if wave0 is not None:
        k(f"s_cmp_lg_u32 s{wave0}, 0")
        k(f"s_cbranch_scc1 {E}")
    k(f"v_and_b32 v{vtmp}, 63, v0")
    k(f"v_min_u32 v{vtmp}, {nflags - 1}, v{vtmp}")
    k(f"v_lshlrev_b32 v{vtmp}, {stride_shift}, v{vtmp}")
    k(f"v_add_u32 v{vtmp}, {base_off}, v{vtmp}") if isinstance(base_off, int) else k(f"v_add_u32 v{vtmp}, s{base_off[0]}, v{vtmp}")
    k(f"s_mov_b32 s{scnt}, 0")
    k.label(L)
    k(f"buffer_load_dword v{vtmp+1}, v{vtmp}, s[{fl_srd}:{fl_srd+3}], 0 offen sc1")
    k("s_waitcnt vmcnt(0)")
    k(f"v_cmp_ne_u32 vcc, s{snonce}, v{vtmp+1}")
    k("s_nop 4")
    k(f"s_cbranch_vccz {E}")
    k(f"s_add_u32 s{scnt}, s{scnt}, 1")
    k(f"s_cmp_lt_u32 s{scnt}, {SPIN_LIMIT}")
    k("s_sleep 2")
    k(f"s_cbranch_scc1 {L}")
    k.label(E)

def signal(k, fl_srd, soff, snonce, vtmp, imm=0):
    k("s_waitcnt vmcnt(0)")
    k("s_barrier")
    k("v_cmp_eq_u32 vcc, 0, v0")
    k("s_and_saveexec_b64 s[44:45], vcc")
    k(f"s_add_u32 s{soff}, s{soff}, {imm}")
    k(f"v_mov_b32 v{vtmp}, s{soff}")
    k(f"v_mov_b32 v{vtmp+1}, s{snonce}")
    k(f"buffer_store_dword v{vtmp+1}, v{vtmp}, s[{fl_srd}:{fl_srd+3}], 0 offen sc1")
    k("s_mov_b64 exec, s[44:45]")

def wait_flags2(k, fl_srd, sets, snonce, vtmp, scnt, wave0):
    L = uid("wf"); E = uid("wf_e")
    k(f"s_cmp_lg_u32 s{wave0}, 0")
    k(f"s_cbranch_scc1 {E}")
    n = len(sets)
    for i, (base_off, nflags) in enumerate(sets):
        v = vtmp + 2*i
        k(f"v_and_b32 v{v}, 63, v0")
        k(f"v_min_u32 v{v}, {nflags - 1}, v{v}")
        k(f"v_lshlrev_b32 v{v}, 4, v{v}")
        k(f"v_add_u32 v{v}, {base_off}, v{v}") if isinstance(base_off, int) else k(f"v_add_u32 v{v}, s{base_off[0]}, v{v}")
    k(f"s_mov_b32 s{scnt}, 0")
    k.label(L)
    for i in range(n):
        k(f"buffer_load_dword v{vtmp+2*i+1}, v{vtmp+2*i}, s[{fl_srd}:{fl_srd+3}], 0 offen sc1")
    k("s_waitcnt vmcnt(0)")
    for i in range(1, n):
        k(f"v_xor_b32 v{vtmp+2*i+1}, s{snonce}, v{vtmp+2*i+1}")
    k(f"v_xor_b32 v{vtmp+1}, s{snonce}, v{vtmp+1}")
    for i in range(1, n):
        k(f"v_or_b32 v{vtmp+1}, v{vtmp+1}, v{vtmp+2*i+1}")
    k(f"v_cmp_ne_u32 vcc, 0, v{vtmp+1}")
    k("s_nop 4")
    k(f"s_cbranch_vccz {E}")
    k(f"s_add_u32 s{scnt}, s{scnt}, 1")
    k(f"s_cmp_lt_u32 s{scnt}, {SPIN_LIMIT}")
    k("s_sleep 1")
    k(f"s_cbranch_scc1 {L}")
    k.label(E)

def role_g1(k):
    stamp(k, 8); stamp(k, 0)
    k("s_load_dwordx2 s[4:5], s[0:1], 0")
    k(f"s_setprio {PRIO[0]}")
    k("s_load_dwordx2 s[6:7], s[0:1], 80")
    k("s_load_dwordx2 s[8:9], s[0:1], 112")
    k("s_load_dwordx2 s[50:51], s[0:1], 104")
    k("s_and_b32 s10, s3, 7")
    k("s_lshr_b32 s11, s3, 3")
    k("s_and_b32 s30, s11, 3")
    k("s_lshr_b32 s31, s11, 2")
    if "map81" in EXP:
        k("s_and_b32 s12, s11, 1\n s_lshl_b32 s13, s10, 1\n s_add_u32 s12, s12, s13")
        k("s_lshr_b32 s13, s11, 1")
        k("s_and_b32 s30, s11, 1\n s_lshl_b32 s30, s30, 1\n s_lshr_b32 s31, s11, 2")
    else:
        k("s_lshr_b32 s12, s10, 1")
        k("s_lshl_b32 s12, s12, 2")
        k("s_add_u32 s12, s12, s30")
        k("s_and_b32 s13, s10, 1")
        k("s_mul_i32 s13, s13, 7")
        k("s_add_u32 s13, s13, s31")
    k("s_mul_i32 s32, s30, 7\n s_add_u32 s32, s32, 1\n s_lshr_b32 s32, s32, 1")
    k("s_lshl_b32 s31, s31, 1\n s_add_u32 s45, s32, s31")
    k("s_cmp_ge_u32 s45, 14\n s_cselect_b32 s32, 14, 0\n s_sub_u32 s45, s45, s32")
    if "norot" in EXP: k("s_mov_b32 s45, 0")
    if "rot1" in EXP:
        k("s_and_b32 s45, s11, 3\n s_lshl_b32 s45, s45, 1\n s_lshr_b32 s32, s11, 2\n s_add_u32 s45, s45, s32")
    if "rot2" in EXP:
        k("s_and_b32 s45, s11, 1\n s_mul_i32 s45, s45, 7\n s_lshr_b32 s32, s11, 2\n s_add_u32 s45, s45, s32")
    k("v_and_b32 v1, 63, v0")
    k("v_lshrrev_b32 v2, 6, v0")
    k("v_readfirstlane_b32 s14, v2")
    k("s_and_b32 s15, s14, 1")
    k("s_lshr_b32 s28, s14, 1")
    k("s_lshl_b32 s29, s14, 11")
    VX0, VX1, VW0, VW1 = 4, 5, 6, 7
    with k.sched():
        k("s_lshl_b32 s30, s12, 7")
        k("s_lshl_b32 s31, s14, 5")
        k("s_add_u32 s30, s30, s31")
        k("v_lshrrev_b32 v3, 2, v1")
        k("v_add_u32 v3, s30, v3")
        k("v_mul_u32_u24 v3, 896, v3")
        k("v_lshrrev_b32 v8, 4, v1")
        k("v_xor_b32 v9, v1, v8")
        k("v_and_b32 v9, 3, v9")
        k(f"v_lshl_add_u32 v{VX0}, v9, 4, v3")
        k(f"v_add_u32 v{VX1}, 14336, v{VX0}")
        k("s_lshl_b32 s33, s14, 3")
        k("v_add_u32 v10, s33, v8")
        k("v_mul_u32_u24 v10, 3584, v10")
        k("v_lshlrev_b32 v11, 2, v8")
        k("v_xor_b32 v11, v1, v11")
        k("v_and_b32 v11, 15, v11")
        k("v_lshl_add_u32 v10, v11, 4, v10")
        k("s_lshl_b32 s34, s13, 8")
        k(f"v_add_u32 v{VW0}, s34, v10")
        k(f"v_add_u32 v{VW1}, 14336, v{VW0}")
    k("s_memrealtime s[46:47]")
    k("s_waitcnt lgkmcnt(0)")
    srd(k, 16, 4, 5, 2048 * 896)
    srd(k, 20, 6, 7, 448 * 3584)
    srd(k, 24, 8, 9, HF_SZ, HF_OFF)
    srd(k, 52, 50, 51, 256)
    srd(k, 60, 8, 9, FL_SZ, FL_OFF)
    k("s_cmp_lg_u32 s3, 0")
    k("s_cbranch_scc1 L_g1_nn")
    k("s_or_b32 s46, s46, 1")
    k("v_cmp_eq_u32 vcc, 0, v0")
    k("s_and_saveexec_b64 s[30:31], vcc")
    k("v_mov_b32 v100, 0")
    k("v_mov_b32 v101, s46")
    k("buffer_store_dword v101, v100, s[52:55], 0 offen sc1")
    k("s_mov_b64 exec, s[30:31]")
    k("s_waitcnt vmcnt(0)")
    k.label("L_g1_nn")
    k("v_mov_b32 v176, 0")
    def set_stage():
        k("s_mul_i32 s40, s45, 114688")
        k("s_lshl_b32 s41, s45, 6")
    def adv_stage():
        k("s_add_u32 s45, s45, 1\n s_cmp_eq_u32 s45, 14\n s_cselect_b32 s45, 0, s45")
    def dma_w(j, slot):
        k(f"s_add_u32 m0, s29, {16384*slot + 1024*j}")
        k(f"buffer_load_dwordx4 v{[VW0, VW1][j]}, s[20:23], s40 offen lds")
    def dma_x(j, slot):
        k(f"s_add_u32 m0, s29, {16384*slot + 8192 + 1024*j}")
        k(f"buffer_load_dwordx4 v{[VX0, VX1][j]}, s[16:19], s41 offen lds")
    for s in range(3):
        set_stage(); dma_w(0, s); dma_w(1, s); dma_x(0, s); dma_x(1, s); adv_stage()
    set_stage(); dma_w(0, 3); dma_w(1, 3)
    AA = [10, 11]; BB0 = [12, 13]; BB1 = [14, 15]
    AAh = [16, 17]; BB0h = [18, 19]; BB1h = [20, 21]
    with k.sched():
        k("v_lshrrev_b32 v3, 5, v1")
        k("v_bfe_u32 v8, v1, 2, 2")
        k("v_lshl_add_u32 v3, v3, 3, v8")
        k("v_lshlrev_b32 v3, 8, v3")
        k("v_bfe_u32 v9, v1, 4, 1")
        k("v_lshlrev_b32 v9, 1, v9")
        k("v_bfe_u32 v22, v1, 1, 1")
        k("v_add_u32 v9, v9, v22")
        k("v_lshl_add_u32 v3, v9, 4, v3")
        k("v_and_b32 v22, 1, v1")
        k("v_lshl_add_u32 v3, v22, 3, v3")
        for ai in range(2):
            k(f"s_xor_b32 s{30+ai}, s28, {ai}")
            k(f"s_lshl_b32 s{32+ai}, s15, 1")
            k(f"s_add_u32 s{30+ai}, s{30+ai}, s{32+ai}")
            k(f"v_xor_b32 v{24+ai}, s{30+ai}, v8")
            k(f"v_lshl_add_u32 v{AA[ai]}, v{24+ai}, 6, v3")
            k(f"v_add_u32 v{AAh[ai]}, 65536, v{AA[ai]}")
        k("v_and_b32 v26, 31, v1")
        k("v_lshrrev_b32 v27, 5, v1")
        k("v_xor_b32 v27, v27, v8")
        k("v_lshlrev_b32 v27, 4, v27")
        k("v_lshl_add_u32 v26, v26, 6, v27")
        for bi in range(2):
            k(f"s_xor_b32 s{34+bi}, s15, {bi}")
            k(f"s_lshl_b32 s{34+bi}, s{34+bi}, 11")
            k(f"s_lshl_b32 s{36+bi}, s28, 12")
            k(f"s_add_u32 s{34+bi}, s{34+bi}, s{36+bi}")
            k(f"s_add_u32 s{34+bi}, s{34+bi}, 8192")
            k(f"v_add_u32 v{BB0[bi]}, s{34+bi}, v26")
            k(f"v_xor_b32 v{BB1[bi]}, 32, v{BB0[bi]}")
            k(f"v_add_u32 v{BB0h[bi]}, 65536, v{BB0[bi]}")
            k(f"v_add_u32 v{BB1h[bi]}, 65536, v{BB1[bi]}")
    SEL = 160; SW = 164; SX = 168
    k("v_and_b32 v22, 15, v1")
    k("v_bfe_u32 v23, v1, 4, 1")
    k("v_cmp_eq_u32 vcc, v22, v23")
    k("v_mov_b32 v22, 0x3f803f80")
    k(f"v_cndmask_b32 v{SEL}, 0, v22, vcc")
    for i in range(1, 4): k(f"v_mov_b32 v{SEL + i}, v{SEL}")
    for i in range(4):
        k(f"v_mov_b32 v{SW + i}, 0")
        k(f"v_mov_b32 v{SX + i}, 0")
    FR = [24, 40]
    ACC = 56
    for i in range(64): k(f"v_mov_b32 v{ACC + i}, 0")
    def rdA(slot, kap, fs, ai):
        if "nords" in EXP: return
        hi = slot >= 4; sb = 0 if hi else slot * 16384
        a_ = (AAh if hi else AA)[ai]
        k(f"ds_read_b64_tr_b16 {vr(fs + 4*ai, 2)}, v{a_} offset:{sb + kap*4096}")
        k(f"ds_read_b64_tr_b16 {vr(fs + 4*ai + 2, 2)}, v{a_} offset:{sb + kap*4096 + 1024}")
    def rdB(slot, kap, fs, bi):
        if "nords" in EXP: return
        hi = slot >= 4; sb = 0 if hi else slot * 16384
        b_ = ((BB1h if hi else BB1) if kap else (BB0h if hi else BB0))[bi]
        k(f"ds_read_b128 {vr(fs + 8 + 4*bi, 4)}, v{b_} offset:{sb}")
    def mf(fs, ai, bi):
        if "nomf" in EXP: return
        c = ACC + (2*ai + bi) * 16
        k(f"v_mfma_f32_32x32x16_bf16 {vr(c,16)}, {vr(fs + 4*ai,4)}, {vr(fs + 8 + 4*bi,4)}, {vr(c,16)}")
    def sums(fs, which):
        if "nomf" in EXP: return
        src = fs if which == 0 else fs + 8
        dst = SW if which == 0 else SX
        k(f"v_mfma_f32_16x16x32_bf16 {vr(dst,4)}, {vr(src,4)}, {vr(SEL,4)}, {vr(dst,4)}")
    def stage_body(slot, cd, ab, wait, last=False):
        nslot = (slot + 1) % 5
        k("s_waitcnt lgkmcnt(0)")
        mf(FR[0], 0, 0)
        rdA(slot, 1, FR[1], 0); rdB(slot, 1, FR[1], 0)
        mf(FR[0], 0, 1)
        rdA(slot, 1, FR[1], 1); rdB(slot, 1, FR[1], 1)
        sums(FR[0], 0)
        if cd: dma_x(0, (slot + 3) % 5)
        mf(FR[0], 1, 0)
        if cd: dma_x(1, (slot + 3) % 5)
        sums(FR[0], 1)
        if cd: adv_stage(); set_stage()
        mf(FR[0], 1, 1)
        if not last:
            k(f"s_waitcnt vmcnt({wait}) lgkmcnt(0)")
            k("s_barrier")
        else:
            k("s_waitcnt lgkmcnt(0)")
        mf(FR[1], 0, 0)
        if not last: rdA(nslot, 0, FR[0], 0); rdB(nslot, 0, FR[0], 0)
        mf(FR[1], 0, 1)
        if not last: rdA(nslot, 0, FR[0], 1); rdB(nslot, 0, FR[0], 1)
        sums(FR[1], 0)
        if ab: dma_w(0, (slot + 4) % 5)
        mf(FR[1], 1, 0)
        if ab: dma_w(1, (slot + 4) % 5)
        sums(FR[1], 1)
        mf(FR[1], 1, 1)
    with k.sched():
        k("v_and_b32 v120, 1, v1")
        k("v_lshlrev_b32 v120, 6, v120")
        k("v_lshrrev_b32 v121, 4, v1")
        k("v_lshl_add_u32 v122, v121, 4, v120")
        k("s_lshl_b32 s30, s28, 1\n s_add_u32 s30, s30, s15\n s_lshl_b32 s30, s30, 7")
        k("s_lshl_b32 s31, s15, 1\n s_add_u32 s31, s31, s28\n s_lshl_b32 s31, s31, 7\n s_add_u32 s31, s31, 512")
        k("v_add_u32 v120, s30, v122")
        k("v_add_u32 v121, s31, v122")
        k("v_and_b32 v126, 31, v1")
        k("v_lshlrev_b32 v126, 2, v126")
        for bi in range(2):
            k(f"s_xor_b32 s32, s15, {bi}\n s_lshl_b32 s33, s28, 1\n s_add_u32 s32, s32, s33\n s_lshl_b32 s32, s32, 7")
            k(f"v_add_u32 v{122+bi}, s32, v126")
        for ai in range(2):
            k(f"s_xor_b32 s34, s28, {ai}\n s_lshl_b32 s35, s15, 1\n s_add_u32 s34, s34, s35\n s_lshl_b32 s34, s34, 7\n s_add_u32 s34, s34, 512")
            k(f"v_add_u32 v{124+ai}, s34, v126")
    for bi in range(2):
        k(f"s_xor_b32 s{36+bi}, s15, {bi}\n s_lshl_b32 s31, s28, 1\n s_add_u32 s{36+bi}, s{36+bi}, s31\n s_lshl_b32 s31, s12, 2\n s_add_u32 s{36+bi}, s{36+bi}, s31\n s_mul_i32 s{36+bi}, s{36+bi}, {112*1024}")
    for ai in range(2):
        k(f"s_xor_b32 s{38+ai}, s28, {ai}\n s_lshl_b32 s31, s15, 1\n s_add_u32 s{38+ai}, s{38+ai}, s31\n s_lshl_b32 s31, s13, 2\n s_add_u32 s{38+ai}, s{38+ai}, s31\n s_lshl_b32 s{38+ai}, s{38+ai}, 11")
    for i in range(16): k(f"v_mov_b32 v{128 + i}, 0")
    k("v_cmp_gt_u32 vcc, 32, v1")
    k("s_mov_b64 s[42:43], vcc")
    k("v_and_b32 v126, 15, v1")
    k("v_cmp_gt_u32 vcc, 2, v126")
    k("s_mov_b64 s[50:51], vcc")
    k("v_min_u32 v126, 55, v1")
    k("v_lshlrev_b32 v126, 4, v126")
    k(f"v_add_u32 v126, {FL_W2}, v126")
    g2_setup(k)
    k("s_mov_b32 s44, 0")
    if "flow" in EXP: k("s_setprio 3")
    stamp(k, 1)
    k("s_waitcnt vmcnt(10)")
    k("s_barrier")
    stamp(k, 2)
    for ai in range(2): rdA(0, 0, FR[0], ai)
    for bi in range(2): rdB(0, 0, FR[0], bi)
    k.label("L_g1_loop")
    for sl in range(5): stage_body(sl, True, True, 8)
    k("s_add_u32 s44, s44, 1")
    k("s_cmp_lt_u32 s44, 2")
    k("s_cbranch_scc1 L_g1_loop")
    stage_body(0, True, False, 8)
    stage_body(1, False, False, 4)
    k("buffer_load_dword v177, v176, s[52:55], 0 offen sc1")
    stage_body(2, False, False, 0)
    stage_body(3, False, False, 0, last=True)
    stamp(k, 3)
    k("buffer_load_dword v127, v126, s[60:63], 0 offen sc1")
    k("s_nop 4")
    for r in range(4): k(f"v_mul_f32 v{SX + r}, 0x3b124925, v{SX + r}")
    k(f"v_cvt_pk_bf16_f32 v24, v{SX}, v{SX+1}")
    k(f"v_cvt_pk_bf16_f32 v25, v{SX+2}, v{SX+3}")
    k(f"v_lshlrev_b32 v{SX}, 16, v24")
    k(f"v_and_b32 v{SX+1}, 0xffff0000, v24")
    k(f"v_lshlrev_b32 v{SX+2}, 16, v25")
    k(f"v_and_b32 v{SX+3}, 0xffff0000, v25")
    k("s_mov_b64 exec, s[50:51]")
    k(f"ds_write_b128 v120, {vr(SX,4)}")
    k(f"ds_write_b128 v121, {vr(SW,4)}")
    k("s_mov_b64 exec, -1")
    k("v_readfirstlane_b32 s48, v177")
    k("s_nop 3")
    k("s_cmp_lg_u32 s48, 0")
    k("s_cbranch_scc1 L_g1_haven")
    get_nonce(k, 52, 48, 48)
    k.label("L_g1_haven")
    srd(k, 52, 8, 9, W2F_SZ, W2F_OFF)
    k("s_waitcnt lgkmcnt(0)")
    k("s_barrier")
    for bi in range(2): k(f"ds_read_b32 v{40+bi}, v{122+bi}")
    for ai in range(2): k(f"ds_read_b32 v{42+ai}, v{124+ai}")
    k("v_lshlrev_b32 v3, 4, v1")
    k("s_waitcnt lgkmcnt(0)")
    with k.sched():
        for bi in range(2):
            k(f"v_cvt_pk_bf16_f32 v{44+bi}, -v{40+bi}, -v{40+bi}")
            k(f"v_cndmask_b32 v{136 + 4*bi}, 0, v{44+bi}, s[42:43]")
        for ai in range(2):
            k(f"v_cvt_pk_bf16_f32 v{46+ai}, v{42+ai}, v{42+ai}")
            k(f"v_lshlrev_b32 v{46+ai}, 16, v{46+ai}")
            k(f"v_sub_f32 v{46+ai}, v{42+ai}, v{46+ai}")
            k(f"v_cvt_pk_bf16_f32 v{46+ai}, v{42+ai}, v{46+ai}")
            k(f"v_cndmask_b32 v{128 + 4*ai}, 0, v{46+ai}, s[42:43]")
    for ai in range(2):
        for bi in range(2):
            c = ACC + (2*ai + bi) * 16
            k(f"v_mfma_f32_32x32x16_bf16 {vr(c,16)}, {vr(128 + 4*ai,4)}, {vr(136 + 4*bi,4)}, {vr(c,16)}")
    for ai in range(2):
        for bi in range(2):
            c = ACC + (2*ai + bi) * 16
            t = 24 + 8*(2*ai + bi)
            for j in range(8):
                k(f"v_cvt_pk_bf16_f32 v{t + j}, v{c + 2*j}, v{c + 2*j + 1}")
            for j in range(8):
                k(f"v_pk_max_i16 v{t + j}, v{t + j}, 0")
            hf = " sc1"
            k(f"s_add_u32 s30, s{36+bi}, s{38+ai}")
            k(f"buffer_store_dwordx4 {vr(t,4)}, v3, s[24:27], s30 offen{hf}")
            k(f"buffer_store_dwordx4 {vr(t+4,4)}, v3, s[24:27], s30 offen offset:1024{hf}")
    stamp(k, 4)
    role_g2(k)

def g2_setup(k):
    k("s_load_dwordx2 s[6:7], s[0:1], 96")
    k("s_and_b32 s10, s3, 7")
    k("s_lshr_b32 s11, s3, 3")
    k("s_and_b32 s30, s11, 3")
    k("s_lshl_b32 s65, s10, 2")
    k("s_add_u32 s64, s30, s65")
    k("s_lshr_b32 s65, s11, 2")
    k("s_and_b32 s66, s14, 1")
    k("s_lshr_b32 s67, s14, 1")
    k("s_mul_i32 s30, s14, 28")
    if "rotb" in EXP:
        k("s_lshl_b32 s10, s65, 2")
        k("s_mov_b32 s11, s10")
        k("s_add_u32 s30, s30, s10")
    k("s_mul_i32 s31, s30, 14\n s_lshl_b32 s32, s65, 1\n s_add_u32 s31, s31, s32")
    k("s_add_u32 s68, s31, s66\n s_lshl_b32 s68, s68, 10")
    k("s_xor_b32 s32, s66, 1\n s_add_u32 s69, s31, s32\n s_lshl_b32 s69, s69, 10")
    k("s_lshl_b32 s32, s64, 1")
    k("s_add_u32 s33, s32, s67\n s_mul_i32 s33, s33, 112\n s_add_u32 s70, s33, s30\n s_lshl_b32 s70, s70, 10")
    k("s_xor_b32 s33, s67, 1\n s_add_u32 s33, s33, s32\n s_mul_i32 s33, s33, 112\n s_add_u32 s71, s33, s30\n s_lshl_b32 s71, s71, 10")

def role_g2(k):
    ACC = 16; BR = 80; NBR = 6; NK = 28; NPRE = 11; NLDS = 8
    AP = 128; AR = 216
    RED = 0; ZL = 49152; XL = 65536 + 0; OL = 73728
    ALDS = 0
    FIRST_LDS = NPRE + 4
    k("s_waitcnt vmcnt(8)")
    k("v_cmp_ne_u32 vcc, s48, v127")
    k("s_nop 4")
    k("s_cbranch_vccz L_g2_w2ok")
    k("s_mov_b32 s44, 0")
    wait_flags2(k, 60, [(FL_W2, 56)], 48, 50, 49, 44)
    k.label("L_g2_w2ok")
    def aregs(j):
        if j < NPRE: return AP + 8*j
        return AR + 8*((j - NPRE) % 4)
    def advA_ins():
        if "rotb" not in EXP: return ["s_add_u32 s68, s68, 14336", "s_add_u32 s69, s69, 14336"]
        return ["s_add_u32 s10, s10, 1", "s_cmp_eq_u32 s10, 28", f"s_cselect_b32 s30, {28*14336}, 0", "s_cselect_b32 s10, 0, s10", "s_sub_u32 s30, 14336, s30", "s_add_u32 s68, s68, s30", "s_add_u32 s69, s69, s30"]
    def advB_ins():
        if "rotb" not in EXP: return ["s_add_u32 s70, s70, 1024", "s_add_u32 s71, s71, 1024"]
        return ["s_add_u32 s11, s11, 1", "s_cmp_eq_u32 s11, 28", f"s_cselect_b32 s31, {28*1024}, 0", "s_cselect_b32 s11, 0, s11", "s_sub_u32 s31, 1024, s31", "s_add_u32 s70, s70, s31", "s_add_u32 s71, s71, s31"]
    def advA(n=1):
        for i in advA_ins(): k(i)
    def loadA(j):
        f = aregs(j)
        k(f"buffer_load_dwordx4 {vr(f,4)}, v3, s[52:55], s68 offen sc1")
        k(f"buffer_load_dwordx4 {vr(f+4,4)}, v3, s[52:55], s69 offen sc1")
        advA()
    def loadA_lds(j):
        o = (j - FIRST_LDS) * 2048
        k(f"s_add_u32 m0, s34, {ALDS + o}")
        k(f"buffer_load_dwordx4 v3, s[52:55], s68 offen sc1 lds")
        k(f"s_add_u32 m0, s34, {ALDS + o + 1024}")
        k(f"buffer_load_dwordx4 v3, s[52:55], s69 offen sc1 lds")
        advA()
    def loadB(j):
        f = BR + 8*(j % NBR)
        k(f"buffer_load_dwordx4 {vr(f,4)}, v3, s[24:27], s70 offen sc1")
        k(f"buffer_load_dwordx4 {vr(f+4,4)}, v3, s[24:27], s71 offen sc1")
        for i in advB_ins(): k(i)
    NE = NEPRE
    for j in range(NE): loadA(j)
    npre = 2*NE
    k("s_waitcnt vmcnt(0)")
    k("s_barrier")
    k("s_lshl_b32 s30, s12, 8\n s_lshl_b32 s31, s13, 4\n s_add_u32 s30, s30, s31\n s_add_u32 s30, s30, %d" % FL_H)
    k("v_cmp_eq_u32 vcc, 0, v0")
    k("s_and_saveexec_b64 s[44:45], vcc")
    k("v_mov_b32 v40, s30")
    k("v_mov_b32 v41, s48")
    k("buffer_store_dword v41, v40, s[60:63], 0 offen sc1")
    k("s_mov_b64 exec, s[44:45]")
    stamp(k, 5)
    k("s_setprio %d" % PRIO[1])
    for j in range(NE, FIRST_LDS): loadA(j)
    k("s_lshl_b32 s34, s14, 14")
    srd(k, 16, 4, 5, 2048 * 896)
    srd(k, 36, 8, 9, RS_SZ, RS_OFF)
    srd(k, 56, 8, 9, ZT_SZ, ZT_OFF)
    with k.sched():
        k("v_lshrrev_b32 v4, 3, v1")
        k("s_lshl_b32 s35, s14, 4")
        k("v_add_u32 v4, s35, v4")
        k("v_lshrrev_b32 v5, 1, v4")
        k("v_xor_b32 v5, v5, v1")
        k("v_and_b32 v5, 7, v5")
        k("s_lshl_b32 s35, s64, 6")
        k("v_add_u32 v6, s35, v4")
        k("v_mul_u32_u24 v6, 896, v6")
        k("v_lshl_add_u32 v6, v5, 4, v6")
        k("s_lshl_b32 s30, s65, 7")
        k("v_add_u32 v6, s30, v6")
        k("v_xor_b32 v7, 64, v6")
        k(f"v_add_u32 v7, {8*896}, v7")
        k("s_lshl_b32 s31, s65, 6")
        k("v_add_u32 v248, s31, v4")
        k("v_lshlrev_b32 v248, 12, v248")
        k("v_and_b32 v9, 7, v1")
        k("v_lshl_add_u32 v248, v9, 4, v248")
        k("s_lshl_b32 s32, s64, 7")
        k("v_add_u32 v248, s32, v248")
        k(f"v_add_u32 v249, {8*4096}, v248")
        k("v_and_b32 v250, 31, v1")
        k("s_lshl_b32 s33, s67, 5")
        k("s_add_u32 s33, s33, s35")
        k("v_add_u32 v250, s33, v250")
        k("v_lshlrev_b32 v250, 2, v250")
        k("v_and_b32 v251, 31, v1")
        k("v_lshlrev_b32 v251, 4, v251")
        k("s_lshl_b32 s44, s65, 9")
        k(f"s_add_u32 s44, s44, {FL_Z}")
        k("v_add_u32 v251, s44, v251")
        k("v_and_b32 v252, 7, v1")
        k("v_lshlrev_b32 v252, 4, v252")
        k("s_lshl_b32 s45, s64, 7")
        k("v_add_u32 v252, s45, v252")
        k("s_lshl_b32 s33, s14, 14")
        k("v_add_u32 v253, s33, v3")
    k("s_lshl_b32 s35, s14, 11")
    k(f"s_add_u32 m0, s35, {XL}")
    k("buffer_load_dwordx4 v6, s[16:19], 0 offen lds")
    k(f"s_add_u32 m0, s35, {XL + 1024}")
    k("buffer_load_dwordx4 v7, s[16:19], 0 offen lds")
    with k.sched():
        k("v_lshrrev_b32 v5, 5, v1")
        k("v_bfe_u32 v6, v1, 2, 2")
        k("v_lshl_add_u32 v5, v5, 2, v6")
        k("v_lshlrev_b32 v5, 7, v5")
        k("v_bfe_u32 v6, v1, 4, 1")
        k("v_lshl_add_u32 v5, v6, 5, v5")
        k("v_and_b32 v7, 3, v1")
        k("v_lshl_add_u32 v5, v7, 3, v5")
        k("s_lshl_b32 s30, s66, 15\n s_lshl_b32 s31, s67, 6\n s_add_u32 s30, s30, s31\n s_add_u32 s30, s30, 12288")
        k("v_add_u32 v5, s30, v5")
        k("v_and_b32 v4, 31, v1")
        k("s_lshl_b32 s32, s67, 5")
        k("v_add_u32 v4, s32, v4")
        k("v_bfe_u32 v10, v4, 1, 3")
        k("s_lshl_b32 s33, s66, 2")
        k("v_xor_b32 v10, s33, v10")
        k("v_lshlrev_b32 v10, 4, v10")
        k("v_lshlrev_b32 v12, 7, v4")
        k("v_lshrrev_b32 v13, 5, v1")
        k("v_lshl_add_u32 v12, v13, 3, v12")
        k(f"v_add_u32 v12, {XL}, v12")
        k("s_lshl_b32 s44, s14, 11") if False else None
        k("v_and_b32 v14, 31, v1")
        k("v_bfe_u32 v15, v14, 1, 2")
        k("v_lshlrev_b32 v15, 4, v15")
        k("v_lshlrev_b32 v14, 6, v14")
        k("v_lshl_add_u32 v14, v13, 3, v14")
        k(f"v_add_u32 v14, {OL}, v14")
        k("v_add_u32 v14, s35, v14")
        k("v_bfe_u32 v6, v1, 3, 2")
        k("v_xor_b32 v6, v6, v1")
        k("v_and_b32 v6, 3, v6")
        k("v_lshrrev_b32 v7, 2, v1")
        k("s_lshl_b32 s30, s64, 6\n s_add_u32 s30, s30, s32")
        k("v_add_u32 v7, s30, v7")
        k("v_mul_u32_u24 v7, 896, v7")
        k("v_lshl_add_u32 v7, v6, 4, v7")
        k("s_lshl_b32 s31, s65, 7\n s_lshl_b32 s33, s66, 6\n s_add_u32 s31, s31, s33")
        k("v_add_u32 v7, s31, v7")
    for i in range(64): k(f"v_mov_b32 v{ACC + i}, 0")
    k("s_waitcnt lgkmcnt(0)")
    srd(k, 20, 6, 7, 2048 * 896)
    k("s_lshr_b32 s30, s64, 1\n s_lshl_b32 s30, s30, 8\n s_add_u32 s30, s30, %d" % FL_H)
    k("s_mul_i32 s31, s14, 7\n s_lshr_b32 s31, s31, 1\n s_lshl_b32 s31, s31, 4\n s_add_u32 s30, s30, s31")
    k("s_mov_b32 s33, 0")
    wait_flags2(k, 60, [((30,), 4)], 48, 8, 49, 33)
    stamp(k, 6)
    LA = NBR - 1
    for j in range(LA): loadB(j)
    fifo = [("B", j) for j in range(LA) for _ in range(2)]
    lfifo = []
    LAST_LDS = FIRST_LDS + NLDS
    def areg_final(j):
        if j < NPRE: return AP + 8*j
        if j < LAST_LDS: return AR + 8*((j - NPRE) % 4)
        return AP + 8*(j - LAST_LDS)
    def allowed(q, wanted):
        idx = [i for i, e in enumerate(q) if e in wanted]
        return None if not idx else len(q) - 1 - max(idx)
    for j in range(NK):
        want = [("B", j), ("A", j)]
        jl = j + 3
        do_lds = (j - 1 >= NPRE) and FIRST_LDS <= jl < LAST_LDS
        if do_lds: want.append(("L", jl))
        n = allowed(fifo, want)
        if j <= NK - 3: k(f"s_waitcnt vmcnt({n})")
        m = allowed(lfifo, [("S", j)])
        if m is not None: k(f"s_waitcnt lgkmcnt({m})")
        fb = BR + 8*(j % NBR); fa = areg_final(j)
        fill = [[], [], [], []]
        jb = j + LA
        if jb < NK:
            f = BR + 8*(jb % NBR)
            fill[0] += [f"buffer_load_dwordx4 {vr(f,4)}, v3, s[24:27], s70 offen sc1"]
            fill[1] += [f"buffer_load_dwordx4 {vr(f+4,4)}, v3, s[24:27], s71 offen sc1"] + advB_ins()
            fifo += [("B", jb)] * 2
        if j < NLDS:
            o = j * 2048
            fill[2] += [f"s_add_u32 m0, s34, {ALDS + o}", f"buffer_load_dwordx4 v3, s[52:55], s68 offen sc1 lds"]
            fill[3] += [f"s_add_u32 m0, s34, {ALDS + o + 1024}", f"buffer_load_dwordx4 v3, s[52:55], s69 offen sc1 lds"] + advA_ins()
            fifo += [("L", FIRST_LDS + j)] * 2
        elif j < NLDS + (NK - LAST_LDS):
            jn = LAST_LDS + (j - NLDS); f = areg_final(jn)
            fill[2] += [f"buffer_load_dwordx4 {vr(f,4)}, v3, s[52:55], s68 offen sc1"]
            fill[3] += [f"buffer_load_dwordx4 {vr(f+4,4)}, v3, s[52:55], s69 offen sc1"] + advA_ins()
            fifo += [("A", jn)] * 2
        if do_lds:
            f = AR + 8*((jl - NPRE) % 4); o = (jl - FIRST_LDS) * 2048
            fill[2] += [f"ds_read_b128 {vr(f,4)}, v253 offset:{ALDS + o}"]
            fill[3] += [f"ds_read_b128 {vr(f+4,4)}, v253 offset:{ALDS + o + 1024}"]
            lfifo += [("S", jl)] * 2
        q = 0
        for ti in range(2):
            for di in range(2):
                c = ACC + (2*ti + di) * 16
                k(f"v_mfma_f32_32x32x16_bf16 {vr(c,16)}, {vr(fa + 4*di,4)}, {vr(fb + 4*ti,4)}, {vr(c,16)}")
                for ins in fill[q]: k(ins)
                q += 1
        if "g2st" in EXP and j in (0, 5, 10, 14): stamp(k, {0: 1, 5: 2, 10: 3, 14: 4}[j])
        if j == NK - LA - 1:
            k("buffer_load_dword v254, v251, s[60:63], 0 offen sc1")
            k(f"buffer_load_dword v255, v252, s[60:63], 0 offen offset:{FL_LN} sc1")
            fifo += [("F", 0)] * 2
            stamp(k, 7)
        if j == NK - 3:
            k("s_waitcnt vmcnt(0)")
            k("v_xor_b32 v254, s48, v254")
            k("v_xor_b32 v255, s48, v255")
            k("v_or_b32 v254, v254, v255")
            k("v_cmp_ne_u32 vcc, 0, v254")
            k("s_mov_b32 s33, 0")
            k("s_nop 3")
            k("s_cbranch_vccnz L_g2_nz")
            k("buffer_load_dwordx4 v[80:83], v248, s[56:59], 0 offen sc1")
            k("buffer_load_dwordx4 v[84:87], v249, s[56:59], 0 offen sc1")
            k("buffer_load_dword v11, v250, s[36:39], 0 offen sc1")
            k("s_mov_b32 s33, 1")
            k.label("L_g2_nz")
    stamp(k, 9)
    k("s_cmp_eq_u32 s33, 1")
    k("s_cbranch_scc1 L_g2_zok")
    k("s_mov_b32 s33, 0")
    if "noS" not in EXP: wait_flags2(k, 60, [((44,), 32), ((45,), 8)], 48, 240, 49, 33)
    k("buffer_load_dwordx4 v[80:83], v248, s[56:59], 0 offen sc1")
    k("buffer_load_dwordx4 v[84:87], v249, s[56:59], 0 offen sc1")
    k("buffer_load_dword v11, v250, s[36:39], 0 offen sc1")
    k.label("L_g2_zok")
    k("s_nop 7")
    k("s_nop 3")
    stamp(k, 10)
    for tp in range(1, 4):
        for q in range(4):
            k(f"ds_write_b128 v253, {vr(ACC + 16*tp + 4*q, 4)} offset:{4096*(tp-1) + 1024*q}")
    for tp in range(1, 4):
        k(f"s_xor_b32 s30, s14, {tp}\n s_lshl_b32 s30, s30, 14")
        k(f"v_add_u32 v{96+tp}, s30, v3")
    for q in range(4):
        k(f"v_xor_b32 v{100+q}, {16*q}, v10")
        k(f"v_add_u32 v{100+q}, v{100+q}, v12")
    k("s_waitcnt vmcnt(0)")
    k("ds_write_b128 v253, v[80:83] offset:12288")
    k("ds_write_b128 v253, v[84:87] offset:13312")
    k("s_waitcnt lgkmcnt(0)")
    k("s_barrier")
    for sl in range(3):
        for q in range(4):
            k(f"ds_read_b128 {vr(112 + 16*sl + 4*q, 4)}, v{97+sl} offset:{4096*sl + 1024*q}")
    for q in range(4):
        k(f"ds_read_b64_tr_b16 {vr(80 + 2*q, 2)}, v5 offset:{16384*(q >> 1) + 1024*(q & 1)}")
    k("s_waitcnt lgkmcnt(4)")
    for q in range(4):
        k(f"ds_read_b64 {vr(88 + 2*q, 2)}, v{100+q}")
    with k.sched():
        for r in range(16):
            k(f"v_add_f32 v{ACC + r}, v{ACC + r}, v{112 + r}")
            k(f"v_add_f32 v{128 + r}, v{128 + r}, v{144 + r}")
            k(f"v_add_f32 v{ACC + r}, v{ACC + r}, v{128 + r}")
    k("s_waitcnt lgkmcnt(0)")
    with k.sched():
        for j in range(8):
            a = 112 + 2*j; b = 128 + 2*j
            k(f"v_lshlrev_b32 v{a}, 16, v{88 + j}")
            k(f"v_and_b32 v{a+1}, 0xffff0000, v{88 + j}")
            k(f"v_lshlrev_b32 v{b}, 16, v{80 + j}")
            k(f"v_and_b32 v{b+1}, 0xffff0000, v{80 + j}")
            k(f"v_add_f32 v{a}, v{a}, v{b}")
            k(f"v_add_f32 v{a+1}, v{a+1}, v{b+1}")
            if "emu" not in EXP:
                k(f"v_fma_f32 v{a}, v{ACC + 2*j}, v11, v{a}")
                k(f"v_fma_f32 v{a+1}, v{ACC + 2*j + 1}, v11, v{a+1}")
            else:
                k(f"v_mul_f32 v{b}, v{ACC + 2*j}, v11")
                k(f"v_mul_f32 v{b+1}, v{ACC + 2*j + 1}, v11")
                k(f"v_cvt_pk_bf16_f32 v{152 + j}, v{a}, v{a+1}")
                k(f"v_cvt_pk_bf16_f32 v{160 + j}, v{b}, v{b+1}")
                k(f"v_lshlrev_b32 v{a}, 16, v{152 + j}")
                k(f"v_and_b32 v{a+1}, 0xffff0000, v{152 + j}")
                k(f"v_lshlrev_b32 v{b}, 16, v{160 + j}")
                k(f"v_and_b32 v{b+1}, 0xffff0000, v{160 + j}")
                k(f"v_add_f32 v{a}, v{a}, v{b}")
                k(f"v_add_f32 v{a+1}, v{a+1}, v{b+1}")
            k(f"v_cvt_pk_bf16_f32 v{144 + j}, v{a}, v{a+1}")
    for q in range(4):
        k(f"v_xor_b32 v{100+q}, {16*q}, v15")
        k(f"v_add_u32 v{100+q}, v{100+q}, v14")
    for q in range(4):
        k(f"ds_write_b64 v{100+q}, {vr(144 + 2*q, 2)}")
    k("s_lshl_b32 s35, s14, 11")
    k(f"s_add_u32 s35, s35, {OL}")
    k("v_add_u32 v104, s35, v3")
    k(f"v_add_u32 v107, {16*896}, v7")
    k("v_mov_b32 v106, v7")
    k("s_waitcnt lgkmcnt(0)")
    k("ds_read_b128 v[112:115], v104")
    k("ds_read_b128 v[116:119], v104 offset:1024")
    k("s_waitcnt lgkmcnt(0)")
    of = "" if "oplain" in EXP else " sc1"
    k(f"buffer_store_dwordx4 v[112:115], v106, s[20:23], 0 offen{of}")
    k(f"buffer_store_dwordx4 v[116:119], v107, s[20:23], 0 offen{of}")
    stamp(k, 11)
    stamp_flush(k, 0, 8)
    k("s_endpgm")


def ln8_issue(k, blk_s, xsrd):
    k(f"s_lshl_b32 s30, s{blk_s}, 3")
    k("s_lshl_b32 s31, s14, 1")
    k("s_add_u32 s30, s30, s31")
    k("v_lshrrev_b32 v36, 5, v1")
    k("v_add_u32 v36, s30, v36")
    k("v_and_b32 v37, 31, v1")
    k("v_mul_u32_u24 v38, 896, v36")
    k("v_lshl_add_u32 v38, v37, 4, v38")
    for i in range(4): k(f"v_mov_b32 v{44 + i}, 0")
    k(f"buffer_load_dwordx4 v[40:43], v38, s[{xsrd}:{xsrd+3}], 0 offen")
    k("s_mov_b32 exec_lo, 0x00ffffff\n s_mov_b32 exec_hi, 0x00ffffff")
    k(f"buffer_load_dwordx4 v[44:47], v38, s[{xsrd}:{xsrd+3}], 0 offen offset:512")
    k("s_mov_b64 exec, -1")

def ln8_compute(k, blk_s, xtsrd, rssrd, ldsbase):
    F = 48
    def red32(reg, tmp):
        k(f"v_add_f32_dpp v{reg}, v{reg}, v{reg} quad_perm:[1,0,3,2] row_mask:0xf bank_mask:0xf")
        k(f"v_add_f32_dpp v{reg}, v{reg}, v{reg} quad_perm:[2,3,0,1] row_mask:0xf bank_mask:0xf")
        k(f"v_add_f32_dpp v{reg}, v{reg}, v{reg} row_half_mirror row_mask:0xf bank_mask:0xf")
        k(f"v_add_f32_dpp v{reg}, v{reg}, v{reg} row_mirror row_mask:0xf bank_mask:0xf")
        k(f"ds_swizzle_b32 v{tmp}, v{reg} offset:0x401F")
        k("s_waitcnt lgkmcnt(0)")
        k(f"v_add_f32 v{reg}, v{reg}, v{tmp}")
    with k.sched():
        for j in range(8):
            k(f"v_lshlrev_b32 v{F + 2*j}, 16, v{40 + j}")
            k(f"v_and_b32 v{F + 2*j + 1}, 0xffff0000, v{40 + j}")
        for j in range(4): k(f"v_add_f32 v{64 + j}, v{F + j}, v{F + 4 + j}")
        for j in range(8, 16): k(f"v_add_f32 v{64 + (j & 3)}, v{64 + (j & 3)}, v{F + j}")
        k("v_add_f32 v64, v64, v65\n v_add_f32 v66, v66, v67\n v_add_f32 v64, v64, v66")
    red32(64, 65)
    k("v_mul_f32 v64, 0xbb124925, v64")
    with k.sched():
        for j in range(8): k(f"v_add_f32 v{68 + j}, v{F + j}, v64")
        k("v_mul_f32 v65, v68, v68\n v_mul_f32 v66, v69, v69")
        for j in range(2, 8): k(f"v_fmac_f32 v{65 + (j & 1)}, v{68 + j}, v{68 + j}")
    k("s_mov_b32 exec_lo, 0x00ffffff\n s_mov_b32 exec_hi, 0x00ffffff")
    with k.sched():
        for j in range(8): k(f"v_add_f32 v{68 + j}, v{F + 8 + j}, v64")
        for j in range(8): k(f"v_fmac_f32 v{65 + (j & 1)}, v{68 + j}, v{68 + j}")
    k("s_mov_b64 exec, -1")
    k("v_add_f32 v65, v65, v66")
    red32(65, 66)
    k("v_mul_f32 v65, 0x3b124925, v65")
    k("v_cvt_pk_bf16_f32 v65, v65, v64")
    k("v_and_b32 v64, 0xffff0000, v65")
    k("v_lshlrev_b32 v65, 16, v65")
    k("v_add_f32 v65, 0x3727c5ac, v65")
    k("v_cvt_pk_bf16_f32 v65, v65, v65")
    k("v_lshlrev_b32 v65, 16, v65")
    k("v_sqrt_f32 v65, v65")
    k("v_cvt_pk_bf16_f32 v65, v65, v65")
    k("v_lshlrev_b32 v65, 16, v65")
    k("v_rcp_f32 v66, v65")
    k("v_fma_f32 v67, -v65, v66, 2.0")
    k("v_mul_f32 v66, v66, v67")
    k("v_lshlrev_b32 v39, 2, v36")
    k("s_mov_b32 exec_lo, 1\n s_mov_b32 exec_hi, 1")
    k(f"buffer_store_dword v66, v39, s[{rssrd}:{rssrd+3}], 0 offen sc1")
    k("s_mov_b64 exec, -1")
    with k.sched():
        for j in range(8):
            a = F + 2*j
            k(f"v_add_f32 v{a}, v{a}, v64")
            k(f"v_add_f32 v{a+1}, v{a+1}, v64")
            k(f"v_cvt_pk_bf16_f32 v{40 + j}, v{a}, v{a+1}")
            k(f"v_lshlrev_b32 v{a}, 16, v{40 + j}")
            k(f"v_and_b32 v{a+1}, 0xffff0000, v{40 + j}")
            k(f"v_mul_f32 v{a}, v{a}, v66")
            k(f"v_mul_f32 v{a+1}, v{a+1}, v66")
            k(f"v_cvt_pk_bf16_f32 v{40 + j}, v{a}, v{a+1}")
        k("v_and_b32 v68, 7, v36")
        k("v_mul_u32_u24 v68, 960, v68")
        k("v_lshl_add_u32 v68, v37, 4, v68")
        k(f"v_add_u32 v68, {ldsbase}, v68")
        k("v_bfe_u32 v69, v1, 2, 2")
        k("v_mul_u32_u24 v69, 960, v69")
        k("v_lshrrev_b32 v70, 4, v1")
        k("v_lshl_add_u32 v69, v70, 5, v69")
        k("v_and_b32 v70, 3, v1")
        k("v_lshl_add_u32 v69, v70, 3, v69")
        k("s_lshl_b32 s44, s14, 7")
        k(f"s_add_u32 s44, s44, {ldsbase}")
        k("v_add_u32 v69, s44, v69")
        k("v_lshlrev_b32 v70, 4, v1")
    k("ds_write_b128 v68, v[40:43]")
    k("s_mov_b32 exec_lo, 0x00ffffff\n s_mov_b32 exec_hi, 0x00ffffff")
    k("ds_write_b128 v68, v[44:47] offset:512")
    k("s_mov_b64 exec, -1")
    k(f"s_mul_i32 s44, s{blk_s}, 7168")
    k("s_lshl_b32 s45, s14, 10")
    k("s_add_u32 s44, s44, s45")
    k("s_waitcnt lgkmcnt(0)")
    k("s_barrier")
    k("ds_read_b64_tr_b16 v[72:73], v69")
    k(f"ds_read_b64_tr_b16 v[74:75], v69 offset:{4*960}")
    k("ds_read_b64_tr_b16 v[76:77], v69 offset:512")
    k(f"ds_read_b64_tr_b16 v[78:79], v69 offset:{4*960 + 512}")
    k("s_waitcnt lgkmcnt(2)")
    k(f"buffer_store_dwordx4 v[72:75], v70, s[{xtsrd}:{xtsrd+3}], s44 offen sc1")
    L = uid("ln8")
    k("s_cmp_eq_u32 s14, 3")
    k(f"s_cbranch_scc1 {L}")
    k("s_add_u32 s44, s44, 4096")
    k("s_waitcnt lgkmcnt(0)")
    k(f"buffer_store_dwordx4 v[76:79], v70, s[{xtsrd}:{xtsrd+3}], s44 offen sc1")
    k.label(L)
    k("s_waitcnt lgkmcnt(0)")

def role_ln(k):
    stamp(k, 8); stamp(k, 0)
    k("s_setprio 1")
    k("s_load_dwordx2 s[4:5], s[0:1], 0")
    k("s_load_dwordx2 s[6:7], s[0:1], 88")
    k("s_load_dwordx4 s[8:11], s[0:1], 104")
    k("v_and_b32 v1, 63, v0")
    k("v_lshrrev_b32 v2, 6, v0")
    k("v_readfirstlane_b32 s14, v2")
    k("s_min_u32 s33, s3, 55")
    k("s_mul_i32 s30, s33, 28672")
    k("s_mul_i32 s31, s14, 7168")
    k("s_add_u32 s30, s30, s31")
    k("v_lshlrev_b32 v7, 4, v1")
    k("s_waitcnt lgkmcnt(0)")
    srd(k, 20, 6, 7, 1792 * 896)
    W2L = 32768
    for j in range(7):
        k(f"s_add_u32 m0, s31, {W2L + 1024*j}")
        k(f"s_add_u32 s32, s30, {1024*j}")
        k(f"buffer_load_dwordx4 v7, s[20:23], s32 offen lds")
    srd(k, 16, 4, 5, 2048 * 896)
    k("s_and_b32 s47, s3, 31")
    k("s_add_u32 s47, s47, 224")
    ln8_issue(k, 47, 16)
    srd(k, 52, 8, 9, 256)
    k("v_mov_b32 v120, 0")
    srd(k, 24, 10, 11, XT_SZ, XT_OFF)
    srd(k, 36, 10, 11, RS_SZ, RS_OFF)
    srd(k, 40, 10, 11, W2F_SZ, W2F_OFF)
    srd(k, 56, 10, 11, FL_SZ, FL_OFF)
    with k.sched():
        k("v_lshrrev_b32 v80, 5, v1")
        k("v_bfe_u32 v81, v1, 2, 2")
        k("v_lshl_add_u32 v80, v80, 2, v81")
        k("v_mul_u32_u24 v80, 896, v80")
        k("v_bfe_u32 v82, v1, 4, 1")
        k("v_lshl_add_u32 v80, v82, 5, v80")
        k("v_and_b32 v83, 3, v1")
        k("v_lshl_add_u32 v80, v83, 3, v80")
        k(f"v_add_u32 v80, {W2L}, v80")
        k("s_lshr_b32 s30, s14, 1")
        k("s_and_b32 s31, s14, 1")
        k("s_mul_i32 s31, s31, 7")
        k(f"s_mul_i32 s32, s30, {16*896}")
        k("s_lshl_b32 s34, s31, 6")
        k("s_add_u32 s32, s32, s34")
        k("v_add_u32 v80, s32, v80")
        k("s_lshl_b32 s35, s33, 1")
        k("s_add_u32 s35, s35, s30")
        k("s_mul_i32 s35, s35, 14")
        k("s_add_u32 s35, s35, s31")
        k("s_lshl_b32 s35, s35, 10")
    k("s_waitcnt vmcnt(2)")
    k("buffer_load_dword v121, v120, s[52:55], 0 offen sc1")
    k("s_barrier")
    stamp(k, 1)
    for j in range(7):
        k(f"ds_read_b64_tr_b16 {vr(84 + 4*j, 2)}, v80 offset:{64*j}")
        k(f"ds_read_b64_tr_b16 {vr(84 + 4*j + 2, 2)}, v80 offset:{64*j + 8*896}")
    k("s_waitcnt lgkmcnt(0) vmcnt(0)")
    k("v_readfirstlane_b32 s48, v121")
    k("s_cmp_ge_u32 s3, 56")
    k("s_cbranch_scc1 L_ln_now2")
    for j in range(7):
        k(f"buffer_store_dwordx4 {vr(84 + 4*j, 4)}, v7, s[40:43], s35 offen sc1")
        k(f"s_add_u32 s35, s35, 1024")
    k.label("L_ln_now2")
    k("s_cmp_lg_u32 s48, 0")
    k("s_cbranch_scc1 L_ln_haven")
    get_nonce(k, 52, 48, 112)
    k.label("L_ln_haven")
    k("s_cmp_ge_u32 s3, 32")
    k("s_cbranch_scc1 L_ln_noln")
    ln8_compute(k, 47, 24, 36, 0)
    k("s_lshl_b32 s30, s47, 4")
    signal(k, 56, 30, 48, 112, FL_LN)
    k.label("L_ln_noln")
    stamp(k, 2)
    k("s_lshl_b32 s30, s3, 4")
    signal(k, 56, 30, 48, 112, FL_W2)
    stamp(k, 3)
    if "pf" in EXP:
        wait_flags(k, 56, FL_W2, 4, 56, 48, 112, 49)
        k("s_and_b32 s30, s3, 31\n s_lshr_b32 s30, s30, 3\n s_lshr_b32 s31, s3, 5\n s_lshl_b32 s31, s31, 2\n s_add_u32 s30, s30, s31")
        k("s_lshr_b32 s31, s30, 1\n s_mul_i32 s31, s31, 28\n s_add_u32 s31, s31, s14\n s_mul_i32 s31, s31, 14336")
        k("s_and_b32 s30, s30, 1\n s_mul_i32 s30, s30, 7168\n s_add_u32 s30, s30, s31")
        k("s_mov_b32 s31, 0")
        k.label("L_ln_pf")
        for j in range(7):
            k(f"buffer_load_dwordx4 {vr(40 + 4*j, 4)}, v7, s[40:43], s30 offen offset:{1024*(j % 4)} sc1") if j < 4 else None
        k("s_add_u32 s32, s30, 4096")
        for j in range(4, 7):
            k(f"buffer_load_dwordx4 {vr(40 + 4*j, 4)}, v7, s[40:43], s32 offen offset:{1024*(j - 4)} sc1")
        k("s_add_u32 s30, s30, %d" % (4*14336))
        k("s_waitcnt vmcnt(7)")
        k("s_add_u32 s31, s31, 1")
        k("s_cmp_lt_u32 s31, 7")
        k("s_cbranch_scc1 L_ln_pf")
    stamp(k, 4)
    stamp_flush(k, 0, 4)
    k("s_endpgm")

def cmul(k, o, x, y, t):
    k(f"v_mul_f32 v{t}, v{x+1}, v{y+1}")
    k(f"v_mul_f32 v{t+1}, v{x+1}, v{y}")
    if o == x:
        k(f"v_fma_f32 v{o+1}, v{x}, v{y+1}, v{t+1}")
        k(f"v_fma_f32 v{o}, v{x}, v{y}, -v{t}")
    else:
        k(f"v_fma_f32 v{o}, v{x}, v{y}, -v{t}")
        k(f"v_fma_f32 v{o+1}, v{x}, v{y+1}, v{t+1}")

def role_s(k):
    stamp(k, 8); stamp(k, 0)
    k("s_setprio 3")
    k("s_load_dwordx16 s[56:71], s[0:1], 8")
    k("s_load_dwordx4 s[8:11], s[0:1], 104")
    k("s_load_dwordx2 s[4:5], s[0:1], 0")
    k("v_and_b32 v1, 63, v0")
    k("v_lshrrev_b32 v2, 6, v0")
    k("v_readfirstlane_b32 s14, v2")
    k("s_lshr_b32 s15, s14, 1")
    k("s_and_b32 s28, s14, 1")
    k("s_and_b32 s29, s3, 7")
    k("s_lshr_b32 s30, s3, 3")
    k("s_lshr_b32 s31, s30, 2\n s_lshl_b32 s31, s31, 3\n s_add_u32 s29, s29, s31")
    k("s_lshl_b32 s29, s29, 2\n s_and_b32 s30, s30, 3\n s_add_u32 s47, s29, s30")
    k("s_lshl_b32 s29, s47, 1")
    k("s_add_u32 s29, s29, s15")
    k("s_lshl_b32 s30, s29, 9")
    k("s_lshl_b32 s31, s28, 8")
    k("s_add_u32 s30, s30, s31")
    k("v_lshlrev_b32 v3, 2, v1")
    k("v_add_u32 v3, s30, v3")
    k("s_lshl_b32 s31, s29, 1")
    k("v_mov_b32 v4, s31")
    k("s_waitcnt lgkmcnt(0)")
    srd(k, 40, 4, 5, 2048 * 896)
    ln8_issue(k, 3, 40)
    PSZ = 448 * 512
    for i in range(6):
        srd(k, 16, 56 + 2*i, 57 + 2*i, PSZ)
        k(f"buffer_load_dword v{8 + i}, v3, s[16:19], 0 offen")
    srd(k, 20, 68, 69, 896)
    k("buffer_load_ushort v14, v4, s[20:23], 0 offen")
    srd(k, 20, 70, 71, 896)
    k("buffer_load_ushort v7, v4, s[20:23], 0 offen")
    srd(k, 52, 8, 9, 256)
    k("v_mov_b32 v190, 0")
    srd(k, 20, 10, 11, XT_SZ, XT_OFF)
    srd(k, 24, 10, 11, ZT_SZ, ZT_OFF)
    srd(k, 36, 10, 11, FL_SZ, FL_OFF)
    srd(k, 40, 10, 11, RS_SZ, RS_OFF)
    TB = 75776; XB = 65536
    CSTR = 4160; CH = 37888
    WA = 144
    RA = 152
    GA = 160
    k("s_lshl_b32 s33, s14, 14")
    k("s_mul_i32 s31, s15, 1536")
    k(f"s_add_u32 s31, s31, {TB}")
    k("s_lshl_b32 s30, s28, 6")
    k("v_add_u32 v2, s30, v1")
    k("v_lshlrev_b32 v3, 4, v1")
    with k.sched():
        k("v_and_b32 v16, 7, v1")
        k("v_lshlrev_b32 v17, 7, v1")
        k("v_add_u32 v17, s33, v17")
        for v_ in range(8):
            k(f"v_xor_b32 v{WA + v_}, {v_}, v16")
            k(f"v_lshl_add_u32 v{WA + v_}, v{WA + v_}, 4, v17")
        k("v_bfe_u32 v18, v1, 5, 1")
        k("v_bfe_u32 v19, v1, 3, 1")
        k("v_lshl_add_u32 v18, v18, 2, v19")
        k("v_bfe_u32 v19, v1, 2, 1")
        k("v_bfe_u32 v20, v1, 4, 1")
        k("v_bfe_u32 v21, v1, 1, 1")
        k("v_lshl_add_u32 v20, v20, 1, v21")
        k("v_lshl_add_u32 v19, v19, 2, v20")
        k("v_and_b32 v21, 1, v1")
        k("v_lshlrev_b32 v21, 3, v21")
        k("v_add_u32 v21, s33, v21")
        for j in range(2):
            k(f"v_add_u32 v{22+j}, {2*j}, v18")
            k(f"v_xor_b32 v{24+j}, v19, v{22+j}")
            k(f"v_lshl_add_u32 v{24+j}, v{24+j}, 4, v21")
            k(f"v_lshl_add_u32 v{RA+j}, v{22+j}, 7, v{24+j}")
        k("v_lshlrev_b32 v156, 4, v1")
        k("v_mul_u32_u24 v157, 7168, v2")
        k("s_lshl_b32 s45, s29, 4")
        k("v_add_u32 v157, s45, v157")
        k(f"v_add_u32 v158, {128*7168}, v157")
        for c in range(2):
            b_ = 80 + 20*c
            k(f"v_lshlrev_b32 v{b_+16}, 3, v2")
            k(f"v_sub_u32 v{b_+16}, {2047 - 1024*c}, v{b_+16}")
            for e in range(8): k(f"v_subrev_u32 v{b_ + e}, {e}, v{b_+16}")
            g = GA + 8*c
            for e in range(8): k(f"v_cvt_f32_u32 v{g + e}, v{b_ + e}")
            for e in range(0, 8, 2): k(f"v_cvt_pk_bf16_f32 v{b_ + 8 + e//2}, v{g + e}, v{g + e + 1}")
            for e in range(8):
                if e % 2 == 0: k(f"v_and_b32 v{g + e}, 0xffff, v{b_ + 8 + e//2}")
                else: k(f"v_lshrrev_b32 v{g + e}, 16, v{b_ + 8 + e//2}")
            for e in range(8): k(f"v_add_u32 v{g + e}, {(-0x4300 + 128) & 0xffffffff}, v{g + e}")
            for e in range(8):
                k(f"v_cmp_gt_u32 vcc, 128, v{b_ + e}")
                k(f"v_cndmask_b32 v{g + e}, v{g + e}, v{b_ + e}, vcc")
            for e in range(8): k(f"v_lshl_add_u32 v{g + e}, v{g + e}, 1, s31")
    ACC = 112
    for i in range(16): k(f"v_mov_b32 v{ACC + i}, 0")
    k("s_waitcnt vmcnt(8)")
    k("buffer_load_dword v191, v190, s[52:55], 0 offen sc1")
    ln8_compute(k, 3, 20, 40, 65536)
    stamp(k, 11)
    k("s_waitcnt vmcnt(2)")
    stamp(k, 1)
    k("v_readfirstlane_b32 s48, v191")
    k("v_lshlrev_b32 v14, 16, v14")
    k("v_mul_f32 v15, 0x3fb8aa3b, v14")
    k("s_mov_b32 s34, 0x3fb8aa3b")
    k("v_fma_f32 v16, v14, s34, -v15")
    k("s_mov_b32 s34, 0x32a57060")
    k("v_fma_f32 v16, v14, s34, v16")
    k("v_exp_f32 v15, v15")
    k("v_mul_f32 v16, 0x3f317218, v16")
    k("v_fma_f32 v15, v15, v16, v15")
    k("v_cvt_pk_bf16_f32 v15, v15, v15")
    k("v_lshlrev_b32 v15, 16, v15")
    E1, Z2, Z4, E256 = 20, 22, 24, 26
    Q = [28, 30, 32, 34]
    E32 = 36
    TT = [64 + 2*i for i in range(8)]
    tc = [0]
    def T():
        tc[0] += 1
        return TT[tc[0] % len(TT)]
    SA = 80
    SB = 176
    k("s_cmp_lg_u32 s48, 0")
    k("s_cbranch_scc1 L_s_haven")
    get_nonce(k, 52, 48, 104)
    k.label("L_s_haven")
    if "siglate" not in EXP:
        k("s_lshl_b32 s30, s3, 4")
        signal(k, 36, 30, 48, 104, FL_LN)
    k(f"s_setprio {PRIO[2]}")
    k("s_mov_b32 s35, 0")
    k("s_mov_b32 s34, 16")
    k.label("L_s_item")
    with k.sched():
        for i in range(6):
            k(f"v_lshlrev_b32 v{50 + i}, s34, v{8 + i}")
            k(f"v_and_b32 v{50 + i}, 0xffff0000, v{50 + i}")
        k("v_mul_f32 v18, v15, v50")
        k("v_mul_f32 v18, 0x3fb8aa3b, v18")
        k("v_mul_f32 v19, v15, v51")
        k("v_mul_f32 v19, 0.15915494, v19")
        k("v_mul_f32 v52, v15, v52")
        k("v_mul_f32 v53, v15, v53")
        P0 = 16
        cmul(k, P0, 54, 52, T())
        def E(dst, l):
            tmp = T()
            lit = {1: "1.0", 8: "0x41000000", 16: "0x41800000", 24: "0x41c00000", 32: "0x42000000", 256: "0x43800000"}[l]
            k(f"v_mul_f32 v{tmp}, {lit}, v18")
            k(f"v_mul_f32 v{tmp+1}, {lit}, v19")
            k(f"v_exp_f32 v{tmp}, v{tmp}")
            k(f"v_fract_f32 v{tmp+1}, v{tmp+1}")
            k(f"v_cos_f32 v{dst}, v{tmp+1}")
            k(f"v_sin_f32 v{dst+1}, v{tmp+1}")
            k(f"v_mul_f32 v{dst}, v{dst}, v{tmp}")
            k(f"v_mul_f32 v{dst+1}, v{dst+1}, v{tmp}")
        E(E1, 1); E(E256, 256); E(E32, 32); E(Q[1], 8); E(Q[2], 16); E(Q[3], 24)
        k(f"v_mov_b32 v{Q[0]}, 1.0")
        k(f"v_mov_b32 v{Q[0]+1}, 0")
        cmul(k, Z2, E1, E1, T())
        cmul(k, Z4, Z2, Z2, T())
        def pairA(h, ra, rb):
            p = h >> 3; dw = (h & 7) >> 1
            base = SA + 8*p
            if rb is None:
                k(f"v_cvt_pk_bf16_f32 v{base + dw}, v{ra}, 0")
                k(f"v_cvt_pk_bf16_f32 v{base + 4 + dw}, -v{ra+1}, 0")
            else:
                k(f"v_cvt_pk_bf16_f32 v{base + dw}, v{ra}, v{rb}")
                k(f"v_cvt_pk_bf16_f32 v{base + 4 + dw}, -v{ra+1}, -v{rb+1}")
        def flushA(p):
            base = SA + 8*p
            if "nokw" in EXP: return
            k(f"ds_write_b128 v{WA + p}, {vr(base, 4)}")
            k(f"ds_write_b128 v{WA + 4 + p}, {vr(base + 4, 4)}")
        def pairB(i):
            p = i >> 1; base = SB + 8*(p & 1); dw = 2*(i & 1)
            k(f"v_cvt_pk_bf16_f32 v{base + dw}, v{Q[0]}, v{Q[1]}")
            k(f"v_cvt_pk_bf16_f32 v{base + dw + 1}, v{Q[2]}, v{Q[3]}")
            k(f"v_cvt_pk_bf16_f32 v{base + 4 + dw}, v{Q[0]+1}, v{Q[1]+1}")
            k(f"v_cvt_pk_bf16_f32 v{base + 4 + dw + 1}, v{Q[2]+1}, v{Q[3]+1}")
            if (i & 1) and "nokw" not in EXP:
                k(f"ds_write_b128 v{WA + p}, {vr(base, 4)} offset:8192")
                k(f"ds_write_b128 v{WA + 4 + p}, {vr(base + 4, 4)} offset:8192")
        PE, PO = 38, 40
        U0, U1, S0, S1 = 42, 44, 46, 48
        steps = []
        def low():
            cmul(k, PO, P0, E1, T()); pairA(0, P0, PO)
            yield
            for h in (2, 4, 6):
                cmul(k, PE, PO, E1, T())
                yield
                cmul(k, PO, PE, E1, T()); pairA(h, PE, PO)
                yield
            flushA(0)
            yield
        def high():
            cmul(k, U0, P0, E256, T())
            cmul(k, S0, U0, Z2, T()); pairA(8, U0, S0)
            yield
            cmul(k, U1, U0, E256, T())
            cmul(k, S1, S0, Z2, T())
            yield
            cmul(k, S0, S1, Z2, T()); pairA(10, S1, S0)
            cmul(k, U0, U1, E256, T())
            yield
            cmul(k, S1, U1, Z4, T()); pairA(12, U1, S1)
            cmul(k, U1, U0, E256, T())
            yield
            cmul(k, S0, U0, Z4, T()); pairA(14, U0, S0)
            flushA(1)
            cmul(k, U0, U1, E256, T()); pairA(16, U1, U0)
            yield
            cmul(k, U1, U0, E256, T())
            cmul(k, U0, U1, E256, T()); pairA(18, U1, U0)
            yield
            cmul(k, U1, U0, E256, T()); pairA(20, U1, None)
            k(f"v_mov_b32 v{SA + 16 + 3}, 0\n v_mov_b32 v{SA + 16 + 7}, 0")
            flushA(2)
            yield
        gl, gh = low(), high()
        pairB(0)
        for i in range(1, 8):
            for c in range(4): cmul(k, Q[c], Q[c], E32, T())
            pairB(i)
            next(gl, None); next(gh, None)
        for _ in gl: pass
        for _ in gh: pass
    k("s_waitcnt lgkmcnt(0)")
    for half in range(2):
        for ks in range(4*half, 4*half + 4):
            fa = 64 + 8 * (ks % 4)
            k(f"ds_read_b64_tr_b16 {vr(fa,2)}, v{RA} offset:{1024*ks}")
            k(f"ds_read_b64_tr_b16 {vr(fa+2,2)}, v{RA+1} offset:{1024*ks}")
            k(f"ds_read_b64_tr_b16 {vr(fa+4,2)}, v{RA} offset:{1024*ks + 8192}")
            k(f"ds_read_b64_tr_b16 {vr(fa+6,2)}, v{RA+1} offset:{1024*ks + 8192}")
        for ks in range(4*half, 4*half + 4):
            fa = 64 + 8 * (ks % 4)
            k(f"s_waitcnt lgkmcnt({4*(3 - (ks % 4))})")
            k(f"v_mfma_f32_32x32x16_bf16 {vr(ACC,16)}, {vr(fa,4)}, {vr(fa+4,4)}, {vr(ACC,16)}")
    if "siglate" in EXP:
        k("s_cmp_lg_u32 s35, 0")
        k("s_cbranch_scc1 L_s_nosig")
        k("s_lshl_b32 s30, s3, 4")
        signal(k, 36, 30, 48, 104, FL_LN)
        stamp(k, 12)
        k.label("L_s_nosig")
    k("s_cmp_lg_u32 s35, 0")
    k("s_cbranch_scc1 L_s_nou")
    k("s_setprio 3")
    for i in range(4):
        k(f"buffer_load_dword v{104+i}, v156, s[36:39], 0 offen offset:{FL_LN + 1024*i} sc1")
    k(f"s_setprio {PRIO[2]}")
    k.label("L_s_nou")
    if "spf" in EXP:
        k("s_cmp_lg_u32 s35, 0")
        k("s_cbranch_scc1 L_s_nopf")
        k("v_min_u32 v104, 55, v1")
        k("v_lshlrev_b32 v104, 4, v104")
        k(f"v_add_u32 v104, {FL_W2}, v104")
        k("buffer_load_dword v105, v104, s[36:39], 0 offen sc1")
        srd(k, 40, 10, 11, W2F_SZ, W2F_OFF)
        k("s_lshr_b32 s30, s3, 3\n s_mul_i32 s44, s14, 28\n s_add_u32 s30, s30, s44\n s_mul_i32 s30, s30, 14336")
        k("s_waitcnt vmcnt(0)")
        k("v_cmp_ne_u32 vcc, s48, v105")
        k("s_nop 4")
        k("s_cbranch_vccnz L_s_nopf")
        for i in range(14):
            k(f"buffer_load_dwordx4 v[104:107], v3, s[40:43], s30 offen offset:{1024*(i % 4)} sc1")
            if i % 4 == 3: k("s_add_u32 s30, s30, 4096")
        k.label("L_s_nopf")
    k("s_mov_b32 s34, 0")
    k("s_add_u32 s35, s35, 1")
    k("s_cmp_lt_u32 s35, 2")
    k("s_cbranch_scc1 L_s_item")
    stamp(k, 2)
    k(f"s_setprio {PRIO[3]}")
    k("s_waitcnt vmcnt(0)")
    for i in range(4): k(f"v_xor_b32 v{104+i}, s48, v{104+i}")
    k("v_or_b32 v104, v104, v105\n v_or_b32 v106, v106, v107\n v_or_b32 v104, v104, v106")
    k("v_cmp_ne_u32 vcc, 0, v104")
    k("s_nop 4")
    k("s_cbranch_vccz L_s_haveu")
    k("s_mov_b32 s45, 0")
    wait_flags2(k, 36, [(FL_LN + 1024*i, 64) for i in range(4)], 48, 90, 49, 45)
    k.label("L_s_haveu")
    k("buffer_load_dwordx4 v[104:107], v157, s[20:23], 0 offen sc1")
    k("buffer_load_dwordx4 v[108:111], v158, s[20:23], 0 offen sc1")
    k("s_mul_i32 s30, s15, 3072")
    k(f"s_add_u32 s30, s30, {XB}")
    k("v_add_u32 v4, s30, v3")
    k("s_cmp_eq_u32 s28, 0")
    k("s_cbranch_scc1 L_kg_a")
    k("s_nop 7\n s_nop 3")
    for q in range(3): k(f"ds_write_b128 v4, {vr(ACC + 4*q, 4)} offset:{1024*q}")
    k("s_waitcnt lgkmcnt(0)")
    k.label("L_kg_a")
    k("s_barrier")
    k("s_cmp_eq_u32 s28, 0")
    k("s_cbranch_scc0 L_kg_b")
    for q in range(3): k(f"ds_read_b128 {vr(64 + 4*q, 4)}, v4 offset:{1024*q}")
    k("v_and_b32 v6, 31, v1")
    k("v_lshrrev_b32 v12, 5, v1")
    k("v_lshlrev_b32 v8, 4, v6")
    k("v_lshl_add_u32 v8, v12, 3, v8")
    k("v_add_u32 v8, s31, v8")
    k("v_lshlrev_b32 v9, 3, v6\n v_add_u32 v9, s31, v9")
    k("v_lshlrev_b32 v10, 2, v6\n v_add_u32 v10, s31, v10")
    k("v_lshlrev_b32 v11, 1, v6\n v_add_u32 v11, s31, v11")
    k("s_waitcnt lgkmcnt(0)")
    for r in range(12): k(f"v_add_f32 v{ACC + r}, v{ACC + r}, v{64 + r}")
    for j in range(6): k(f"v_cvt_pk_bf16_f32 v{80 + j}, v{ACC + 2*j}, v{ACC + 2*j + 1}")
    k("ds_write_b64 v8, v[80:81]")
    k("s_mov_b64 s[40:41], exec")
    k("s_mov_b32 exec_lo, -1\n s_mov_b32 exec_hi, 0")
    k("ds_write_b64 v9, v[82:83] offset:512")
    k("ds_write_b16 v11, v84 offset:1024")
    k("ds_write_b16_d16_hi v11, v84 offset:1088")
    k("ds_write_b16 v11, v85 offset:1152")
    k("ds_write_b16_d16_hi v11, v85 offset:1216")
    k("s_mov_b32 exec_lo, 0\n s_mov_b32 exec_hi, -1")
    k("ds_write_b32 v10, v82 offset:768")
    k("ds_write_b32 v10, v83 offset:896")
    k("ds_write_b16 v11, v84 offset:1280")
    k("s_mov_b64 exec, s[40:41]")
    k("s_waitcnt lgkmcnt(0)")
    k.label("L_kg_b")
    k(f"s_mul_i32 s33, s15, {CH}")
    k(f"s_add_u32 s34, s33, {8*CSTR}")
    k("s_barrier")
    stamp(k, 3)
    for c in range(2):
        for e in range(8):
            if e % 2 == 0: k(f"ds_read_u16 v{64 + 8*c + e//2}, v{GA + 8*c + e}")
            else: k(f"ds_read_u16_d16_hi v{80 + 4*c + e//2}, v{GA + 8*c + e}")
    for i in range(4): k(f"v_mov_b32 v{28 + i}, 0")
    k("v_add_u32 v25, s34, v3")
    k("v_subrev_u32 v26, 32, v1")
    k(f"v_mul_u32_u24 v26, {CSTR}, v26")
    k("v_add_u32 v26, s33, v26")
    k("v_add_u32 v26, 4096, v26")
    k("v_cmp_gt_u32 vcc, 32, v1")
    k("v_cndmask_b32 v25, v26, v25, vcc")
    k("v_lshlrev_b32 v27, 4, v2")
    k("v_add_u32 v27, s33, v27")
    k("s_waitcnt lgkmcnt(0)")
    for c in range(2):
        for j in range(4):
            k(f"v_and_b32 v{80 + 4*c + j}, 0xffff0000, v{80 + 4*c + j}")
            k(f"v_or_b32 v{64 + 8*c + j}, v{64 + 8*c + j}, v{80 + 4*c + j}")
    k("ds_write_b128 v27, v[64:67]")
    k("ds_write_b128 v27, v[72:75] offset:2048")
    k("v_cmp_gt_u32 vcc, 40, v1")
    k("s_and_saveexec_b64 s[40:41], vcc")
    k("ds_write_b128 v25, v[28:31]")
    k("s_mov_b64 exec, s[40:41]")
    k("s_waitcnt lgkmcnt(0)")
    k("s_barrier")
    k("ds_read_b128 v[68:71], v27 offset:16")
    k("ds_read_b128 v[76:79], v27 offset:2064")
    k("v_lshlrev_b32 v10, 4, v2")
    k("v_add_u32 v10, s34, v10")
    k("s_waitcnt vmcnt(0)")
    k("ds_write_b128 v10, v[104:107] offset:512")
    k("ds_write_b128 v10, v[108:111] offset:2560")
    k("s_waitcnt lgkmcnt(2)")
    for c in range(2):
        Dr = 64 + 8*c
        Ee = 96 + 24*c; Eo = Ee + 8; Do = Ee + 16
        with k.sched():
            for i in range(7): k(f"v_alignbit_b32 v{Ee + i}, v{Dr + i + 1}, v{Dr + i}, 16")
            for i in range(6): k(f"v_alignbit_b32 v{Eo + i}, v{Dr + i + 2}, v{Dr + i + 1}, 16")
            for i in range(6): k(f"v_mov_b32 v{Do + i}, v{Dr + i + 1}")
            src = {1: Ee, 2: Do, 3: Eo, 4: Dr + 2, 5: Ee + 2, 6: Do + 2, 7: Eo + 2}
            for s_ in range(1, 8):
                k(f"ds_write_b128 v27, {vr(src[s_], 4)} offset:{s_*CSTR + 2048*c}")
    stamp(k, 4)
    with k.sched():
        k("v_and_b32 v10, 7, v1")
        k("v_sub_u32 v10, 7, v10")
        k(f"v_mul_u32_u24 v10, {CSTR}, v10")
        k("v_bfe_u32 v11, v1, 3, 1")
        k("v_bfe_u32 v12, v1, 5, 1")
        k("v_bfe_u32 v13, v1, 4, 1")
        k("v_lshl_add_u32 v14, v12, 1, v11")
        k("v_sub_u32 v14, v13, v14")
        k("v_lshlrev_b32 v14, 4, v14")
        k("v_add_u32 v10, v10, v14")
        k(f"s_add_u32 s30, s33, {255*16 - 64*56}")
        k("s_lshl_b32 s31, s28, 8")
        k("s_sub_u32 s30, s30, s31")
        k("v_add_u32 v4, s30, v10")
        k("v_and_b32 v15, 15, v1")
        k("v_sub_u32 v15, v15, v12")
        k("v_lshlrev_b32 v15, 5, v15")
        k("v_lshl_add_u32 v15, v13, 4, v15")
        k("s_add_u32 s32, s34, 512")
        k("s_sub_u32 s32, s32, s31")
        k("v_add_u32 v5, s32, v15")
    ACC = 32
    FA = [64, 128]
    for i in range(32): k(f"v_mov_b32 v{ACC + i}, 0")
    k("s_waitcnt lgkmcnt(0)")
    k("s_barrier")
    stamp(k, 5)
    def rd(fs, p1):
        k(f"ds_read_b128 {vr(fs + 4*p1, 4)}, v4 offset:{512*(7 - p1)}")
        k(f"ds_read_b128 {vr(fs + 32 + 4*p1, 4)}, v5 offset:{512*p1}")
    def adv():
        k("v_subrev_u32 v4, 64, v4")
        k("v_subrev_u32 v5, 64, v5")
    def mm(fs, nxt):
        n = 0
        for p1 in range(8):
            for be in range(8 - p1):
                c = ACC + 4*(p1 + be)
                k(f"v_mfma_f32_16x16x32_bf16 {vr(c,4)}, {vr(fs + 4*p1,4)}, {vr(fs + 32 + 4*be,4)}, {vr(c,4)}")
                n += 1
                if nxt is not None and n % 4 == 0 and n // 4 <= 8: rd(nxt, n // 4 - 1)
        if nxt is not None: adv()
    for p1 in range(8): rd(FA[0], p1)
    adv()
    k("s_mov_b32 s35, 0")
    k.label("L_cv_loop")
    if "noconv" in EXP: k("s_branch L_cv_done")
    k("s_waitcnt lgkmcnt(0)")
    mm(FA[0], FA[1])
    k("s_waitcnt lgkmcnt(0)")
    mm(FA[1], FA[0])
    k("s_add_u32 s35, s35, 1")
    k("s_cmp_lt_u32 s35, 2")
    k("s_cbranch_scc1 L_cv_loop")
    k.label("L_cv_done")
    stamp(k, 6)
    k("s_setprio 3")
    k("s_waitcnt lgkmcnt(0)")
    k("s_barrier")
    k("s_lshl_b32 s30, s14, 12")
    k("v_add_u32 v6, s30, v3")
    k("s_xor_b32 s31, s14, 1")
    k("s_lshl_b32 s31, s31, 12")
    k("v_add_u32 v11, s31, v3")
    k("s_cmp_eq_u32 s28, 0")
    k("s_cbranch_scc0 L_cv_w1")
    for q in range(4): k(f"ds_write_b128 v6, {vr(ACC + 16 + 4*q, 4)} offset:{1024*q}")
    k("s_branch L_cv_w2")
    k.label("L_cv_w1")
    for q in range(4): k(f"ds_write_b128 v6, {vr(ACC + 4*q, 4)} offset:{1024*q}")
    for r in range(16): k(f"v_mov_b32 v{ACC + r}, v{ACC + 16 + r}")
    k.label("L_cv_w2")
    k("v_and_b32 v8, 15, v1")
    k("v_lshlrev_b32 v8, 5, v8")
    k("v_lshrrev_b32 v9, 4, v1")
    k("v_lshl_add_u32 v8, v9, 3, v8")
    k("s_lshl_b32 s30, s28, 11")
    k("s_add_u32 s30, s30, s34")
    k("s_add_u32 s30, s30, 512")
    k("v_add_u32 v9, s30, v8")
    for q in range(4): k(f"ds_read_b64 {vr(80 + 2*q, 2)}, v9 offset:{512*q}")
    k("v_lshlrev_b32 v7, 16, v7")
    k("s_waitcnt lgkmcnt(0)")
    k("s_barrier")
    stamp(k, 7)
    for q in range(4): k(f"ds_read_b128 {vr(64 + 4*q, 4)}, v11 offset:{1024*q}")
    k("s_waitcnt lgkmcnt(0)")
    with k.sched():
        for r in range(16): k(f"v_add_f32 v{ACC + r}, v{ACC + r}, v{64 + r}")
        for q in range(4):
            for hh in range(2):
                src = 80 + 2*q + hh
                t = 96 + 4*q + 2*hh
                c0 = ACC + 4*q + 2*hh
                k(f"v_lshlrev_b32 v{t}, 16, v{src}")
                k(f"v_and_b32 v{t+1}, 0xffff0000, v{src}")
                if "emu" not in EXP:
                    k(f"v_fmac_f32 v{c0}, v{t}, v7")
                    k(f"v_fmac_f32 v{c0+1}, v{t+1}, v7")
                else:
                    k(f"v_mul_f32 v{t}, v{t}, v7")
                    k(f"v_mul_f32 v{t+1}, v{t+1}, v7")
                    k(f"v_cvt_pk_bf16_f32 v{src}, v{t}, v{t+1}")
                    k(f"v_cvt_pk_bf16_f32 v{120 + 2*q + hh}, v{c0}, v{c0+1}")
                    k(f"v_lshlrev_b32 v{t}, 16, v{src}")
                    k(f"v_and_b32 v{t+1}, 0xffff0000, v{src}")
                    k(f"v_lshlrev_b32 v{c0}, 16, v{120 + 2*q + hh}")
                    k(f"v_and_b32 v{c0+1}, 0xffff0000, v{120 + 2*q + hh}")
                    k(f"v_add_f32 v{c0}, v{c0}, v{t}")
                    k(f"v_add_f32 v{c0+1}, v{c0+1}, v{t+1}")
        for j in range(8): k(f"v_cvt_pk_bf16_f32 v{112 + j}, v{ACC + 2*j}, v{ACC + 2*j + 1}")
    k("s_lshl_b32 s30, s14, 11")
    k("s_add_u32 s30, s30, 16384")
    k("v_add_u32 v9, s30, v8")
    for q in range(4): k(f"ds_write_b64 v9, {vr(112 + 2*q, 2)} offset:{512*q}")
    k("v_add_u32 v9, s30, v3")
    k("s_waitcnt lgkmcnt(0)")
    k("ds_read_b128 v[72:75], v9")
    k("ds_read_b128 v[76:79], v9 offset:1024")
    k("s_lshl_b32 s30, s29, 12")
    k("s_lshl_b32 s31, s28, 11")
    k("s_add_u32 s30, s30, s31")
    k("s_waitcnt lgkmcnt(0)")
    k("buffer_store_dwordx4 v[72:75], v3, s[24:27], s30 offen sc1")
    k("buffer_store_dwordx4 v[76:79], v3, s[24:27], s30 offen offset:1024 sc1")
    stamp(k, 9)
    k("s_lshl_b32 s30, s47, 4")
    signal(k, 36, 30, 48, 90, FL_Z)
    stamp(k, 10)
    stamp_flush(k, 0, 8)
    k("s_endpgm")

def kd(name, vgpr, sgpr=102):
    return f""".amdhsa_kernel {name}
  .amdhsa_next_free_vgpr {vgpr}
  .amdhsa_next_free_sgpr {sgpr}
  .amdhsa_accum_offset {vgpr}
  .amdhsa_group_segment_fixed_size 0
  .amdhsa_kernarg_size 120
  .amdhsa_user_sgpr_count 2
  .amdhsa_user_sgpr_kernarg_segment_ptr 1
  .amdhsa_system_sgpr_workgroup_id_x 1
.end_amdhsa_kernel
"""

def header(launches):
    h = open("cdna_kernels/" + NAME + ".s.ref").read().split("; Override")[0]
    for (kn, g, b, lds) in launches:
        if len(launches) == 1 and PLAIN: h += f"; @launch grid=({g},1,1) block=({b},1,1) lds={lds}\n"
        else: h += f"; @launch kernel={kn} grid=({g},1,1) block=({b},1,1) lds={lds}\n"
    h += """; One persistent launch, 512 co-resident workgroups (2 per CU), roles chosen by workgroup id:
"""
    h += '.amdgcn_target "amdgcn-amd-amdhsa--gfx950"\n.text\n'
    return h

def kern_text(name, k):
    return f".globl {name}\n.p2align 8\n.type {name},@function\n{name}:\n" + k.text()

def pretouch(k):
    k("s_load_dwordx2 s[20:21], s[0:1], 112")
    k("s_load_dwordx2 s[22:23], s[0:1], 96")
    k("v_and_b32 v250, 63, v0")
    k("v_lshlrev_b32 v251, 19, v250")
    k("v_lshlrev_b32 v252, 15, v250")
    k("s_waitcnt lgkmcnt(0)")
    k("s_mov_b32 s16, s20\n s_mov_b32 s17, s21\n s_mov_b32 s18, 0x1200000\n s_mov_b32 s19, 0x00020000")
    k("buffer_load_dword v253, v251, s[16:19], 0 offen")
    k("s_mov_b32 s16, s22\n s_mov_b32 s17, s23\n s_mov_b32 s18, 1835008\n s_mov_b32 s19, 0x00020000")
    k("buffer_load_dword v254, v252, s[16:19], 0 offen")

def main(path):
    K1 = NAME + "_kernel"
    k1 = Kern()
    if "touch" in EXP:
        k1("s_cmp_lt_u32 s2, 224")
        k1("s_cbranch_scc1 L_notouch")
        k1("s_cmp_ge_u32 s2, 256")
        k1("s_cbranch_scc1 L_notouch")
        pretouch(k1)
        k1("s_waitcnt vmcnt(0)")
        k1.label("L_notouch")
    k1("s_load_dword s100, s[0:1], 0")
    k1("s_load_dword s101, s[0:1], 64")
    k1("s_cmp_lt_u32 s2, 224")
    k1("s_cbranch_scc0 L_notf")
    k1("s_mov_b32 s3, s2")
    role_g1(k1)
    k1.label("L_notf")
    k1("s_cmp_lt_u32 s2, 256")
    k1("s_cbranch_scc1 L_lna")
    k1("s_cmp_lt_u32 s2, 480")
    k1("s_cbranch_scc0 L_nots")
    k1("s_sub_u32 s3, s2, 256")
    if "noS" in EXP: k1("s_endpgm")
    role_s(k1)
    k1.label("L_nots")
    k1("s_cmp_lt_u32 s2, 512")
    k1("s_cbranch_scc1 L_lnb")
    k1("s_endpgm")
    k1.label("L_lna")
    k1("s_sub_u32 s3, s2, 224")
    k1("s_branch L_ln")
    k1.label("L_lnb")
    k1("s_sub_u32 s3, s2, 448")
    k1.label("L_ln")
    role_ln(k1)
    launches = [(K1, 512, 256, 81920)]
    txt = header(launches)
    txt += kern_text(K1, k1)
    txt += '.section .rodata,"a"\n.p2align 6\n' + kd(K1, 256)
    open(path, "w").write(txt)

if __name__ == "__main__":
    for a in list(sys.argv):
        if a.startswith("--exp="):
            EXP = a[6:].split(","); sys.argv.remove(a)
    for a in list(sys.argv):
        if a.startswith("--prio="):
            PRIO = [int(x) for x in a[7:].split(",")]; sys.argv.remove(a)
    for a in list(sys.argv):
        if a.startswith("--ne="):
            NEPRE = int(a[5:]); sys.argv.remove(a)
    if "--plain" in sys.argv:
        PLAIN = True; sys.argv.remove("--plain")
    if "--stamp" in sys.argv:
        STAMP = True; sys.argv.remove("--stamp")
    main(sys.argv[1] if len(sys.argv) > 1 else "cdna_kernels/" + NAME + ".s")
```
